```python
import torch

def _softmax(x, axis=-1):
    return torch.softmax(x, dim=axis)
def _gelu(x):
    return torch.nn.functional.gelu(x, approximate="tanh")
def _silu(x):
    return torch.nn.functional.silu(x)
def _sigmoid(x):
    return torch.sigmoid(x)
def _layernorm(x, axis=-1, eps=1e-5):
    m = x.mean(dim=axis, keepdim=True)
    v = x.var(dim=axis, keepdim=True, unbiased=False)
    return (x - m) / torch.sqrt(v + eps)
def _scatter_add(tgt, idx, src, axis=0):
    return tgt.clone().index_add_(axis, idx, src)
def _segment_sum(src, seg, n):
    out = torch.zeros((n,) + src.shape[1:], dtype=src.dtype)
    return out.index_add_(0, seg, src)
def _pad(x, pw):
    flat = tuple(v for pair in reversed(pw) for v in pair)
    return torch.nn.functional.pad(x, flat)

kernel_name = 'concat_heads__mha_block_cached__gqa_block_cached__near_ridge'

def setup_inputs():

    _w = (lambda a: (lambda t: t.to(torch.bfloat16) if t.is_floating_point() else t)(torch.as_tensor(a)))
    def _A_setup():
        B, Sq, D = 8, 192, 640
        H, Sk, Dh = 32, 512, 128
        return {
            "x": _w((lambda *s: torch.randn(*s, dtype=torch.bfloat16) * 0.8)(B, Sq, D)),
            "k_cache": _w((lambda *s: torch.randn(*s, dtype=torch.bfloat16) * 0.8)(B, H, Sk, Dh)),
            "v_cache": _w((lambda *s: torch.randn(*s, dtype=torch.bfloat16) * 0.05)(B, H, Sk, Dh)),
            "wq": _w((lambda *s: torch.randn(*s, dtype=torch.bfloat16) * 0.8)(D, H * Dh) * (D ** -0.5)),
            "wo": _w((lambda *s: torch.randn(*s, dtype=torch.bfloat16) * 0.05)(H * Dh, D) * ((H * Dh) ** -0.5)),
        }
    _A_in = _A_setup()

    def _B_setup():
        B, Sq, D = 8, 192, 640
        Hq, Hkv, Sk, Dh = 32, 32, 512, 128
        assert Hq % Hkv == 0, (Hq, Hkv)
        return {
            "x": _w((lambda *s: torch.randn(*s, dtype=torch.bfloat16) * 0.8)(B, Sq, D)),
            "k_cache": _w((lambda *s: torch.randn(*s, dtype=torch.bfloat16) * 0.8)(B, Hkv, Sk, Dh)),
            "v_cache": _w((lambda *s: torch.randn(*s, dtype=torch.bfloat16) * 0.05)(B, Hkv, Sk, Dh)),
            "wq": _w((lambda *s: torch.randn(*s, dtype=torch.bfloat16) * 0.8)(D, Hq * Dh) * (D ** -0.5)),
            "wo": _w((lambda *s: torch.randn(*s, dtype=torch.bfloat16) * 0.05)(Hq * Dh, D) * ((Hq * Dh) ** -0.5)),
        }
    _B_in = _B_setup()

    return {
        "A_x": _A_in["x"],
        "A_k_cache": _A_in["k_cache"],
        "A_v_cache": _A_in["v_cache"],
        "A_wq": _A_in["wq"],
        "A_wo": _A_in["wo"],
        "B_x": _B_in["x"],
        "B_k_cache": _B_in["k_cache"],
        "B_v_cache": _B_in["v_cache"],
        "B_wq": _B_in["wq"],
        "B_wo": _B_in["wo"],
    }

def reference(A_x, A_k_cache, A_v_cache, A_wq, A_wo, B_x, B_k_cache, B_v_cache, B_wq, B_wo):
    def _A_ref(x, k_cache, v_cache, wq, wo):
        B, Sq, D = x.shape
        H, Dh = 32, 128
        q = (lambda x, *d: x.permute(*d))((x @ wq).reshape(B, Sq, H, Dh), 0, 2, 1, 3)
        scores = torch.einsum("bhqd,bhkd->bhqk", q, k_cache) * (Dh ** -0.5)
        p = _softmax(scores, axis=-1)
        o = torch.einsum("bhqk,bhkd->bhqd", p, v_cache)
        return (lambda x, *d: x.permute(*d))(o, 0, 2, 1, 3).reshape(B, Sq, H * Dh) @ wo

    def _B_ref(x, k_cache, v_cache, wq, wo):
        B, Sq, D = x.shape
        Hq, Dh = 32, 128
        Hkv = k_cache.shape[1]
        rep = Hq // Hkv
        q = (lambda x, *d: x.permute(*d))((x @ wq).reshape(B, Sq, Hq, Dh), 0, 2, 1, 3)
        k = (lambda x, n, axis: torch.repeat_interleave(x, n, dim=axis))(k_cache, rep, axis=1)
        v = (lambda x, n, axis: torch.repeat_interleave(x, n, dim=axis))(v_cache, rep, axis=1)
        scores = torch.einsum("bhqd,bhkd->bhqk", q, k) * (Dh ** -0.5)
        p = _softmax(scores, axis=-1)
        o = torch.einsum("bhqk,bhkd->bhqd", p, v)
        return (lambda x, *d: x.permute(*d))(o, 0, 2, 1, 3).reshape(B, Sq, Hq * Dh) @ wo

    a = _A_ref(A_x, A_k_cache, A_v_cache, A_wq, A_wo)
    b = _B_ref(B_x, B_k_cache, B_v_cache, B_wq, B_wo)
    return torch.concatenate([a, b], axis=-1)
```

```python
import re

class I:
    __slots__ = ("txt", "rd", "wr", "kind", "cdst", "meta")
    def __init__(self, txt, rd=(), wr=(), kind="other", cdst=None, meta=None):
        self.txt = txt
        self.rd = tuple(rd)
        self.wr = tuple(wr)
        self.kind = kind
        self.cdst = cdst
        self.meta = meta
    def __repr__(self): return self.txt

def R(base, n): return list(range(base, base + n))
def vr(base, n):
    return f"v{base}" if n == 1 else f"v[{base}:{base+n-1}]"
def sr(base, n):
    return f"s{base}" if n == 1 else f"s[{base}:{base+n-1}]"

def mfma16(d, a, b, c):
    ctxt = "0" if c is None else vr(c, 4)
    crd = [] if c is None else R(c, 4)
    return I(f"v_mfma_f32_16x16x32_bf16 {vr(d,4)}, {vr(a,4)}, {vr(b,4)}, {ctxt}",
             rd=R(a,4)+R(b,4)+crd, wr=R(d,4), kind="mfma", cdst=(R(a,4), R(b,4), crd, R(d,4)))

def valu(op, dst, *srcs, kind="valu", extra_rd=(), extra_wr=()):
    ts = [f"v{s}" if isinstance(s, int) else s for s in srcs]
    return I(f"{op} v{dst}, " + ", ".join(ts), rd=[s for s in srcs if isinstance(s, int)]+list(extra_rd), wr=[dst]+list(extra_wr), kind=kind)

def vexp(dst, src): return valu("v_exp_f32", dst, src, kind="trans")
def vrcp(dst, src): return valu("v_rcp_f32", dst, src, kind="trans")
def cvtpk(dst, a, b): return valu("v_cvt_pk_bf16_f32", dst, a, b)
def perm16(a, b): return I(f"v_permlane16_swap_b32 v{a}, v{b}", rd=[a,b], wr=[a,b], kind="perm")
def perm32(a, b): return I(f"v_permlane32_swap_b32 v{a}, v{b}", rd=[a,b], wr=[a,b], kind="perm")
def pkmul(dst, a, b_txt):
    return I(f"v_pk_mul_f32 {vr(dst,2)}, {vr(a,2)}, {b_txt}", rd=R(a,2), wr=R(dst,2), kind="valu")

def ds128(dst, addr, off):
    assert 0 <= off < 65536, off
    return I(f"ds_read_b128 {vr(dst,4)}, v{addr} offset:{off}", rd=[addr], wr=R(dst,4), kind="dsr")
def dstr(dst, addr, off):
    assert 0 <= off < 65536, off
    return I(f"ds_read_b64_tr_b16 {vr(dst,2)}, v{addr} offset:{off}", rd=[addr], wr=R(dst,2), kind="dsr")
def dsr32(dst, addr, off=0):
    return I(f"ds_read_b32 v{dst}, v{addr} offset:{off}", rd=[addr], wr=[dst], kind="dsr")
def dsw128(addr, src, off):
    assert 0 <= off < 65536, off
    return I(f"ds_write_b128 v{addr}, {vr(src,4)} offset:{off}", rd=[addr]+R(src,4), wr=[], kind="dsw")
def dsw32(addr, src, off=0):
    return I(f"ds_write_b32 v{addr}, v{src} offset:{off}", rd=[addr, src], wr=[], kind="dsw")

def salu(txt, wr_m0=False): return I(txt, kind="salu", wr=(["m0"] if wr_m0 else []))
def m0set(sreg, imm):
    if imm == 0: return I(f"s_mov_b32 m0, s{sreg}", kind="salu", wr=["m0"])
    return I(f"s_add_u32 m0, s{sreg}, {imm}", kind="salu", wr=["m0"])
def dma(voff, srd, soff, flags=""):
    fl = (" " + flags) if flags else ""
    return I(f"buffer_load_dwordx4 v{voff}, {sr(srd,4)}, s{soff} offen{fl} lds", rd=[voff, "m0"], kind="dma")
def bload(dst, n, voff, srd, soff, off=0, flags=""):
    nm = {1:"dword",2:"dwordx2",4:"dwordx4"}[n]
    fl = (" " + flags) if flags else ""
    so = f"s{soff}" if isinstance(soff, int) else soff
    o = f" offset:{off}" if off else ""
    return I(f"buffer_load_{nm} {vr(dst,n)}, v{voff}, {sr(srd,4)}, {so} offen{o}{fl}", rd=[voff], wr=R(dst,n), kind="vload")
def bstore(src, n, voff, srd, soff, off=0, flags=""):
    nm = {1:"dword",2:"dwordx2",4:"dwordx4"}[n]
    fl = (" " + flags) if flags else ""
    so = f"s{soff}" if isinstance(soff, int) else soff
    o = f" offset:{off}" if off else ""
    return I(f"buffer_store_{nm} {vr(src,n)}, v{voff}, {sr(srd,4)}, {so} offen{o}{fl}", rd=[voff]+R(src,n), kind="vstore", meta=R(src,n))
def waitcnt(vm=None, lgkm=None):
    p = []
    if vm is not None: p.append(f"vmcnt({vm})")
    if lgkm is not None: p.append(f"lgkmcnt({lgkm})")
    return I("s_waitcnt " + " ".join(p), kind="wait", meta=(vm, lgkm))
def barrier(): return I("s_barrier", kind="barrier")
def nop(n): return I(f"s_nop {n}", kind="nop", meta=n)
def label(n): return I(f"{n}:", kind="label")
def raw(t, kind="other", rd=(), wr=()): return I(t, kind=kind, rd=rd, wr=wr)

class State:
    def __init__(self):
        self.pos = 0
        self.lds = []
        self.valu_w = {}; self.trans_w = {}; self.mfma_w = {}; self.mfma_wrange = {}
        self.mfma_c = {}; self.store_rd = {}; self.m0_w = -100
    def copy(self):
        s = State(); s.pos = self.pos; s.lds = [list(x) for x in self.lds]
        s.valu_w = dict(self.valu_w); s.trans_w = dict(self.trans_w); s.mfma_w = dict(self.mfma_w)
        s.mfma_wrange = dict(self.mfma_wrange); s.mfma_c = dict(self.mfma_c); s.store_rd = dict(self.store_rd); s.m0_w = self.m0_w
        return s

def need_wait_lgkm(st, ins):
    regs = set(r for r in list(ins.rd) + list(ins.wr) if isinstance(r, int))
    n = None
    for i, d in enumerate(st.lds):
        if regs & set(d):
            after = len(st.lds) - 1 - i
            n = after if n is None else min(n, after)
    return n

def need_nops(st, ins):
    need = 0
    def req(q, n):
        nonlocal need
        if q is None: return
        have = st.pos - q - 1
        if have < n: need = max(need, n - have)
    k = ins.kind
    rd = [r for r in ins.rd if isinstance(r, int)]
    wr = [r for r in ins.wr if isinstance(r, int)]
    if k == "mfma":
        A, B, C, D = ins.cdst
        for r in A + B + C:
            req(st.valu_w.get(r), 2)
        for r in A + B:
            req(st.mfma_w.get(r), 8)
        for r in C:
            if r in st.mfma_w and st.mfma_wrange.get(r) != tuple(C):
                req(st.mfma_w.get(r), 6)
        for r in D:
            if r in st.mfma_w and (tuple(C) != tuple(D)):
                req(st.mfma_w.get(r), 6)
    elif k in ("valu", "trans", "perm"):
        for r in rd + wr: req(st.mfma_w.get(r), 8)
        for r in wr:
            req(st.mfma_c.get(r), 3)
            req(st.store_rd.get(r), 2)
        if k != "trans":
            for r in rd: req(st.trans_w.get(r), 1)
        if k == "perm":
            for r in rd: req(st.valu_w.get(r), 2)
    elif k in ("dsr", "vload"):
        for r in rd + wr: req(st.mfma_w.get(r), 8)
        for r in wr: req(st.store_rd.get(r), 1)
    elif k in ("dsw", "vstore", "dma"):
        for r in rd: req(st.mfma_w.get(r), 8)
        if k == "dma" and "m0" in ins.rd: req(st.m0_w, 1)
    return need

def advance(st, ins):
    k = ins.kind
    p = st.pos
    if k == "nop":
        st.pos += ins.meta + 1; return
    if k == "label": return
    if k == "wait":
        vm, lg = ins.meta
        if lg is not None:
            while len(st.lds) > lg: st.lds.pop(0)
    elif k == "mfma":
        A, B, C, D = ins.cdst
        for r in D:
            st.mfma_w[r] = p; st.mfma_wrange[r] = tuple(D); st.valu_w.pop(r, None); st.trans_w.pop(r, None)
        for r in C: st.mfma_c[r] = p
    elif k in ("valu", "trans", "perm"):
        for r in ins.wr:
            if isinstance(r, int):
                st.valu_w[r] = p; st.mfma_w.pop(r, None)
                if k == "trans": st.trans_w[r] = p
                else: st.trans_w.pop(r, None)
    elif k == "dsr":
        st.lds.append([r for r in ins.wr])
        for r in ins.wr: st.mfma_w.pop(r, None); st.valu_w.pop(r, None); st.trans_w.pop(r, None)
    elif k == "dsw":
        st.lds.append([])
    elif k == "vstore":
        for r in ins.meta: st.store_rd[r] = p
    elif k == "vload":
        for r in ins.wr: st.mfma_w.pop(r, None); st.valu_w.pop(r, None); st.trans_w.pop(r, None)
    if "m0" in ins.wr: st.m0_w = p
    st.pos += 1

def resolve(seq, st=None, insert=True, where=""):
    st = st or State()
    out = []
    for ins in seq:
        if ins.kind not in ("label", "nop", "wait", "barrier"):
            n = need_wait_lgkm(st, ins)
            if n is not None:
                if not insert: raise RuntimeError(f"{where}: missing lgkmcnt({n}) before {ins.txt}")
                w = waitcnt(lgkm=min(n, 15)); out.append(w); advance(st, w)
            k = need_nops(st, ins)
            if k > 0:
                if not insert: raise RuntimeError(f"{where}: missing {k} wait states before {ins.txt}")
                while k > 0:
                    c = min(k, 16); w = nop(c - 1); out.append(w); advance(st, w); k -= c
        out.append(ins); advance(st, ins)
    return out, st

def resolve_loop(pro, body, st=None):
    pro2, st1 = resolve(pro, st)
    b1, st2 = resolve(body, st1.copy())
    b2, st3 = resolve(body, st2.copy())
    cur = b2
    for _ in range(4):
        try:
            _, sA = resolve(cur, st1.copy(), insert=False, where="loop-first")
            _, sB = resolve(cur, sA.copy(), insert=False, where="loop-steady")
            return pro2, cur, sB
        except RuntimeError as e:
            cur, sA = resolve(cur, st1.copy())
            cur, sB = resolve(cur, sA.copy())
    raise RuntimeError("loop resolve did not converge")

def text(seq):
    o = []
    for i in seq:
        o.append(i.txt if i.kind == "label" else "  " + i.txt)
    return "\n".join(o) + "\n"

def interleave(mf, fillers, start=0, end=None):
    end = len(mf) if end is None else end
    slots = [[] for _ in mf]
    n = len(fillers); m = end - start
    for i, f in enumerate(fillers):
        s = start + (i * m) // n
        slots[s].append(f)
    return slots
```

```python
from asmlib import *

SLOT = 33792
VPART = 16896
HEADK = 8448
ACC = 16; QF = 112
SX, SY, SZ = 160, 172, 184
PB = 196
KF = 214; VF = 230
QA = [160, 204]; QB = [192, 236]
V_OFFA, V_OFFB = 1, 2
A_K = [3, 4]; A_V = [5, 6]; A_W = [7, 8]; A_X = [9, 10]
LSUM = [7, 8, 9]
V_L16 = 11; VT = [12, 13, 14, 15]
S_W, S_HS, S_RG, S_BR, S_B, S_HP = 4, 5, 6, 7, 8, 9
SRDA, SRDB, SRDK, SRDV, SRDO = 12, 16, 20, 24, 28
S_O = [32, 33, 34, 35]; S_STA, S_STB = 36, 37; S_L = [38, 39, 40, 41]; S_CNT = 42
S_T = [43, 44, 45, 46, 47, 48, 49]
S_SC = 50
S_PTR = 52

def acc(T, qt): return ACC + (T * 3 + qt) * 4
def qf(qt, c): return QF + (qt * 4 + c) * 4
def slot_addr(regs, slot, off):
    return regs[slot // 2], (slot % 2) * SLOT + off

def dma_batch(slots, flags=("", "", "", "")):
    out = []
    for j in range(4):
        voff = V_OFFA if j < 2 else V_OFFB
        srd = SRDA if j < 2 else SRDB
        st = S_STA if j < 2 else S_STB
        out.append([m0set(S_L[j], slots[j] * SLOT),
                    salu(f"s_nop 0") if False else None,
                    dma(voff, srd, S_O[j], flags[j]),
                    salu(f"s_add_u32 s{S_O[j]}, s{S_O[j]}, s{st}")])
        out[-1] = [x for x in out[-1] if x is not None]
    return out

def prologue(name, kvflags):
    P = []
    A = lambda t, **k: P.append(raw(t, **k))
    A(f"s_cmp_ge_u32 s2, 256"); A(f"s_cbranch_scc1 {name}_end")
    A(f"s_and_b32 s3, s2, 7")
    A(f"s_lshr_b32 s{S_T[0]}, s2, 3")
    A(f"s_lshr_b32 s{S_BR}, s3, 2")
    A(f"s_and_b32 s3, s3, 3"); A(f"s_lshl_b32 s3, s3, 2")
    A(f"s_and_b32 s{S_HP}, s{S_T[0]}, 3"); A(f"s_add_u32 s{S_HP}, s{S_HP}, s3")
    A(f"s_lshr_b32 s{S_B}, s{S_T[0]}, 2")
    A(f"s_mul_i32 s3, s{S_BR}, 40")
    A(f"s_load_dwordx4 s[{S_PTR}:{S_PTR+3}], s[0:1], s3")
    A(f"s_add_u32 s{S_T[1]}, s3, 16")
    A(f"s_load_dwordx4 s[{S_PTR+4}:{S_PTR+7}], s[0:1], s{S_T[1]}")
    A(f"s_load_dwordx2 s[{S_PTR+8}:{S_PTR+9}], s[0:1], 96")
    P.append(valu("v_lshrrev_b32", VT[0], "6", 0))
    P.append(valu("v_and_b32", 0, "63", 0))
    A("s_nop 0")
    A(f"v_readfirstlane_b32 s{S_W}, v{VT[0]}")
    A("s_nop 3")
    A(f"s_lshr_b32 s{S_HS}, s{S_W}, 2"); A(f"s_and_b32 s{S_RG}, s{S_W}, 3")
    g, m, r, c = VT
    P.append(valu("v_lshrrev_b32", g, "4", 0))
    P.append(valu("v_and_b32", m, "15", 0))
    P.append(valu("v_bfe_u32", r, 0, "2", "2"))
    P.append(valu("v_and_b32", c, "3", 0))
    P.append(valu("v_lshlrev_b32", V_L16, "4", 0))
    T0, T1 = 16, 17
    P.append(valu("v_lshrrev_b32", T0, "5", 0)); P.append(valu("v_lshlrev_b32", T0, "15", T0))
    P.append(valu("v_and_b32", T1, "31", 0)); P.append(valu("v_lshlrev_b32", T1, "4", T1))
    P.append(valu("v_add_u32", V_OFFA, T0, T1))
    P.append(valu("v_lshrrev_b32", T0, "2", 0))
    P.append(valu("v_lshrrev_b32", T1, "5", 0))
    P.append(valu("v_mul_u32_u24", T1, "3", T1))
    P.append(valu("v_xor_b32", T1, c, T1)); P.append(valu("v_lshlrev_b32", T1, "4", T1))
    P.append(valu("v_mul_u32_u24", T0, "1280", T0))
    P.append(valu("v_add_u32", V_OFFB, T0, T1))
    P.append(valu("v_lshl_add_u32", T0, g, "2", r))
    P.append(valu("v_mul_u32_u24", T0, "1056", T0))
    P.append(valu("v_lshl_add_u32", T0, c, "3", T0))
    A(f"s_lshl_b32 s3, s{S_HS}, 8")
    P.append(valu("v_add_u32", A_W[0], "s3", T0))
    P.append(valu("v_add_u32", A_W[1], str(2*SLOT), A_W[0]))
    P.append(valu("v_lshrrev_b32", T0, "3", m)); P.append(valu("v_mul_u32_u24", T0, "3", T0))
    P.append(valu("v_xor_b32", T0, g, T0)); P.append(valu("v_lshlrev_b32", T0, "4", T0))
    P.append(valu("v_lshl_add_u32", T0, m, "6", T0))
    A(f"s_mul_i32 s3, s{S_RG}, 3072"); A(f"s_add_u32 s3, s3, {VPART}")
    P.append(valu("v_add_u32", A_X[0], "s3", T0))
    P.append(valu("v_add_u32", A_X[1], str(2*SLOT), A_X[0]))
    P.append(valu("v_and_b32", T0, "7", m))
    P.append(valu("v_lshrrev_b32", T1, "1", T0)); P.append(valu("v_lshlrev_b32", T1, "2", T1))
    P.append(valu("v_and_b32", A_K[1], "1", T0)); P.append(valu("v_add_u32", T1, T1, A_K[1]))
    P.append(valu("v_lshlrev_b32", T1, "4", T1))
    P.append(valu("v_lshl_add_u32", T1, T0, "10", T1))
    P.append(valu("v_lshrrev_b32", T0, "3", m)); P.append(valu("v_lshl_add_u32", T1, T0, "8", T1))
    P.append(valu("v_and_b32", T0, "1", g)); P.append(valu("v_lshlrev_b32", T0, "1", T0))
    P.append(valu("v_lshrrev_b32", A_K[1], "1", g)); P.append(valu("v_or_b32", T0, T0, A_K[1]))
    P.append(valu("v_lshl_add_u32", T1, T0, "4", T1))
    A(f"s_mul_i32 s3, s{S_HS}, {HEADK}")
    P.append(valu("v_add_u32", A_K[0], "s3", T1))
    P.append(valu("v_add_u32", A_K[1], str(2*SLOT), A_K[0]))
    P.append(valu("v_and_b32", T0, "1", g)); P.append(valu("v_lshl_add_u32", T0, T0, "2", r))
    P.append(valu("v_mul_u32_u24", T0, "1056", T0))
    P.append(valu("v_lshrrev_b32", T1, "1", g)); P.append(valu("v_lshl_add_u32", T0, T1, "8", T0))
    P.append(valu("v_lshl_add_u32", T0, c, "3", T0))
    A(f"s_add_u32 s3, s3, {VPART}")
    P.append(valu("v_add_u32", A_V[0], "s3", T0))
    P.append(valu("v_add_u32", A_V[1], str(2*SLOT), A_V[0]))
    t0, t1 = S_T[0], S_T[1]
    A(f"s_lshl_b32 s{t0}, s{S_HS}, 3"); A(f"s_add_u32 s{t0}, s{t0}, s{S_RG}")
    A(f"s_lshl_b32 s{S_O[0]}, s{t0}, 13"); A(f"s_add_u32 s{S_O[1]}, s{S_O[0]}, {16*8192}")
    A(f"s_mul_i32 s{S_O[2]}, s{S_W}, {16*1280}"); A(f"s_add_u32 s{S_O[3]}, s{S_O[2]}, {8*16*1280}")
    A(f"s_mov_b32 s{S_STA}, {32*8192}"); A(f"s_mov_b32 s{S_STB}, 64")
    A(f"s_mul_i32 s{S_L[0]}, s{S_W}, 1056"); A(f"s_add_u32 s{S_L[1]}, s{S_L[0]}, {8*1056}")
    A(f"s_lshl_b32 s{S_L[2]}, s{S_W}, 10"); A(f"s_add_u32 s{S_L[2]}, s{S_L[2]}, {VPART}"); A(f"s_add_u32 s{S_L[3]}, s{S_L[2]}, {8*1024}")
    A(f"s_mov_b32 s{S_SC}, 0x3e0293ee"); A(f"s_mov_b32 s{S_SC+1}, 0x3e0293ee")
    A("s_waitcnt lgkmcnt(0)")
    px, pk, pv, pw, pws = S_PTR, S_PTR+2, S_PTR+4, S_PTR+6, S_PTR+8
    def srd(dst, ptr, off_lo_expr, nrec):
        for t in off_lo_expr: A(t)
        A(f"s_add_u32 s{dst}, s{ptr}, s{t0}"); A(f"s_addc_u32 s{dst+1}, s{ptr+1}, 0")
        A(f"s_and_b32 s{dst+1}, s{dst+1}, 0xffff")
        A(f"s_mov_b32 s{dst+2}, {nrec}"); A(f"s_mov_b32 s{dst+3}, 0x20000")
    srd(SRDA, pw, [f"s_lshl_b32 s{t0}, s{S_HP}, 9"], 640*8192 - 15*512)
    srd(SRDB, px, [f"s_mul_i32 s{t0}, s{S_B}, 245760"], 245760)
    A(f"s_lshl_b32 s{t1}, s{S_B}, 5"); A(f"s_lshl_b32 s{t0}, s{S_HP}, 1"); A(f"s_add_u32 s{t1}, s{t1}, s{t0}"); A(f"s_add_u32 s{t1}, s{t1}, s{S_HS}")
    srd(SRDK, pk, [f"s_lshl_b32 s{t0}, s{t1}, 17"], 131072)
    srd(SRDV, pv, [f"s_lshl_b32 s{t0}, s{t1}, 17"], 131072)
    A(f"s_mul_i32 s{t1}, s{S_BR}, {12*1048576}")
    A(f"s_lshl_b32 s{S_T[2]}, s{S_HP}, 1"); A(f"s_add_u32 s{S_T[2]}, s{S_T[2]}, s{S_HS}"); A(f"s_lshl_b32 s{S_T[2]}, s{S_T[2]}, 15")
    srd(SRDO, pws, [f"s_add_u32 s{t0}, s{t1}, s{S_T[2]}"], 12*1048576 - 31*32768)
    for st in range(4):
        for grp in dma_batch([st]*4):
            P.extend(grp)
    for i in range(96): P.append(valu("v_mov_b32", ACC + i, "0"))
    P.append(waitcnt(vm=12)); P.append(barrier())
    P.extend(q_frag_reads(0, 0))
    return P

def q_frag_reads(slot, st):
    out = []
    for qt in range(3):
        a, o = slot_addr(A_X, slot, qt * 1024)
        out.append(ds128(QB[st] + 4*qt, a, o))
    for T in range(8):
        a, o = slot_addr(A_W, slot, T * 32)
        out.append(dstr(QA[st] + 4*T, a, o))
        out.append(dstr(QA[st] + 4*T + 2, a, o + 512))
    return out

def emit(mf, slots):
    out = []
    for m, fs in zip(mf, slots):
        out.append(m)
        for f in fs:
            if isinstance(f, list): out.extend(f)
            else: out.append(f)
    return out

def q_iter(u):
    st = u % 2
    out = [waitcnt(vm=8, lgkm=0), barrier()]
    mf = [mfma16(acc(T, qt), QA[st] + 4*T, QB[st] + 4*qt, acc(T, qt)) for T in range(8) for qt in range(3)]
    slots = [[] for _ in mf]
    reads = q_frag_reads((u + 1) % 4, 1 - st)
    for i, rd in enumerate(reads): slots[i].append(rd)
    for j, grp in enumerate(dma_batch([u]*4)):
        slots[1 + 5*j].append(grp[0]); slots[2 + 5*j].append(grp[1]); slots[3 + 5*j].append(grp[2])
    out += emit(mf, slots)
    return out

def q_switch():
    o = []
    A = lambda t: o.append(raw(t))
    for i in range(4):
        A(f"s_mov_b32 s{SRDA+i}, s{SRDK+i}"); A(f"s_mov_b32 s{SRDB+i}, s{SRDV+i}")
    o.append(valu("v_lshrrev_b32", V_OFFA, "4", 0)); o.append(valu("v_lshlrev_b32", V_OFFA, "11", V_OFFA))
    o.append(valu("v_and_b32", V_OFFB, "15", 0)); o.append(valu("v_lshl_add_u32", V_OFFA, V_OFFB, "4", V_OFFA))
    o.append(valu("v_mov_b32", V_OFFB, V_OFFA))
    t0, t1 = S_T[0], S_T[1]
    A(f"s_lshr_b32 s{t0}, s{S_RG}, 1"); A(f"s_lshl_b32 s{t0}, s{t0}, 2"); A(f"s_and_b32 s{t1}, s{S_RG}, 1"); A(f"s_add_u32 s{t0}, s{t0}, s{t1}")
    A(f"s_lshl_b32 s{t0}, s{t0}, 4"); A(f"s_lshl_b32 s{t1}, s{S_RG}, 10"); A(f"s_add_u32 s{t0}, s{t0}, s{t1}")
    A(f"s_mul_i32 s{t1}, s{S_HS}, {HEADK}")
    A(f"s_add_u32 s{S_L[0]}, s{t0}, s{t1}"); A(f"s_add_u32 s{S_L[1]}, s{S_L[0]}, {4096+128}")
    A(f"s_mul_i32 s{t0}, s{S_RG}, 1056"); A(f"s_add_u32 s{t0}, s{t0}, s{t1}")
    A(f"s_add_u32 s{S_L[2]}, s{t0}, {VPART}"); A(f"s_add_u32 s{S_L[3]}, s{S_L[2]}, {4*1056}")
    A(f"s_lshl_b32 s{S_O[0]}, s{S_RG}, 8"); A(f"s_add_u32 s{S_O[1]}, s{S_O[0]}, 1024")
    A(f"s_mov_b32 s{S_O[2]}, s{S_O[0]}"); A(f"s_mov_b32 s{S_O[3]}, s{S_O[1]}")
    A(f"s_mov_b32 s{S_STA}, 8192"); A(f"s_mov_b32 s{S_STB}, 8192")
    return o

def q_convert():
    o = []
    for qt in range(3):
        for T in range(8):
            a = acc(T, qt)
            o.append(pkmul(a, a, f"s[{S_SC}:{S_SC+1}]")); o.append(pkmul(a+2, a+2, f"s[{S_SC}:{S_SC+1}]"))
    for qt in range(3):
        for c in range(4):
            q = qf(qt, c); a = acc(2*c, qt); b = acc(2*c+1, qt)
            o += [cvtpk(q, a, a+1), cvtpk(q+1, a+2, a+3), cvtpk(q+2, b, b+1), cvtpk(q+3, b+2, b+3)]
    for qt in range(3):
        for c in range(4):
            q = qf(qt, c)
            o += [perm16(q, q+2), perm16(q+1, q+3)]
    for i in range(96): o.append(valu("v_mov_b32", ACC + i, "0"))
    for r in LSUM: o.append(valu("v_mov_b32", r, "0"))
    return o

def sreg(j, Tk, qt):
    if Tk == 0: return SX + 4*qt
    return (SY if j % 2 == 0 else SZ) + 4*qt
def preg(j, part, qt):
    base = PB + 6*qt
    if part == 1: return base + 2
    return base + (0 if j % 2 == 0 else 4)
def pop(j, qt): return PB + 6*qt + (0 if j % 2 == 0 else 2)

def k_read(j, i):
    a, o = slot_addr(A_K, j % 4, (i % 4) * 64 + (i // 4) * 512)
    return ds128(KF + 4*(i % 4), a, o)
def v_read(j, T):
    a, o = slot_addr(A_V, j % 4, T * 32)
    d = VF + 4*(T % 4)
    if j % 2 == 0: return [dstr(d, a, o), dstr(d+2, a, o + 512)]
    return [dstr(d+2, a, o), dstr(d, a, o + 512)]

def softmax_ops(j, part):
    ops = []
    for qt in range(3):
        s = sreg(j, part, qt); p = preg(j, part, qt)
        ops.append([vexp(s, s), vexp(s+1, s+1), vexp(s+2, s+2), vexp(s+3, s+3),
                    valu("v_add_f32", LSUM[qt], LSUM[qt], s), cvtpk(p, s, s+1), valu("v_add_f32", LSUM[qt], LSUM[qt], s+1),
                    valu("v_add_f32", LSUM[qt], LSUM[qt], s+2), cvtpk(p+1, s+2, s+3), valu("v_add_f32", LSUM[qt], LSUM[qt], s+3)])
    seq = []
    seq += ops[0][:4]
    for qt in range(1, 3):
        e = ops[qt][:4]; f = ops[qt-1][4:]
        seq += [e[0], f[0], f[1], e[1], f[2], e[2], f[3], f[4], e[3], f[5]]
    seq += ops[2][4:]
    return seq

def qk_mfmas(j):
    mf = []
    for Tk in range(2):
        for c in range(4):
            i = Tk*4 + c
            for qt in range(3):
                s = sreg(j, Tk, qt)
                mf.append(mfma16(s, KF + 4*(i % 4), qf(qt, c), None if c == 0 else s))
    return mf
def pv_mfmas(j):
    return [mfma16(acc(T, qt), VF + 4*(T % 4), pop(j, qt), acc(T, qt)) for T in range(8) for qt in range(3)]

def spread(slots, items, lo, hi):
    n = len(items); m = hi - lo
    for i, it in enumerate(items):
        slots[lo + (i * m) // n].append(it)

def h0(s, tail=False):
    sm = softmax_ops(s, 1)
    vr_ = [v_read(s, T) for T in range(4)]
    if tail:
        out = []
        for v in vr_: out += v
        return out + sm
    mf = qk_mfmas(s + 1)
    slots = [[] for _ in mf]
    for i in range(5): slots[3*i].append(k_read(s + 1, i + 3))
    for T in range(4): slots[14 + 2*T].append(vr_[T][0]); slots[15 + 2*T].append(vr_[T][1])
    spread(slots, sm, 0, 23)
    return emit(mf, slots)

def h1(s, tail=False, kvflags=("", "", "", "")):
    mf = pv_mfmas(s)
    slots = [[] for _ in mf]
    for T in range(4, 8):
        v = v_read(s, T); slots[3*(T-4) + 2].append(v[0]); slots[3*(T-4) + 3].append(v[1])
    if not tail:
        sm = softmax_ops(s + 1, 0)
        spread(slots, sm, 0, 23)
        slots[16].append([waitcnt(vm=8, lgkm=0), barrier()])
        for i in range(3): slots[17 + i].append(k_read(s + 2, i))
        b = dma_batch([(s + 1) % 4, (s + 1) % 4, s % 4, s % 4], kvflags)
        for j, grp in enumerate(b):
            slots[17 + j].append(grp[0]); slots[18 + j].append(grp[1]); slots[19 + j].append(grp[2])
    return emit(mf, slots)

def att_prologue(kvflags):
    o = []
    o.append(raw(f"s_sub_u32 s{S_O[2]}, s{S_O[2]}, 8192")); o.append(raw(f"s_sub_u32 s{S_O[3]}, s{S_O[3]}, 8192"))
    for i in range(3): o.append(k_read(0, i))
    mf = qk_mfmas(0)
    slots = [[] for _ in mf]
    for i in range(5): slots[3*i].append(k_read(0, i + 3))
    o += emit(mf, slots)
    o += [waitcnt(vm=8, lgkm=0), barrier()]
    for i in range(3): o.append(k_read(1, i))
    for grp in dma_batch([0, 0, 3, 3], kvflags): o += grp
    o += softmax_ops(0, 0)
    return o

def epilogue():
    o = []
    t = VT
    for qt in range(3):
        l = LSUM[qt]
        o += [valu("v_mov_b32", t[qt], l), perm32(t[qt], l), valu("v_add_f32", l, l, t[qt])]
    for qt in range(3):
        l = LSUM[qt]
        o += [valu("v_mov_b32", t[qt], l), perm16(t[qt], l), valu("v_add_f32", l, l, t[qt])]
    for qt in range(3): o.append(vrcp(t[qt], LSUM[qt]))
    for qt in range(3):
        o.append(raw(f"s_mul_i32 s{S_T[3]}, s{S_B}, 12")); o.append(raw(f"s_mul_i32 s{S_T[4]}, s{S_RG}, 3"))
        o.append(raw(f"s_add_u32 s{S_T[3]}, s{S_T[3]}, s{S_T[4]}")); o.append(raw(f"s_add_u32 s{S_T[3]}, s{S_T[3]}, {qt}"))
        o.append(raw(f"s_lshr_b32 s{S_T[4]}, s{S_T[3]}, 3")); o.append(raw(f"s_lshl_b32 s{S_T[4]}, s{S_T[4]}, 20"))
        o.append(raw(f"s_and_b32 s{S_T[3]}, s{S_T[3]}, 7")); o.append(raw(f"s_lshl_b32 s{S_T[3]}, s{S_T[3]}, 10"))
        o.append(raw(f"s_add_u32 s{S_T[qt]}, s{S_T[3]}, s{S_T[4]}"))
    for qt in range(3):
        for c in range(4):
            a = acc(2*c, qt); b = acc(2*c+1, qt)
            for r in range(4):
                o.append(valu("v_mul_f32", a + r, a + r, t[qt])); o.append(valu("v_mul_f32", b + r, b + r, t[qt]))
            o += [cvtpk(a, a, a+1), cvtpk(a+1, a+2, a+3), cvtpk(a+2, b, b+1), cvtpk(a+3, b+2, b+3)]
            o.append(bstore(a, 4, V_L16, SRDO, S_T[qt]))
            if c < 3: o.append(raw(f"s_add_u32 s{S_T[qt]}, s{S_T[qt]}, 8192"))
    o.append(waitcnt(vm=0))
    return o

def build(name, kvflags=("nt","nt","nt","nt")):
    out = [label(name)]
    pro = prologue(name, kvflags)
    pro.append(raw(f"s_mov_b32 s{S_CNT}, 5"))
    qbody = [label(f"{name}_qloop"), raw(f"s_cmp_eq_u32 s{S_CNT}, 1"), raw(f"s_cbranch_scc0 {name}_qns")]
    sw = q_switch()
    qb = []
    for u in range(4): qb += q_iter(u)
    qb += [raw(f"s_sub_u32 s{S_CNT}, s{S_CNT}, 1"), raw(f"s_cmp_lg_u32 s{S_CNT}, 0"), raw(f"s_cbranch_scc1 {name}_qloop")]
    pro2, qb2, st = resolve_loop(pro, qbody + sw + [label(f"{name}_qns")] + qb)
    out += pro2 + qb2
    mid = [waitcnt(lgkm=0)] + q_convert() + att_prologue(kvflags) + [raw(f"s_mov_b32 s{S_CNT}, 4")]
    body = [label(f"{name}_aloop")]
    for u in range(3): body += h0(u) + h1(u, kvflags=kvflags)
    body += [raw(f"s_cmp_eq_u32 s{S_CNT}, 1"), raw(f"s_cbranch_scc1 {name}_tail")]
    pre_tail_len = len(body)
    body += h0(3) + h1(3, kvflags=kvflags)
    body += [raw(f"s_sub_u32 s{S_CNT}, s{S_CNT}, 1"), raw(f"s_branch {name}_aloop")]
    mid2, st1 = resolve(mid, st)
    _, body2, _ = resolve_loop([], body, st1)
    idx = [i for i, x in enumerate(body2) if x.txt.startswith(f"s_cbranch_scc1 {name}_tail")][0]
    _, sA = resolve(body2, st1.copy(), insert=False)
    _, sB = resolve(body2[:idx+1], sA.copy(), insert=False)
    tail = [label(f"{name}_tail")] + h0(3, tail=True) + h1(3, tail=True) + epilogue()
    tail2, _ = resolve(tail, sB)
    out += mid2 + body2 + tail2
    out += [label(f"{name}_end"), raw("s_endpgm")]
    return out
```

```python
from asmlib import *

WSLOT = 4224
NRING = 4
BF = 32
AF = 160
V_OFFO = 8
V_OFFW = 2; V_AW = 3; V_T = [4, 5, 6, 7]
S_W = 4
SRDO, SRDW, SRDOUT = 12, 16, 20
S_OO, S_OW = 24, 25
S_OWB = [26, 27, 28, 29]
S_L = 30; S_CNT = 31
S_T = [32, 33, 34, 35]
S_PTR = 36

def ar(base, n): return f"a[{base}:{base+n-1}]"
def accq(rt, Tc): return (rt * 4 + Tc) * 4

def mfma_acc(rt, Tc, a, b, zero=False):
    d = accq(rt, Tc)
    D = [1000 + d + i for i in range(4)]
    c = "0" if zero else ar(d, 4)
    return I(f"v_mfma_f32_16x16x32_bf16 {ar(d,4)}, {vr(a,4)}, {vr(b,4)}, {c}",
             rd=R(a,4)+R(b,4)+([] if zero else D), wr=D, kind="mfma", cdst=(R(a,4), R(b,4), [] if zero else D, D))

def loads(u):
    o = []
    for j in range(8):
        o.append([bload(BF + 32*u + 4*j, 4, V_OFFO + j//4, SRDO, S_OO, off=(j%4)*1024)])
    o[-1].append(salu(f"s_add_u32 s{S_OO}, s{S_OO}, 32768"))
    for b in range(4):
        o.append([m0set(S_L, u * WSLOT + b * 1056), nop(0), dma(V_OFFW, SRDW, S_OWB[b]), salu(f"s_add_u32 s{S_OWB[b]}, s{S_OWB[b]}, {128*1280}")])
    return o

def a_reads(u, st):
    o = []
    for Tc in range(4):
        off = u * WSLOT + Tc * 32
        o.append(dstr(AF + 16*st + 4*Tc, V_AW, off)); o.append(dstr(AF + 16*st + 4*Tc + 2, V_AW, off + 512))
    return o

def step(u, first=False):
    st = u % 2
    mf = [mfma_acc(rt, Tc, AF + 16*st + 4*Tc, BF + 32*u + 4*rt) for rt in range(8) for Tc in range(4)]
    slots = [[] for _ in mf]
    return mf, slots

def build(name):
    P = []
    A = lambda t, **k: P.append(raw(t, **k))
    P.append(label(name))
    A("s_cmp_ge_u32 s2, 240"); A(f"s_cbranch_scc1 {name}_end")
    t0, t1, t2, t3 = S_T
    A("s_and_b32 s3, s2, 7"); A(f"s_lshr_b32 s{t0}, s2, 3")
    A(f"s_lshr_b32 s5, s3, 2")
    A("s_and_b32 s3, s3, 3"); A("s_mul_i32 s3, s3, 3")
    A(f"s_mul_i32 s{t1}, s{t0}, 6554"); A(f"s_lshr_b32 s{t1}, s{t1}, 16")
    A(f"s_add_u32 s6, s3, s{t1}")
    A(f"s_mul_i32 s{t1}, s{t1}, 10"); A(f"s_sub_u32 s7, s{t0}, s{t1}")
    A(f"s_mul_i32 s3, s5, 40"); A("s_add_u32 s3, s3, 32")
    A(f"s_load_dwordx2 s[{S_PTR}:{S_PTR+1}], s[0:1], s3")
    A(f"s_load_dwordx2 s[{S_PTR+2}:{S_PTR+3}], s[0:1], 80")
    A(f"s_load_dwordx2 s[{S_PTR+4}:{S_PTR+5}], s[0:1], 96")
    P.append(valu("v_lshrrev_b32", V_T[0], "6", 0)); P.append(valu("v_and_b32", 0, "63", 0))
    A("s_nop 0"); A(f"v_readfirstlane_b32 s{S_W}, v{V_T[0]}"); A("s_nop 3")
    g, m, r, c = V_T
    P.append(valu("v_lshrrev_b32", g, "4", 0)); P.append(valu("v_and_b32", m, "15", 0))
    P.append(valu("v_bfe_u32", r, 0, "2", "2")); P.append(valu("v_and_b32", c, "3", 0))
    P.append(valu("v_lshlrev_b32", V_OFFO, "4", 0))
    P.append(valu("v_add_u32", V_OFFO + 1, "4096", V_OFFO))
    P.append(valu("v_lshrrev_b32", 16, "3", 0)); P.append(valu("v_mul_u32_u24", 16, "5120", 16))
    P.append(valu("v_and_b32", 17, "7", 0)); P.append(valu("v_lshl_add_u32", V_OFFW, 17, "4", 16))
    P.append(valu("v_mul_u32_u24", 16, "1056", r)); P.append(valu("v_lshl_add_u32", 16, g, "7", 16)); P.append(valu("v_lshl_add_u32", 16, c, "3", 16))
    A(f"s_mul_i32 s{S_L}, s{S_W}, {NRING*WSLOT}")
    P.append(valu("v_add_u32", V_AW, f"s{S_L}", 16))
    A("s_waitcnt lgkmcnt(0)")
    def srd(dst, ptr, nrec):
        A(f"s_add_u32 s{dst}, s{ptr}, s{t0}"); A(f"s_addc_u32 s{dst+1}, s{ptr+1}, 0"); A(f"s_and_b32 s{dst+1}, s{dst+1}, 0xffff")
        A(f"s_mov_b32 s{dst+2}, {nrec}"); A(f"s_mov_b32 s{dst+3}, 0x20000")
    A(f"s_mul_i32 s{t0}, s5, 12"); A(f"s_add_u32 s{t0}, s{t0}, s6"); A(f"s_lshl_b32 s{t0}, s{t0}, 20")
    srd(SRDO, S_PTR+4, 1048576)
    A(f"s_lshl_b32 s{t0}, s7, 7")
    srd(SRDW, S_PTR, 4096*1280 - 9*128)
    A(f"s_mul_i32 s{t0}, s6, {128*2560}"); A(f"s_mul_i32 s{t1}, s5, 1280"); A(f"s_add_u32 s{t0}, s{t0}, s{t1}")
    A(f"s_lshl_b32 s{t1}, s7, 7"); A(f"s_add_u32 s{t0}, s{t0}, s{t1}")
    srd(SRDOUT, S_PTR+2, 127*2560 + 128)
    A(f"s_lshl_b32 s{S_OO}, s{S_W}, 13")
    A(f"s_mul_i32 s{t0}, s{S_W}, {32*1280}")
    for b in range(4): A(f"s_add_u32 s{S_OWB[b]}, s{t0}, {b*1280}")
    for u in range(3):
        for grp in loads(u): P.extend(grp)
    for i in range(128): P.append(I(f"v_accvgpr_write_b32 a{i}, 0", wr=[1000+i], kind="valu"))
    P.append(waitcnt(vm=24))
    P.extend(a_reads(0, 0))
    A(f"s_mov_b32 s{S_CNT}, 8")
    body = [label(f"{name}_loop")]
    for u in range(4):
        st = u % 2
        mf = [mfma_acc(rt, Tc, AF + 16*st + 4*Tc, BF + 32*u + 4*rt) for rt in range(8) for Tc in range(4)]
        slots = [[] for _ in mf]
        ld = loads((u + 3) % 4)
        for j, grp in enumerate(ld): slots[1 + 2*j] += grp
        slots[26].append(waitcnt(vm=24))
        rd = a_reads((u + 1) % 4, 1 - st)
        for j, x in enumerate(rd): slots[min(31, 26 + j//2 + 0)].append(x)
        for m_, fs in zip(mf, slots):
            body.append(m_); body += fs
    body += [raw(f"s_sub_u32 s{S_CNT}, s{S_CNT}, 1"), raw(f"s_cmp_lg_u32 s{S_CNT}, 0"), raw(f"s_cbranch_scc1 {name}_loop")]
    P2, body2, st = resolve_loop(P, body)
    E = []
    A = lambda t, **k: E.append(raw(t, **k))
    E.append(waitcnt(vm=0, lgkm=0)); E.append(barrier())
    E.append(valu("v_lshlrev_b32", 16, "4", 0))
    A(f"s_lshl_b32 s{t0}, s{S_W}, 15")
    E.append(valu("v_add_u32", 17, f"s{t0}", 16))
    for tl in range(32):
        d = 32 + 4*(tl % 8)
        for i in range(4): E.append(I(f"v_accvgpr_read_b32 v{d+i}, a{tl*4+i}", rd=[1000+tl*4+i], wr=[d+i], kind="valu"))
        E.append(dsw128(17, d, tl*1024))
    E.append(waitcnt(lgkm=0)); E.append(barrier())
    A(f"s_lshl_b32 s{t0}, s{S_W}, 13")
    E.append(valu("v_add_u32", 17, f"s{t0}", 16))
    E.append(valu("v_add_u32", 18, "65536", 17))
    for p in range(4):
        for t in range(8):
            E.append(ds128(32 + (p*8 + t)*4, 17 if p < 2 else 18, (p % 2)*32768 + t*1024))
    for t in range(8):
        for i in range(4):
            a = 32 + t*4 + i
            E.append(valu("v_add_f32", a, a, a + 32));
        for i in range(4):
            a = 32 + t*4 + i
            E.append(valu("v_add_f32", a + 64, a + 64, a + 96))
        for i in range(4):
            a = 32 + t*4 + i
            E.append(valu("v_add_f32", a, a, a + 64))
    E.append(valu("v_and_b32", 19, "1", g)); E.append(valu("v_lshlrev_b32", 19, "1", 19)); E.append(valu("v_lshrrev_b32", 20, "1", g))
    E.append(valu("v_or_b32", 19, 19, 20)); E.append(valu("v_lshlrev_b32", 19, "4", 19))
    E.append(valu("v_mul_u32_u24", 20, "2560", m)); E.append(valu("v_add_u32", 19, 19, 20))
    A(f"s_mul_i32 s{t0}, s{S_W}, {32*2560}"); A(f"s_add_u32 s{t1}, s{t0}, {16*2560}")
    for rr in range(2):
        for pr in range(2):
            a = 32 + (rr*4 + 2*pr)*4; b = a + 4; q = 160 + (rr*2 + pr)*4
            E += [cvtpk(q, a, a+1), cvtpk(q+1, a+2, a+3), cvtpk(q+2, b, b+1), cvtpk(q+3, b+2, b+3), perm16(q, q+2), perm16(q+1, q+3)]
            E.append(bstore(q, 4, 19, SRDOUT, t0 if rr == 0 else t1, off=pr*64))
    E.append(waitcnt(vm=0))
    E2, _ = resolve(E, st)
    return P2 + body2 + E2 + [label(f"{name}_end"), raw("s_endpgm")]
```

```python
import sys
sys.path.insert(0, "gen")
from asmlib import *
import k1, k2
HDR = open("concat_heads__mha_block_cached__gqa_block_cached__near_ridge.s.ref").read().split("; Override launch")[0]
def desc(name, vgpr, accum, sgpr=96):
    return f""".section .rodata,"a"
.p2align 6
.amdhsa_kernel {name}
  .amdhsa_next_free_vgpr {vgpr}
  .amdhsa_next_free_sgpr {sgpr}
  .amdhsa_accum_offset {accum}
  .amdhsa_group_segment_fixed_size 0
  .amdhsa_kernarg_size 104
  .amdhsa_user_sgpr_count 2
  .amdhsa_user_sgpr_kernarg_segment_ptr 1
  .amdhsa_system_sgpr_workgroup_id_x 1
.end_amdhsa_kernel
.text
"""
def kern(name, seq):
    return f".globl {name}\n.p2align 8\n.type {name},@function\n" + text(seq)
def main(out, opts=None):
    s = HDR
    s += "; @launch kernel=qattn_kernel grid=(256,1,1) block=(512,1,1) lds=135168\n"
    s += "; @launch kernel=oproj_kernel grid=(240,1,1) block=(256,1,1) lds=131072\n"
    s += '.amdgcn_target "amdgcn-amd-amdhsa--gfx950"\n.text\n'
    s += kern("qattn_kernel", k1.build("qattn_kernel")) + desc("qattn_kernel", 256, 256, 64)
    s += kern("oproj_kernel", k2.build("oproj_kernel")) + desc("oproj_kernel", 384, 256, 48)
    open(out, "w").write(s)
if __name__ == "__main__":
    main(sys.argv[1])
```

```python
import re

class I:
    __slots__ = ("txt", "rd", "wr", "kind", "cdst", "meta")
    def __init__(self, txt, rd=(), wr=(), kind="other", cdst=None, meta=None):
        self.txt = txt
        self.rd = tuple(rd)
        self.wr = tuple(wr)
        self.kind = kind
        self.cdst = cdst
        self.meta = meta
    def __repr__(self): return self.txt

def R(base, n): return list(range(base, base + n))
def vr(base, n):
    return f"v{base}" if n == 1 else f"v[{base}:{base+n-1}]"
def sr(base, n):
    return f"s{base}" if n == 1 else f"s[{base}:{base+n-1}]"

def mfma16(d, a, b, c):
    ctxt = "0" if c is None else vr(c, 4)
    crd = [] if c is None else R(c, 4)
    return I(f"v_mfma_f32_16x16x32_bf16 {vr(d,4)}, {vr(a,4)}, {vr(b,4)}, {ctxt}",
             rd=R(a,4)+R(b,4)+crd, wr=R(d,4), kind="mfma", cdst=(R(a,4), R(b,4), crd, R(d,4)))

def valu(op, dst, *srcs, kind="valu", extra_rd=(), extra_wr=()):
    ts = [f"v{s}" if isinstance(s, int) else s for s in srcs]
    return I(f"{op} v{dst}, " + ", ".join(ts), rd=[s for s in srcs if isinstance(s, int)]+list(extra_rd), wr=[dst]+list(extra_wr), kind=kind)

def vexp(dst, src): return valu("v_exp_f32", dst, src, kind="trans")
def vrcp(dst, src): return valu("v_rcp_f32", dst, src, kind="trans")
def cvtpk(dst, a, b): return valu("v_cvt_pk_bf16_f32", dst, a, b)
def perm16(a, b): return I(f"v_permlane16_swap_b32 v{a}, v{b}", rd=[a,b], wr=[a,b], kind="perm")
def perm32(a, b): return I(f"v_permlane32_swap_b32 v{a}, v{b}", rd=[a,b], wr=[a,b], kind="perm")
def pkmul(dst, a, b_txt):
    return I(f"v_pk_mul_f32 {vr(dst,2)}, {vr(a,2)}, {b_txt}", rd=R(a,2), wr=R(dst,2), kind="valu")

def ds128(dst, addr, off):
    assert 0 <= off < 65536, off
    return I(f"ds_read_b128 {vr(dst,4)}, v{addr} offset:{off}", rd=[addr], wr=R(dst,4), kind="dsr")
def dstr(dst, addr, off):
    assert 0 <= off < 65536, off
    return I(f"ds_read_b64_tr_b16 {vr(dst,2)}, v{addr} offset:{off}", rd=[addr], wr=R(dst,2), kind="dsr")
def dsr32(dst, addr, off=0):
    return I(f"ds_read_b32 v{dst}, v{addr} offset:{off}", rd=[addr], wr=[dst], kind="dsr")
def dsw128(addr, src, off):
    assert 0 <= off < 65536, off
    return I(f"ds_write_b128 v{addr}, {vr(src,4)} offset:{off}", rd=[addr]+R(src,4), wr=[], kind="dsw")
def dsw32(addr, src, off=0):
    return I(f"ds_write_b32 v{addr}, v{src} offset:{off}", rd=[addr, src], wr=[], kind="dsw")

def salu(txt, wr_m0=False): return I(txt, kind="salu", wr=(["m0"] if wr_m0 else []))
def m0set(sreg, imm):
    if imm == 0: return I(f"s_mov_b32 m0, s{sreg}", kind="salu", wr=["m0"])
    return I(f"s_add_u32 m0, s{sreg}, {imm}", kind="salu", wr=["m0"])
def dma(voff, srd, soff, flags=""):
    fl = (" " + flags) if flags else ""
    return I(f"buffer_load_dwordx4 v{voff}, {sr(srd,4)}, s{soff} offen{fl} lds", rd=[voff, "m0"], kind="dma")
def bload(dst, n, voff, srd, soff, off=0, flags=""):
    nm = {1:"dword",2:"dwordx2",4:"dwordx4"}[n]
    fl = (" " + flags) if flags else ""
    so = f"s{soff}" if isinstance(soff, int) else soff
    o = f" offset:{off}" if off else ""
    return I(f"buffer_load_{nm} {vr(dst,n)}, v{voff}, {sr(srd,4)}, {so} offen{o}{fl}", rd=[voff], wr=R(dst,n), kind="vload")
def bstore(src, n, voff, srd, soff, off=0, flags=""):
    nm = {1:"dword",2:"dwordx2",4:"dwordx4"}[n]
    fl = (" " + flags) if flags else ""
    so = f"s{soff}" if isinstance(soff, int) else soff
    o = f" offset:{off}" if off else ""
    return I(f"buffer_store_{nm} {vr(src,n)}, v{voff}, {sr(srd,4)}, {so} offen{o}{fl}", rd=[voff]+R(src,n), kind="vstore", meta=R(src,n))
def waitcnt(vm=None, lgkm=None):
    p = []
    if vm is not None: p.append(f"vmcnt({vm})")
    if lgkm is not None: p.append(f"lgkmcnt({lgkm})")
    return I("s_waitcnt " + " ".join(p), kind="wait", meta=(vm, lgkm))
def barrier(): return I("s_barrier", kind="barrier")
def nop(n): return I(f"s_nop {n}", kind="nop", meta=n)
def label(n): return I(f"{n}:", kind="label")
def raw(t, kind="other", rd=(), wr=()): return I(t, kind=kind, rd=rd, wr=wr)

class State:
    def __init__(self):
        self.pos = 0
        self.lds = []
        self.valu_w = {}; self.trans_w = {}; self.mfma_w = {}; self.mfma_wrange = {}
        self.mfma_c = {}; self.store_rd = {}; self.m0_w = -100
    def copy(self):
        s = State(); s.pos = self.pos; s.lds = [list(x) for x in self.lds]
        s.valu_w = dict(self.valu_w); s.trans_w = dict(self.trans_w); s.mfma_w = dict(self.mfma_w)
        s.mfma_wrange = dict(self.mfma_wrange); s.mfma_c = dict(self.mfma_c); s.store_rd = dict(self.store_rd); s.m0_w = self.m0_w
        return s

def need_wait_lgkm(st, ins):
    regs = set(r for r in list(ins.rd) + list(ins.wr) if isinstance(r, int))
    n = None
    for i, d in enumerate(st.lds):
        if regs & set(d):
            after = len(st.lds) - 1 - i
            n = after if n is None else min(n, after)
    return n

def need_nops(st, ins):
    need = 0
    def req(q, n):
        nonlocal need
        if q is None: return
        have = st.pos - q - 1
        if have < n: need = max(need, n - have)
    k = ins.kind
    rd = [r for r in ins.rd if isinstance(r, int)]
    wr = [r for r in ins.wr if isinstance(r, int)]
    if k == "mfma":
        A, B, C, D = ins.cdst
        for r in A + B + C:
            req(st.valu_w.get(r), 2)
        for r in A + B:
            req(st.mfma_w.get(r), 8)
        for r in C:
            if r in st.mfma_w and st.mfma_wrange.get(r) != tuple(C):
                req(st.mfma_w.get(r), 6)
        for r in D:
            if r in st.mfma_w and (tuple(C) != tuple(D)):
                req(st.mfma_w.get(r), 6)
    elif k in ("valu", "trans", "perm"):
        for r in rd + wr: req(st.mfma_w.get(r), 8)
        for r in wr:
            req(st.mfma_c.get(r), 3)
            req(st.store_rd.get(r), 2)
        if k != "trans":
            for r in rd: req(st.trans_w.get(r), 1)
        if k == "perm":
            for r in rd: req(st.valu_w.get(r), 2)
    elif k in ("dsr", "vload"):
        for r in rd + wr: req(st.mfma_w.get(r), 8)
        for r in wr: req(st.store_rd.get(r), 1)
    elif k in ("dsw", "vstore", "dma"):
        for r in rd: req(st.mfma_w.get(r), 8)
        if k == "dma" and "m0" in ins.rd: req(st.m0_w, 1)
    return need

def advance(st, ins):
    k = ins.kind
    p = st.pos
    if k == "nop":
        st.pos += ins.meta + 1; return
    if k == "label": return
    if k == "wait":
        vm, lg = ins.meta
        if lg is not None:
            while len(st.lds) > lg: st.lds.pop(0)
    elif k == "mfma":
        A, B, C, D = ins.cdst
        for r in D:
            st.mfma_w[r] = p; st.mfma_wrange[r] = tuple(D); st.valu_w.pop(r, None); st.trans_w.pop(r, None)
        for r in C: st.mfma_c[r] = p
    elif k in ("valu", "trans", "perm"):
        for r in ins.wr:
            if isinstance(r, int):
                st.valu_w[r] = p; st.mfma_w.pop(r, None)
                if k == "trans": st.trans_w[r] = p
                else: st.trans_w.pop(r, None)
    elif k == "dsr":
        st.lds.append([r for r in ins.wr])
        for r in ins.wr: st.mfma_w.pop(r, None); st.valu_w.pop(r, None); st.trans_w.pop(r, None)
    elif k == "dsw":
        st.lds.append([])
    elif k == "vstore":
        for r in ins.meta: st.store_rd[r] = p
    elif k == "vload":
        for r in ins.wr: st.mfma_w.pop(r, None); st.valu_w.pop(r, None); st.trans_w.pop(r, None)
    if "m0" in ins.wr: st.m0_w = p
    st.pos += 1

def resolve(seq, st=None, insert=True, where=""):
    st = st or State()
    out = []
    for ins in seq:
        if ins.kind not in ("label", "nop", "wait", "barrier"):
            n = need_wait_lgkm(st, ins)
            if n is not None:
                if not insert: raise RuntimeError(f"{where}: missing lgkmcnt({n}) before {ins.txt}")
                w = waitcnt(lgkm=min(n, 15)); out.append(w); advance(st, w)
            k = need_nops(st, ins)
            if k > 0:
                if not insert: raise RuntimeError(f"{where}: missing {k} wait states before {ins.txt}")
                while k > 0:
                    c = min(k, 16); w = nop(c - 1); out.append(w); advance(st, w); k -= c
        out.append(ins); advance(st, ins)
    return out, st

def resolve_loop(pro, body, st=None):
    pro2, st1 = resolve(pro, st)
    b1, st2 = resolve(body, st1.copy())
    b2, st3 = resolve(body, st2.copy())
    cur = b2
    for _ in range(4):
        try:
            _, sA = resolve(cur, st1.copy(), insert=False, where="loop-first")
            _, sB = resolve(cur, sA.copy(), insert=False, where="loop-steady")
            return pro2, cur, sB
        except RuntimeError as e:
            cur, sA = resolve(cur, st1.copy())
            cur, sB = resolve(cur, sA.copy())
    raise RuntimeError("loop resolve did not converge")

def text(seq):
    o = []
    for i in seq:
        o.append(i.txt if i.kind == "label" else "  " + i.txt)
    return "\n".join(o) + "\n"

def interleave(mf, fillers, start=0, end=None):
    end = len(mf) if end is None else end
    slots = [[] for _ in mf]
    n = len(fillers); m = end - start
    for i, f in enumerate(fillers):
        s = start + (i * m) // n
        slots[s].append(f)
    return slots


STAMP_BASE = 70
def stamp(i, real=False):
    r = STAMP_BASE + 2*i
    return [raw(f"s_memtime s[{r}:{r+1}]" if not real else f"s_memrealtime s[{r}:{r+1}]"), waitcnt(lgkm=0)]
def stamp_dump(n, ws_ptr_sgpr, wave_sgpr, region_off, vtmp, nwaves_shift=3):
    o = []
    A = lambda t: o.append(raw(t))
    A(f"s_add_u32 s92, s{ws_ptr_sgpr}, {region_off}"); A(f"s_addc_u32 s93, s{ws_ptr_sgpr+1}, 0"); A("s_and_b32 s93, s93, 0xffff")
    A("s_mov_b32 s94, 0x100000"); A("s_mov_b32 s95, 0x20000")
    A(f"s_lshl_b32 s90, s2, {nwaves_shift}"); A(f"s_add_u32 s90, s90, s{wave_sgpr}"); A("s_lshl_b32 s90, s90, 6")
    A(f"v_mov_b32 v{vtmp+1}, 0")
    for i in range(n):
        A(f"v_mov_b32 v{vtmp}, s{STAMP_BASE+2*i}")
        A(f"buffer_store_dword v{vtmp}, v{vtmp+1}, s[92:95], s90 offen offset:{4*i}")
        A("s_nop 1")
    A("s_waitcnt vmcnt(0)")
    return o
```

```python
from asmlib import *

SLOT = 33792
VPART = 16896
HEADK = 8448
ACC = 16; QF = 112
SX, SY, SZ = 160, 172, 184
PB = 196
KF = 214; VF = 230
QA = [160, 204]; QB = [192, 236]
V_OFFA, V_OFFB = 1, 2
A_K = [3, 4]; A_V = [5, 6]; A_W = [7, 8]; A_X = [9, 10]
LSUM = [7, 8, 9]
V_L16 = 11; VT = [12, 13, 14, 15]
S_W, S_HS, S_RG, S_BR, S_B, S_HP = 4, 5, 6, 7, 8, 9
SRDA, SRDB, SRDK, SRDV, SRDO = 12, 16, 20, 24, 28
S_O = [32, 33, 34, 35]; S_STA, S_STB = 36, 37; S_L = [38, 39, 40, 41]; S_CNT = 42
S_T = [43, 44, 45, 46, 47, 48, 49]
S_SC = 50
S_PTR = 52

def acc(T, qt): return ACC + (T * 3 + qt) * 4
def qf(qt, c): return QF + (qt * 4 + c) * 4
def slot_addr(regs, slot, off):
    return regs[slot // 2], (slot % 2) * SLOT + off

def dma_batch(slots, flags=("", "", "", "")):
    out = []
    for j in range(4):
        voff = V_OFFA if j < 2 else V_OFFB
        srd = SRDA if j < 2 else SRDB
        st = S_STA if j < 2 else S_STB
        out.append([m0set(S_L[j], slots[j] * SLOT),
                    salu(f"s_nop 0") if False else None,
                    dma(voff, srd, S_O[j], flags[j]),
                    salu(f"s_add_u32 s{S_O[j]}, s{S_O[j]}, s{st}")])
        out[-1] = [x for x in out[-1] if x is not None]
    return out

def prologue(name, kvflags):
    P = []
    A = lambda t, **k: P.append(raw(t, **k))
    A(f"s_cmp_ge_u32 s2, 256"); A(f"s_cbranch_scc1 {name}_end")
    A(f"s_and_b32 s3, s2, 7")
    A(f"s_lshr_b32 s{S_T[0]}, s2, 3")
    A(f"s_lshr_b32 s{S_BR}, s3, 2")
    A(f"s_and_b32 s3, s3, 3"); A(f"s_lshl_b32 s3, s3, 2")
    A(f"s_and_b32 s{S_HP}, s{S_T[0]}, 3"); A(f"s_add_u32 s{S_HP}, s{S_HP}, s3")
    A(f"s_lshr_b32 s{S_B}, s{S_T[0]}, 2")
    A(f"s_mul_i32 s3, s{S_BR}, 40")
    A(f"s_load_dwordx4 s[{S_PTR}:{S_PTR+3}], s[0:1], s3")
    A(f"s_add_u32 s{S_T[1]}, s3, 16")
    A(f"s_load_dwordx4 s[{S_PTR+4}:{S_PTR+7}], s[0:1], s{S_T[1]}")
    A(f"s_load_dwordx2 s[{S_PTR+8}:{S_PTR+9}], s[0:1], 96")
    P.append(valu("v_lshrrev_b32", VT[0], "6", 0))
    P.append(valu("v_and_b32", 0, "63", 0))
    A("s_nop 0")
    A(f"v_readfirstlane_b32 s{S_W}, v{VT[0]}")
    A("s_nop 3")
    A(f"s_lshr_b32 s{S_HS}, s{S_W}, 2"); A(f"s_and_b32 s{S_RG}, s{S_W}, 3")
    g, m, r, c = VT
    P.append(valu("v_lshrrev_b32", g, "4", 0))
    P.append(valu("v_and_b32", m, "15", 0))
    P.append(valu("v_bfe_u32", r, 0, "2", "2"))
    P.append(valu("v_and_b32", c, "3", 0))
    P.append(valu("v_lshlrev_b32", V_L16, "4", 0))
    T0, T1 = 16, 17
    P.append(valu("v_lshrrev_b32", T0, "5", 0)); P.append(valu("v_lshlrev_b32", T0, "15", T0))
    P.append(valu("v_and_b32", T1, "31", 0)); P.append(valu("v_lshlrev_b32", T1, "4", T1))
    P.append(valu("v_add_u32", V_OFFA, T0, T1))
    P.append(valu("v_lshrrev_b32", T0, "2", 0))
    P.append(valu("v_lshrrev_b32", T1, "5", 0))
    P.append(valu("v_mul_u32_u24", T1, "3", T1))
    P.append(valu("v_xor_b32", T1, c, T1)); P.append(valu("v_lshlrev_b32", T1, "4", T1))
    P.append(valu("v_mul_u32_u24", T0, "1280", T0))
    P.append(valu("v_add_u32", V_OFFB, T0, T1))
    P.append(valu("v_lshl_add_u32", T0, g, "2", r))
    P.append(valu("v_mul_u32_u24", T0, "1056", T0))
    P.append(valu("v_lshl_add_u32", T0, c, "3", T0))
    A(f"s_lshl_b32 s3, s{S_HS}, 8")
    P.append(valu("v_add_u32", A_W[0], "s3", T0))
    P.append(valu("v_add_u32", A_W[1], str(2*SLOT), A_W[0]))
    P.append(valu("v_lshrrev_b32", T0, "3", m)); P.append(valu("v_mul_u32_u24", T0, "3", T0))
    P.append(valu("v_xor_b32", T0, g, T0)); P.append(valu("v_lshlrev_b32", T0, "4", T0))
    P.append(valu("v_lshl_add_u32", T0, m, "6", T0))
    A(f"s_mul_i32 s3, s{S_RG}, 3072"); A(f"s_add_u32 s3, s3, {VPART}")
    P.append(valu("v_add_u32", A_X[0], "s3", T0))
    P.append(valu("v_add_u32", A_X[1], str(2*SLOT), A_X[0]))
    P.append(valu("v_and_b32", T0, "7", m))
    P.append(valu("v_lshrrev_b32", T1, "1", T0)); P.append(valu("v_lshlrev_b32", T1, "2", T1))
    P.append(valu("v_and_b32", A_K[1], "1", T0)); P.append(valu("v_add_u32", T1, T1, A_K[1]))
    P.append(valu("v_lshlrev_b32", T1, "4", T1))
    P.append(valu("v_lshl_add_u32", T1, T0, "10", T1))
    P.append(valu("v_lshrrev_b32", T0, "3", m)); P.append(valu("v_lshl_add_u32", T1, T0, "8", T1))
    P.append(valu("v_and_b32", T0, "1", g)); P.append(valu("v_lshlrev_b32", T0, "1", T0))
    P.append(valu("v_lshrrev_b32", A_K[1], "1", g)); P.append(valu("v_or_b32", T0, T0, A_K[1]))
    P.append(valu("v_lshl_add_u32", T1, T0, "4", T1))
    A(f"s_mul_i32 s3, s{S_HS}, {HEADK}")
    P.append(valu("v_add_u32", A_K[0], "s3", T1))
    P.append(valu("v_add_u32", A_K[1], str(2*SLOT), A_K[0]))
    P.append(valu("v_and_b32", T0, "1", g)); P.append(valu("v_lshl_add_u32", T0, T0, "2", r))
    P.append(valu("v_mul_u32_u24", T0, "1056", T0))
    P.append(valu("v_lshrrev_b32", T1, "1", g)); P.append(valu("v_lshl_add_u32", T0, T1, "8", T0))
    P.append(valu("v_lshl_add_u32", T0, c, "3", T0))
    A(f"s_add_u32 s3, s3, {VPART}")
    P.append(valu("v_add_u32", A_V[0], "s3", T0))
    P.append(valu("v_add_u32", A_V[1], str(2*SLOT), A_V[0]))
    t0, t1 = S_T[0], S_T[1]
    A(f"s_lshl_b32 s{t0}, s{S_HS}, 3"); A(f"s_add_u32 s{t0}, s{t0}, s{S_RG}")
    A(f"s_lshl_b32 s{S_O[0]}, s{t0}, 13"); A(f"s_add_u32 s{S_O[1]}, s{S_O[0]}, {16*8192}")
    A(f"s_mul_i32 s{S_O[2]}, s{S_W}, {16*1280}"); A(f"s_add_u32 s{S_O[3]}, s{S_O[2]}, {8*16*1280}")
    A(f"s_mov_b32 s{S_STA}, {32*8192}"); A(f"s_mov_b32 s{S_STB}, 64")
    A(f"s_mul_i32 s{S_L[0]}, s{S_W}, 1056"); A(f"s_add_u32 s{S_L[1]}, s{S_L[0]}, {8*1056}")
    A(f"s_lshl_b32 s{S_L[2]}, s{S_W}, 10"); A(f"s_add_u32 s{S_L[2]}, s{S_L[2]}, {VPART}"); A(f"s_add_u32 s{S_L[3]}, s{S_L[2]}, {8*1024}")
    A(f"s_mov_b32 s{S_SC}, 0x3e0293ee"); A(f"s_mov_b32 s{S_SC+1}, 0x3e0293ee")
    A("s_waitcnt lgkmcnt(0)")
    px, pk, pv, pw, pws = S_PTR, S_PTR+2, S_PTR+4, S_PTR+6, S_PTR+8
    def srd(dst, ptr, off_lo_expr, nrec):
        for t in off_lo_expr: A(t)
        A(f"s_add_u32 s{dst}, s{ptr}, s{t0}"); A(f"s_addc_u32 s{dst+1}, s{ptr+1}, 0")
        A(f"s_and_b32 s{dst+1}, s{dst+1}, 0xffff")
        A(f"s_mov_b32 s{dst+2}, {nrec}"); A(f"s_mov_b32 s{dst+3}, 0x20000")
    srd(SRDA, pw, [f"s_lshl_b32 s{t0}, s{S_HP}, 9"], 640*8192 - 15*512)
    srd(SRDB, px, [f"s_mul_i32 s{t0}, s{S_B}, 245760"], 245760)
    A(f"s_lshl_b32 s{t1}, s{S_B}, 5"); A(f"s_lshl_b32 s{t0}, s{S_HP}, 1"); A(f"s_add_u32 s{t1}, s{t1}, s{t0}"); A(f"s_add_u32 s{t1}, s{t1}, s{S_HS}")
    srd(SRDK, pk, [f"s_lshl_b32 s{t0}, s{t1}, 17"], 131072)
    srd(SRDV, pv, [f"s_lshl_b32 s{t0}, s{t1}, 17"], 131072)
    A(f"s_mul_i32 s{t1}, s{S_BR}, {12*1048576}")
    A(f"s_lshl_b32 s{S_T[2]}, s{S_HP}, 1"); A(f"s_add_u32 s{S_T[2]}, s{S_T[2]}, s{S_HS}"); A(f"s_lshl_b32 s{S_T[2]}, s{S_T[2]}, 15")
    srd(SRDO, pws, [f"s_add_u32 s{t0}, s{t1}, s{S_T[2]}"], 12*1048576 - 31*32768)
    for st in range(4):
        for grp in dma_batch([st]*4):
            P.extend(grp)
    for i in range(96): P.append(valu("v_mov_b32", ACC + i, "0"))
    P.append(waitcnt(vm=12)); P.append(barrier())
    P.extend(q_frag_reads(0, 0))
    return P

def q_frag_reads(slot, st):
    out = []
    for qt in range(3):
        a, o = slot_addr(A_X, slot, qt * 1024)
        out.append(ds128(QB[st] + 4*qt, a, o))
    for T in range(8):
        a, o = slot_addr(A_W, slot, T * 32)
        out.append(dstr(QA[st] + 4*T, a, o))
        out.append(dstr(QA[st] + 4*T + 2, a, o + 512))
    return out

def emit(mf, slots):
    out = []
    for m, fs in zip(mf, slots):
        out.append(m)
        for f in fs:
            if isinstance(f, list): out.extend(f)
            else: out.append(f)
    return out

def q_iter(u):
    st = u % 2
    out = [waitcnt(vm=8, lgkm=0), barrier()]
    mf = [mfma16(acc(T, qt), QA[st] + 4*T, QB[st] + 4*qt, acc(T, qt)) for T in range(8) for qt in range(3)]
    slots = [[] for _ in mf]
    reads = q_frag_reads((u + 1) % 4, 1 - st)
    for i, rd in enumerate(reads): slots[i].append(rd)
    for j, grp in enumerate(dma_batch([u]*4)):
        slots[1 + 5*j].append(grp[0]); slots[2 + 5*j].append(grp[1]); slots[3 + 5*j].append(grp[2])
    out += emit(mf, slots)
    return out

def q_switch():
    o = []
    A = lambda t: o.append(raw(t))
    for i in range(4):
        A(f"s_mov_b32 s{SRDA+i}, s{SRDK+i}"); A(f"s_mov_b32 s{SRDB+i}, s{SRDV+i}")
    o.append(valu("v_lshrrev_b32", V_OFFA, "4", 0)); o.append(valu("v_lshlrev_b32", V_OFFA, "11", V_OFFA))
    o.append(valu("v_and_b32", V_OFFB, "15", 0)); o.append(valu("v_lshl_add_u32", V_OFFA, V_OFFB, "4", V_OFFA))
    o.append(valu("v_mov_b32", V_OFFB, V_OFFA))
    t0, t1 = S_T[0], S_T[1]
    A(f"s_lshr_b32 s{t0}, s{S_RG}, 1"); A(f"s_lshl_b32 s{t0}, s{t0}, 2"); A(f"s_and_b32 s{t1}, s{S_RG}, 1"); A(f"s_add_u32 s{t0}, s{t0}, s{t1}")
    A(f"s_lshl_b32 s{t0}, s{t0}, 4"); A(f"s_lshl_b32 s{t1}, s{S_RG}, 10"); A(f"s_add_u32 s{t0}, s{t0}, s{t1}")
    A(f"s_mul_i32 s{t1}, s{S_HS}, {HEADK}")
    A(f"s_add_u32 s{S_L[0]}, s{t0}, s{t1}"); A(f"s_add_u32 s{S_L[1]}, s{S_L[0]}, {4096+128}")
    A(f"s_mul_i32 s{t0}, s{S_RG}, 1056"); A(f"s_add_u32 s{t0}, s{t0}, s{t1}")
    A(f"s_add_u32 s{S_L[2]}, s{t0}, {VPART}"); A(f"s_add_u32 s{S_L[3]}, s{S_L[2]}, {4*1056}")
    A(f"s_lshl_b32 s{S_O[0]}, s{S_RG}, 8"); A(f"s_add_u32 s{S_O[1]}, s{S_O[0]}, 1024")
    A(f"s_mov_b32 s{S_O[2]}, s{S_O[0]}"); A(f"s_mov_b32 s{S_O[3]}, s{S_O[1]}")
    A(f"s_mov_b32 s{S_STA}, 8192"); A(f"s_mov_b32 s{S_STB}, 8192")
    return o

def q_convert():
    o = []
    for qt in range(3):
        for T in range(8):
            a = acc(T, qt)
            o.append(pkmul(a, a, f"s[{S_SC}:{S_SC+1}]")); o.append(pkmul(a+2, a+2, f"s[{S_SC}:{S_SC+1}]"))
    for qt in range(3):
        for c in range(4):
            q = qf(qt, c); a = acc(2*c, qt); b = acc(2*c+1, qt)
            o += [cvtpk(q, a, a+1), cvtpk(q+1, a+2, a+3), cvtpk(q+2, b, b+1), cvtpk(q+3, b+2, b+3)]
    for qt in range(3):
        for c in range(4):
            q = qf(qt, c)
            o += [perm16(q, q+2), perm16(q+1, q+3)]
    for i in range(96): o.append(valu("v_mov_b32", ACC + i, "0"))
    for r in LSUM: o.append(valu("v_mov_b32", r, "0"))
    return o

def sreg(j, Tk, qt):
    if Tk == 0: return SX + 4*qt
    return (SY if j % 2 == 0 else SZ) + 4*qt
def preg(j, part, qt):
    base = PB + 6*qt
    if part == 1: return base + 2
    return base + (0 if j % 2 == 0 else 4)
def pop(j, qt): return PB + 6*qt + (0 if j % 2 == 0 else 2)

def k_read(j, i):
    a, o = slot_addr(A_K, j % 4, (i % 4) * 64 + (i // 4) * 512)
    return ds128(KF + 4*(i % 4), a, o)
def v_read(j, T):
    a, o = slot_addr(A_V, j % 4, T * 32)
    d = VF + 4*(T % 4)
    if j % 2 == 0: return [dstr(d, a, o), dstr(d+2, a, o + 512)]
    return [dstr(d+2, a, o), dstr(d, a, o + 512)]

def softmax_ops(j, part):
    ops = []
    for qt in range(3):
        s = sreg(j, part, qt); p = preg(j, part, qt)
        ops.append([vexp(s, s), vexp(s+1, s+1), vexp(s+2, s+2), vexp(s+3, s+3),
                    valu("v_add_f32", LSUM[qt], LSUM[qt], s), cvtpk(p, s, s+1), valu("v_add_f32", LSUM[qt], LSUM[qt], s+1),
                    valu("v_add_f32", LSUM[qt], LSUM[qt], s+2), cvtpk(p+1, s+2, s+3), valu("v_add_f32", LSUM[qt], LSUM[qt], s+3)])
    seq = []
    seq += ops[0][:4]
    for qt in range(1, 3):
        e = ops[qt][:4]; f = ops[qt-1][4:]
        seq += [e[0], f[0], f[1], e[1], f[2], e[2], f[3], f[4], e[3], f[5]]
    seq += ops[2][4:]
    return seq

def qk_mfmas(j):
    mf = []
    for Tk in range(2):
        for c in range(4):
            i = Tk*4 + c
            for qt in range(3):
                s = sreg(j, Tk, qt)
                mf.append(mfma16(s, KF + 4*(i % 4), qf(qt, c), None if c == 0 else s))
    return mf
def pv_mfmas(j):
    return [mfma16(acc(T, qt), VF + 4*(T % 4), pop(j, qt), acc(T, qt)) for T in range(8) for qt in range(3)]

def spread(slots, items, lo, hi):
    n = len(items); m = hi - lo
    for i, it in enumerate(items):
        slots[lo + (i * m) // n].append(it)

def h0(s, tail=False):
    sm = softmax_ops(s, 1)
    vr_ = [v_read(s, T) for T in range(4)]
    if tail:
        out = []
        for v in vr_: out += v
        return out + sm
    mf = qk_mfmas(s + 1)
    slots = [[] for _ in mf]
    for i in range(5): slots[3*i].append(k_read(s + 1, i + 3))
    for T in range(4): slots[14 + 2*T].append(vr_[T][0]); slots[15 + 2*T].append(vr_[T][1])
    spread(slots, sm, 0, 23)
    return emit(mf, slots)

def h1(s, tail=False, kvflags=("", "", "", "")):
    mf = pv_mfmas(s)
    slots = [[] for _ in mf]
    for T in range(4, 8):
        v = v_read(s, T); slots[3*(T-4) + 2].append(v[0]); slots[3*(T-4) + 3].append(v[1])
    if not tail:
        sm = softmax_ops(s + 1, 0)
        spread(slots, sm, 0, 23)
        slots[16].append([waitcnt(vm=8, lgkm=0), barrier()])
        for i in range(3): slots[17 + i].append(k_read(s + 2, i))
        b = dma_batch([(s + 1) % 4, (s + 1) % 4, s % 4, s % 4], kvflags)
        for j, grp in enumerate(b):
            slots[17 + j].append(grp[0]); slots[18 + j].append(grp[1]); slots[19 + j].append(grp[2])
    return emit(mf, slots)

def att_prologue(kvflags):
    o = []
    o.append(raw(f"s_sub_u32 s{S_O[2]}, s{S_O[2]}, 8192")); o.append(raw(f"s_sub_u32 s{S_O[3]}, s{S_O[3]}, 8192"))
    for i in range(3): o.append(k_read(0, i))
    mf = qk_mfmas(0)
    slots = [[] for _ in mf]
    for i in range(5): slots[3*i].append(k_read(0, i + 3))
    o += emit(mf, slots)
    o += [waitcnt(vm=8, lgkm=0), barrier()]
    for i in range(3): o.append(k_read(1, i))
    for grp in dma_batch([0, 0, 3, 3], kvflags): o += grp
    o += softmax_ops(0, 0)
    return o

def epilogue():
    o = []
    t = VT
    for qt in range(3):
        l = LSUM[qt]
        o += [valu("v_mov_b32", t[qt], l), perm32(t[qt], l), valu("v_add_f32", l, l, t[qt])]
    for qt in range(3):
        l = LSUM[qt]
        o += [valu("v_mov_b32", t[qt], l), perm16(t[qt], l), valu("v_add_f32", l, l, t[qt])]
    for qt in range(3): o.append(vrcp(t[qt], LSUM[qt]))
    for qt in range(3):
        o.append(raw(f"s_mul_i32 s{S_T[3]}, s{S_B}, 12")); o.append(raw(f"s_mul_i32 s{S_T[4]}, s{S_RG}, 3"))
        o.append(raw(f"s_add_u32 s{S_T[3]}, s{S_T[3]}, s{S_T[4]}")); o.append(raw(f"s_add_u32 s{S_T[3]}, s{S_T[3]}, {qt}"))
        o.append(raw(f"s_lshr_b32 s{S_T[4]}, s{S_T[3]}, 3")); o.append(raw(f"s_lshl_b32 s{S_T[4]}, s{S_T[4]}, 20"))
        o.append(raw(f"s_and_b32 s{S_T[3]}, s{S_T[3]}, 7")); o.append(raw(f"s_lshl_b32 s{S_T[3]}, s{S_T[3]}, 10"))
        o.append(raw(f"s_add_u32 s{S_T[qt]}, s{S_T[3]}, s{S_T[4]}"))
    for qt in range(3):
        for c in range(4):
            a = acc(2*c, qt); b = acc(2*c+1, qt)
            for r in range(4):
                o.append(valu("v_mul_f32", a + r, a + r, t[qt])); o.append(valu("v_mul_f32", b + r, b + r, t[qt]))
            o += [cvtpk(a, a, a+1), cvtpk(a+1, a+2, a+3), cvtpk(a+2, b, b+1), cvtpk(a+3, b+2, b+3)]
            o.append(bstore(a, 4, V_L16, SRDO, S_T[qt]))
            if c < 3: o.append(raw(f"s_add_u32 s{S_T[qt]}, s{S_T[qt]}, 8192"))
    o.append(waitcnt(vm=0))
    return o

def build(name, kvflags=("nt","nt","nt","nt"), stamps=False):
    ST = (lambda i, real=False: stamp(i, real)) if stamps else (lambda i, real=False: [])
    out = [label(name)]
    pro = ST(0) + ST(6, True) + prologue(name, kvflags) + ST(1)
    pro.append(raw(f"s_mov_b32 s{S_CNT}, 5"))
    qbody = [label(f"{name}_qloop"), raw(f"s_cmp_eq_u32 s{S_CNT}, 1"), raw(f"s_cbranch_scc0 {name}_qns")]
    sw = q_switch()
    qb = []
    for u in range(4): qb += q_iter(u)
    qb += [raw(f"s_sub_u32 s{S_CNT}, s{S_CNT}, 1"), raw(f"s_cmp_lg_u32 s{S_CNT}, 0"), raw(f"s_cbranch_scc1 {name}_qloop")]
    pro2, qb2, st = resolve_loop(pro, qbody + sw + [label(f"{name}_qns")] + qb)
    out += pro2 + qb2
    mid = [waitcnt(lgkm=0)] + ST(2) + q_convert() + ST(3) + att_prologue(kvflags) + [raw(f"s_mov_b32 s{S_CNT}, 4")]
    body = [label(f"{name}_aloop")]
    for u in range(3): body += h0(u) + h1(u, kvflags=kvflags)
    body += [raw(f"s_cmp_eq_u32 s{S_CNT}, 1"), raw(f"s_cbranch_scc1 {name}_tail")]
    pre_tail_len = len(body)
    body += h0(3) + h1(3, kvflags=kvflags)
    body += [raw(f"s_sub_u32 s{S_CNT}, s{S_CNT}, 1"), raw(f"s_branch {name}_aloop")]
    mid2, st1 = resolve(mid, st)
    _, body2, _ = resolve_loop([], body, st1)
    idx = [i for i, x in enumerate(body2) if x.txt.startswith(f"s_cbranch_scc1 {name}_tail")][0]
    _, sA = resolve(body2, st1.copy(), insert=False)
    _, sB = resolve(body2[:idx+1], sA.copy(), insert=False)
    tail = [label(f"{name}_tail")] + h0(3, tail=True) + h1(3, tail=True) + ST(4) + epilogue() + ST(5) + ST(7, True) + (stamp_dump(8, S_PTR+8, S_W, 64<<20, 12) if stamps else [])
    tail2, _ = resolve(tail, sB)
    out += mid2 + body2 + tail2
    out += [label(f"{name}_end"), raw("s_endpgm")]
    return out
```

```python
from asmlib import *

WSLOT = 4224
NRING = 4
BF = 32
AF = 160
V_OFFO = 8
V_OFFW = 2; V_AW = 3; V_T = [4, 5, 6, 7]
S_W = 4
SRDO, SRDW, SRDOUT = 12, 16, 20
S_OO, S_OW = 24, 25
S_OWB = [26, 27, 28, 29]
S_L = 30; S_CNT = 31
S_T = [32, 33, 34, 35]
S_PTR = 36

def ar(base, n): return f"a[{base}:{base+n-1}]"
def accq(rt, Tc): return (rt * 4 + Tc) * 4

def mfma_acc(rt, Tc, a, b, zero=False):
    d = accq(rt, Tc)
    D = [1000 + d + i for i in range(4)]
    c = "0" if zero else ar(d, 4)
    return I(f"v_mfma_f32_16x16x32_bf16 {ar(d,4)}, {vr(a,4)}, {vr(b,4)}, {c}",
             rd=R(a,4)+R(b,4)+([] if zero else D), wr=D, kind="mfma", cdst=(R(a,4), R(b,4), [] if zero else D, D))

OFLAGS=''; WFLAGS=''
def loads(u):
    o = []
    for j in range(8):
        o.append([bload(BF + 32*u + 4*j, 4, V_OFFO + j//4, SRDO, S_OO, off=(j%4)*1024, flags=OFLAGS)])
    o[-1].append(salu(f"s_add_u32 s{S_OO}, s{S_OO}, 32768"))
    for b in range(4):
        o.append([m0set(S_L, u * WSLOT + b * 1056), nop(0), dma(V_OFFW, SRDW, S_OWB[b], WFLAGS), salu(f"s_add_u32 s{S_OWB[b]}, s{S_OWB[b]}, {128*1280}")])
    return o

def a_reads(u, st):
    o = []
    for Tc in range(4):
        off = u * WSLOT + Tc * 32
        o.append(dstr(AF + 16*st + 4*Tc, V_AW, off)); o.append(dstr(AF + 16*st + 4*Tc + 2, V_AW, off + 512))
    return o

def step(u, first=False):
    st = u % 2
    mf = [mfma_acc(rt, Tc, AF + 16*st + 4*Tc, BF + 32*u + 4*rt) for rt in range(8) for Tc in range(4)]
    slots = [[] for _ in mf]
    return mf, slots

def build(name, stamps=False, no_o=False, no_w=False, oflags='', wflags=''):
    global OFLAGS, WFLAGS
    OFLAGS, WFLAGS = oflags, wflags
    ST = (lambda i, real=False: stamp(i, real)) if stamps else (lambda i, real=False: [])
    P = []
    A = lambda t, **k: P.append(raw(t, **k))
    P.append(label(name))
    P.extend(ST(0)); P.extend(ST(6, True))
    A("s_cmp_ge_u32 s2, 240"); A(f"s_cbranch_scc1 {name}_end")
    t0, t1, t2, t3 = S_T
    A("s_and_b32 s3, s2, 7"); A(f"s_lshr_b32 s{t0}, s2, 3")
    A(f"s_lshr_b32 s5, s3, 2")
    A("s_and_b32 s3, s3, 3"); A("s_mul_i32 s3, s3, 3")
    A(f"s_mul_i32 s{t1}, s{t0}, 6554"); A(f"s_lshr_b32 s{t1}, s{t1}, 16")
    A(f"s_add_u32 s6, s3, s{t1}")
    A(f"s_mul_i32 s{t1}, s{t1}, 10"); A(f"s_sub_u32 s7, s{t0}, s{t1}")
    A(f"s_mul_i32 s3, s5, 40"); A("s_add_u32 s3, s3, 32")
    A(f"s_load_dwordx2 s[{S_PTR}:{S_PTR+1}], s[0:1], s3")
    A(f"s_load_dwordx2 s[{S_PTR+2}:{S_PTR+3}], s[0:1], 80")
    A(f"s_load_dwordx2 s[{S_PTR+4}:{S_PTR+5}], s[0:1], 96")
    P.append(valu("v_lshrrev_b32", V_T[0], "6", 0)); P.append(valu("v_and_b32", 0, "63", 0))
    A("s_nop 0"); A(f"v_readfirstlane_b32 s{S_W}, v{V_T[0]}"); A("s_nop 3")
    g, m, r, c = V_T
    P.append(valu("v_lshrrev_b32", g, "4", 0)); P.append(valu("v_and_b32", m, "15", 0))
    P.append(valu("v_bfe_u32", r, 0, "2", "2")); P.append(valu("v_and_b32", c, "3", 0))
    P.append(valu("v_lshlrev_b32", V_OFFO, "4", 0))
    P.append(valu("v_add_u32", V_OFFO + 1, "4096", V_OFFO))
    P.append(valu("v_lshrrev_b32", 16, "3", 0)); P.append(valu("v_mul_u32_u24", 16, "5120", 16))
    P.append(valu("v_and_b32", 17, "7", 0)); P.append(valu("v_lshl_add_u32", V_OFFW, 17, "4", 16))
    P.append(valu("v_mul_u32_u24", 16, "1056", r)); P.append(valu("v_lshl_add_u32", 16, g, "7", 16)); P.append(valu("v_lshl_add_u32", 16, c, "3", 16))
    A(f"s_mul_i32 s{S_L}, s{S_W}, {NRING*WSLOT}")
    P.append(valu("v_add_u32", V_AW, f"s{S_L}", 16))
    A("s_waitcnt lgkmcnt(0)")
    def srd(dst, ptr, nrec):
        A(f"s_add_u32 s{dst}, s{ptr}, s{t0}"); A(f"s_addc_u32 s{dst+1}, s{ptr+1}, 0"); A(f"s_and_b32 s{dst+1}, s{dst+1}, 0xffff")
        A(f"s_mov_b32 s{dst+2}, {nrec}"); A(f"s_mov_b32 s{dst+3}, 0x20000")
    A(f"s_mul_i32 s{t0}, s5, 12"); A(f"s_add_u32 s{t0}, s{t0}, s6"); A(f"s_lshl_b32 s{t0}, s{t0}, 20")
    srd(SRDO, S_PTR+4, 0 if no_o else 1048576)
    A(f"s_lshl_b32 s{t0}, s7, 7")
    srd(SRDW, S_PTR, 0 if no_w else 4096*1280 - 9*128)
    A(f"s_mul_i32 s{t0}, s6, {128*2560}"); A(f"s_mul_i32 s{t1}, s5, 1280"); A(f"s_add_u32 s{t0}, s{t0}, s{t1}")
    A(f"s_lshl_b32 s{t1}, s7, 7"); A(f"s_add_u32 s{t0}, s{t0}, s{t1}")
    srd(SRDOUT, S_PTR+2, 127*2560 + 128)
    A(f"s_lshl_b32 s{S_OO}, s{S_W}, 13")
    A(f"s_mul_i32 s{t0}, s{S_W}, {32*1280}")
    for b in range(4): A(f"s_add_u32 s{S_OWB[b]}, s{t0}, {b*1280}")
    for u in range(3):
        for grp in loads(u): P.extend(grp)
    for i in range(128): P.append(I(f"v_accvgpr_write_b32 a{i}, 0", wr=[1000+i], kind="valu"))
    P.append(waitcnt(vm=24))
    P.extend(ST(1))
    P.extend(a_reads(0, 0))
    A(f"s_mov_b32 s{S_CNT}, 8")
    body = [label(f"{name}_loop")]
    for u in range(4):
        st = u % 2
        mf = [mfma_acc(rt, Tc, AF + 16*st + 4*Tc, BF + 32*u + 4*rt) for rt in range(8) for Tc in range(4)]
        slots = [[] for _ in mf]
        ld = loads((u + 3) % 4)
        for j, grp in enumerate(ld): slots[1 + 2*j] += grp
        slots[26].append(waitcnt(vm=24))
        rd = a_reads((u + 1) % 4, 1 - st)
        for j, x in enumerate(rd): slots[min(31, 26 + j//2 + 0)].append(x)
        for m_, fs in zip(mf, slots):
            body.append(m_); body += fs
    body += [raw(f"s_sub_u32 s{S_CNT}, s{S_CNT}, 1"), raw(f"s_cmp_lg_u32 s{S_CNT}, 0"), raw(f"s_cbranch_scc1 {name}_loop")]
    P2, body2, st = resolve_loop(P, body)
    E = []
    A = lambda t, **k: E.append(raw(t, **k))
    E.extend(ST(2))
    E.append(waitcnt(vm=0, lgkm=0)); E.append(barrier())
    E.extend(ST(3))
    E.append(valu("v_lshlrev_b32", 16, "4", 0))
    A(f"s_lshl_b32 s{t0}, s{S_W}, 15")
    E.append(valu("v_add_u32", 17, f"s{t0}", 16))
    for tl in range(32):
        d = 32 + 4*(tl % 8)
        for i in range(4): E.append(I(f"v_accvgpr_read_b32 v{d+i}, a{tl*4+i}", rd=[1000+tl*4+i], wr=[d+i], kind="valu"))
        E.append(dsw128(17, d, tl*1024))
    E.append(waitcnt(lgkm=0)); E.append(barrier())
    A(f"s_lshl_b32 s{t0}, s{S_W}, 13")
    E.append(valu("v_add_u32", 17, f"s{t0}", 16))
    E.append(valu("v_add_u32", 18, "65536", 17))
    for p in range(4):
        for t in range(8):
            E.append(ds128(32 + (p*8 + t)*4, 17 if p < 2 else 18, (p % 2)*32768 + t*1024))
    for t in range(8):
        for i in range(4):
            a = 32 + t*4 + i
            E.append(valu("v_add_f32", a, a, a + 32));
        for i in range(4):
            a = 32 + t*4 + i
            E.append(valu("v_add_f32", a + 64, a + 64, a + 96))
        for i in range(4):
            a = 32 + t*4 + i
            E.append(valu("v_add_f32", a, a, a + 64))
    E.append(valu("v_and_b32", 19, "1", g)); E.append(valu("v_lshlrev_b32", 19, "1", 19)); E.append(valu("v_lshrrev_b32", 20, "1", g))
    E.append(valu("v_or_b32", 19, 19, 20)); E.append(valu("v_lshlrev_b32", 19, "4", 19))
    E.append(valu("v_mul_u32_u24", 20, "2560", m)); E.append(valu("v_add_u32", 19, 19, 20))
    A(f"s_mul_i32 s{t0}, s{S_W}, {32*2560}"); A(f"s_add_u32 s{t1}, s{t0}, {16*2560}")
    for rr in range(2):
        for pr in range(2):
            a = 32 + (rr*4 + 2*pr)*4; b = a + 4; q = 160 + (rr*2 + pr)*4
            E += [cvtpk(q, a, a+1), cvtpk(q+1, a+2, a+3), cvtpk(q+2, b, b+1), cvtpk(q+3, b+2, b+3), perm16(q, q+2), perm16(q+1, q+3)]
            E.append(bstore(q, 4, 19, SRDOUT, t0 if rr == 0 else t1, off=pr*64))
    E.append(waitcnt(vm=0))
    E.extend(ST(4)); E.extend(ST(5)); E.extend(ST(7, True))
    if stamps: E.extend(stamp_dump(8, S_PTR+4, S_W, 96<<20, 16))
    E2, _ = resolve(E, st)
    return P2 + body2 + E2 + [label(f"{name}_end"), raw("s_endpgm")]
```

```python
import sys
sys.path.insert(0, "gen")
from asmlib import *
import k1, k2
HDR = open("concat_heads__mha_block_cached__gqa_block_cached__near_ridge.s.ref").read().split("; Override launch")[0]
def desc(name, vgpr, accum, sgpr=96):
    return f""".section .rodata,"a"
.p2align 6
.amdhsa_kernel {name}
  .amdhsa_next_free_vgpr {vgpr}
  .amdhsa_next_free_sgpr {sgpr}
  .amdhsa_accum_offset {accum}
  .amdhsa_group_segment_fixed_size 0
  .amdhsa_kernarg_size 104
  .amdhsa_user_sgpr_count 2
  .amdhsa_user_sgpr_kernarg_segment_ptr 1
  .amdhsa_system_sgpr_workgroup_id_x 1
.end_amdhsa_kernel
.text
"""
def kern(name, seq):
    return f".globl {name}\n.p2align 8\n.type {name},@function\n" + text(seq)
def main(out, stamps=False, k1o={}, k2o={}):
    s = HDR
    s += "; @launch kernel=qattn_kernel grid=(256,1,1) block=(512,1,1) lds=135168\n"
    s += "; @launch kernel=oproj_kernel grid=(240,1,1) block=(256,1,1) lds=131072\n"
    s += '.amdgcn_target "amdgcn-amd-amdhsa--gfx950"\n.text\n'
    s += kern("qattn_kernel", k1.build("qattn_kernel", stamps=stamps, **k1o)) + desc("qattn_kernel", 256, 256, 100)
    s += kern("oproj_kernel", k2.build("oproj_kernel", stamps=stamps, **k2o)) + desc("oproj_kernel", 384, 256, 100)
    open(out, "w").write(s)
if __name__ == "__main__":
    import json
    k1o = json.loads(sys.argv[3]) if len(sys.argv) > 3 else {}
    k2o = json.loads(sys.argv[4]) if len(sys.argv) > 4 else {}
    if "kvflags" in k1o: k1o["kvflags"] = tuple(k1o["kvflags"])
    main(sys.argv[1], stamps=(len(sys.argv) > 2 and sys.argv[2] == "stamps"), k1o=k1o, k2o=k2o)
```

```python
import re

class I:
    __slots__ = ("txt", "rd", "wr", "kind", "cdst", "meta")
    def __init__(self, txt, rd=(), wr=(), kind="other", cdst=None, meta=None):
        self.txt = txt
        self.rd = tuple(rd)
        self.wr = tuple(wr)
        self.kind = kind
        self.cdst = cdst
        self.meta = meta
    def __repr__(self): return self.txt

def R(base, n): return list(range(base, base + n))
def vr(base, n):
    return f"v{base}" if n == 1 else f"v[{base}:{base+n-1}]"
def sr(base, n):
    return f"s{base}" if n == 1 else f"s[{base}:{base+n-1}]"

def mfma16(d, a, b, c):
    ctxt = "0" if c is None else vr(c, 4)
    crd = [] if c is None else R(c, 4)
    return I(f"v_mfma_f32_16x16x32_bf16 {vr(d,4)}, {vr(a,4)}, {vr(b,4)}, {ctxt}",
             rd=R(a,4)+R(b,4)+crd, wr=R(d,4), kind="mfma", cdst=(R(a,4), R(b,4), crd, R(d,4)))

def valu(op, dst, *srcs, kind="valu", extra_rd=(), extra_wr=()):
    ts = [f"v{s}" if isinstance(s, int) else s for s in srcs]
    return I(f"{op} v{dst}, " + ", ".join(ts), rd=[s for s in srcs if isinstance(s, int)]+list(extra_rd), wr=[dst]+list(extra_wr), kind=kind)

def vexp(dst, src): return valu("v_exp_f32", dst, src, kind="trans")
def vrcp(dst, src): return valu("v_rcp_f32", dst, src, kind="trans")
def cvtpk(dst, a, b): return valu("v_cvt_pk_bf16_f32", dst, a, b)
def perm16(a, b): return I(f"v_permlane16_swap_b32 v{a}, v{b}", rd=[a,b], wr=[a,b], kind="perm")
def perm32(a, b): return I(f"v_permlane32_swap_b32 v{a}, v{b}", rd=[a,b], wr=[a,b], kind="perm")
def pkmul(dst, a, b_txt):
    return I(f"v_pk_mul_f32 {vr(dst,2)}, {vr(a,2)}, {b_txt}", rd=R(a,2), wr=R(dst,2), kind="valu")

def ds128(dst, addr, off):
    assert 0 <= off < 65536, off
    return I(f"ds_read_b128 {vr(dst,4)}, v{addr} offset:{off}", rd=[addr], wr=R(dst,4), kind="dsr")
def dstr(dst, addr, off):
    assert 0 <= off < 65536, off
    return I(f"ds_read_b64_tr_b16 {vr(dst,2)}, v{addr} offset:{off}", rd=[addr], wr=R(dst,2), kind="dsr")
def dsr32(dst, addr, off=0):
    return I(f"ds_read_b32 v{dst}, v{addr} offset:{off}", rd=[addr], wr=[dst], kind="dsr")
def dsw128(addr, src, off):
    assert 0 <= off < 65536, off
    return I(f"ds_write_b128 v{addr}, {vr(src,4)} offset:{off}", rd=[addr]+R(src,4), wr=[], kind="dsw")
def dsw32(addr, src, off=0):
    return I(f"ds_write_b32 v{addr}, v{src} offset:{off}", rd=[addr, src], wr=[], kind="dsw")

def salu(txt, wr_m0=False): return I(txt, kind="salu", wr=(["m0"] if wr_m0 else []))
def m0set(sreg, imm):
    if imm == 0: return I(f"s_mov_b32 m0, s{sreg}", kind="salu", wr=["m0"])
    return I(f"s_add_u32 m0, s{sreg}, {imm}", kind="salu", wr=["m0"])
def dma(voff, srd, soff, flags=""):
    fl = (" " + flags) if flags else ""
    return I(f"buffer_load_dwordx4 v{voff}, {sr(srd,4)}, s{soff} offen{fl} lds", rd=[voff, "m0"], kind="dma")
def bload(dst, n, voff, srd, soff, off=0, flags=""):
    nm = {1:"dword",2:"dwordx2",4:"dwordx4"}[n]
    fl = (" " + flags) if flags else ""
    so = f"s{soff}" if isinstance(soff, int) else soff
    o = f" offset:{off}" if off else ""
    return I(f"buffer_load_{nm} {vr(dst,n)}, v{voff}, {sr(srd,4)}, {so} offen{o}{fl}", rd=[voff], wr=R(dst,n), kind="vload")
def bstore(src, n, voff, srd, soff, off=0, flags=""):
    nm = {1:"dword",2:"dwordx2",4:"dwordx4"}[n]
    fl = (" " + flags) if flags else ""
    so = f"s{soff}" if isinstance(soff, int) else soff
    o = f" offset:{off}" if off else ""
    return I(f"buffer_store_{nm} {vr(src,n)}, v{voff}, {sr(srd,4)}, {so} offen{o}{fl}", rd=[voff]+R(src,n), kind="vstore", meta=R(src,n))
def waitcnt(vm=None, lgkm=None):
    p = []
    if vm is not None: p.append(f"vmcnt({vm})")
    if lgkm is not None: p.append(f"lgkmcnt({lgkm})")
    return I("s_waitcnt " + " ".join(p), kind="wait", meta=(vm, lgkm))
def barrier(): return I("s_barrier", kind="barrier")
def nop(n): return I(f"s_nop {n}", kind="nop", meta=n)
def label(n): return I(f"{n}:", kind="label")
def raw(t, kind="other", rd=(), wr=()): return I(t, kind=kind, rd=rd, wr=wr)

class State:
    def __init__(self):
        self.pos = 0
        self.lds = []
        self.valu_w = {}; self.trans_w = {}; self.mfma_w = {}; self.mfma_wrange = {}
        self.mfma_c = {}; self.store_rd = {}; self.m0_w = -100
    def copy(self):
        s = State(); s.pos = self.pos; s.lds = [list(x) for x in self.lds]
        s.valu_w = dict(self.valu_w); s.trans_w = dict(self.trans_w); s.mfma_w = dict(self.mfma_w)
        s.mfma_wrange = dict(self.mfma_wrange); s.mfma_c = dict(self.mfma_c); s.store_rd = dict(self.store_rd); s.m0_w = self.m0_w
        return s

def need_wait_lgkm(st, ins):
    regs = set(r for r in list(ins.rd) + list(ins.wr) if isinstance(r, int))
    n = None
    for i, d in enumerate(st.lds):
        if regs & set(d):
            after = len(st.lds) - 1 - i
            n = after if n is None else min(n, after)
    return n

def need_nops(st, ins):
    need = 0
    def req(q, n):
        nonlocal need
        if q is None: return
        have = st.pos - q - 1
        if have < n: need = max(need, n - have)
    k = ins.kind
    rd = [r for r in ins.rd if isinstance(r, int)]
    wr = [r for r in ins.wr if isinstance(r, int)]
    if k == "mfma":
        A, B, C, D = ins.cdst
        for r in A + B + C:
            req(st.valu_w.get(r), 2)
        for r in A + B:
            req(st.mfma_w.get(r), 8)
        for r in C:
            if r in st.mfma_w and st.mfma_wrange.get(r) != tuple(C):
                req(st.mfma_w.get(r), 6)
        for r in D:
            if r in st.mfma_w and (tuple(C) != tuple(D)):
                req(st.mfma_w.get(r), 6)
    elif k in ("valu", "trans", "perm"):
        for r in rd + wr: req(st.mfma_w.get(r), 8)
        for r in wr:
            req(st.mfma_c.get(r), 3)
            req(st.store_rd.get(r), 2)
        if k != "trans":
            for r in rd: req(st.trans_w.get(r), 1)
        if k == "perm":
            for r in rd: req(st.valu_w.get(r), 2)
    elif k in ("dsr", "vload"):
        for r in rd + wr: req(st.mfma_w.get(r), 8)
        for r in wr: req(st.store_rd.get(r), 1)
    elif k in ("dsw", "vstore", "dma"):
        for r in rd: req(st.mfma_w.get(r), 8)
        if k == "dma" and "m0" in ins.rd: req(st.m0_w, 1)
    return need

def advance(st, ins):
    k = ins.kind
    p = st.pos
    if k == "nop":
        st.pos += ins.meta + 1; return
    if k == "label": return
    if k == "wait":
        vm, lg = ins.meta
        if lg is not None:
            while len(st.lds) > lg: st.lds.pop(0)
    elif k == "mfma":
        A, B, C, D = ins.cdst
        for r in D:
            st.mfma_w[r] = p; st.mfma_wrange[r] = tuple(D); st.valu_w.pop(r, None); st.trans_w.pop(r, None)
        for r in C: st.mfma_c[r] = p
    elif k in ("valu", "trans", "perm"):
        for r in ins.wr:
            if isinstance(r, int):
                st.valu_w[r] = p; st.mfma_w.pop(r, None)
                if k == "trans": st.trans_w[r] = p
                else: st.trans_w.pop(r, None)
    elif k == "dsr":
        st.lds.append([r for r in ins.wr])
        for r in ins.wr: st.mfma_w.pop(r, None); st.valu_w.pop(r, None); st.trans_w.pop(r, None)
    elif k == "dsw":
        st.lds.append([])
    elif k == "vstore":
        for r in ins.meta: st.store_rd[r] = p
    elif k == "vload":
        for r in ins.wr: st.mfma_w.pop(r, None); st.valu_w.pop(r, None); st.trans_w.pop(r, None)
    if "m0" in ins.wr: st.m0_w = p
    st.pos += 1

def resolve(seq, st=None, insert=True, where=""):
    st = st or State()
    out = []
    for ins in seq:
        if ins.kind not in ("label", "nop", "wait", "barrier"):
            n = need_wait_lgkm(st, ins)
            if n is not None:
                if not insert: raise RuntimeError(f"{where}: missing lgkmcnt({n}) before {ins.txt}")
                w = waitcnt(lgkm=min(n, 15)); out.append(w); advance(st, w)
            k = need_nops(st, ins)
            if k > 0:
                if not insert: raise RuntimeError(f"{where}: missing {k} wait states before {ins.txt}")
                while k > 0:
                    c = min(k, 16); w = nop(c - 1); out.append(w); advance(st, w); k -= c
        out.append(ins); advance(st, ins)
    return out, st

def resolve_loop(pro, body, st=None):
    pro2, st1 = resolve(pro, st)
    b1, st2 = resolve(body, st1.copy())
    b2, st3 = resolve(body, st2.copy())
    cur = b2
    for _ in range(4):
        try:
            _, sA = resolve(cur, st1.copy(), insert=False, where="loop-first")
            _, sB = resolve(cur, sA.copy(), insert=False, where="loop-steady")
            return pro2, cur, sB
        except RuntimeError as e:
            cur, sA = resolve(cur, st1.copy())
            cur, sB = resolve(cur, sA.copy())
    raise RuntimeError("loop resolve did not converge")

def text(seq):
    o = []
    for i in seq:
        o.append(i.txt if i.kind == "label" else "  " + i.txt)
    return "\n".join(o) + "\n"

def interleave(mf, fillers, start=0, end=None):
    end = len(mf) if end is None else end
    slots = [[] for _ in mf]
    n = len(fillers); m = end - start
    for i, f in enumerate(fillers):
        s = start + (i * m) // n
        slots[s].append(f)
    return slots


STAMP_BASE = 80
def stamp(i, real=False):
    r = STAMP_BASE + 2*i
    return [raw(f"s_memtime s[{r}:{r+1}]" if not real else f"s_memrealtime s[{r}:{r+1}]"), waitcnt(lgkm=0)]
def stamp_dump(n, ws_ptr_sgpr, wave_sgpr, region_off, vtmp, nwaves_shift=3):
    o = []
    A = lambda t: o.append(raw(t))
    A(f"s_add_u32 s12, s{ws_ptr_sgpr}, {region_off}"); A(f"s_addc_u32 s13, s{ws_ptr_sgpr+1}, 0"); A("s_and_b32 s13, s13, 0xffff")
    A("s_mov_b32 s14, 0x100000"); A("s_mov_b32 s15, 0x20000")
    A(f"s_lshl_b32 s96, s2, {nwaves_shift}"); A(f"s_add_u32 s96, s96, s{wave_sgpr}"); A("s_lshl_b32 s96, s96, 6")
    A(f"v_mov_b32 v{vtmp+1}, 0")
    for i in range(n):
        A(f"v_mov_b32 v{vtmp}, s{STAMP_BASE+2*i}")
        A(f"buffer_store_dword v{vtmp}, v{vtmp+1}, s[12:15], s96 offen offset:{4*i}")
        A("s_nop 1")
    A("s_waitcnt vmcnt(0)")
    return o
```

```python
from asmlib import *

SLOT = 33792
VPART = 16896
HEADK = 8448
ACC = 16; QF = 112
SX, SY, SZ = 160, 172, 184
PB = 196
KF = 214; VF = 230
QA = [160, 204]; QB = [192, 236]
V_OFFA, V_OFFB = 1, 2
A_K = [3, 4]; A_V = [5, 6]; A_W = [7, 8]; A_X = [9, 10]
LSUM = [7, 8, 9]
V_L16 = 11; VT = [12, 13, 14, 15]
V_TCH, V_DUMMY = 248, 249
S_W, S_HS, S_RG, S_BR, S_B, S_HP = 4, 5, 6, 7, 8, 9
SRDA, SRDB, SRDK, SRDV, SRDO = 12, 16, 20, 24, 28
S_O = [32, 33, 34, 35]; S_STA, S_STB = 36, 37; S_L = [38, 39, 40, 41]; S_CNT = 42
S_T = [43, 44, 45, 46, 47, 48, 49]
S_SC = 50
S_PTR = 52
SRDT, SRDWO = 64, 68
S_TO, S_TWO = 72, 73

def acc(T, qt): return ACC + (T * 3 + qt) * 4
def qf(qt, c): return QF + (qt * 4 + c) * 4
def slot_addr(regs, slot, off):
    return regs[slot // 2], (slot % 2) * SLOT + off

def dma_batch(slots, flags=("", "", "", "")):
    out = []
    for j in range(4):
        voff = V_OFFA if j < 2 else V_OFFB
        srd = SRDA if j < 2 else SRDB
        st = S_STA if j < 2 else S_STB
        out.append([m0set(S_L[j], slots[j] * SLOT), dma(voff, srd, S_O[j], flags[j]), salu(f"s_add_u32 s{S_O[j]}, s{S_O[j]}, s{st}")])
    return out

def touch(opts):
    st = opts.get("tstride", 32)
    return [bload(V_DUMMY, 1, V_TCH, SRDT, S_TO, flags=opts.get("tflags", "")), salu(f"s_add_u32 s{S_TO}, s{S_TO}, {128*st}")]

def prologue(name, opts):
    P = []
    A = lambda t, **k: P.append(raw(t, **k))
    A(f"s_cmp_ge_u32 s2, 256"); A(f"s_cbranch_scc1 {name}_end")
    A(f"s_and_b32 s3, s2, 7"); A(f"s_lshr_b32 s{S_T[0]}, s2, 3"); A(f"s_lshr_b32 s{S_BR}, s3, 2")
    A(f"s_and_b32 s3, s3, 3"); A(f"s_lshl_b32 s3, s3, 2")
    A(f"s_and_b32 s{S_HP}, s{S_T[0]}, 3"); A(f"s_add_u32 s{S_HP}, s{S_HP}, s3")
    A(f"s_lshr_b32 s{S_B}, s{S_T[0]}, 2")
    A(f"s_mul_i32 s3, s{S_BR}, 40")
    A(f"s_load_dwordx4 s[{S_PTR}:{S_PTR+3}], s[0:1], s3")
    A(f"s_add_u32 s{S_T[1]}, s3, 16")
    A(f"s_load_dwordx4 s[{S_PTR+4}:{S_PTR+7}], s[0:1], s{S_T[1]}")
    A(f"s_load_dwordx2 s[{S_PTR+8}:{S_PTR+9}], s[0:1], 96")
    A(f"s_add_u32 s{S_T[2]}, s3, 32")
    A(f"s_load_dwordx2 s[{S_PTR+10}:{S_PTR+11}], s[0:1], s{S_T[2]}")
    P.append(valu("v_lshrrev_b32", VT[0], "6", 0))
    P.append(valu("v_and_b32", 0, "63", 0))
    A("s_nop 0")
    A(f"v_readfirstlane_b32 s{S_W}, v{VT[0]}")
    A("s_nop 3")
    A(f"s_lshr_b32 s{S_HS}, s{S_W}, 2"); A(f"s_and_b32 s{S_RG}, s{S_W}, 3")
    g, m, r, c = VT
    P.append(valu("v_lshrrev_b32", g, "4", 0)); P.append(valu("v_and_b32", m, "15", 0))
    P.append(valu("v_bfe_u32", r, 0, "2", "2")); P.append(valu("v_and_b32", c, "3", 0))
    P.append(valu("v_lshlrev_b32", V_L16, "4", 0))
    T0, T1 = 16, 17
    P.append(valu("v_lshrrev_b32", T0, "5", 0)); P.append(valu("v_lshlrev_b32", T0, "15", T0))
    P.append(valu("v_and_b32", T1, "31", 0)); P.append(valu("v_lshlrev_b32", T1, "4", T1))
    P.append(valu("v_add_u32", V_OFFA, T0, T1))
    P.append(valu("v_lshrrev_b32", T0, "2", 0)); P.append(valu("v_lshrrev_b32", T1, "5", 0))
    P.append(valu("v_mul_u32_u24", T1, "3", T1)); P.append(valu("v_xor_b32", T1, c, T1)); P.append(valu("v_lshlrev_b32", T1, "4", T1))
    P.append(valu("v_mul_u32_u24", T0, "1280", T0)); P.append(valu("v_add_u32", V_OFFB, T0, T1))
    t0, t1 = S_T[0], S_T[1]
    A(f"s_lshl_b32 s{t0}, s{S_HS}, 3"); A(f"s_add_u32 s{t0}, s{t0}, s{S_RG}")
    A(f"s_lshl_b32 s{S_O[0]}, s{t0}, 13"); A(f"s_add_u32 s{S_O[1]}, s{S_O[0]}, {16*8192}")
    A(f"s_mul_i32 s{S_O[2]}, s{S_W}, {16*1280}"); A(f"s_add_u32 s{S_O[3]}, s{S_O[2]}, {8*16*1280}")
    A(f"s_mov_b32 s{S_STA}, {32*8192}"); A(f"s_mov_b32 s{S_STB}, 64")
    A(f"s_mul_i32 s{S_L[0]}, s{S_W}, 1056"); A(f"s_add_u32 s{S_L[1]}, s{S_L[0]}, {8*1056}")
    A(f"s_lshl_b32 s{S_L[2]}, s{S_W}, 10"); A(f"s_add_u32 s{S_L[2]}, s{S_L[2]}, {VPART}"); A(f"s_add_u32 s{S_L[3]}, s{S_L[2]}, {8*1024}")
    A("s_waitcnt lgkmcnt(0)")
    px, pk, pv, pw, pws = S_PTR, S_PTR+2, S_PTR+4, S_PTR+6, S_PTR+8
    def srd(dst, ptr, off_lo_expr, nrec):
        for t in off_lo_expr: A(t)
        A(f"s_add_u32 s{dst}, s{ptr}, s{t0}"); A(f"s_addc_u32 s{dst+1}, s{ptr+1}, 0")
        A(f"s_and_b32 s{dst+1}, s{dst+1}, 0xffff")
        A(f"s_mov_b32 s{dst+2}, {nrec}"); A(f"s_mov_b32 s{dst+3}, 0x20000")
    srd(SRDA, pw, [f"s_lshl_b32 s{t0}, s{S_HP}, 9"], 640*8192 - 15*512)
    srd(SRDB, px, [f"s_mul_i32 s{t0}, s{S_B}, 245760"], 245760)
    A(f"s_lshl_b32 s{t1}, s{S_B}, 5"); A(f"s_lshl_b32 s{t0}, s{S_HP}, 1"); A(f"s_add_u32 s{t1}, s{t1}, s{t0}"); A(f"s_add_u32 s{t1}, s{t1}, s{S_HS}")
    srd(SRDK, pk, [f"s_lshl_b32 s{t0}, s{t1}, 17"], 131072)
    srd(SRDV, pv, [f"s_lshl_b32 s{t0}, s{t1}, 17"], 131072)
    A(f"s_cmp_lt_u32 s{S_RG}, 2")
    for i in range(3): A(f"s_cselect_b32 s{SRDT+i}, s{SRDK+i}, s{SRDV+i}")
    A(f"s_mov_b32 s{SRDT+3}, 0x20000")
    st = opts.get("tstride", 32)
    P.append(valu("v_mul_u32_u24", V_TCH, str(st), 0))
    A(f"s_and_b32 s{S_TO}, s{S_RG}, 1"); A(f"s_mul_i32 s{S_TO}, s{S_TO}, {64*st}"); A(f"s_add_u32 s{S_TO}, s{S_TO}, {opts.get('tstart', 0)*8192}")
    for st in range(4):
        for grp in dma_batch([st]*4): P.extend([grp[0], nop(0)] + grp[1:])
        if st in tuple(opts.get("q_touch_u", (0, 2))): P.extend(touch(opts))
    A(f"s_mul_i32 s{t1}, s{S_BR}, {12*1048576}")
    A(f"s_lshl_b32 s{S_T[2]}, s{S_HP}, 1"); A(f"s_add_u32 s{S_T[2]}, s{S_T[2]}, s{S_HS}"); A(f"s_lshl_b32 s{S_T[2]}, s{S_T[2]}, 15")
    srd(SRDO, pws, [f"s_add_u32 s{t0}, s{t1}, s{S_T[2]}"], 12*1048576 - 31*32768)
    srd(SRDWO, S_PTR+10, [f"s_mov_b32 s{t0}, 0"], 4096*1280)
    A(f"s_lshr_b32 s{S_TWO}, s{S_HP}, 2"); A(f"s_lshl_b32 s{S_TWO}, s{S_TWO}, 5"); A(f"s_lshl_b32 s{t0}, s{S_B}, 2"); A(f"s_add_u32 s{S_TWO}, s{S_TWO}, s{t0}")
    A(f"s_and_b32 s{t0}, s{S_HP}, 3"); A(f"s_add_u32 s{S_TWO}, s{S_TWO}, s{t0}"); A(f"s_mul_i32 s{S_TWO}, s{S_TWO}, 40960")
    A(f"s_lshl_b32 s{t0}, s{S_W}, 13"); A(f"s_add_u32 s{S_TWO}, s{S_TWO}, s{t0}")
    A(f"s_mov_b32 s{S_SC}, 0x3e0293ee"); A(f"s_mov_b32 s{S_SC+1}, 0x3e0293ee")
    P.append(valu("v_lshl_add_u32", T0, g, "2", r)); P.append(valu("v_mul_u32_u24", T0, "1056", T0))
    P.append(valu("v_lshl_add_u32", T0, c, "3", T0))
    A(f"s_lshl_b32 s3, s{S_HS}, 8")
    P.append(valu("v_add_u32", A_W[0], "s3", T0)); P.append(valu("v_add_u32", A_W[1], str(2*SLOT), A_W[0]))
    P.append(valu("v_lshrrev_b32", T0, "3", m)); P.append(valu("v_mul_u32_u24", T0, "3", T0))
    P.append(valu("v_xor_b32", T0, g, T0)); P.append(valu("v_lshlrev_b32", T0, "4", T0))
    P.append(valu("v_lshl_add_u32", T0, m, "6", T0))
    A(f"s_mul_i32 s3, s{S_RG}, 3072"); A(f"s_add_u32 s3, s3, {VPART}")
    P.append(valu("v_add_u32", A_X[0], "s3", T0)); P.append(valu("v_add_u32", A_X[1], str(2*SLOT), A_X[0]))
    P.append(valu("v_and_b32", T0, "7", m))
    P.append(valu("v_lshrrev_b32", T1, "1", T0)); P.append(valu("v_lshlrev_b32", T1, "2", T1))
    P.append(valu("v_and_b32", A_K[1], "1", T0)); P.append(valu("v_add_u32", T1, T1, A_K[1]))
    P.append(valu("v_lshlrev_b32", T1, "4", T1)); P.append(valu("v_lshl_add_u32", T1, T0, "10", T1))
    P.append(valu("v_lshrrev_b32", T0, "3", m)); P.append(valu("v_lshl_add_u32", T1, T0, "8", T1))
    P.append(valu("v_and_b32", T0, "1", g)); P.append(valu("v_lshlrev_b32", T0, "1", T0))
    P.append(valu("v_lshrrev_b32", A_K[1], "1", g)); P.append(valu("v_or_b32", T0, T0, A_K[1]))
    P.append(valu("v_lshl_add_u32", T1, T0, "4", T1))
    A(f"s_mul_i32 s3, s{S_HS}, {HEADK}")
    P.append(valu("v_add_u32", A_K[0], "s3", T1)); P.append(valu("v_add_u32", A_K[1], str(2*SLOT), A_K[0]))
    P.append(valu("v_and_b32", T0, "1", g)); P.append(valu("v_lshl_add_u32", T0, T0, "2", r))
    P.append(valu("v_mul_u32_u24", T0, "1056", T0))
    P.append(valu("v_lshrrev_b32", T1, "1", g)); P.append(valu("v_lshl_add_u32", T0, T1, "8", T0))
    P.append(valu("v_lshl_add_u32", T0, c, "3", T0))
    A(f"s_add_u32 s3, s3, {VPART}")
    P.append(valu("v_add_u32", A_V[0], "s3", T0)); P.append(valu("v_add_u32", A_V[1], str(2*SLOT), A_V[0]))
    for i in range(96): P.append(valu("v_mov_b32", ACC + i, "0"))
    P.append(waitcnt(vm=12)); P.append(barrier())
    P.extend(q_frag_reads(0, 0))
    return P

def q_frag_reads(slot, st):
    out = []
    for qt in range(3):
        a, o = slot_addr(A_X, slot, qt * 1024)
        out.append(ds128(QB[st] + 4*qt, a, o))
    for T in range(8):
        a, o = slot_addr(A_W, slot, T * 32)
        out.append(dstr(QA[st] + 4*T, a, o)); out.append(dstr(QA[st] + 4*T + 2, a, o + 512))
    return out

def emit(mf, slots):
    out = []
    for m, fs in zip(mf, slots):
        out.append(m)
        for f in fs:
            if isinstance(f, list): out.extend(f)
            else: out.append(f)
    return out

def q_iter(u, vm, do_touch, opts, flags=("","","","")):
    st = u % 2
    out = [waitcnt(vm=vm, lgkm=0), barrier()]
    mf = [mfma16(acc(T, qt), QA[st] + 4*T, QB[st] + 4*qt, acc(T, qt)) for T in range(8) for qt in range(3)]
    slots = [[] for _ in mf]
    for i, rd in enumerate(q_frag_reads((u + 1) % 4, 1 - st)): slots[i].append(rd)
    for j, grp in enumerate(dma_batch([u]*4, flags)):
        slots[1 + 5*j].append(grp[0]); slots[2 + 5*j].append(grp[1]); slots[3 + 5*j].append(grp[2])
    if do_touch: slots[21] += touch(opts)
    return out + emit(mf, slots)

def vm_counts(touch_us):
    T = lambda i: 1 if (i % 4) in touch_us else 0
    return [T(u - 3) + 4 + T(u - 2) + 4 + T(u - 1) for u in range(4)]

def q_switch():
    o = []
    A = lambda t: o.append(raw(t))
    for i in range(4):
        A(f"s_mov_b32 s{SRDA+i}, s{SRDK+i}"); A(f"s_mov_b32 s{SRDB+i}, s{SRDV+i}")
    o.append(valu("v_mov_b32", V_OFFA, V_L16)); o.append(valu("v_mov_b32", V_OFFB, V_L16))
    t0, t1 = S_T[0], S_T[1]
    A(f"s_lshr_b32 s{t0}, s{S_RG}, 1"); A(f"s_lshl_b32 s{t0}, s{t0}, 2"); A(f"s_and_b32 s{t1}, s{S_RG}, 1"); A(f"s_add_u32 s{t0}, s{t0}, s{t1}")
    A(f"s_lshl_b32 s{t0}, s{t0}, 4"); A(f"s_lshl_b32 s{t1}, s{S_RG}, 10"); A(f"s_add_u32 s{t0}, s{t0}, s{t1}")
    A(f"s_mul_i32 s{t1}, s{S_HS}, {HEADK}")
    A(f"s_add_u32 s{S_L[0]}, s{t0}, s{t1}"); A(f"s_add_u32 s{S_L[1]}, s{S_L[0]}, {4096+128}")
    A(f"s_mul_i32 s{t0}, s{S_RG}, 1056"); A(f"s_add_u32 s{t0}, s{t0}, s{t1}")
    A(f"s_add_u32 s{S_L[2]}, s{t0}, {VPART}"); A(f"s_add_u32 s{S_L[3]}, s{S_L[2]}, {4*1056}")
    A(f"s_lshl_b32 s{S_O[0]}, s{S_RG}, 10"); A(f"s_add_u32 s{S_O[1]}, s{S_O[0]}, 4096")
    A(f"s_mov_b32 s{S_O[2]}, s{S_O[0]}"); A(f"s_mov_b32 s{S_O[3]}, s{S_O[1]}")
    A(f"s_mov_b32 s{S_STA}, 8192"); A(f"s_mov_b32 s{S_STB}, 8192")
    return o

def q_convert():
    o = []
    for qt in range(3):
        for T in range(8):
            a = acc(T, qt)
            o.append(pkmul(a, a, f"s[{S_SC}:{S_SC+1}]")); o.append(pkmul(a+2, a+2, f"s[{S_SC}:{S_SC+1}]"))
    for qt in range(3):
        for c in range(4):
            q = qf(qt, c); a = acc(2*c, qt); b = acc(2*c+1, qt)
            o += [cvtpk(q, a, a+1), cvtpk(q+1, a+2, a+3), cvtpk(q+2, b, b+1), cvtpk(q+3, b+2, b+3)]
    for qt in range(3):
        for c in range(4):
            q = qf(qt, c)
            o += [perm16(q, q+2), perm16(q+1, q+3)]
    for i in range(96): o.append(valu("v_mov_b32", ACC + i, "0"))
    for r in LSUM: o.append(valu("v_mov_b32", r, "0"))
    return o

def sreg(j, Tk, qt):
    if Tk == 0: return SX + 4*qt
    return (SY if j % 2 == 0 else SZ) + 4*qt
def preg(j, part, qt):
    base = PB + 6*qt
    if part == 1: return base + 2
    return base + (0 if j % 2 == 0 else 4)
def pop(j, qt): return PB + 6*qt + (0 if j % 2 == 0 else 2)

def k_read(j, i):
    a, o = slot_addr(A_K, j % 4, (i % 4) * 64 + (i // 4) * 512)
    return ds128(KF + 4*(i % 4), a, o)
def v_read(j, T):
    a, o = slot_addr(A_V, j % 4, T * 32)
    d = VF + 4*(T % 4)
    if j % 2 == 0: return [dstr(d, a, o), dstr(d+2, a, o + 512)]
    return [dstr(d+2, a, o), dstr(d, a, o + 512)]

def softmax_ops(j, part):
    ops = []
    for qt in range(3):
        s = sreg(j, part, qt); p = preg(j, part, qt)
        ops.append([vexp(s, s), vexp(s+1, s+1), vexp(s+2, s+2), vexp(s+3, s+3),
                    valu("v_add_f32", LSUM[qt], LSUM[qt], s), cvtpk(p, s, s+1), valu("v_add_f32", LSUM[qt], LSUM[qt], s+1),
                    valu("v_add_f32", LSUM[qt], LSUM[qt], s+2), cvtpk(p+1, s+2, s+3), valu("v_add_f32", LSUM[qt], LSUM[qt], s+3)])
    seq = []
    seq += ops[0][:4]
    for qt in range(1, 3):
        e = ops[qt][:4]; f = ops[qt-1][4:]
        seq += [e[0], f[0], f[1], e[1], f[2], e[2], f[3], f[4], e[3], f[5]]
    seq += ops[2][4:]
    return seq

def qk_mfmas(j):
    mf = []
    for Tk in range(2):
        for c in range(4):
            i = Tk*4 + c
            for qt in range(3):
                s = sreg(j, Tk, qt)
                mf.append(mfma16(s, KF + 4*(i % 4), qf(qt, c), None if c == 0 else s))
    return mf
def pv_mfmas(j):
    return [mfma16(acc(T, qt), VF + 4*(T % 4), pop(j, qt), acc(T, qt)) for T in range(8) for qt in range(3)]

def spread(slots, items, lo, hi):
    n = len(items); m = hi - lo
    for i, it in enumerate(items):
        slots[lo + (i * m) // n].append(it)

def h0(s, opts, tail=False):
    sm = softmax_ops(s, 1)
    vr_ = [v_read(s, T) for T in range(4)]
    if tail:
        out = []
        for v in vr_: out += v
        return out + sm
    mf = qk_mfmas(s + 1)
    slots = [[] for _ in mf]
    for i in range(5): slots[3*i].append(k_read(s + 1, i + 3))
    for T in range(4): slots[14 + 2*T].append(vr_[T][0]); slots[15 + 2*T].append(vr_[T][1])
    spread(slots, sm, 0, 23)
    if opts.get("att_touch", True): slots[8] += touch(opts)
    return emit(mf, slots)

def h1(s, opts, tail=False, kvflags=("", "", "", "")):
    mf = pv_mfmas(s)
    slots = [[] for _ in mf]
    for T in range(4, 8):
        v = v_read(s, T); slots[3*(T-4) + 2].append(v[0]); slots[3*(T-4) + 3].append(v[1])
    if not tail:
        sm = softmax_ops(s + 1, 0)
        spread(slots, sm, 0, 23)
        vm = opts["att_vm"]
        slots[16].append([waitcnt(vm=vm, lgkm=0), barrier()])
        for i in range(3): slots[17 + i].append(k_read(s + 2, i))
        b = dma_batch([(s + 1) % 4, (s + 1) % 4, s % 4, s % 4], kvflags)
        for j, grp in enumerate(b):
            slots[17 + j].append(grp[0]); slots[18 + j].append(grp[1]); slots[19 + j].append(grp[2])
    return emit(mf, slots)

def att_prologue(kvflags, opts, vm0):
    o = []
    o.append(raw(f"s_sub_u32 s{S_O[2]}, s{S_O[2]}, 8192")); o.append(raw(f"s_sub_u32 s{S_O[3]}, s{S_O[3]}, 8192"))
    for i in range(3): o.append(k_read(0, i))
    mf = qk_mfmas(0)
    slots = [[] for _ in mf]
    for i in range(5): slots[3*i].append(k_read(0, i + 3))
    o += emit(mf, slots)
    o += [waitcnt(vm=vm0, lgkm=0), barrier()]
    for i in range(3): o.append(k_read(1, i))
    for grp in dma_batch([0, 0, 3, 3], kvflags): o += [grp[0], nop(0)] + grp[1:]
    o += softmax_ops(0, 0)
    return o

def epilogue(opts):
    o = []
    t = VT
    if opts.get("touch_wo", True):
        o.append(valu("v_lshlrev_b32", V_TCH, "7", 0))
        o.append(raw(f"s_cmp_lt_u32 s{S_W}, 5")); o.append(raw(f"s_cbranch_scc0 {opts['name']}_nowo"))
        o.append(bload(V_DUMMY, 1, V_TCH, SRDWO, S_TWO))
        o.append(label(f"{opts['name']}_nowo"))
    for qt in range(3):
        l = LSUM[qt]
        o += [valu("v_mov_b32", t[qt], l), perm32(t[qt], l), valu("v_add_f32", l, l, t[qt])]
    for qt in range(3):
        l = LSUM[qt]
        o += [valu("v_mov_b32", t[qt], l), perm16(t[qt], l), valu("v_add_f32", l, l, t[qt])]
    for qt in range(3): o.append(vrcp(t[qt], LSUM[qt]))
    for qt in range(3):
        o.append(raw(f"s_mul_i32 s{S_T[3]}, s{S_B}, 12")); o.append(raw(f"s_mul_i32 s{S_T[4]}, s{S_RG}, 3"))
        o.append(raw(f"s_add_u32 s{S_T[3]}, s{S_T[3]}, s{S_T[4]}")); o.append(raw(f"s_add_u32 s{S_T[3]}, s{S_T[3]}, {qt}"))
        o.append(raw(f"s_lshr_b32 s{S_T[4]}, s{S_T[3]}, 3")); o.append(raw(f"s_lshl_b32 s{S_T[4]}, s{S_T[4]}, 20"))
        o.append(raw(f"s_and_b32 s{S_T[3]}, s{S_T[3]}, 7")); o.append(raw(f"s_lshl_b32 s{S_T[3]}, s{S_T[3]}, 10"))
        o.append(raw(f"s_add_u32 s{S_T[qt]}, s{S_T[3]}, s{S_T[4]}"))
    for qt in range(3):
        for c in range(4):
            a = acc(2*c, qt); b = acc(2*c+1, qt)
            for r in range(4):
                o.append(valu("v_mul_f32", a + r, a + r, t[qt])); o.append(valu("v_mul_f32", b + r, b + r, t[qt]))
            o += [cvtpk(a, a, a+1), cvtpk(a+1, a+2, a+3), cvtpk(a+2, b, b+1), cvtpk(a+3, b+2, b+3)]
            o.append(bstore(a, 4, V_L16, SRDO, S_T[qt]))
            if c < 3: o.append(raw(f"s_add_u32 s{S_T[qt]}, s{S_T[qt]}, 8192"))
    return o

def build(name, kvflags=("nt","nt","nt","nt"), stamps=False, **opts):
    opts["name"] = name
    ST = (lambda i, real=False: stamp(i, real)) if stamps else (lambda i, real=False: [])
    out = [label(name)]
    tus = tuple(opts.get("q_touch_u", (0, 2)))
    tl = tuple(opts.get("q_touch_last", (0, 2)))
    pro = ST(0) + ST(6, True) + prologue(name, opts) + ST(1)
    pro.append(raw(f"s_mov_b32 s{S_CNT}, 4"))
    vms = vm_counts(tus)
    qb = [label(f"{name}_qloop")]
    for u in range(4): qb += q_iter(u, vms[u], u in tus, opts)
    qb += [raw(f"s_sub_u32 s{S_CNT}, s{S_CNT}, 1"), raw(f"s_cmp_lg_u32 s{S_CNT}, 0"), raw(f"s_cbranch_scc1 {name}_qloop")]
    pro2, qb2, st = resolve_loop(pro, qb)
    out += pro2 + qb2
    Tm = lambda i: 1 if (i % 4) in tus else 0
    Tl = lambda i: 1 if i in tl else 0
    def T(i): return Tl(i) if i >= 0 else Tm(i)
    last = ST(2) + q_switch()
    for u in range(4):
        last += q_iter(u, T(u-3) + 4 + T(u-2) + 4 + T(u-1), u in tl, opts, kvflags)
    last2, st = resolve(last, st)
    out += last2
    vm0 = Tl(1) + 4 + Tl(2) + 4 + Tl(3)
    Aa = 1 if opts.get("att_touch", True) else 0
    opts["att_vm"] = min(Tl(2) + Tl(3) + 8 + Aa, Tl(3) + 8 + 2*Aa, 8 + 3*Aa)
    mid = [waitcnt(lgkm=0)] + ST(3) + q_convert() + att_prologue(kvflags, opts, vm0) + [raw(f"s_mov_b32 s{S_CNT}, 4")]
    body = [label(f"{name}_aloop")]
    for u in range(3): body += h0(u, opts) + h1(u, opts, kvflags=kvflags)
    body += [raw(f"s_cmp_eq_u32 s{S_CNT}, 1"), raw(f"s_cbranch_scc1 {name}_tail")]
    body += h0(3, opts) + h1(3, opts, kvflags=kvflags)
    body += [raw(f"s_sub_u32 s{S_CNT}, s{S_CNT}, 1"), raw(f"s_branch {name}_aloop")]
    mid2, st1 = resolve(mid, st)
    _, body2, _ = resolve_loop([], body, st1)
    idx = [i for i, x in enumerate(body2) if x.txt.startswith(f"s_cbranch_scc1 {name}_tail")][0]
    _, sA = resolve(body2, st1.copy(), insert=False)
    _, sB = resolve(body2[:idx+1], sA.copy(), insert=False)
    tail = [label(f"{name}_tail")] + h0(3, opts, tail=True) + h1(3, opts, tail=True) + ST(4) + epilogue(opts) + [waitcnt(vm=0)] + ST(5) + ST(7, True) + (stamp_dump(8, S_PTR+8, S_W, 64<<20, 12) if stamps else [])
    tail2, _ = resolve(tail, sB)
    out += mid2 + body2 + tail2
    out += [label(f"{name}_end"), raw("s_endpgm")]
    return out
```

```python
from asmlib import *

WSLOT = 4224
NRING = 4
BF = 32
AF = 160
V_OFFO = 8
V_OFFW = 2; V_AW = 3; V_T = [4, 5, 6, 7]
S_W = 4
SRDO, SRDW, SRDOUT = 12, 16, 20
S_OO = 24
S_OWB = [26, 27, 28, 29]
S_L = 30; S_CNT = 31
S_T = [32, 33, 34, 35]
S_PTR = 36
S_TAU, S_OFF, S_WO0, S_OO0 = 42, 43, 44, 45
OFLAGS=''; WFLAGS=''

def ar(base, n): return f"a[{base}:{base+n-1}]"
def accq(rt, Tc): return (rt * 4 + Tc) * 4

def mfma_acc(rt, Tc, a, b):
    d = accq(rt, Tc)
    D = [1000 + d + i for i in range(4)]
    return I(f"v_mfma_f32_16x16x32_bf16 {ar(d,4)}, {vr(a,4)}, {vr(b,4)}, {ar(d,4)}",
             rd=R(a,4)+R(b,4)+D, wr=D, kind="mfma", cdst=(R(a,4), R(b,4), D, D))

def step_addr(rot):
    t0, t1 = S_T[0], S_T[1]
    o = []
    if rot == "fake":
        o += [salu(f"s_and_b32 s{t0}, s{S_TAU}, 7")]
    elif rot == "fake2":
        o += [salu(f"s_add_u32 s{t0}, s{S_TAU}, s{S_OFF}"), salu(f"s_and_b32 s{t0}, s{t0}, 7")]
    elif rot:
        o += [salu(f"s_add_u32 s{t0}, s{S_TAU}, s{S_OFF}"), salu(f"s_and_b32 s{t0}, s{t0}, 7"),
              salu(f"s_andn2_b32 s{t1}, s{S_TAU}, 7"), salu(f"s_or_b32 s{t0}, s{t0}, s{t1}")]
    else:
        o += [salu(f"s_mov_b32 s{t0}, s{S_TAU}")]
    o += [salu(f"s_lshl_b32 s{t1}, s{t0}, 15"), salu(f"s_add_u32 s{S_OO}, s{S_OO0}, s{t1}"),
          salu(f"s_mul_i32 s{t1}, s{t0}, {128*1280}"), salu(f"s_add_u32 s{S_OWB[0]}, s{S_WO0}, s{t1}"),
          salu(f"s_add_u32 s{S_OWB[1]}, s{S_OWB[0]}, 1280"), salu(f"s_add_u32 s{S_OWB[2]}, s{S_OWB[0]}, 2560"),
          salu(f"s_add_u32 s{S_OWB[3]}, s{S_OWB[0]}, 3840"), salu(f"s_add_u32 s{S_TAU}, s{S_TAU}, 1")]
    return o

def loads(u):
    o = []
    for j in range(8):
        o.append([bload(BF + 32*u + 4*j, 4, V_OFFO + j//4, SRDO, S_OO, off=(j%4)*1024, flags=OFLAGS)])
    for b in range(4):
        o.append([m0set(S_L, u * WSLOT + b * 1056), nop(0), dma(V_OFFW, SRDW, S_OWB[b], WFLAGS)])
    return o

def a_reads(u, st):
    o = []
    for Tc in range(4):
        off = u * WSLOT + Tc * 32
        o.append(dstr(AF + 16*st + 4*Tc, V_AW, off)); o.append(dstr(AF + 16*st + 4*Tc + 2, V_AW, off + 512))
    return o

def build(name, stamps=False, no_o=False, no_w=False, oflags='', wflags='', rot=True):
    global OFLAGS, WFLAGS
    OFLAGS, WFLAGS = oflags, wflags
    ST = (lambda i, real=False: stamp(i, real)) if stamps else (lambda i, real=False: [])
    P = []
    A = lambda t, **k: P.append(raw(t, **k))
    P.append(label(name))
    P.extend(ST(0)); P.extend(ST(6, True))
    A("s_cmp_ge_u32 s2, 240"); A(f"s_cbranch_scc1 {name}_end")
    t0, t1, t2, t3 = S_T
    A("s_and_b32 s3, s2, 7"); A(f"s_lshr_b32 s{t0}, s2, 3")
    A(f"s_lshr_b32 s5, s3, 2")
    A(f"s_mul_i32 s3, s5, 40"); A("s_add_u32 s3, s3, 32")
    A(f"s_load_dwordx2 s[{S_PTR}:{S_PTR+1}], s[0:1], s3")
    A(f"s_load_dwordx2 s[{S_PTR+2}:{S_PTR+3}], s[0:1], 80")
    A(f"s_load_dwordx2 s[46:47], s[0:1], 96")
    A("s_and_b32 s3, s2, 7"); A("s_and_b32 s3, s3, 3"); A("s_mul_i32 s3, s3, 3")
    A(f"s_mul_i32 s{t1}, s{t0}, 6554"); A(f"s_lshr_b32 s{t1}, s{t1}, 16")
    A(f"s_add_u32 s6, s3, s{t1}")
    A(f"s_mul_i32 s{S_OFF}, s{t1}, 3")
    A(f"s_mul_i32 s{t1}, s{t1}, 10"); A(f"s_sub_u32 s7, s{t0}, s{t1}")
    A(f"s_add_u32 s{S_OFF}, s{S_OFF}, s7")
    P.append(valu("v_lshrrev_b32", V_T[0], "6", 0)); P.append(valu("v_and_b32", 0, "63", 0))
    A("s_nop 0"); A(f"v_readfirstlane_b32 s{S_W}, v{V_T[0]}")
    g, m, r, c = V_T
    P.append(valu("v_lshlrev_b32", V_OFFO, "4", 0)); P.append(valu("v_add_u32", V_OFFO + 1, "4096", V_OFFO))
    P.append(valu("v_lshrrev_b32", 16, "3", 0)); P.append(valu("v_mul_u32_u24", 16, "5120", 16))
    P.append(valu("v_and_b32", 17, "7", 0)); P.append(valu("v_lshl_add_u32", V_OFFW, 17, "4", 16))
    A(f"s_mul_i32 s{S_L}, s{S_W}, {NRING*WSLOT}")
    A(f"s_lshl_b32 s{S_OO0}, s{S_W}, 13"); A(f"s_mul_i32 s{S_WO0}, s{S_W}, {32*1280}"); A(f"s_mov_b32 s{S_TAU}, 0")
    A("s_waitcnt lgkmcnt(0)")
    def srd(dst, ptr, nrec):
        A(f"s_add_u32 s{dst}, s{ptr}, s{t0}"); A(f"s_addc_u32 s{dst+1}, s{ptr+1}, 0"); A(f"s_and_b32 s{dst+1}, s{dst+1}, 0xffff")
        A(f"s_mov_b32 s{dst+2}, {nrec}"); A(f"s_mov_b32 s{dst+3}, 0x20000")
    A(f"s_mul_i32 s{t0}, s5, 12"); A(f"s_add_u32 s{t0}, s{t0}, s6"); A(f"s_lshl_b32 s{t0}, s{t0}, 20")
    srd(SRDO, 46, 0 if no_o else 1048576)
    A(f"s_lshl_b32 s{t0}, s7, 7")
    srd(SRDW, S_PTR, 0 if no_w else 4096*1280 - 9*128)
    for u in range(3):
        P.extend(step_addr(rot))
        for grp in loads(u): P.extend(grp)
    A(f"s_mul_i32 s{t0}, s6, {128*2560}"); A(f"s_mul_i32 s{t1}, s5, 1280"); A(f"s_add_u32 s{t0}, s{t0}, s{t1}")
    A(f"s_lshl_b32 s{t1}, s7, 7"); A(f"s_add_u32 s{t0}, s{t0}, s{t1}")
    srd(SRDOUT, S_PTR+2, 127*2560 + 128)
    P.append(valu("v_lshrrev_b32", g, "4", 0)); P.append(valu("v_and_b32", m, "15", 0))
    P.append(valu("v_bfe_u32", r, 0, "2", "2")); P.append(valu("v_and_b32", c, "3", 0))
    P.append(valu("v_mul_u32_u24", 16, "1056", r)); P.append(valu("v_lshl_add_u32", 16, g, "7", 16)); P.append(valu("v_lshl_add_u32", 16, c, "3", 16))
    P.append(valu("v_add_u32", V_AW, f"s{S_L}", 16))
    for i in range(128): P.append(I(f"v_accvgpr_write_b32 a{i}, 0", wr=[1000+i], kind="valu"))
    P.append(waitcnt(vm=24))
    P.extend(ST(1))
    P.extend(a_reads(0, 0))
    A(f"s_mov_b32 s{S_CNT}, 8")
    body = [label(f"{name}_loop")]
    for u in range(4):
        st = u % 2
        mf = [mfma_acc(rt, Tc, AF + 16*st + 4*Tc, BF + 32*u + 4*rt) for rt in range(8) for Tc in range(4)]
        slots = [[] for _ in mf]
        sa = step_addr(rot)
        slots[0] += sa
        ld = loads((u + 3) % 4)
        for j, grp in enumerate(ld): slots[1 + 2*j] += grp
        slots[26].append(waitcnt(vm=24))
        rd = a_reads((u + 1) % 4, 1 - st)
        for j, x in enumerate(rd): slots[min(31, 26 + j//2)].append(x)
        for m_, fs in zip(mf, slots):
            body.append(m_); body += fs
    body += [raw(f"s_sub_u32 s{S_CNT}, s{S_CNT}, 1"), raw(f"s_cmp_lg_u32 s{S_CNT}, 0"), raw(f"s_cbranch_scc1 {name}_loop")]
    P2, body2, st = resolve_loop(P, body)
    E = []
    A = lambda t, **k: E.append(raw(t, **k))
    E.extend(ST(2))
    E.append(valu("v_lshlrev_b32", 16, "4", 0))
    A(f"s_lshl_b32 s{t0}, s{S_W}, 15")
    E.append(valu("v_add_u32", 17, f"s{t0}", 16))
    E.append(waitcnt(vm=0, lgkm=0)); E.append(barrier())
    E.extend(ST(3))
    for w in range(4):
        E.append(label(f"{name}_red{w}")) if False else None
    for tl in range(32):
        E.append(I(f"ds_write_b128 v17, {ar(tl*4,4)} offset:{tl*1024}", rd=[17]+[1000+tl*4+i for i in range(4)], kind="dsw"))
    E.append(waitcnt(lgkm=0)); E.append(barrier())
    A(f"s_lshl_b32 s{t0}, s{S_W}, 13")
    E.append(valu("v_add_u32", 17, f"s{t0}", 16))
    E.append(valu("v_add_u32", 18, "65536", 17))
    for t in range(8):
        for p in range(4):
            E.append(ds128(32 + (p*8 + t)*4, 17 if p < 2 else 18, (p % 2)*32768 + t*1024))
    E.append(valu("v_and_b32", 19, "1", g)); E.append(valu("v_lshlrev_b32", 19, "1", 19)); E.append(valu("v_lshrrev_b32", 20, "1", g))
    E.append(valu("v_or_b32", 19, 19, 20)); E.append(valu("v_lshlrev_b32", 19, "4", 19))
    E.append(valu("v_mul_u32_u24", 20, "2560", m)); E.append(valu("v_add_u32", 19, 19, 20))
    A(f"s_mul_i32 s{t0}, s{S_W}, {32*2560}"); A(f"s_add_u32 s{t1}, s{t0}, {16*2560}")
    for rr in range(2):
        for pr in range(2):
            for h in range(2):
                t = rr*4 + 2*pr + h
                for i in range(4):
                    a = 32 + t*4 + i
                    E.append(valu("v_add_f32", a, a, a + 32)); E.append(valu("v_add_f32", a + 64, a + 64, a + 96))
                for i in range(4):
                    a = 32 + t*4 + i
                    E.append(valu("v_add_f32", a, a, a + 64))
            a = 32 + (rr*4 + 2*pr)*4; b = a + 4; q = 160 + (rr*2 + pr)*4
            E += [cvtpk(q, a, a+1), cvtpk(q+1, a+2, a+3), cvtpk(q+2, b, b+1), cvtpk(q+3, b+2, b+3), perm16(q, q+2), perm16(q+1, q+3)]
            E.append(bstore(q, 4, 19, SRDOUT, t0 if rr == 0 else t1, off=pr*64))
    if stamps:
        E.append(waitcnt(vm=0))
        E.extend(ST(4)); E.extend(ST(5)); E.extend(ST(7, True))
        E.extend(stamp_dump(8, 46, S_W, 96<<20, 16))
    E = [x for x in E if x is not None]
    E2, _ = resolve(E, st)
    return P2 + body2 + E2 + [label(f"{name}_end"), raw("s_endpgm")]
```

```python
from asmlib import *

QSLOT = 40960; XOFF = 16384
ASLOT = 16896; VOFF = 8448
ACC = 16; QF = 112
SX, SY, SZ = 160, 172, 184
PB = 196; KF = 214; VF = 230
QA = [160, 204]; QB = [192, 236]
V_OFFA, V_OFFB, V_L16 = 1, 2, 3
A_W = [4, 5, 6, 7, 8, 9, 10, 11]; A_X = [12, 15]; A_K = 13; A_V = 14
LSUM = [4, 5, 6]; VT = [7, 8, 9, 10]
G, M, RR, C = 248, 249, 250, 251
V_DUMMY = 253; V_TCH = 252
S_W, S_BR, S_B, S_H = 4, 5, 6, 7
SRDA, SRDB, SRDK, SRDV, SRDO, SRDD = 12, 16, 20, 24, 28, 64
S_O = [32, 33, 34, 35]; S_L = [38, 39, 40, 41]; S_CNT = 42
S_OW, S_OX, S_LW, S_LX, S_SIG, S_TT = 8, 9, 36, 37, 10, 11
S_KC, S_VC, S_KB, S_KROT = 8, 9, 36, 37
S_T = [43, 44, 45, 46, 47, 48, 49]
S_SC = 50
S_PTR = 52
SRDWO = 68
S_ID = 72
S_DBG = 74
FLAGOFF = 32 << 20
S_NONCE = 73

def acc(T, qt): return ACC + (T * 3 + qt) * 4
def qf(qt, c): return QF + (qt * 4 + c) * 4

def emit(mf, slots):
    out = []
    for m, fs in zip(mf, slots):
        out.append(m)
        for f in fs:
            if isinstance(f, list): out.extend(f)
            else: out.append(f)
    return out
def spread(slots, items, lo, hi):
    n = len(items); m = hi - lo
    for i, it in enumerate(items): slots[lo + (i * m) // n].append(it)

def q_addr():
    t0 = S_T[0]
    return [salu(f"s_lshl_b32 s{t0}, s{S_SIG}, 19"), salu(f"s_add_u32 s{S_O[0]}, s{S_OW}, s{t0}"),
            salu(f"s_lshl_b32 s{t0}, s{S_SIG}, 7"), salu(f"s_add_u32 s{S_O[1]}, s{S_OX}, s{t0}"),
            salu(f"s_add_u32 s{S_SIG}, s{S_SIG}, 1"), salu(f"s_cmp_eq_u32 s{S_SIG}, 10"), salu(f"s_cselect_b32 s{S_SIG}, 0, s{S_SIG}")]
def q_dma(slot):
    out = []
    for i in range(4):
        g = [m0set(S_LW, slot * QSLOT + i * 4096)]
        if i == 0: g += [dma(V_OFFA, SRDA, S_O[0])]
        else: g += [salu(f"s_add_u32 s{S_TT}, s{S_O[0]}, {i*16*8192}"), dma(V_OFFA, SRDA, S_TT)]
        out.append(g)
    for i in range(6):
        g = [m0set(S_LX, slot * QSLOT + i * 4096)]
        if i == 0: g += [dma(V_OFFB, SRDB, S_O[1])]
        else: g += [salu(f"s_add_u32 s{S_TT}, s{S_O[1]}, {i*32*1280}"), dma(V_OFFB, SRDB, S_TT)]
        out.append(g)
    return out
KVROT = True
def kv_addr(which):
    c = S_KC if which == 0 else S_VC
    a, b = (S_O[0], S_O[1]) if which == 0 else (S_O[2], S_O[3])
    t = S_TT
    return [salu(f"s_add_u32 s{t}, s{c}, s{S_KROT}"), salu(f"s_and_b32 s{t}, s{t}, 15"), salu(f"s_cmp_lt_u32 s{c}, 16"),
            salu(f"s_cselect_b32 s{t}, s{t}, 16"), salu(f"s_lshl_b32 s{t}, s{t}, 13"), salu(f"s_add_u32 s{a}, s{t}, s{S_KB}"),
            salu(f"s_add_u32 s{b}, s{a}, 4096"), salu(f"s_add_u32 s{c}, s{c}, 1")]
def kv_dma(kslot, vslot, flags):
    out = []
    for j in range(4):
        sl = kslot if j < 2 else vslot
        pre = kv_addr(j // 2) if j % 2 == 0 else []
        out.append([pre + [m0set(S_L[j], sl * ASLOT)], dma(V_L16, SRDK if j < 2 else SRDV, S_O[j], flags), nop(0)])
    return out

def q_frag_reads(slot, e, st):
    out = []
    for qt in range(3): out.append(ds128(QB[st] + 4*qt, A_X[e], slot * QSLOT + qt * 2048))
    for T in range(8):
        o = slot * QSLOT + e * 8192
        out.append(dstr(QA[st] + 4*T, A_W[T], o)); out.append(dstr(QA[st] + 4*T + 2, A_W[T], o + 1024))
    return out

_pl = [0]
def polite(n):
    _pl[0] += 1
    lab = f"Lpol{_pl[0]}"
    return [raw(f"s_cmp_eq_u32 s{S_BR}, 0"), raw(f"s_cbranch_scc1 {lab}"), waitcnt(vm=n), label(lab)]
POL = None
def q_half(st, reads, extra):
    mf = [mfma16(acc(T, qt), QA[st] + 4*T, QB[st] + 4*qt, acc(T, qt)) for T in range(8) for qt in range(3)]
    slots = [[] for _ in mf]
    for i, rd in enumerate(reads): slots[i].append(rd)
    n = len(extra)
    for j, grp in enumerate(extra):
        k = (j * 22) // max(n, 1)
        slots[k].append(grp[0]); slots[k+1] += [x for x in grp[1:] if getattr(x, "kind", "") != "nop"]
    return emit(mf, slots)

def q_iter(p, kind, kvflags=""):
    out = q_half(0, q_frag_reads(p, 1, 1), [])
    out += [waitcnt(vm=0, lgkm=0) if kind != 'K1' else waitcnt(lgkm=0), barrier()]
    if kind == 'Q':
        extra = [q_addr()] + q_dma(p)
        if POL:
            for pos, n in POL: extra[pos] = extra[pos] + polite(n)
    elif kind == 'K0': extra = kv_dma(0, 0, kvflags) + kv_dma(1, 1, kvflags)
    else: extra = kv_dma(2, 2, kvflags) + kv_dma(3, 3, kvflags)
    reads = q_frag_reads(1 - p, 0, 0) if kind != 'K1' else []
    out += q_half(1, reads, extra)
    return out

def q_switch():
    o = []
    A = lambda t: o.append(raw(t))
    t0, t1 = S_T[0], S_T[1]
    A(f"s_lshr_b32 s{t0}, s{S_W}, 1"); A(f"s_lshl_b32 s{t0}, s{t0}, 2"); A(f"s_and_b32 s{t1}, s{S_W}, 1"); A(f"s_add_u32 s{t0}, s{t0}, s{t1}")
    A(f"s_lshl_b32 s{t0}, s{t0}, 4"); A(f"s_lshl_b32 s{t1}, s{S_W}, 10"); A(f"s_add_u32 s{S_L[0]}, s{t0}, s{t1}")
    A(f"s_add_u32 s{S_L[1]}, s{S_L[0]}, {4096+128}")
    A(f"s_mul_i32 s{t0}, s{S_W}, 1056"); A(f"s_add_u32 s{S_L[2]}, s{t0}, {VOFF}"); A(f"s_add_u32 s{S_L[3]}, s{S_L[2]}, {4*1056}")
    A(f"s_lshl_b32 s{S_KB}, s{S_W}, 10"); A(f"s_mov_b32 s{S_KC}, 0"); A(f"s_mov_b32 s{S_VC}, 0")
    if KVROT:
        A(f"s_lshr_b32 s{S_KROT}, s{S_ID}, 3"); A(f"s_add_u32 s{S_KROT}, s{S_KROT}, s{S_ID}"); A(f"s_and_b32 s{S_KROT}, s{S_KROT}, 15")
    else: A(f"s_mov_b32 s{S_KROT}, 0")
    return o

def q_convert():
    o = []
    for qt in range(3):
        for T in range(8):
            a = acc(T, qt)
            o.append(pkmul(a, a, f"s[{S_SC}:{S_SC+1}]")); o.append(pkmul(a+2, a+2, f"s[{S_SC}:{S_SC+1}]"))
    for qt in range(3):
        for c in range(4):
            q = qf(qt, c); a = acc(2*c, qt); b = acc(2*c+1, qt)
            o += [cvtpk(q, a, a+1), cvtpk(q+1, a+2, a+3), cvtpk(q+2, b, b+1), cvtpk(q+3, b+2, b+3)]
    for qt in range(3):
        for c in range(4):
            q = qf(qt, c)
            o += [perm16(q, q+2), perm16(q+1, q+3)]
    for i in range(96): o.append(valu("v_mov_b32", ACC + i, "0"))
    for r in LSUM: o.append(valu("v_mov_b32", r, "0"))
    return o

def sreg(j, Tk, qt):
    if Tk == 0: return SX + 4*qt
    return (SY if j % 2 == 0 else SZ) + 4*qt
def preg(j, part, qt):
    base = PB + 6*qt
    if part == 1: return base + 2
    return base + (0 if j % 2 == 0 else 4)
def pop(j, qt): return PB + 6*qt + (0 if j % 2 == 0 else 2)
def k_read(j, i): return ds128(KF + 4*(i % 4), A_K, (j % 4) * ASLOT + (i % 4) * 64 + (i // 4) * 512)
def v_read(j, T):
    o = (j % 4) * ASLOT + T * 32
    d = VF + 4*(T % 4)
    if j % 2 == 0: return [dstr(d, A_V, o), dstr(d+2, A_V, o + 512)]
    return [dstr(d+2, A_V, o), dstr(d, A_V, o + 512)]
def softmax_ops(j, part):
    ops = []
    for qt in range(3):
        s = sreg(j, part, qt); p = preg(j, part, qt)
        ops.append([vexp(s, s), vexp(s+1, s+1), vexp(s+2, s+2), vexp(s+3, s+3),
                    valu("v_add_f32", LSUM[qt], LSUM[qt], s), cvtpk(p, s, s+1), valu("v_add_f32", LSUM[qt], LSUM[qt], s+1),
                    valu("v_add_f32", LSUM[qt], LSUM[qt], s+2), cvtpk(p+1, s+2, s+3), valu("v_add_f32", LSUM[qt], LSUM[qt], s+3)])
    seq = list(ops[0][:4])
    for qt in range(1, 3):
        e = ops[qt][:4]; f = ops[qt-1][4:]
        seq += [e[0], f[0], f[1], e[1], f[2], e[2], f[3], f[4], e[3], f[5]]
    seq += ops[2][4:]
    return seq
def qk_mfmas(j):
    mf = []
    for Tk in range(2):
        for c in range(4):
            i = Tk*4 + c
            for qt in range(3):
                s = sreg(j, Tk, qt)
                mf.append(mfma16(s, KF + 4*(i % 4), qf(qt, c), None if c == 0 else s))
    return mf
def pv_mfmas(j):
    return [mfma16(acc(T, qt), VF + 4*(T % 4), pop(j, qt), acc(T, qt)) for T in range(8) for qt in range(3)]

def h0(s, tail=False):
    sm = softmax_ops(s, 1)
    vr_ = [v_read(s, T) for T in range(4)]
    if tail:
        out = []
        for v in vr_: out += v
        return out + sm
    mf = qk_mfmas(s + 1)
    slots = [[] for _ in mf]
    for i in range(5): slots[3*i].append(k_read(s + 1, i + 3))
    for T in range(4): slots[14 + 2*T].append(vr_[T][0]); slots[15 + 2*T].append(vr_[T][1])
    spread(slots, sm, 0, 23)
    return emit(mf, slots)
def h1(s, kvflags, tail=False):
    mf = pv_mfmas(s)
    slots = [[] for _ in mf]
    for T in range(4, 8):
        v = v_read(s, T); slots[3*(T-4) + 2].append(v[0]); slots[3*(T-4) + 3].append(v[1])
    if not tail:
        spread(slots, softmax_ops(s + 1, 0), 0, 23)
        slots[16].append([waitcnt(vm=8, lgkm=0), barrier()])
        for i in range(3): slots[17 + i].append(k_read(s + 2, i))
        for j, grp in enumerate(kv_dma((s + 1) % 4, s % 4, kvflags)):
            slots[17 + j].append(grp[0]); slots[18 + j].append(grp[1])
    return emit(mf, slots)
def att_prologue(kvflags):
    o = [raw(f"s_sub_u32 s{S_VC}, s{S_VC}, 1")]
    o += [waitcnt(vm=14), barrier()]
    for i in range(3): o.append(k_read(0, i))
    mf = qk_mfmas(0)
    slots = [[] for _ in mf]
    for i in range(5): slots[3*i].append(k_read(0, i + 3))
    o += emit(mf, slots)
    o += [waitcnt(vm=8, lgkm=0), barrier()]
    for i in range(3): o.append(k_read(1, i))
    for grp in kv_dma(0, 3, kvflags): o += grp[0] + [nop(0), grp[1]]
    o += softmax_ops(0, 0)
    return o

def srd_build(A, dst, ptr, offreg, nrec):
    if offreg is None:
        A(f"s_mov_b32 s{dst}, s{ptr}"); A(f"s_and_b32 s{dst+1}, s{ptr+1}, 0xffff")
    else:
        A(f"s_add_u32 s{dst}, s{ptr}, s{offreg}"); A(f"s_addc_u32 s{dst+1}, s{ptr+1}, 0"); A(f"s_and_b32 s{dst+1}, s{dst+1}, 0xffff")
    A(f"s_mov_b32 s{dst+2}, {nrec}"); A(f"s_mov_b32 s{dst+3}, 0x20000")

def head_prologue(name, opts):
    P = []
    A = lambda t, **k: P.append(raw(t, **k))
    t0, t1, t2 = S_T[0], S_T[1], S_T[2]
    A(f"s_lshr_b32 s{S_BR}, s2, 8"); A(f"s_and_b32 s{S_ID}, s2, 255")
    A(f"s_mul_i32 s3, s{S_BR}, 40")
    A(f"s_load_dwordx4 s[{S_PTR}:{S_PTR+3}], s[0:1], s3")
    A(f"s_add_u32 s{t1}, s3, 16"); A(f"s_load_dwordx4 s[{S_PTR+4}:{S_PTR+7}], s[0:1], s{t1}")
    A(f"s_load_dwordx2 s[{S_PTR+8}:{S_PTR+9}], s[0:1], 96")
    A(f"s_load_dwordx2 s[{S_DBG}:{S_DBG+1}], s[0:1], 88")
    A(f"s_add_u32 s{t1}, s3, 32"); A(f"s_load_dwordx2 s[{S_PTR+10}:{S_PTR+11}], s[0:1], s{t1}")
    A(f"s_and_b32 s3, s{S_ID}, 7"); A(f"s_lshr_b32 s{t0}, s{S_ID}, 3")
    A(f"s_lshr_b32 s{S_B}, s3, 2"); A(f"s_lshl_b32 s{S_B}, s{S_B}, 2"); A(f"s_lshr_b32 s{t1}, s{t0}, 3"); A(f"s_add_u32 s{S_B}, s{S_B}, s{t1}")
    A(f"s_and_b32 s{S_H}, s3, 3"); A(f"s_lshl_b32 s{S_H}, s{S_H}, 3"); A(f"s_and_b32 s{t1}, s{t0}, 7"); A(f"s_add_u32 s{S_H}, s{S_H}, s{t1}")
    P.append(valu("v_lshrrev_b32", G, "6", 0)); P.append(valu("v_and_b32", 0, "63", 0))
    A("s_nop 0"); A(f"v_readfirstlane_b32 s{S_W}, v{G}")
    P.append(valu("v_lshrrev_b32", G, "4", 0)); P.append(valu("v_and_b32", M, "15", 0))
    P.append(valu("v_bfe_u32", RR, 0, "2", "2")); P.append(valu("v_and_b32", C, "3", 0))
    P.append(valu("v_lshlrev_b32", V_L16, "4", 0))
    T0, T1 = 16, 17
    A(f"s_lshr_b32 s{t0}, s{S_W}, 1"); A(f"s_and_b32 s{t0}, s{t0}, 1"); A(f"s_lshl_b32 s{t0}, s{t0}, 2")
    P.append(valu("v_or_b32", T0, f"s{t0}", G))
    P.append(valu("v_lshrrev_b32", T1, "1", M)); P.append(valu("v_xor_b32", T0, T0, T1))
    P.append(valu("v_lshlrev_b32", T0, "5", T0))
    P.append(valu("v_and_b32", T1, "1", M)); P.append(valu("v_lshl_add_u32", T0, T1, "4", T0))
    P.append(valu("v_lshl_add_u32", V_OFFA, G, "13", T0))
    A(f"s_and_b32 s{t0}, s{S_W}, 1"); A(f"s_lshl_b32 s{t0}, s{t0}, 2")
    P.append(valu("v_add_u32", T0, f"s{t0}", G))
    P.append(valu("v_and_b32", T1, "7", 0)); P.append(valu("v_xor_b32", T1, T1, T0)); P.append(valu("v_lshlrev_b32", T1, "4", T1))
    P.append(valu("v_lshrrev_b32", T0, "3", 0)); P.append(valu("v_mul_u32_u24", T0, "1280", T0)); P.append(valu("v_add_u32", V_OFFB, T0, T1))
    A(f"s_lshl_b32 s{S_OW}, s{S_W}, 15"); A(f"s_mul_i32 s{S_OX}, s{S_W}, {8*1280}")
    A(f"s_lshl_b32 s{S_LW}, s{S_W}, 10"); A(f"s_add_u32 s{S_LX}, s{S_LW}, {XOFF}")
    if opts.get("rot", False):
        A(f"s_and_b32 s{t0}, s{S_H}, 7"); A(f"s_lshr_b32 s{t1}, s{t0}, 2"); A(f"s_add_u32 s{t0}, s{t0}, s{t1}")
        A(f"s_and_b32 s{t1}, s{S_B}, 3"); A(f"s_mul_i32 s{t1}, s{t1}, 5"); A(f"s_add_u32 s{t1}, s{t1}, 1"); A(f"s_lshr_b32 s{t1}, s{t1}, 1")
        A(f"s_add_u32 s{S_SIG}, s{t0}, s{t1}")
        A(f"s_cmp_ge_u32 s{S_SIG}, 10"); A(f"s_cselect_b32 s{t0}, 10, 0"); A(f"s_sub_u32 s{S_SIG}, s{S_SIG}, s{t0}")
    else:
        A(f"s_mov_b32 s{S_SIG}, 0")
    A("s_waitcnt lgkmcnt(0)")
    px, pk, pv, pw, pws = S_PTR, S_PTR+2, S_PTR+4, S_PTR+6, S_PTR+8
    srd_build(A, SRDD, S_DBG, None, 256)
    A(f"s_or_b32 s{t0}, s2, s{S_W}"); A(f"s_cmp_eq_u32 s{t0}, 0"); A(f"s_cbranch_scc0 {name}_nononce")
    A(f"s_memrealtime s[{S_T[3]}:{S_T[4]}]"); A("s_waitcnt lgkmcnt(0)"); A(f"s_or_b32 s{t0}, s{S_T[3]}, 1")
    P.append(valu("v_mov_b32", V_DUMMY, f"s{t0}")); P.append(valu("v_mov_b32", V_TCH, "0"))
    A(f"buffer_store_dword v{V_DUMMY}, v{V_TCH}, s[{SRDD}:{SRDD+3}], 0 offen sc1")
    P.append(label(f"{name}_nononce"))
    if opts.get("hold", True): hold_setup(name, opts, A, P)
    A(f"s_lshl_b32 s{t0}, s{S_H}, 8"); srd_build(A, SRDA, pw, t0, 640*8192 - 31*256)
    A(f"s_mul_i32 s{t0}, s{S_B}, 245760"); srd_build(A, SRDB, px, t0, 245760)
    for st in range(2):
        P.extend(q_addr())
        for grp in q_dma(st): P.extend([grp[0], nop(0)] + grp[1:])
    A(f"s_cmp_eq_u32 s{S_BR}, 0"); A(f"s_cbranch_scc0 {name}_noprio"); A(f"s_setprio {opts.get('prioA', 3)}"); P.append(label(f"{name}_noprio"))
    A(f"s_lshl_b32 s{t1}, s{S_B}, 5"); A(f"s_add_u32 s{t1}, s{t1}, s{S_H}"); A(f"s_lshl_b32 s{t0}, s{t1}, 17")
    srd_build(A, SRDK, pk, t0, 131072); srd_build(A, SRDV, pv, t0, 131072)
    A(f"s_mul_i32 s{t1}, s{S_BR}, {12*1048576}"); A(f"s_lshl_b32 s{t2}, s{S_H}, 15"); A(f"s_add_u32 s{t0}, s{t1}, s{t2}")
    srd_build(A, SRDO, pws, t0, 12*1048576 - 31*32768)
    A(f"s_mul_i32 s{t0}, s{S_ID}, 20480"); srd_build(A, SRDWO, S_PTR+10, t0, 20480)
    A(f"s_mov_b32 s{S_SC}, 0x3e0293ee"); A(f"s_mov_b32 s{S_SC+1}, 0x3e0293ee")
    P.append(valu("v_and_b32", T0, "1", G)); P.append(valu("v_lshl_or_b32", T0, T0, "2", RR))
    P.append(valu("v_lshl_add_u32", T1, G, "3", RR)); P.append(valu("v_lshlrev_b32", T1, "8", T1))
    P.append(valu("v_lshl_add_u32", T1, C, "3", T1))
    for T in range(8):
        P.append(valu("v_xor_b32", A_W[T], str(T), T0)); P.append(valu("v_lshl_add_u32", A_W[T], A_W[T], "5", T1))
    P.append(valu("v_lshrrev_b32", T0, "1", M)); P.append(valu("v_xor_b32", T0, G, T0)); P.append(valu("v_lshlrev_b32", T0, "4", T0))
    P.append(valu("v_lshl_add_u32", T0, M, "7", T0))
    A(f"s_mul_i32 s3, s{S_W}, {48*128}"); A(f"s_add_u32 s3, s3, {XOFF}")
    P.append(valu("v_add_u32", A_X[0], "s3", T0)); P.append(valu("v_xor_b32", A_X[1], "64", A_X[0]))
    P.append(valu("v_and_b32", T0, "7", M))
    P.append(valu("v_lshrrev_b32", T1, "1", T0)); P.append(valu("v_lshlrev_b32", T1, "2", T1))
    P.append(valu("v_and_b32", A_K, "1", T0)); P.append(valu("v_add_u32", T1, T1, A_K))
    P.append(valu("v_lshlrev_b32", T1, "4", T1)); P.append(valu("v_lshl_add_u32", T1, T0, "10", T1))
    P.append(valu("v_lshrrev_b32", T0, "3", M)); P.append(valu("v_lshl_add_u32", T1, T0, "8", T1))
    P.append(valu("v_and_b32", T0, "1", G)); P.append(valu("v_lshlrev_b32", T0, "1", T0))
    P.append(valu("v_lshrrev_b32", A_K, "1", G)); P.append(valu("v_or_b32", T0, T0, A_K))
    P.append(valu("v_lshl_add_u32", A_K, T0, "4", T1))
    P.append(valu("v_and_b32", T0, "1", G)); P.append(valu("v_lshl_add_u32", T0, T0, "2", RR))
    P.append(valu("v_mul_u32_u24", T0, "1056", T0))
    P.append(valu("v_lshrrev_b32", T1, "1", G)); P.append(valu("v_lshl_add_u32", T0, T1, "8", T0))
    P.append(valu("v_lshl_add_u32", T0, C, "3", T0)); P.append(valu("v_add_u32", A_V, str(VOFF), T0))
    for i in range(96): P.append(valu("v_mov_b32", ACC + i, "0"))
    P.append(waitcnt(vm=10)); P.append(barrier())
    P.extend(q_frag_reads(0, 0, 0))
    return P

def poll(name, srd, off_sreg, mask_or_val, mode, vtmp, sleep=8):
    o = [raw(f"s_mov_b32 s{S_T[5]}, 200000"), label(f"{name}"), raw(f"v_mov_b32 v{vtmp}, 0", kind="valu", wr=[vtmp]),
         raw(f"buffer_load_dword v{vtmp+1}, v{vtmp}, s[{srd}:{srd+3}], s{off_sreg} offen sc1"),
         raw("s_waitcnt vmcnt(0)"),
         raw(f"v_readfirstlane_b32 s{S_T[6]}, v{vtmp+1}"),
         raw(f"s_sub_u32 s{S_T[5]}, s{S_T[5]}, 1"), raw(f"s_cbranch_scc1 {name}_ok"),
         raw("s_nop 2")]
    if mode == 'bit':
        o += [raw(f"s_and_b32 s{S_T[6]}, s{S_T[6]}, s{mask_or_val}"), raw(f"s_cbranch_scc1 {name}_ok")]
    else:
        o += [raw(f"s_cmp_ge_u32 s{S_T[6]}, {mask_or_val}"), raw(f"s_cbranch_scc1 {name}_ok")]
    o += [raw(f"s_sleep {sleep}"), raw(f"s_branch {name}"), label(f"{name}_ok")]
    return o

def head_epilogue(name, opts):
    o = [valu("v_mov_b32", V_TCH, "0"), raw(f"buffer_load_dword v{V_DUMMY}, v{V_TCH}, s[{SRDD}:{SRDD+3}], 0 offen sc1", kind="vload", rd=[V_TCH], wr=[V_DUMMY])]
    t = VT
    for qt in range(3):
        l = LSUM[qt]
        o += [valu("v_mov_b32", t[qt], l), perm32(t[qt], l), valu("v_add_f32", l, l, t[qt])]
    for qt in range(3):
        l = LSUM[qt]
        o += [valu("v_mov_b32", t[qt], l), perm16(t[qt], l), valu("v_add_f32", l, l, t[qt])]
    for qt in range(3): o.append(vrcp(t[qt], LSUM[qt]))
    for qt in range(3):
        o.append(raw(f"s_mul_i32 s{S_T[3]}, s{S_B}, 12")); o.append(raw(f"s_mul_i32 s{S_T[4]}, s{S_W}, 3"))
        o.append(raw(f"s_add_u32 s{S_T[3]}, s{S_T[3]}, s{S_T[4]}")); o.append(raw(f"s_add_u32 s{S_T[3]}, s{S_T[3]}, {qt}"))
        o.append(raw(f"s_lshr_b32 s{S_T[4]}, s{S_T[3]}, 3")); o.append(raw(f"s_lshl_b32 s{S_T[4]}, s{S_T[4]}, 20"))
        o.append(raw(f"s_and_b32 s{S_T[3]}, s{S_T[3]}, 7")); o.append(raw(f"s_lshl_b32 s{S_T[3]}, s{S_T[3]}, 10"))
        o.append(raw(f"s_add_u32 s{S_T[qt]}, s{S_T[3]}, s{S_T[4]}"))
    for qt in range(3):
        for c in range(4):
            a = acc(2*c, qt); b = acc(2*c+1, qt)
            for r in range(4):
                o.append(valu("v_mul_f32", a + r, a + r, t[qt])); o.append(valu("v_mul_f32", b + r, b + r, t[qt]))
            o += [cvtpk(a, a, a+1), cvtpk(a+1, a+2, a+3), cvtpk(a+2, b, b+1), cvtpk(a+3, b+2, b+3)]
            o.append(bstore(a, 4, V_L16, SRDO, S_T[qt], flags=opts.get("stflags", "sc1")))
            if c < 3: o.append(raw(f"s_add_u32 s{S_T[qt]}, s{S_T[qt]}, 8192"))
    o += [waitcnt(vm=0), barrier()]
    t0, t1 = S_T[0], S_T[1]
    o += [raw(f"s_cmp_eq_u32 s{S_W}, 0"), raw(f"s_cbranch_scc0 {name}_nopub"),
          raw(f"v_readfirstlane_b32 s{S_NONCE}, v{V_DUMMY}"), raw("s_nop 3"),
          raw(f"s_cmp_lg_u32 s{S_NONCE}, 0"), raw(f"s_cbranch_scc1 {name}_pn_done"), raw(f"s_mov_b32 s{t0}, 0")]
    o += poll(f"{name}_pn", SRDD, t0, 1, 'ge', V_TCH)
    o += [raw(f"s_mov_b32 s{S_NONCE}, s{S_T[6]}"), label(f"{name}_pn_done"),
          raw(f"s_lshl_b32 s{t0}, s{S_BR}, 3"), raw(f"s_add_u32 s{t0}, s{t0}, s{S_B}"), raw(f"s_mul_i32 s{t0}, s{t0}, 384"),
          raw(f"s_lshl_b32 s{t1}, s{S_H}, 2"), raw(f"s_add_u32 s{t0}, s{t0}, s{t1}"), raw(f"s_add_u32 s{t0}, s{t0}, {FLAGOFF}")]
    A = lambda t: o.append(raw(t))
    srd_build(A, SRDWO, S_PTR+8, t0, 260)
    o += [raw("v_lshlrev_b32 v16, 7, v0", kind="valu", wr=[16]), raw(f"v_mov_b32 v17, s{S_NONCE}", kind="valu", wr=[17]),
          raw("s_mov_b64 exec, 7"),
          raw(f"buffer_store_dword v17, v16, s[{SRDWO}:{SRDWO+3}], 0 offen sc1"),
          label(f"{name}_nopub")]
    return o

V_HOLD = 254
SRDH = 24
SRDH = 76
def hold_setup(name, opts, A, P):
    t0 = S_T[0]
    A(f"s_lshl_b32 s{t0}, s{S_ID}, 7"); A(f"s_add_u32 s{t0}, s{t0}, {FLAGOFF + 65536}")
    srd_build(A, SRDH, S_PTR+8, t0, 4)
    P.append(valu("v_mov_b32", V_TCH, "0"))
    A(f"s_cmp_eq_u32 s{S_W}, 0"); A(f"s_cbranch_scc0 {name}_hw_done")
    A(f"buffer_load_dword v{V_HOLD}, v{V_TCH}, s[{SRDH}:{SRDH+3}], 0 offen sc1")
    A(f"s_cmp_eq_u32 s{S_BR}, 0"); A(f"s_cbranch_scc1 {name}_hw_done")
    A("s_waitcnt vmcnt(0)"); A(f"v_readfirstlane_b32 s{S_T[4]}, v{V_HOLD}"); A(f"s_mov_b32 s{S_T[5]}, {opts.get('hold_polls', 40)}")
    P.append(label(f"{name}_hw"))
    A(f"s_sleep {opts.get('hold_sleep', 8)}")
    A(f"buffer_load_dword v{V_HOLD}, v{V_TCH}, s[{SRDH}:{SRDH+3}], 0 offen sc1"); A("s_waitcnt vmcnt(0)")
    A(f"v_readfirstlane_b32 s{S_T[6]}, v{V_HOLD}")
    A(f"s_sub_u32 s{S_T[5]}, s{S_T[5]}, 1"); A(f"s_cbranch_scc1 {name}_hw_done"); A("s_nop 2")
    A(f"s_cmp_eq_u32 s{S_T[6]}, s{S_T[4]}"); A(f"s_cbranch_scc1 {name}_hw")
    P.append(label(f"{name}_hw_done"))
    A(f"s_cmp_eq_u32 s{S_BR}, 0"); A(f"s_cbranch_scc1 {name}_hw_end"); P.append(barrier()); P.append(label(f"{name}_hw_end"))
def hold_release(name):
    return [raw(f"s_or_b32 s{S_T[0]}, s{S_BR}, s{S_W}"), raw(f"s_cmp_eq_u32 s{S_T[0]}, 0"), raw(f"s_cbranch_scc0 {name}_hr"),
            raw(f"v_add_u32 v{V_HOLD}, 1, v{V_HOLD}", kind="valu", rd=[V_HOLD], wr=[V_HOLD]), raw(f"v_mov_b32 v{V_TCH}, 0", kind="valu", wr=[V_TCH]),
            raw("s_mov_b64 exec, 1"),
            raw(f"buffer_store_dword v{V_HOLD}, v{V_TCH}, s[{SRDH}:{SRDH+3}], 0 offen sc1"),
            raw("s_mov_b64 exec, -1"), raw("s_nop 1"), label(f"{name}_hr")]

def build_head(name, opts, ST):
    global POL, KVROT
    POL = opts.get("polite"); KVROT = opts.get("kvrot", True)
    kvflags = opts.get("kvflags", "nt")
    pro = head_prologue(name, opts) + ST(1) + [raw(f"s_mov_b32 s{S_CNT}, 4")]
    qb = [label(f"{name}_qloop")]
    for p in range(2): qb += q_iter(p, 'Q')
    qb += [raw(f"s_sub_u32 s{S_CNT}, s{S_CNT}, 1"), raw(f"s_cmp_lg_u32 s{S_CNT}, 0"), raw(f"s_cbranch_scc1 {name}_qloop")]
    pro2, qb2, st = resolve_loop(pro, qb)
    last = ST(2)
    if opts.get("hold", True):
        if opts.get("hold_at", "q") == "q": last += hold_release(name)
    last += q_switch() + q_iter(0, 'K0', kvflags) + q_iter(1, 'K1', kvflags)
    last2, st = resolve(last, st)
    wot = []
    if opts.get("touch_wo", True):
        wot = [valu("v_lshlrev_b32", V_TCH, "7", 0), raw(f"s_lshl_b32 s{S_T[0]}, s{S_W}, 13"), bload(V_DUMMY, 1, V_TCH, SRDWO, S_T[0])]
    mid = [waitcnt(lgkm=0)] + ST(3) + wot + [raw(f"s_setprio {opts.get('prioAtt', 3)}")] + q_convert() + att_prologue(kvflags) + [raw(f"s_mov_b32 s{S_CNT}, 4")]
    body = [label(f"{name}_aloop")]
    for u in range(3): body += h0(u) + h1(u, kvflags)
    body += [raw(f"s_cmp_eq_u32 s{S_CNT}, 1"), raw(f"s_cbranch_scc1 {name}_tail")]
    body += h0(3) + h1(3, kvflags)
    body += [raw(f"s_sub_u32 s{S_CNT}, s{S_CNT}, 1"), raw(f"s_branch {name}_aloop")]
    mid2, st1 = resolve(mid, st)
    _, body2, _ = resolve_loop([], body, st1)
    idx = [i for i, x in enumerate(body2) if x.txt.startswith(f"s_cbranch_scc1 {name}_tail")][0]
    _, sA = resolve(body2, st1.copy(), insert=False)
    _, sB = resolve(body2[:idx+1], sA.copy(), insert=False)
    tail = [label(f"{name}_tail")] + h0(3, tail=True) + h1(3, kvflags, tail=True) + ST(4) + head_epilogue(name, opts)
    tail2, _ = resolve(tail, sB)
    return pro2 + qb2 + last2 + mid2 + body2 + tail2

WSLOT = 4224; NR = 3
OACC = 16
OBF = 144
OAF = 240
O_OFFO, O_OFFW, O_AW, O_FL, O_PV = [1, 2], 3, 4, 5, 6
OG, OM, ORR, OC = 7, 8, 9, 10
OS_OO = 32; OS_OW = [33, 34, 35, 36]; OS_L = 37
OSRDO, OSRDW, OSRDOUT, OSRDF = 12, 16, 20, 24
OS_OFF, OS_WO0, OS_OO0 = 8, 40, 41
OS_AV, OS_ISS, OS_ROT = 38, 39, 9
OS_A2 = 46
def oacc(rt, Tc): return OACC + (rt * 4 + Tc) * 4
_sel = [0]
def o_select(name, opts):
    _sel[0] += 1
    L = f"{name}_s{_sel[0]}"
    t0, t1 = S_T[0], S_T[1]
    return [raw(f"s_cmp_lg_u32 s{OS_AV}, 0"), raw(f"s_cbranch_scc1 {L}_have"),
         raw(f"s_mov_b32 s{t0}, 32"), raw(f"s_cmp_eq_u32 s{OS_ISS}, -1"), raw(f"s_cbranch_scc1 {L}_addr"),
         raw(f"s_mov_b32 s{S_T[5]}, 200000"),
         label(f"{L}_poll"),
         raw(f"buffer_load_dword v{O_PV}, v{O_FL}, s[{OSRDF}:{OSRDF+3}], 0 offen sc1"), raw("s_waitcnt vmcnt(0)"),
         raw(f"v_cmp_eq_u32 vcc, s{S_NONCE}, v{O_PV}"),
         raw(f"s_sub_u32 s{S_T[5]}, s{S_T[5]}, 1"), raw(f"s_cselect_b32 s{t1}, -1, 0"), raw("s_nop 2"),
         raw(f"s_and_b32 s{t0}, vcc_lo, vcc_hi"),
         raw(f"s_or_b32 s{t1}, s{t1}, s{t0}"), raw(f"s_andn2_b32 s{OS_AV}, s{t1}, s{OS_ISS}"),
         raw(f"s_cbranch_scc1 {L}_have"), raw(f"s_sleep {opts.get('sleep', 8)}"), raw(f"s_branch {L}_poll"),
         label(f"{L}_have"),
         raw(f"s_mov_b32 s{OS_A2}, s{OS_AV}"), raw(f"s_mov_b32 s{OS_A2+1}, s{OS_AV}"),
         raw(f"s_lshr_b64 s[{OS_A2}:{OS_A2+1}], s[{OS_A2}:{OS_A2+1}], s{OS_ROT}"),
         raw(f"s_ff1_i32_b32 s{t0}, s{OS_A2}"), raw(f"s_add_u32 s{t0}, s{t0}, s{OS_ROT}"), raw(f"s_and_b32 s{t0}, s{t0}, 31"),
         raw(f"s_lshl_b32 s{t1}, 1, s{t0}"), raw(f"s_or_b32 s{OS_ISS}, s{OS_ISS}, s{t1}"), raw(f"s_andn2_b32 s{OS_AV}, s{OS_AV}, s{t1}"),
         label(f"{L}_addr"),
         raw(f"s_lshl_b32 s{t1}, s{t0}, 15"), raw(f"s_add_u32 s{OS_OO}, s{OS_OO0}, s{t1}"),
         raw(f"s_mul_i32 s{t1}, s{t0}, {128*1280}"), raw(f"s_add_u32 s{OS_OW[0]}, s{OS_WO0}, s{t1}"),
         raw(f"s_add_u32 s{OS_OW[1]}, s{OS_OW[0]}, 1280"), raw(f"s_add_u32 s{OS_OW[2]}, s{OS_OW[0]}, 2560"), raw(f"s_add_u32 s{OS_OW[3]}, s{OS_OW[0]}, 3840")]
OFL = 'sc1'
def o_loads(u):
    o = []
    for j in range(8): o.append([bload(OBF + 32*u + 4*j, 4, O_OFFO[j//4], OSRDO, OS_OO, off=(j%4)*1024, flags=OFL)])
    for b in range(4): o.append([m0set(OS_L, u * WSLOT + b * 1056), dma(O_OFFW, OSRDW, OS_OW[b])])
    return o
def o_aread(u, Tc):
    off = u * WSLOT + Tc * 32
    return [dstr(OAF + 4*Tc, O_AW, off), dstr(OAF + 4*Tc + 2, O_AW, off + 512)]

def build_oproj(name, opts, ST):
    global OFL
    OFL = opts.get('oflags', 'sc1')
    P = []
    A = lambda t, **k: P.append(raw(t, **k))
    t0, t1, t2 = S_T[0], S_T[1], S_T[2]
    A(f"s_sub_u32 s{S_ID}, s2, 512"); A(f"s_cmp_ge_u32 s{S_ID}, 120"); A(f"s_cselect_b32 s{S_BR}, 1, 0")
    A(f"s_mul_i32 s{t0}, s{S_BR}, 120"); A(f"s_sub_u32 s{S_ID}, s{S_ID}, s{t0}")
    A(f"s_mul_i32 s3, s{S_BR}, 40"); A("s_add_u32 s3, s3, 32")
    A(f"s_load_dwordx2 s[{S_PTR}:{S_PTR+1}], s[0:1], s3")
    A(f"s_load_dwordx4 s[{S_PTR+4}:{S_PTR+7}], s[0:1], 80")
    A(f"s_load_dwordx2 s[{S_PTR+8}:{S_PTR+9}], s[0:1], 96")
    A(f"s_and_b32 s3, s{S_ID}, 7"); A(f"s_lshr_b32 s{OS_OFF}, s{S_ID}, 3")
    A(f"s_mul_i32 s{t1}, s{OS_OFF}, 13108"); A(f"s_lshr_b32 s{t1}, s{t1}, 16")
    A(f"s_lshr_b32 s{t2}, s3, 1"); A(f"s_mul_i32 s{t2}, s{t2}, 3"); A(f"s_add_u32 s6, s{t2}, s{t1}")
    A(f"s_mul_i32 s{t1}, s{t1}, 5"); A(f"s_sub_u32 s7, s{OS_OFF}, s{t1}"); A(f"s_and_b32 s{t2}, s3, 1"); A(f"s_mul_i32 s{t2}, s{t2}, 5"); A(f"s_add_u32 s7, s7, s{t2}")
    P.append(valu("v_lshrrev_b32", OG, "6", 0)); P.append(valu("v_and_b32", 0, "63", 0))
    A("s_nop 0"); A(f"v_readfirstlane_b32 s{S_W}, v{OG}")
    P.append(valu("v_lshrrev_b32", OG, "4", 0)); P.append(valu("v_and_b32", OM, "15", 0))
    P.append(valu("v_bfe_u32", ORR, 0, "2", "2")); P.append(valu("v_and_b32", OC, "3", 0))
    P.append(valu("v_lshlrev_b32", O_OFFO[0], "4", 0)); P.append(valu("v_add_u32", O_OFFO[1], "4096", O_OFFO[0]))
    P.append(valu("v_lshrrev_b32", 16, "3", 0)); P.append(valu("v_mul_u32_u24", 16, "5120", 16))
    P.append(valu("v_and_b32", 17, "7", 0)); P.append(valu("v_lshl_add_u32", O_OFFW, 17, "4", 16))
    A(f"s_mul_i32 s{OS_L}, s{S_W}, {NR*WSLOT}")
    P.append(valu("v_mul_u32_u24", 16, "1056", ORR)); P.append(valu("v_lshl_add_u32", 16, OG, "7", 16)); P.append(valu("v_lshl_add_u32", 16, OC, "3", 16))
    P.append(valu("v_add_u32", O_AW, f"s{OS_L}", 16))
    A(f"s_lshl_b32 s{OS_OO0}, s{S_W}, 13"); A(f"s_mul_i32 s{OS_WO0}, s{S_W}, {32*1280}")
    A("s_waitcnt lgkmcnt(0)")
    A(f"s_mul_i32 s{t0}, s{S_BR}, 12"); A(f"s_add_u32 s{t0}, s{t0}, s6"); A(f"s_lshl_b32 s{t0}, s{t0}, 20")
    srd_build(A, OSRDO, S_PTR+8, t0, 1048576)
    A(f"s_lshl_b32 s{t0}, s7, 7"); srd_build(A, OSRDW, S_PTR, t0, 4096*1280 - 9*128)
    A(f"s_mul_i32 s{t0}, s6, {128*2560}"); A(f"s_mul_i32 s{t1}, s{S_BR}, 1280"); A(f"s_add_u32 s{t0}, s{t0}, s{t1}")
    A(f"s_lshl_b32 s{t1}, s7, 7"); A(f"s_add_u32 s{t0}, s{t0}, s{t1}")
    srd_build(A, OSRDOUT, S_PTR+4, t0, 127*2560 + 128)
    srd_build(A, SRDD, S_PTR+6, None, 256)
    A(f"s_mov_b32 s{t0}, 0")
    P.extend(poll(f"{name}_pn", SRDD, t0, 1, 'ge', O_FL, sleep=8))
    A(f"s_mov_b32 s{S_NONCE}, s{S_T[6]}")
    A(f"s_mul_i32 s{t0}, s6, 43691"); A(f"s_lshr_b32 s{t0}, s{t0}, 16")
    A(f"s_lshl_b32 s{t1}, s6, 7"); A(f"s_add_u32 s{t1}, s{t1}, 127"); A(f"s_mul_i32 s{t1}, s{t1}, 21846"); A(f"s_lshr_b32 s{t1}, s{t1}, 22")
    A(f"s_sub_u32 s{t1}, s{t1}, s{t0}"); A(f"s_mul_i32 s{t1}, s{t1}, 384")
    A(f"s_lshl_b32 s{t2}, s{S_BR}, 3"); A(f"s_add_u32 s{t0}, s{t0}, s{t2}"); A(f"s_mul_i32 s{t0}, s{t0}, 384")
    A(f"s_mul_i32 s{t2}, s7, 21846"); A(f"s_lshr_b32 s{t2}, s{t2}, 16"); A(f"s_mul_i32 s{t2}, s{t2}, 3"); A(f"s_sub_u32 s{t2}, s7, s{t2}")
    A(f"s_lshl_b32 s{t2}, s{t2}, 7"); A(f"s_add_u32 s{t0}, s{t0}, s{t2}"); A(f"s_add_u32 s{t0}, s{t0}, {FLAGOFF}")
    srd_build(A, OSRDF, S_PTR+8, t0, 512)
    P.append(valu("v_and_b32", O_FL, "31", 0)); P.append(valu("v_lshlrev_b32", O_FL, "2", O_FL))
    P.append(valu("v_lshrrev_b32", 16, "5", 0)); P.append(valu("v_mul_lo_u32", 16, f"s{t1}", 16)); P.append(valu("v_add_u32", O_FL, O_FL, 16))
    A(f"s_mov_b32 s{OS_AV}, 0"); A(f"s_mov_b32 s{OS_ISS}, 0")
    A(f"s_and_b32 s{OS_ROT}, s{OS_OFF}, {opts.get('rotmask', 7)}")
    for i in range(128): P.append(valu("v_mov_b32", OACC + i, "0"))
    P.extend(ST(1))
    for u in range(2):
        P.extend(o_select(name, opts))
        for grp in o_loads(u): P.extend(grp if len(grp) == 1 else [grp[0], nop(0)] + grp[1:])
    P.append(waitcnt(vm=12))
    for Tc in range(4): P.extend(o_aread(0, Tc))
    A(f"s_mov_b32 s{S_CNT}, 11")
    body = [label(f"{name}_loop")]
    for u in range(3):
        mf = [mfma16(oacc(rt, Tc), OAF + 4*Tc, OBF + 32*u + 4*rt, oacc(rt, Tc)) for Tc in range(4) for rt in range(8)]
        slots = [[] for _ in mf]
        slots[0] += o_select(name, opts)
        for j, grp in enumerate(o_loads((u + 2) % 3)):
            k = 1 + (j * 22) // 12
            if len(grp) == 1: slots[k] += grp
            else: slots[k].append(grp[0]); slots[k+1] += grp[1:]
        slots[24].append(waitcnt(vm=12))
        n = (u + 1) % 3
        slots[24] += o_aread(n, 0); slots[25] += o_aread(n, 1); slots[26] += o_aread(n, 2); slots[31] += o_aread(n, 3)
        body += emit(mf, slots)
    body += [raw(f"s_sub_u32 s{S_CNT}, s{S_CNT}, 1"), raw(f"s_cmp_lg_u32 s{S_CNT}, 0"), raw(f"s_cbranch_scc1 {name}_loop")]
    P2, body2, st = resolve_loop(P, body)
    E = []
    A = lambda t, **k: E.append(raw(t, **k))
    E.extend(ST(2))
    E.append(valu("v_lshlrev_b32", 11, "4", 0))
    A(f"s_lshl_b32 s{t0}, s{S_W}, 14"); E.append(valu("v_add_u32", 12, f"s{t0}", 11))
    A(f"s_lshl_b32 s{t0}, s{S_W}, 12"); E.append(valu("v_add_u32", 13, f"s{t0}", 11))
    E.append(valu("v_and_b32", 14, "1", OG)); E.append(valu("v_lshlrev_b32", 14, "1", 14)); E.append(valu("v_lshrrev_b32", 15, "1", OG))
    E.append(valu("v_or_b32", 14, 14, 15)); E.append(valu("v_lshlrev_b32", 14, "4", 14))
    E.append(valu("v_mul_u32_u24", 15, "2560", OM)); E.append(valu("v_add_u32", 14, 14, 15))
    A(f"s_mul_i32 s{t0}, s{S_W}, {16*2560}"); A(f"s_add_u32 s{t1}, s{t0}, {64*2560}")
    E.append(waitcnt(vm=0, lgkm=0)); E.append(barrier())
    for r in range(2):
        for tl in range(16): E.append(dsw128(12, OACC + (16*r + tl)*4, tl*1024))
        E.append(waitcnt(lgkm=0)); E.append(barrier())
        for t in range(4):
            for p in range(4): E.append(ds128(144 + (p*4 + t)*4, 13, p*16384 + t*1024))
        for pr in range(2):
            for h in range(2):
                t = 2*pr + h
                for i in range(4):
                    a = 144 + t*4 + i
                    E.append(valu("v_add_f32", a, a, a + 16)); E.append(valu("v_add_f32", a + 32, a + 32, a + 48))
                for i in range(4):
                    a = 144 + t*4 + i
                    E.append(valu("v_add_f32", a, a, a + 32))
            a = 144 + 2*pr*4; b = a + 4; q = 240 + (r*2 + pr)*4
            E += [cvtpk(q, a, a+1), cvtpk(q+1, a+2, a+3), cvtpk(q+2, b, b+1), cvtpk(q+3, b+2, b+3), perm16(q, q+2), perm16(q+1, q+3)]
            E.append(bstore(q, 4, 14, OSRDOUT, t0 if r == 0 else t1, off=pr*64))
        if r == 0: E.append(waitcnt(lgkm=0)); E.append(barrier())
    E2, _ = resolve(E, st)
    return P2 + body2 + E2

def build(name, stamps=False, **opts):
    ST = (lambda i, real=False: stamp(i, real)) if stamps else (lambda i, real=False: [])
    out = [label(name)] + ST(0) + ST(6, True)
    out += [raw("s_cmp_ge_u32 s2, 752"), raw(f"s_cbranch_scc1 {name}_end"), raw("s_cmp_ge_u32 s2, 512"), raw(f"s_cbranch_scc1 {name}_oproj")]
    if opts.get("skip_heads"): out += [raw("s_endpgm")]
    fin_h = []; fin_o = []
    if stamps:
        fin_h = [waitcnt(vm=0), raw("s_mov_b64 exec, -1")] + ST(5) + ST(7, True) + stamp_dump(8, S_PTR+8, S_W, 64<<20, 16, nwaves_shift=2)
        fin_o = [waitcnt(vm=0)] + ST(3) + ST(4) + ST(5) + ST(7, True) + stamp_dump(8, S_PTR+8, S_W, 64<<20, 16, nwaves_shift=2)
    out += build_head(name + "_h", opts, ST) + fin_h + [raw("s_endpgm")]
    out += [label(f"{name}_oproj")] + build_oproj(name + "_o", opts, ST) + fin_o
    out += [label(f"{name}_end"), raw("s_endpgm")]
    return out
```

```python
import sys, json
sys.path.insert(0, "gen")
from asmlib import *
import k3
NAME = "concat_heads__mha_block_cached__gqa_block_cached__near_ridge_kernel"
HDR = open("concat_heads__mha_block_cached__gqa_block_cached__near_ridge.s.ref").read().split("; Override launch")[0]
def main(out, stamps=False, opts={}):
    s = HDR
    s += "; @launch grid=(752,1,1) block=(256,1,1) lds=81920\n"
    s += '.amdgcn_target "amdgcn-amd-amdhsa--gfx950"\n.text\n'
    s += f".globl {NAME}\n.p2align 8\n.type {NAME},@function\n" + text(k3.build(NAME, stamps=stamps, **opts))
    s += f""".section .rodata,"a"
.p2align 6
.amdhsa_kernel {NAME}
  .amdhsa_next_free_vgpr 256
  .amdhsa_next_free_sgpr 100
  .amdhsa_accum_offset 256
  .amdhsa_group_segment_fixed_size 0
  .amdhsa_kernarg_size 104
  .amdhsa_user_sgpr_count 2
  .amdhsa_user_sgpr_kernarg_segment_ptr 1
  .amdhsa_system_sgpr_workgroup_id_x 1
.end_amdhsa_kernel
"""
    open(out, "w").write(s)
if __name__ == "__main__":
    opts = dict(rot=True, hold=False, rotmask=0, att_vm=4, prioAtt=0, prioA=0, omap="xcd", kvrot=False, sleep=32, bar2=True, wo_pos="pro", wot="c")
    opts.update(prioA=1, prioAttA=1, sleep=64, outflags='sc1')
    opts.update(json.loads(sys.argv[3]) if len(sys.argv) > 3 else {})
    main(sys.argv[1], stamps=(len(sys.argv) > 2 and sys.argv[2] == "stamps"), opts=opts)
```

```python
from asmlib import *

QSLOT = 40960; XOFF = 16384
ASLOT = 16896; VOFF = 8448
ACC = 16; QF = 112
SX, SY, SZ = 160, 172, 184
PB = 196; KF = 214; VF = 230
QA = [160, 204]; QB = [192, 236]
V_OFFA, V_OFFB, V_L16 = 1, 2, 3
A_W = [4, 5, 6, 7, 8, 9, 10, 11]; A_X = [12, 15]; A_K = 13; A_V = 14
LSUM = [4, 5, 6]; VT = [7, 8, 9, 10]
ONES = 250
LACC = [4, 8, 246]
LMF = False
G, M, RR, C = 248, 249, 250, 251
V_DUMMY = 255; V_TCH = 254
S_W, S_BR, S_B, S_H = 4, 5, 6, 7
SRDA, SRDB, SRDK, SRDV, SRDO, SRDD = 12, 16, 20, 24, 28, 64
S_O = [32, 33, 34, 35]; S_L = [38, 39, 40, 41]; S_CNT = 42
S_OW, S_OX, S_LW, S_LX, S_SIG, S_TT = 8, 9, 36, 37, 10, 11
S_KC, S_VC, S_KB, S_KROT = 8, 9, 36, 37
S_T = [43, 44, 45, 46, 47, 48, 49]
S_SC = 50
S_PTR = 52
SRDWO = 68
S_ID = 72
S_DBG = 74
FLAGOFF = 32 << 20
S_NONCE = 73

def acc(T, qt): return ACC + (T * 3 + qt) * 4
def qf(qt, c): return QF + (qt * 4 + c) * 4

def emit(mf, slots):
    out = []
    for m, fs in zip(mf, slots):
        out.append(m)
        for f in fs:
            if isinstance(f, list): out.extend(f)
            else: out.append(f)
    return out
def spread(slots, items, lo, hi):
    n = len(items); m = hi - lo
    for i, it in enumerate(items): slots[lo + (i * m) // n].append(it)

def q_addr():
    t0 = S_T[0]
    return [salu(f"s_lshl_b32 s{t0}, s{S_SIG}, 19"), salu(f"s_add_u32 s{S_O[0]}, s{S_OW}, s{t0}"),
            salu(f"s_lshl_b32 s{t0}, s{S_SIG}, 7"), salu(f"s_add_u32 s{S_O[1]}, s{S_OX}, s{t0}"),
            salu(f"s_add_u32 s{S_SIG}, s{S_SIG}, 1"), salu(f"s_cmp_eq_u32 s{S_SIG}, 10"), salu(f"s_cselect_b32 s{S_SIG}, 0, s{S_SIG}")]
def q_dma(slot):
    out = []
    for i in range(4):
        g = [m0set(S_LW, slot * QSLOT + i * 4096)]
        if i == 0: g += [dma(V_OFFA, SRDA, S_O[0])]
        else: g += [salu(f"s_add_u32 s{S_TT}, s{S_O[0]}, {i*16*8192}"), dma(V_OFFA, SRDA, S_TT)]
        out.append(g)
    for i in range(6):
        g = [m0set(S_LX, slot * QSLOT + i * 4096)]
        if i == 0: g += [dma(V_OFFB, SRDB, S_O[1])]
        else: g += [salu(f"s_add_u32 s{S_TT}, s{S_O[1]}, {i*32*1280}"), dma(V_OFFB, SRDB, S_TT)]
        out.append(g)
    return out
KVROT = True
def kv_addr(which):
    c = S_KC if which == 0 else S_VC
    a, b = (S_O[0], S_O[1]) if which == 0 else (S_O[2], S_O[3])
    t = S_TT
    return [salu(f"s_add_u32 s{t}, s{c}, s{S_KROT}"), salu(f"s_and_b32 s{t}, s{t}, 15"), salu(f"s_cmp_lt_u32 s{c}, 16"),
            salu(f"s_cselect_b32 s{t}, s{t}, 16"), salu(f"s_lshl_b32 s{t}, s{t}, 13"), salu(f"s_add_u32 s{a}, s{t}, s{S_KB}"),
            salu(f"s_add_u32 s{b}, s{a}, 4096"), salu(f"s_add_u32 s{c}, s{c}, 1")]
def kv_dma(kslot, vslot, flags):
    out = []
    for j in range(4):
        sl = kslot if j < 2 else vslot
        if KVROT:
            pre = kv_addr(j // 2) if j % 2 == 0 else []
            post = nop(0)
        else:
            pre = []
            post = salu(f"s_add_u32 s{S_O[j]}, s{S_O[j]}, 8192")
        out.append([pre + [m0set(S_L[j], sl * ASLOT)], dma(V_L16, SRDK if j < 2 else SRDV, S_O[j], flags), post])
    return out

def q_frag_reads(slot, e, st):
    out = []
    for qt in range(3): out.append(ds128(QB[st] + 4*qt, A_X[e], slot * QSLOT + qt * 2048))
    for T in range(8):
        o = slot * QSLOT + e * 8192
        out.append(dstr(QA[st] + 4*T, A_W[T], o)); out.append(dstr(QA[st] + 4*T + 2, A_W[T], o + 1024))
    return out

_pl = [0]
def polite(n):
    _pl[0] += 1
    lab = f"Lpol{_pl[0]}"
    return [raw(f"s_cmp_eq_u32 s{S_BR}, 0"), raw(f"s_cbranch_scc1 {lab}"), waitcnt(vm=n), label(lab)]
POL = None
def q_half(st, reads, extra):
    mf = [mfma16(acc(T, qt), QA[st] + 4*T, QB[st] + 4*qt, acc(T, qt)) for T in range(8) for qt in range(3)]
    slots = [[] for _ in mf]
    for i, rd in enumerate(reads): slots[i].append(rd)
    n = len(extra)
    for j, grp in enumerate(extra):
        k = (j * 22) // max(n, 1)
        slots[k].append(grp[0]); slots[k+1] += [x for x in grp[1:] if getattr(x, "kind", "") != "nop"]
    return emit(mf, slots)

def q_iter(p, kind, kvflags=""):
    out = q_half(0, q_frag_reads(p, 1, 1), [])
    out += [waitcnt(vm=0, lgkm=0) if kind != 'K1' else waitcnt(lgkm=0), barrier()]
    if kind == 'Q':
        extra = [q_addr()] + q_dma(p)
        if POL:
            for pos, n in POL: extra[pos] = extra[pos] + polite(n)
    elif kind == 'K0': extra = kv_dma(0, 0, kvflags) + kv_dma(1, 1, kvflags)
    else: extra = kv_dma(2, 2, kvflags) + kv_dma(3, 3, kvflags)
    reads = q_frag_reads(1 - p, 0, 0) if kind != 'K1' else []
    out += q_half(1, reads, extra)
    return out

def q_switch():
    o = []
    A = lambda t: o.append(raw(t))
    t0, t1 = S_T[0], S_T[1]
    A(f"s_lshr_b32 s{t0}, s{S_W}, 1"); A(f"s_lshl_b32 s{t0}, s{t0}, 2"); A(f"s_and_b32 s{t1}, s{S_W}, 1"); A(f"s_add_u32 s{t0}, s{t0}, s{t1}")
    A(f"s_lshl_b32 s{t0}, s{t0}, 4"); A(f"s_lshl_b32 s{t1}, s{S_W}, 10"); A(f"s_add_u32 s{S_L[0]}, s{t0}, s{t1}")
    A(f"s_add_u32 s{S_L[1]}, s{S_L[0]}, {4096+128}")
    A(f"s_mul_i32 s{t0}, s{S_W}, 1056"); A(f"s_add_u32 s{S_L[2]}, s{t0}, {VOFF}"); A(f"s_add_u32 s{S_L[3]}, s{S_L[2]}, {4*1056}")
    A(f"s_lshl_b32 s{S_KB}, s{S_W}, 10"); A(f"s_mov_b32 s{S_KC}, 0"); A(f"s_mov_b32 s{S_VC}, 0")
    if KVROT:
        A(f"s_lshr_b32 s{S_KROT}, s{S_ID}, 3"); A(f"s_add_u32 s{S_KROT}, s{S_KROT}, s{S_ID}"); A(f"s_and_b32 s{S_KROT}, s{S_KROT}, 15")
    else:
        A(f"s_mov_b32 s{S_O[0]}, s{S_KB}"); A(f"s_add_u32 s{S_O[1]}, s{S_KB}, 4096"); A(f"s_mov_b32 s{S_O[2]}, s{S_O[0]}"); A(f"s_mov_b32 s{S_O[3]}, s{S_O[1]}")
    return o

def q_convert():
    o = []
    for qt in range(3):
        for T in range(8):
            a = acc(T, qt)
            o.append(pkmul(a, a, f"s[{S_SC}:{S_SC+1}]")); o.append(pkmul(a+2, a+2, f"s[{S_SC}:{S_SC+1}]"))
    for qt in range(3):
        for c in range(4):
            q = qf(qt, c); a = acc(2*c, qt); b = acc(2*c+1, qt)
            o += [cvtpk(q, a, a+1), cvtpk(q+1, a+2, a+3), cvtpk(q+2, b, b+1), cvtpk(q+3, b+2, b+3)]
    for qt in range(3):
        for c in range(4):
            q = qf(qt, c)
            o += [perm16(q, q+2), perm16(q+1, q+3)]
    for i in range(96): o.append(valu("v_mov_b32", ACC + i, "0"))
    if LMF:
        for qt in range(3):
            for i in range(4): o.append(valu("v_mov_b32", LACC[qt] + i, "0"))
        for i in range(4): o.append(valu("v_mov_b32", ONES + i, "0x3f803f80"))
    else:
        for r in LSUM: o.append(valu("v_mov_b32", r, "0"))
    return o

def sreg(j, Tk, qt):
    if Tk == 0: return SX + 4*qt
    return (SY if j % 2 == 0 else SZ) + 4*qt
def preg(j, part, qt):
    base = PB + 6*qt
    if part == 1: return base + 2
    return base + (0 if j % 2 == 0 else 4)
def pop(j, qt): return PB + 6*qt + (0 if j % 2 == 0 else 2)
def k_read(j, i): return ds128(KF + 4*(i % 4), A_K, (j % 4) * ASLOT + (i % 4) * 64 + (i // 4) * 512)
def v_read(j, T):
    o = (j % 4) * ASLOT + T * 32
    d = VF + 4*(T % 4)
    if j % 2 == 0: return [dstr(d, A_V, o), dstr(d+2, A_V, o + 512)]
    return [dstr(d+2, A_V, o), dstr(d, A_V, o + 512)]
def softmax_ops(j, part):
    if XO.get("nosm"): return [nop(0)]
    ops = []
    for qt in range(3):
        s = sreg(j, part, qt); p = preg(j, part, qt)
        ops.append([vexp(s, s), vexp(s+1, s+1), vexp(s+2, s+2), vexp(s+3, s+3),
                    valu("v_add_f32", LSUM[qt], LSUM[qt], s), cvtpk(p, s, s+1), valu("v_add_f32", LSUM[qt], LSUM[qt], s+1),
                    valu("v_add_f32", LSUM[qt], LSUM[qt], s+2), cvtpk(p+1, s+2, s+3), valu("v_add_f32", LSUM[qt], LSUM[qt], s+3)])
    seq = list(ops[0][:4])
    for qt in range(1, 3):
        e = ops[qt][:4]; f = ops[qt-1][4:]
        seq += [e[0], f[0], f[1], e[1], f[2], e[2], f[3], f[4], e[3], f[5]]
    seq += ops[2][4:]
    if LMF: seq = [x for x in seq if not x.txt.startswith("v_add_f32")]
    if XO.get("noadd"): seq = [x for x in seq if not x.txt.startswith("v_add_f32")]
    if XO.get("noexp"): seq = [x for x in seq if not x.txt.startswith("v_exp")]
    return seq
def qk_mfmas(j):
    mf = []
    for Tk in range(2):
        for c in range(4):
            i = Tk*4 + c
            for qt in range(3):
                s = sreg(j, Tk, qt)
                mf.append(mfma16(s, KF + 4*(i % 4), qf(qt, c), None if c == 0 else s))
    return mf
def pv_mfmas(j):
    return [mfma16(acc(T, qt), VF + 4*(T % 4), pop(j, qt), acc(T, qt)) for T in range(8) for qt in range(3)]
def l_mfmas(j):
    return [mfma16(LACC[qt], ONES, pop(j, qt), LACC[qt]) for qt in range(3)]

def h0(s, tail=False):
    sm = softmax_ops(s, 1)
    vr_ = [v_read(s, T) for T in range(4)]
    if tail:
        out = []
        for v in vr_: out += v
        return out + sm
    mf = qk_mfmas(s + 1)
    slots = [[] for _ in mf]
    for i in range(5): slots[3*i].append(k_read(s + 1, i + 3))
    for T in range(4): slots[14 + 2*T].append(vr_[T][0]); slots[15 + 2*T].append(vr_[T][1])
    spread(slots, sm, 0, 23)
    return emit(mf, slots)
ATTVM = 8
XO = {}
def h1(s, kvflags, tail=False):
    mf = pv_mfmas(s)
    slots = [[] for _ in mf]
    for T in range(4, 8):
        v = v_read(s, T); slots[3*(T-4) + 2].append(v[0]); slots[3*(T-4) + 3].append(v[1])
    if not tail:
        spread(slots, softmax_ops(s + 1, 0), 0, 23)
        if XO.get("nobar"): slots[16].append([waitcnt(lgkm=0)])
        else: slots[16].append([waitcnt(vm=ATTVM, lgkm=0), barrier()])
        for i in range(3): slots[17 + i].append(k_read(s + 2, i))
        if not XO.get("nodma"):
          for j, grp in enumerate(kv_dma((s + 1) % 4, s % 4, kvflags)):
            slots[17 + j].append(grp[0]); slots[18 + j].append(grp[1])
            if grp[2].kind != "nop": slots[19 + j].append(grp[2])
    if LMF:
        lm = l_mfmas(s); slots[2].append(lm[0]); slots[8].append(lm[1]); slots[13].append(lm[2])
    return emit(mf, slots)
def att_prologue(kvflags):
    o = [raw(f"s_sub_u32 s{S_VC}, s{S_VC}, 1")] if KVROT else [raw(f"s_sub_u32 s{S_O[2]}, s{S_O[2]}, 8192"), raw(f"s_sub_u32 s{S_O[3]}, s{S_O[3]}, 8192")]
    o += [waitcnt(vm=14), barrier()]
    for i in range(3): o.append(k_read(0, i))
    mf = qk_mfmas(0)
    slots = [[] for _ in mf]
    for i in range(5): slots[3*i].append(k_read(0, i + 3))
    o += emit(mf, slots)
    o += [waitcnt(vm=8, lgkm=0), barrier()]
    for i in range(3): o.append(k_read(1, i))
    for grp in kv_dma(0, 3, kvflags): o += grp[0] + [nop(0), grp[1], grp[2]]
    o += softmax_ops(0, 0)
    return o

def srd_build(A, dst, ptr, offreg, nrec):
    if offreg is None:
        A(f"s_mov_b32 s{dst}, s{ptr}"); A(f"s_and_b32 s{dst+1}, s{ptr+1}, 0xffff")
    else:
        A(f"s_add_u32 s{dst}, s{ptr}, s{offreg}"); A(f"s_addc_u32 s{dst+1}, s{ptr+1}, 0"); A(f"s_and_b32 s{dst+1}, s{dst+1}, 0xffff")
    A(f"s_mov_b32 s{dst+2}, {nrec}"); A(f"s_mov_b32 s{dst+3}, 0x20000")

def head_prologue(name, opts):
    P = []
    A = lambda t, **k: P.append(raw(t, **k))
    t0, t1, t2 = S_T[0], S_T[1], S_T[2]
    A(f"s_lshr_b32 s{S_BR}, s2, 8"); A(f"s_and_b32 s{S_ID}, s2, 255")
    A(f"s_mul_i32 s3, s{S_BR}, 40")
    A(f"s_load_dwordx4 s[{S_PTR}:{S_PTR+3}], s[0:1], s3")
    A(f"s_add_u32 s{t1}, s3, 16"); A(f"s_load_dwordx4 s[{S_PTR+4}:{S_PTR+7}], s[0:1], s{t1}")
    A(f"s_load_dwordx2 s[{S_PTR+8}:{S_PTR+9}], s[0:1], 96")
    A(f"s_load_dwordx2 s[{S_DBG}:{S_DBG+1}], s[0:1], 88")
    A(f"s_add_u32 s{t1}, s3, 32"); A(f"s_load_dwordx2 s[{S_PTR+10}:{S_PTR+11}], s[0:1], s{t1}")
    A(f"s_and_b32 s3, s{S_ID}, 7"); A(f"s_lshr_b32 s{t0}, s{S_ID}, 3")
    A(f"s_lshr_b32 s{S_B}, s3, 2"); A(f"s_lshl_b32 s{S_B}, s{S_B}, 2"); A(f"s_lshr_b32 s{t1}, s{t0}, 3"); A(f"s_add_u32 s{S_B}, s{S_B}, s{t1}")
    A(f"s_and_b32 s{S_H}, s3, 3"); A(f"s_lshl_b32 s{S_H}, s{S_H}, 3"); A(f"s_and_b32 s{t1}, s{t0}, 7"); A(f"s_add_u32 s{S_H}, s{S_H}, s{t1}")
    P.append(valu("v_lshrrev_b32", G, "6", 0)); P.append(valu("v_and_b32", 0, "63", 0))
    A("s_nop 0"); A(f"v_readfirstlane_b32 s{S_W}, v{G}")
    P.append(valu("v_lshrrev_b32", G, "4", 0)); P.append(valu("v_and_b32", M, "15", 0))
    P.append(valu("v_bfe_u32", RR, 0, "2", "2")); P.append(valu("v_and_b32", C, "3", 0))
    P.append(valu("v_lshlrev_b32", V_L16, "4", 0))
    T0, T1 = 16, 17
    A(f"s_lshr_b32 s{t0}, s{S_W}, 1"); A(f"s_and_b32 s{t0}, s{t0}, 1"); A(f"s_lshl_b32 s{t0}, s{t0}, 2")
    P.append(valu("v_or_b32", T0, f"s{t0}", G))
    P.append(valu("v_lshrrev_b32", T1, "1", M)); P.append(valu("v_xor_b32", T0, T0, T1))
    P.append(valu("v_lshlrev_b32", T0, "5", T0))
    P.append(valu("v_and_b32", T1, "1", M)); P.append(valu("v_lshl_add_u32", T0, T1, "4", T0))
    P.append(valu("v_lshl_add_u32", V_OFFA, G, "13", T0))
    A(f"s_and_b32 s{t0}, s{S_W}, 1"); A(f"s_lshl_b32 s{t0}, s{t0}, 2")
    P.append(valu("v_add_u32", T0, f"s{t0}", G))
    P.append(valu("v_and_b32", T1, "7", 0)); P.append(valu("v_xor_b32", T1, T1, T0)); P.append(valu("v_lshlrev_b32", T1, "4", T1))
    P.append(valu("v_lshrrev_b32", T0, "3", 0)); P.append(valu("v_mul_u32_u24", T0, "1280", T0)); P.append(valu("v_add_u32", V_OFFB, T0, T1))
    A(f"s_lshl_b32 s{S_OW}, s{S_W}, 15"); A(f"s_mul_i32 s{S_OX}, s{S_W}, {8*1280}")
    A(f"s_lshl_b32 s{S_LW}, s{S_W}, 10"); A(f"s_add_u32 s{S_LX}, s{S_LW}, {XOFF}")
    if opts.get("rot", False):
        A(f"s_and_b32 s{t0}, s{S_H}, 7"); A(f"s_lshr_b32 s{t1}, s{t0}, 2"); A(f"s_add_u32 s{t0}, s{t0}, s{t1}")
        A(f"s_and_b32 s{t1}, s{S_B}, 3"); A(f"s_mul_i32 s{t1}, s{t1}, 5"); A(f"s_add_u32 s{t1}, s{t1}, 1"); A(f"s_lshr_b32 s{t1}, s{t1}, 1")
        A(f"s_add_u32 s{S_SIG}, s{t0}, s{t1}")
        A(f"s_cmp_ge_u32 s{S_SIG}, 10"); A(f"s_cselect_b32 s{t0}, 10, 0"); A(f"s_sub_u32 s{S_SIG}, s{S_SIG}, s{t0}")
    else:
        A(f"s_mov_b32 s{S_SIG}, 0")
    A("s_waitcnt lgkmcnt(0)")
    px, pk, pv, pw, pws = S_PTR, S_PTR+2, S_PTR+4, S_PTR+6, S_PTR+8
    srd_build(A, SRDD, S_DBG, None, 256)
    A(f"s_or_b32 s{t0}, s2, s{S_W}"); A(f"s_cmp_eq_u32 s{t0}, 0"); A(f"s_cbranch_scc0 {name}_nononce")
    A(f"s_memrealtime s[{S_T[3]}:{S_T[4]}]"); A("s_waitcnt lgkmcnt(0)"); A(f"s_or_b32 s{t0}, s{S_T[3]}, 1")
    P.append(valu("v_mov_b32", V_DUMMY, f"s{t0}")); P.append(valu("v_mov_b32", V_TCH, "0"))
    A(f"buffer_store_dword v{V_DUMMY}, v{V_TCH}, s[{SRDD}:{SRDD+3}], 0 offen sc1")
    P.append(label(f"{name}_nononce"))
    if opts.get("hold", True): hold_setup(name, opts, A, P)
    A(f"s_lshl_b32 s{t0}, s{S_H}, 8"); srd_build(A, SRDA, pw, t0, 640*8192 - 31*256)
    A(f"s_mul_i32 s{t0}, s{S_B}, 245760"); srd_build(A, SRDB, px, t0, 245760)
    for st in range(2):
        P.extend(q_addr())
        for grp in q_dma(st): P.extend([grp[0], nop(0)] + grp[1:])
    A(f"s_cmp_eq_u32 s{S_BR}, 0"); A(f"s_cbranch_scc0 {name}_noprio"); A(f"s_setprio {opts.get('prioA', 3)}"); P.append(label(f"{name}_noprio"))
    A(f"s_lshl_b32 s{t1}, s{S_B}, 5"); A(f"s_add_u32 s{t1}, s{t1}, s{S_H}"); A(f"s_lshl_b32 s{t0}, s{t1}, 17")
    srd_build(A, SRDK, pk, t0, 131072); srd_build(A, SRDV, pv, t0, 131072)
    A(f"s_mul_i32 s{t1}, s{S_BR}, {12*1048576}"); A(f"s_lshl_b32 s{t2}, s{S_H}, 15"); A(f"s_add_u32 s{t0}, s{t1}, s{t2}")
    srd_build(A, SRDO, pws, t0, 12*1048576 - 31*32768)
    A(f"s_mul_i32 s{t0}, s{S_ID}, 20480"); srd_build(A, SRDWO, S_PTR+10, t0, 20480)
    A(f"s_mov_b32 s{S_SC}, 0x3e0293ee"); A(f"s_mov_b32 s{S_SC+1}, 0x3e0293ee")
    P.append(valu("v_and_b32", T0, "1", G)); P.append(valu("v_lshl_or_b32", T0, T0, "2", RR))
    P.append(valu("v_lshl_add_u32", T1, G, "3", RR)); P.append(valu("v_lshlrev_b32", T1, "8", T1))
    P.append(valu("v_lshl_add_u32", T1, C, "3", T1))
    for T in range(8):
        P.append(valu("v_xor_b32", A_W[T], str(T), T0)); P.append(valu("v_lshl_add_u32", A_W[T], A_W[T], "5", T1))
    P.append(valu("v_lshrrev_b32", T0, "1", M)); P.append(valu("v_xor_b32", T0, G, T0)); P.append(valu("v_lshlrev_b32", T0, "4", T0))
    P.append(valu("v_lshl_add_u32", T0, M, "7", T0))
    A(f"s_mul_i32 s3, s{S_W}, {48*128}"); A(f"s_add_u32 s3, s3, {XOFF}")
    P.append(valu("v_add_u32", A_X[0], "s3", T0)); P.append(valu("v_xor_b32", A_X[1], "64", A_X[0]))
    P.append(valu("v_and_b32", T0, "7", M))
    P.append(valu("v_lshrrev_b32", T1, "1", T0)); P.append(valu("v_lshlrev_b32", T1, "2", T1))
    P.append(valu("v_and_b32", A_K, "1", T0)); P.append(valu("v_add_u32", T1, T1, A_K))
    P.append(valu("v_lshlrev_b32", T1, "4", T1)); P.append(valu("v_lshl_add_u32", T1, T0, "10", T1))
    P.append(valu("v_lshrrev_b32", T0, "3", M)); P.append(valu("v_lshl_add_u32", T1, T0, "8", T1))
    P.append(valu("v_and_b32", T0, "1", G)); P.append(valu("v_lshlrev_b32", T0, "1", T0))
    P.append(valu("v_lshrrev_b32", A_K, "1", G)); P.append(valu("v_or_b32", T0, T0, A_K))
    P.append(valu("v_lshl_add_u32", A_K, T0, "4", T1))
    P.append(valu("v_and_b32", T0, "1", G)); P.append(valu("v_lshl_add_u32", T0, T0, "2", RR))
    P.append(valu("v_mul_u32_u24", T0, "1056", T0))
    P.append(valu("v_lshrrev_b32", T1, "1", G)); P.append(valu("v_lshl_add_u32", T0, T1, "8", T0))
    P.append(valu("v_lshl_add_u32", T0, C, "3", T0)); P.append(valu("v_add_u32", A_V, str(VOFF), T0))
    for i in range(96): P.append(valu("v_mov_b32", ACC + i, "0"))
    P.append(waitcnt(vm=10)); P.append(barrier())
    P.extend(q_frag_reads(0, 0, 0))
    return P

def poll(name, srd, off_sreg, mask_or_val, mode, vtmp, sleep=8):
    o = [raw(f"s_mov_b32 s{S_T[5]}, 200000"), label(f"{name}"), raw(f"v_mov_b32 v{vtmp}, 0", kind="valu", wr=[vtmp]),
         raw(f"buffer_load_dword v{vtmp+1}, v{vtmp}, s[{srd}:{srd+3}], s{off_sreg} offen sc1"),
         raw("s_waitcnt vmcnt(0)"),
         raw(f"v_readfirstlane_b32 s{S_T[6]}, v{vtmp+1}"),
         raw(f"s_sub_u32 s{S_T[5]}, s{S_T[5]}, 1"), raw(f"s_cbranch_scc1 {name}_ok"),
         raw("s_nop 2")]
    if mode == 'bit':
        o += [raw(f"s_and_b32 s{S_T[6]}, s{S_T[6]}, s{mask_or_val}"), raw(f"s_cbranch_scc1 {name}_ok")]
    else:
        o += [raw(f"s_cmp_ge_u32 s{S_T[6]}, {mask_or_val}"), raw(f"s_cbranch_scc1 {name}_ok")]
    o += [raw(f"s_sleep {sleep}"), raw(f"s_branch {name}"), label(f"{name}_ok")]
    return o

FBOFF = 81856
S_FB = 70
S_FB = 78
L_LO, L_HI = "0x2b800000", "0x53800000"
def head_epilogue(name, opts):
    o = [valu("v_mov_b32", V_TCH, "0"), raw(f"buffer_load_dword v{V_DUMMY}, v{V_TCH}, s[{SRDD}:{SRDD+3}], 0 offen sc1", kind="vload", rd=[V_TCH], wr=[V_DUMMY]),
         raw(f"s_mov_b32 s{S_FB}, 0"), label(f"{name}_e0")]
    t = VT
    for qt in range(3):
        l = LSUM[qt]
        o += [valu("v_mov_b32", t[qt], l), perm32(t[qt], l), valu("v_add_f32", l, l, t[qt])]
    for qt in range(3):
        l = LSUM[qt]
        o += [valu("v_mov_b32", t[qt], l), perm16(t[qt], l), valu("v_add_f32", l, l, t[qt])]
    m = S_T[5]
    o += [raw(f"s_mov_b64 s[{m}:{m+1}], 0"), valu("v_mov_b32", 11, L_LO), valu("v_mov_b32", 12, L_HI)]
    for qt in range(3):
        o += [I(f"v_cmp_nle_f32 vcc, v11, v{LSUM[qt]}", rd=[11, LSUM[qt]], kind="valu"), raw("s_nop 1"), raw(f"s_or_b64 s[{m}:{m+1}], s[{m}:{m+1}], vcc"),
              I(f"v_cmp_nge_f32 vcc, v12, v{LSUM[qt]}", rd=[12, LSUM[qt]], kind="valu"), raw("s_nop 1"), raw(f"s_or_b64 s[{m}:{m+1}], s[{m}:{m+1}], vcc")]
    o += [raw(f"s_cmp_lg_u64 s[{m}:{m+1}], 0"), raw(f"s_cselect_b32 s{m}, 1, 0"), raw(f"s_andn2_b32 s{m}, s{m}, s{S_FB}"),
          raw(f"s_lshl_b32 s{m+1}, s{S_W}, 2"), raw(f"s_add_u32 s{m+1}, s{m+1}, {FBOFF}"),
          I(f"v_mov_b32 v11, s{m}", wr=[11], kind="valu"), I(f"v_mov_b32 v12, s{m+1}", wr=[12], kind="valu"), dsw32(12, 11)]
    for qt in range(3): o.append(vrcp(t[qt], LSUM[qt]))
    for qt in range(3):
        o.append(raw(f"s_mul_i32 s{S_T[3]}, s{S_B}, 12")); o.append(raw(f"s_mul_i32 s{S_T[4]}, s{S_W}, 3"))
        o.append(raw(f"s_add_u32 s{S_T[3]}, s{S_T[3]}, s{S_T[4]}")); o.append(raw(f"s_add_u32 s{S_T[3]}, s{S_T[3]}, {qt}"))
        o.append(raw(f"s_lshr_b32 s{S_T[4]}, s{S_T[3]}, 3")); o.append(raw(f"s_lshl_b32 s{S_T[4]}, s{S_T[4]}, 20"))
        o.append(raw(f"s_and_b32 s{S_T[3]}, s{S_T[3]}, 7")); o.append(raw(f"s_lshl_b32 s{S_T[3]}, s{S_T[3]}, 10"))
        o.append(raw(f"s_add_u32 s{S_T[qt]}, s{S_T[3]}, s{S_T[4]}"))
    for qt in range(3):
        for c in range(4):
            a = acc(2*c, qt); b = acc(2*c+1, qt)
            for r in range(4):
                o.append(valu("v_mul_f32", a + r, a + r, t[qt])); o.append(valu("v_mul_f32", b + r, b + r, t[qt]))
            o += [cvtpk(a, a, a+1), cvtpk(a+1, a+2, a+3), cvtpk(a+2, b, b+1), cvtpk(a+3, b+2, b+3)]
            o.append(bstore(a, 4, V_L16, SRDO, S_T[qt], flags=opts.get("stflags", "sc1")))
            if c < 3: o.append(raw(f"s_add_u32 s{S_T[qt]}, s{S_T[qt]}, 8192"))
    o += [waitcnt(vm=0, lgkm=0), barrier()]
    o += [valu("v_mov_b32", 12, str(FBOFF)), ds128(160, 12, 0), waitcnt(lgkm=0),
          valu("v_or_b32", 160, 160, 161), valu("v_or_b32", 162, 162, 163), valu("v_or_b32", 160, 160, 162), raw("s_nop 0"),
          raw(f"v_readfirstlane_b32 s{S_T[2]}, v160"), raw("s_nop 3"), raw(f"s_cmp_lg_u32 s{S_T[2]}, 0"), raw(f"s_cbranch_scc1 {name}_fb")]
    t0, t1 = S_T[0], S_T[1]
    o += [raw(f"s_cmp_eq_u32 s{S_W}, 0"), raw(f"s_cbranch_scc0 {name}_nopub"),
          raw(f"v_readfirstlane_b32 s{S_NONCE}, v{V_DUMMY}"), raw("s_nop 3"),
          raw(f"s_cmp_lg_u32 s{S_NONCE}, 0"), raw(f"s_cbranch_scc1 {name}_pn_done"), raw(f"s_mov_b32 s{t0}, 0")]
    o += poll(f"{name}_pn", SRDD, t0, 1, 'ge', V_TCH)
    o += [raw(f"s_mov_b32 s{S_NONCE}, s{S_T[6]}"), label(f"{name}_pn_done"),
          raw(f"s_lshl_b32 s{t0}, s{S_BR}, 3"), raw(f"s_add_u32 s{t0}, s{t0}, s{S_B}"), raw(f"s_mul_i32 s{t0}, s{t0}, 384"),
          raw(f"s_lshl_b32 s{t1}, s{S_H}, 2"), raw(f"s_add_u32 s{t0}, s{t0}, s{t1}"), raw(f"s_add_u32 s{t0}, s{t0}, {FLAGOFF}")]
    A = lambda t: o.append(raw(t))
    srd_build(A, SRDWO, S_PTR+8, t0, 260)
    o += [raw("v_lshlrev_b32 v16, 7, v0", kind="valu", wr=[16]), raw(f"v_mov_b32 v17, s{S_NONCE}", kind="valu", wr=[17]),
          raw("s_mov_b64 exec, 7"),
          raw(f"buffer_store_dword v17, v16, s[{SRDWO}:{SRDWO+3}], 0 offen sc1"),
          label(f"{name}_nopub")]
    return o

def head_fallback(name):
    MX = [246, 247, 248]; NM = [184, 188, 192]; TT = 249
    def reset_off():
        return [raw(f"s_lshl_b32 s{S_O[0]}, s{S_W}, 10"), raw(f"s_add_u32 s{S_O[1]}, s{S_O[0]}, 4096"),
                raw(f"s_mov_b32 s{S_O[2]}, s{S_O[0]}"), raw(f"s_mov_b32 s{S_O[3]}, s{S_O[1]}"), raw(f"s_mov_b32 s{S_CNT}, 16")]
    def load(js):
        o = [barrier()]
        for j in js:
            o += [m0set(S_L[j], 0), nop(0), dma(V_L16, SRDK if j < 2 else SRDV, S_O[j]), salu(f"s_add_u32 s{S_O[j]}, s{S_O[j]}, 8192")]
        return o + [waitcnt(vm=0), barrier()]
    def qk(cinit):
        o = []
        for Tk in range(2):
            for c in range(4): o.append(k_read(0, Tk*4 + c))
            for c in range(4):
                for qt in range(3):
                    s = sreg(0, Tk, qt)
                    o.append(mfma16(s, KF + 4*c, qf(qt, c), cinit[qt] if c == 0 else s))
        return o
    pre = [label(f"{name}_fb")] + [valu("v_mov_b32", r, "0xff800000") for r in MX] + reset_off()
    b1 = [label(f"{name}_fb1")] + load([0, 1]) + qk([None]*3)
    for qt in range(3):
        for Tk in range(2):
            s = sreg(0, Tk, qt)
            b1 += [valu("v_max3_f32", MX[qt], MX[qt], s, s+1), valu("v_max3_f32", MX[qt], MX[qt], s+2, s+3)]
    b1 += [waitcnt(lgkm=0), raw(f"s_sub_u32 s{S_CNT}, s{S_CNT}, 1"), raw(f"s_cmp_lg_u32 s{S_CNT}, 0"), raw(f"s_cbranch_scc1 {name}_fb1")]
    mid = []
    for qt in range(3):
        mid += [valu("v_mov_b32", TT, MX[qt]), perm32(TT, MX[qt]), valu("v_max_f32", MX[qt], MX[qt], TT),
                valu("v_mov_b32", TT, MX[qt]), perm16(TT, MX[qt]), valu("v_max_f32", MX[qt], MX[qt], TT)]
        for i in range(4): mid.append(I(f"v_sub_f32 v{NM[qt]+i}, 0, v{MX[qt]}", rd=[MX[qt]], wr=[NM[qt]+i], kind="valu"))
    for i in range(96): mid.append(valu("v_mov_b32", ACC + i, "0"))
    for r in LSUM: mid.append(valu("v_mov_b32", r, "0"))
    mid += reset_off()
    b2 = [label(f"{name}_fb2")] + load([0, 1, 2, 3]) + qk(NM)
    for part in range(2):
        for qt in range(3):
            s = sreg(0, part, qt); p = preg(0, part, qt)
            b2 += [vexp(s+i, s+i) for i in range(4)] + [valu("v_add_f32", LSUM[qt], LSUM[qt], s+i) for i in range(4)] + [cvtpk(p, s, s+1), cvtpk(p+1, s+2, s+3)]
    for half in range(2):
        for T in range(4*half, 4*half + 4): b2 += v_read(0, T)
        for T in range(4*half, 4*half + 4):
            for qt in range(3): b2.append(mfma16(acc(T, qt), VF + 4*(T % 4), pop(0, qt), acc(T, qt)))
    b2 += [waitcnt(lgkm=0), raw(f"s_sub_u32 s{S_CNT}, s{S_CNT}, 1"), raw(f"s_cmp_lg_u32 s{S_CNT}, 0"), raw(f"s_cbranch_scc1 {name}_fb2")]
    post = [nop(15), raw(f"s_mov_b32 s{S_FB}, 1"), raw(f"s_branch {name}_e0")]
    p1, l1, st = resolve_loop([nop(15)] + pre, b1)
    p2, l2, st = resolve_loop(mid, b2, st)
    po, _ = resolve(post, st)
    return p1 + l1 + p2 + l2 + po

V_HOLD = 247
SRDH = 24
SRDH = 76
def hold_setup(name, opts, A, P):
    t0 = S_T[0]
    A(f"s_lshl_b32 s{t0}, s{S_ID}, 7"); A(f"s_add_u32 s{t0}, s{t0}, {FLAGOFF + 65536}")
    srd_build(A, SRDH, S_PTR+8, t0, 4)
    P.append(valu("v_mov_b32", V_TCH, "0"))
    A(f"s_cmp_eq_u32 s{S_W}, 0"); A(f"s_cbranch_scc0 {name}_hw_done")
    A(f"buffer_load_dword v{V_HOLD}, v{V_TCH}, s[{SRDH}:{SRDH+3}], 0 offen sc1")
    A(f"s_cmp_eq_u32 s{S_BR}, 0"); A(f"s_cbranch_scc1 {name}_hw_done")
    A("s_waitcnt vmcnt(0)"); A(f"v_readfirstlane_b32 s{S_T[4]}, v{V_HOLD}"); A(f"s_mov_b32 s{S_T[5]}, {opts.get('hold_polls', 40)}")
    P.append(label(f"{name}_hw"))
    A(f"s_sleep {opts.get('hold_sleep', 8)}")
    A(f"buffer_load_dword v{V_HOLD}, v{V_TCH}, s[{SRDH}:{SRDH+3}], 0 offen sc1"); A("s_waitcnt vmcnt(0)")
    A(f"v_readfirstlane_b32 s{S_T[6]}, v{V_HOLD}")
    A(f"s_sub_u32 s{S_T[5]}, s{S_T[5]}, 1"); A(f"s_cbranch_scc1 {name}_hw_done"); A("s_nop 2")
    A(f"s_cmp_eq_u32 s{S_T[6]}, s{S_T[4]}"); A(f"s_cbranch_scc1 {name}_hw")
    P.append(label(f"{name}_hw_done"))
    A(f"s_cmp_eq_u32 s{S_BR}, 0"); A(f"s_cbranch_scc1 {name}_hw_end"); P.append(barrier()); P.append(label(f"{name}_hw_end"))
def hold_release(name):
    return [raw(f"s_or_b32 s{S_T[0]}, s{S_BR}, s{S_W}"), raw(f"s_cmp_eq_u32 s{S_T[0]}, 0"), raw(f"s_cbranch_scc0 {name}_hr"),
            raw(f"v_add_u32 v{V_HOLD}, 1, v{V_HOLD}", kind="valu", rd=[V_HOLD], wr=[V_HOLD]), raw(f"v_mov_b32 v{V_TCH}, 0", kind="valu", wr=[V_TCH]),
            raw("s_mov_b64 exec, 1"),
            raw(f"buffer_store_dword v{V_HOLD}, v{V_TCH}, s[{SRDH}:{SRDH+3}], 0 offen sc1"),
            raw("s_mov_b64 exec, -1"), raw("s_nop 1"), label(f"{name}_hr")]

def build_head(name, opts, ST):
    global POL, KVROT, ATTVM, XO, LMF
    LMF = opts.get('lmfma', False)
    XO = opts.get('x', {})
    ATTVM = opts.get('att_vm', 8)
    POL = opts.get("polite"); KVROT = opts.get("kvrot", True)
    kvflags = opts.get("kvflags", "nt")
    pro = head_prologue(name, opts) + ST(1) + [raw(f"s_mov_b32 s{S_CNT}, 4")]
    qb = [label(f"{name}_qloop")]
    for p in range(2): qb += q_iter(p, 'Q')
    qb += [raw(f"s_sub_u32 s{S_CNT}, s{S_CNT}, 1"), raw(f"s_cmp_lg_u32 s{S_CNT}, 0"), raw(f"s_cbranch_scc1 {name}_qloop")]
    pro2, qb2, st = resolve_loop(pro, qb)
    last = ST(2)
    if opts.get("hold", True):
        if opts.get("hold_at", "q") == "q": last += hold_release(name)
    last += q_switch() + q_iter(0, 'K0', kvflags) + q_iter(1, 'K1', kvflags)
    last2, st = resolve(last, st)
    wot = []
    if opts.get("touch_wo", True):
        wot = [valu("v_lshlrev_b32", V_TCH, "7", 0), raw(f"s_lshl_b32 s{S_T[0]}, s{S_W}, 13"), bload(V_DUMMY, 1, V_TCH, SRDWO, S_T[0])]
    mid = [waitcnt(lgkm=0)] + ST(3) + wot + [raw(f"s_setprio {opts.get('prioAtt', 3)}")] + q_convert() + att_prologue(kvflags) + [raw(f"s_mov_b32 s{S_CNT}, 4")]
    body = [label(f"{name}_aloop")]
    for u in range(3): body += h0(u) + h1(u, kvflags)
    body += [raw(f"s_cmp_eq_u32 s{S_CNT}, 1"), raw(f"s_cbranch_scc1 {name}_tail")]
    body += h0(3) + h1(3, kvflags)
    body += [raw(f"s_sub_u32 s{S_CNT}, s{S_CNT}, 1"), raw(f"s_branch {name}_aloop")]
    mid2, st1 = resolve(mid, st)
    _, body2, _ = resolve_loop([], body, st1)
    idx = [i for i, x in enumerate(body2) if x.txt.startswith(f"s_cbranch_scc1 {name}_tail")][0]
    _, sA = resolve(body2, st1.copy(), insert=False)
    _, sB = resolve(body2[:idx+1], sA.copy(), insert=False)
    tail = [label(f"{name}_tail")] + h0(3, tail=True) + h1(3, kvflags, tail=True) + ST(4) + head_epilogue(name, opts)
    tail2, _ = resolve(tail, sB)
    return pro2 + qb2 + last2 + mid2 + body2 + tail2

WSLOT = 4224; NR = 3
OACC = 16
OBF = 144
OAF = 240
O_OFFO, O_OFFW, O_AW, O_FL, O_PV = [1, 2], 3, 4, 5, 6
OG, OM, ORR, OC = 7, 8, 9, 10
OS_OO = 32; OS_OW = [33, 34, 35, 36]; OS_L = 37
OSRDO, OSRDW, OSRDOUT, OSRDF = 12, 16, 20, 24
OS_OFF, OS_WO0, OS_OO0 = 8, 40, 41
OS_AV, OS_ISS, OS_ROT = 38, 39, 9
OS_A2 = 46
def oacc(rt, Tc): return OACC + (rt * 4 + Tc) * 4
_sel = [0]
def o_select(name, opts):
    _sel[0] += 1
    L = f"{name}_s{_sel[0]}"
    t0, t1 = S_T[0], S_T[1]
    return [raw(f"s_cmp_lg_u32 s{OS_AV}, 0"), raw(f"s_cbranch_scc1 {L}_have"),
         raw(f"s_mov_b32 s{t0}, 32"), raw(f"s_cmp_eq_u32 s{OS_ISS}, -1"), raw(f"s_cbranch_scc1 {L}_addr"),
         raw(f"s_mov_b32 s{S_T[5]}, 200000"),
         label(f"{L}_poll"),
         raw(f"buffer_load_dword v{O_PV}, v{O_FL}, s[{OSRDF}:{OSRDF+3}], 0 offen sc1"), raw("s_waitcnt vmcnt(0)"),
         raw(f"v_cmp_eq_u32 vcc, s{S_NONCE}, v{O_PV}"),
         raw(f"s_sub_u32 s{S_T[5]}, s{S_T[5]}, 1"), raw(f"s_cselect_b32 s{t1}, -1, 0"), raw("s_nop 2"),
         raw(f"s_and_b32 s{t0}, vcc_lo, vcc_hi"),
         raw(f"s_or_b32 s{t1}, s{t1}, s{t0}"), raw(f"s_andn2_b32 s{OS_AV}, s{t1}, s{OS_ISS}"),
         raw(f"s_cbranch_scc1 {L}_have"), raw(f"s_sleep {opts.get('sleep', 8)}"), raw(f"s_branch {L}_poll"),
         label(f"{L}_have"),
         raw(f"s_mov_b32 s{OS_A2}, s{OS_AV}"), raw(f"s_mov_b32 s{OS_A2+1}, s{OS_AV}"),
         raw(f"s_lshr_b64 s[{OS_A2}:{OS_A2+1}], s[{OS_A2}:{OS_A2+1}], s{OS_ROT}"),
         raw(f"s_ff1_i32_b32 s{t0}, s{OS_A2}"), raw(f"s_add_u32 s{t0}, s{t0}, s{OS_ROT}"), raw(f"s_and_b32 s{t0}, s{t0}, 31"),
         raw(f"s_lshl_b32 s{t1}, 1, s{t0}"), raw(f"s_or_b32 s{OS_ISS}, s{OS_ISS}, s{t1}"), raw(f"s_andn2_b32 s{OS_AV}, s{OS_AV}, s{t1}"),
         label(f"{L}_addr"),
         raw(f"s_lshl_b32 s{t1}, s{t0}, 15"), raw(f"s_add_u32 s{OS_OO}, s{OS_OO0}, s{t1}"),
         raw(f"s_mul_i32 s{t1}, s{t0}, {128*1280}"), raw(f"s_add_u32 s{OS_OW[0]}, s{OS_WO0}, s{t1}"),
         raw(f"s_add_u32 s{OS_OW[1]}, s{OS_OW[0]}, 1280"), raw(f"s_add_u32 s{OS_OW[2]}, s{OS_OW[0]}, 2560"), raw(f"s_add_u32 s{OS_OW[3]}, s{OS_OW[0]}, 3840")]
OFL = 'sc1'
def o_loads(u):
    o = []
    for j in range(8): o.append([bload(OBF + 32*u + 4*j, 4, O_OFFO[j//4], OSRDO, OS_OO, off=(j%4)*1024, flags=OFL)])
    for b in range(4): o.append([m0set(OS_L, u * WSLOT + b * 1056), dma(O_OFFW, OSRDW, OS_OW[b])])
    return o
def o_aread(u, Tc):
    off = u * WSLOT + Tc * 32
    return [dstr(OAF + 4*Tc, O_AW, off), dstr(OAF + 4*Tc + 2, O_AW, off + 512)]

def build_oproj(name, opts, ST):
    global OFL
    OFL = opts.get('oflags', 'sc1')
    P = []
    A = lambda t, **k: P.append(raw(t, **k))
    t0, t1, t2 = S_T[0], S_T[1], S_T[2]
    A(f"s_sub_u32 s{S_ID}, s2, 512")
    if opts.get("omap", "xcd") == "xcd":
        A(f"s_and_b32 s3, s{S_ID}, 7"); A(f"s_lshr_b32 s{S_BR}, s3, 2"); A(f"s_lshr_b32 s{OS_OFF}, s{S_ID}, 3")
        A(f"s_mul_i32 s{t1}, s{OS_OFF}, 6554"); A(f"s_lshr_b32 s{t1}, s{t1}, 16")
        A(f"s_and_b32 s{t2}, s3, 3"); A(f"s_mul_i32 s{t2}, s{t2}, 3"); A(f"s_add_u32 s6, s{t2}, s{t1}")
        A(f"s_mul_i32 s{t1}, s{t1}, 10"); A(f"s_sub_u32 s7, s{OS_OFF}, s{t1}")
    else:
        A(f"s_cmp_ge_u32 s{S_ID}, 120"); A(f"s_cselect_b32 s{S_BR}, 1, 0")
        A(f"s_mul_i32 s{t0}, s{S_BR}, 120"); A(f"s_sub_u32 s{S_ID}, s{S_ID}, s{t0}")
        A(f"s_and_b32 s3, s{S_ID}, 7"); A(f"s_lshr_b32 s{OS_OFF}, s{S_ID}, 3")
        A(f"s_mul_i32 s{t1}, s{OS_OFF}, 13108"); A(f"s_lshr_b32 s{t1}, s{t1}, 16")
        A(f"s_lshr_b32 s{t2}, s3, 1"); A(f"s_mul_i32 s{t2}, s{t2}, 3"); A(f"s_add_u32 s6, s{t2}, s{t1}")
        A(f"s_mul_i32 s{t1}, s{t1}, 5"); A(f"s_sub_u32 s7, s{OS_OFF}, s{t1}"); A(f"s_and_b32 s{t2}, s3, 1"); A(f"s_mul_i32 s{t2}, s{t2}, 5"); A(f"s_add_u32 s7, s7, s{t2}")
    A(f"s_mul_i32 s3, s{S_BR}, 40"); A("s_add_u32 s3, s3, 32")
    A(f"s_load_dwordx2 s[{S_PTR}:{S_PTR+1}], s[0:1], s3")
    A(f"s_load_dwordx4 s[{S_PTR+4}:{S_PTR+7}], s[0:1], 80")
    A(f"s_load_dwordx2 s[{S_PTR+8}:{S_PTR+9}], s[0:1], 96")
    P.append(valu("v_lshrrev_b32", OG, "6", 0)); P.append(valu("v_and_b32", 0, "63", 0))
    A("s_nop 0"); A(f"v_readfirstlane_b32 s{S_W}, v{OG}")
    P.append(valu("v_lshrrev_b32", OG, "4", 0)); P.append(valu("v_and_b32", OM, "15", 0))
    P.append(valu("v_bfe_u32", ORR, 0, "2", "2")); P.append(valu("v_and_b32", OC, "3", 0))
    P.append(valu("v_lshlrev_b32", O_OFFO[0], "4", 0)); P.append(valu("v_add_u32", O_OFFO[1], "4096", O_OFFO[0]))
    P.append(valu("v_lshrrev_b32", 16, "3", 0)); P.append(valu("v_mul_u32_u24", 16, "5120", 16))
    P.append(valu("v_and_b32", 17, "7", 0)); P.append(valu("v_lshl_add_u32", O_OFFW, 17, "4", 16))
    A(f"s_mul_i32 s{OS_L}, s{S_W}, {NR*WSLOT}")
    P.append(valu("v_mul_u32_u24", 16, "1056", ORR)); P.append(valu("v_lshl_add_u32", 16, OG, "7", 16)); P.append(valu("v_lshl_add_u32", 16, OC, "3", 16))
    P.append(valu("v_add_u32", O_AW, f"s{OS_L}", 16))
    A(f"s_lshl_b32 s{OS_OO0}, s{S_W}, 13"); A(f"s_mul_i32 s{OS_WO0}, s{S_W}, {32*1280}")
    A("s_waitcnt lgkmcnt(0)")
    A(f"s_mul_i32 s{t0}, s{S_BR}, 12"); A(f"s_add_u32 s{t0}, s{t0}, s6"); A(f"s_lshl_b32 s{t0}, s{t0}, 20")
    srd_build(A, OSRDO, S_PTR+8, t0, 1048576)
    A(f"s_lshl_b32 s{t0}, s7, 7"); srd_build(A, OSRDW, S_PTR, t0, 4096*1280 - 9*128)
    A(f"s_mul_i32 s{t0}, s6, {128*2560}"); A(f"s_mul_i32 s{t1}, s{S_BR}, 1280"); A(f"s_add_u32 s{t0}, s{t0}, s{t1}")
    A(f"s_lshl_b32 s{t1}, s7, 7"); A(f"s_add_u32 s{t0}, s{t0}, s{t1}")
    srd_build(A, OSRDOUT, S_PTR+4, t0, 127*2560 + 128)
    srd_build(A, SRDD, S_PTR+6, None, 256)
    A(f"s_mov_b32 s{t0}, 0")
    P.extend(poll(f"{name}_pn", SRDD, t0, 1, 'ge', O_FL, sleep=8))
    A(f"s_mov_b32 s{S_NONCE}, s{S_T[6]}")
    A(f"s_mul_i32 s{t0}, s6, 43691"); A(f"s_lshr_b32 s{t0}, s{t0}, 16")
    A(f"s_lshl_b32 s{t1}, s6, 7"); A(f"s_add_u32 s{t1}, s{t1}, 127"); A(f"s_mul_i32 s{t1}, s{t1}, 21846"); A(f"s_lshr_b32 s{t1}, s{t1}, 22")
    A(f"s_sub_u32 s{t1}, s{t1}, s{t0}"); A(f"s_mul_i32 s{t1}, s{t1}, 384")
    A(f"s_lshl_b32 s{t2}, s{S_BR}, 3"); A(f"s_add_u32 s{t0}, s{t0}, s{t2}"); A(f"s_mul_i32 s{t0}, s{t0}, 384")
    A(f"s_mul_i32 s{t2}, s7, 21846"); A(f"s_lshr_b32 s{t2}, s{t2}, 16"); A(f"s_mul_i32 s{t2}, s{t2}, 3"); A(f"s_sub_u32 s{t2}, s7, s{t2}")
    A(f"s_lshl_b32 s{t2}, s{t2}, 7"); A(f"s_add_u32 s{t0}, s{t0}, s{t2}"); A(f"s_add_u32 s{t0}, s{t0}, {FLAGOFF}")
    srd_build(A, OSRDF, S_PTR+8, t0, 512)
    P.append(valu("v_and_b32", O_FL, "31", 0)); P.append(valu("v_lshlrev_b32", O_FL, "2", O_FL))
    P.append(valu("v_lshrrev_b32", 16, "5", 0)); P.append(valu("v_mul_lo_u32", 16, f"s{t1}", 16)); P.append(valu("v_add_u32", O_FL, O_FL, 16))
    A(f"s_mov_b32 s{OS_AV}, 0"); A(f"s_mov_b32 s{OS_ISS}, 0")
    if opts.get("trot"):
        A(f"s_memrealtime s[{OS_A2}:{OS_A2+1}]"); A("s_waitcnt lgkmcnt(0)")
        A(f"s_sub_u32 s{t0}, s{OS_A2}, s{S_NONCE}"); A(f"s_mul_i32 s{t0}, s{t0}, {65536 // opts['trot']}"); A(f"s_lshr_b32 s{t0}, s{t0}, 16")
        A(f"s_and_b32 s{t1}, s{OS_OFF}, {opts.get('rotmask', 3)}"); A(f"s_add_u32 s{t0}, s{t0}, s{t1}"); A(f"s_and_b32 s{OS_ROT}, s{t0}, 31")
    else:
        A(f"s_and_b32 s{OS_ROT}, s{OS_OFF}, {opts.get('rotmask', 7)}")
    for i in range(128): P.append(valu("v_mov_b32", OACC + i, "0"))
    P.extend(ST(1))
    for u in range(2):
        P.extend(o_select(name, opts))
        for grp in o_loads(u): P.extend(grp if len(grp) == 1 else [grp[0], nop(0)] + grp[1:])
    P.append(waitcnt(vm=12))
    for Tc in range(4): P.extend(o_aread(0, Tc))
    A(f"s_mov_b32 s{S_CNT}, 11")
    body = [label(f"{name}_loop")]
    for u in range(3):
        mf = [mfma16(oacc(rt, Tc), OAF + 4*Tc, OBF + 32*u + 4*rt, oacc(rt, Tc)) for Tc in range(4) for rt in range(8)]
        slots = [[] for _ in mf]
        slots[0] += o_select(name, opts)
        for j, grp in enumerate(o_loads((u + 2) % 3)):
            k = 1 + (j * 22) // 12
            if len(grp) == 1: slots[k] += grp
            else: slots[k].append(grp[0]); slots[k+1] += grp[1:]
        slots[24].append(waitcnt(vm=12))
        n = (u + 1) % 3
        slots[24] += o_aread(n, 0); slots[25] += o_aread(n, 1); slots[26] += o_aread(n, 2); slots[31] += o_aread(n, 3)
        body += emit(mf, slots)
    if opts.get("ostamp"):
        for cnt, idx in ((9, 2), (5, 3)):
            body += [raw(f"s_cmp_eq_u32 s{S_CNT}, {cnt}"), raw(f"s_cbranch_scc0 {name}_os{idx}")] + ST(idx) + [label(f"{name}_os{idx}")]
    body += [raw(f"s_sub_u32 s{S_CNT}, s{S_CNT}, 1"), raw(f"s_cmp_lg_u32 s{S_CNT}, 0"), raw(f"s_cbranch_scc1 {name}_loop")]
    P2, body2, st = resolve_loop(P, body)
    E = []
    A = lambda t, **k: E.append(raw(t, **k))
    E.extend(ST(4 if opts.get("ostamp") else 2))
    E.append(valu("v_lshlrev_b32", 11, "4", 0))
    A(f"s_lshl_b32 s{t0}, s{S_W}, 14"); E.append(valu("v_add_u32", 12, f"s{t0}", 11))
    A(f"s_lshl_b32 s{t0}, s{S_W}, 12"); E.append(valu("v_add_u32", 13, f"s{t0}", 11))
    E.append(valu("v_and_b32", 14, "1", OG)); E.append(valu("v_lshlrev_b32", 14, "1", 14)); E.append(valu("v_lshrrev_b32", 15, "1", OG))
    E.append(valu("v_or_b32", 14, 14, 15)); E.append(valu("v_lshlrev_b32", 14, "4", 14))
    E.append(valu("v_mul_u32_u24", 15, "2560", OM)); E.append(valu("v_add_u32", 14, 14, 15))
    A(f"s_mul_i32 s{t0}, s{S_W}, {16*2560}"); A(f"s_add_u32 s{t1}, s{t0}, {64*2560}")
    E.append(waitcnt(vm=0, lgkm=0)); E.append(barrier())
    for r in range(2):
        for tl in range(16): E.append(dsw128(12, OACC + (16*r + tl)*4, tl*1024))
        E.append(waitcnt(lgkm=0)); E.append(barrier())
        for t in range(4):
            for p in range(4): E.append(ds128(144 + (p*4 + t)*4, 13, p*16384 + t*1024))
        for pr in range(2):
            for h in range(2):
                t = 2*pr + h
                for i in range(4):
                    a = 144 + t*4 + i
                    E.append(valu("v_add_f32", a, a, a + 16)); E.append(valu("v_add_f32", a + 32, a + 32, a + 48))
                for i in range(4):
                    a = 144 + t*4 + i
                    E.append(valu("v_add_f32", a, a, a + 32))
            a = 144 + 2*pr*4; b = a + 4; q = 240 + (r*2 + pr)*4
            E += [cvtpk(q, a, a+1), cvtpk(q+1, a+2, a+3), cvtpk(q+2, b, b+1), cvtpk(q+3, b+2, b+3), perm16(q, q+2), perm16(q+1, q+3)]
            E.append(bstore(q, 4, 14, OSRDOUT, t0 if r == 0 else t1, off=pr*64))
        if r == 0: E.append(waitcnt(lgkm=0)); E.append(barrier())
    E2, _ = resolve(E, st)
    return P2 + body2 + E2

def build(name, stamps=False, **opts):
    ST = (lambda i, real=False: stamp(i, real)) if stamps else (lambda i, real=False: [])
    out = [label(name)] + ST(0) + ST(6, True)
    out += [raw("s_cmp_ge_u32 s2, 752"), raw(f"s_cbranch_scc1 {name}_end"), raw("s_cmp_ge_u32 s2, 512"), raw(f"s_cbranch_scc1 {name}_oproj")]
    if opts.get("skip_heads"): out += [raw("s_endpgm")]
    fin_h = []; fin_o = []
    if stamps:
        fin_h = [waitcnt(vm=0), raw("s_mov_b64 exec, -1")] + ST(5) + ST(7, True) + stamp_dump(8, S_PTR+8, S_W, 64<<20, 16, nwaves_shift=2)
        fin_o = [waitcnt(vm=0)] + ([] if opts.get("ostamp") else ST(3) + ST(4)) + ST(5) + ST(7, True) + stamp_dump(8, S_PTR+8, S_W, 64<<20, 16, nwaves_shift=2)
    out += build_head(name + "_h", opts, ST) + fin_h + [raw("s_endpgm")] + head_fallback(name + "_h")
    out += [label(f"{name}_oproj")] + build_oproj(name + "_o", opts, ST) + fin_o
    out += [label(f"{name}_end"), raw("s_endpgm")]
    return out
```

```python
from asmlib import *

QSLOT = 40960; XOFF = 16384
ASLOT = 16896; VOFF = 8448
ACC = 16; QF = 112
SX, SY, SZ = 160, 172, 184
PB = 196; KF = 214; VF = 230
QA = [160, 204]; QB = [192, 236]
V_OFFA, V_OFFB, V_L16 = 1, 2, 3
A_W = [4, 5, 6, 7, 8, 9, 10, 11]; A_X = [12, 15]; A_K = 13; A_V = 14
LSUM = [4, 5, 6]; VT = [7, 8, 9, 10]
ONES = 250
LACC = [4, 8, 246]
LMF = False
G, M, RR, C = 248, 249, 250, 251
V_DUMMY = 255; V_TCH = 254
S_W, S_BR, S_B, S_H = 4, 5, 6, 7
SRDA, SRDB, SRDK, SRDV, SRDO, SRDD = 12, 16, 20, 24, 28, 64
S_O = [32, 33, 34, 35]; S_L = [38, 39, 40, 41]; S_CNT = 42
S_OW, S_OX, S_LW, S_LX, S_SIG, S_TT = 8, 9, 36, 37, 10, 11
S_KC, S_VC, S_KB, S_KROT = 8, 9, 36, 37
S_T = [43, 44, 45, 46, 47, 48, 49]
S_SC = 50
S_PTR = 52
SRDWO = 68
S_ID = 72
S_DBG = 74
FLAGOFF = 32 << 20
S_NONCE = 73

def acc(T, qt): return ACC + (T * 3 + qt) * 4
def qf(qt, c): return QF + (qt * 4 + c) * 4

def emit(mf, slots):
    out = []
    for m, fs in zip(mf, slots):
        out.append(m)
        for f in fs:
            if isinstance(f, list): out.extend(f)
            else: out.append(f)
    return out
def spread(slots, items, lo, hi):
    n = len(items); m = hi - lo
    for i, it in enumerate(items): slots[lo + (i * m) // n].append(it)

def q_addr():
    t0 = S_T[0]
    return [salu(f"s_lshl_b32 s{t0}, s{S_SIG}, 19"), salu(f"s_add_u32 s{S_O[0]}, s{S_OW}, s{t0}"),
            salu(f"s_lshl_b32 s{t0}, s{S_SIG}, 7"), salu(f"s_add_u32 s{S_O[1]}, s{S_OX}, s{t0}"),
            salu(f"s_add_u32 s{S_SIG}, s{S_SIG}, 1"), salu(f"s_cmp_eq_u32 s{S_SIG}, 10"), salu(f"s_cselect_b32 s{S_SIG}, 0, s{S_SIG}")]
def q_dma(slot):
    out = []
    for i in range(4):
        g = [m0set(S_LW, slot * QSLOT + i * 4096)]
        if i == 0: g += [dma(V_OFFA, SRDA, S_O[0])]
        else: g += [salu(f"s_add_u32 s{S_TT}, s{S_O[0]}, {i*16*8192}"), dma(V_OFFA, SRDA, S_TT)]
        out.append(g)
    for i in range(6):
        g = [m0set(S_LX, slot * QSLOT + i * 4096)]
        if i == 0: g += [dma(V_OFFB, SRDB, S_O[1])]
        else: g += [salu(f"s_add_u32 s{S_TT}, s{S_O[1]}, {i*32*1280}"), dma(V_OFFB, SRDB, S_TT)]
        out.append(g)
    return out
KVROT = True
def kv_addr(which):
    c = S_KC if which == 0 else S_VC
    a, b = (S_O[0], S_O[1]) if which == 0 else (S_O[2], S_O[3])
    t = S_TT
    return [salu(f"s_add_u32 s{t}, s{c}, s{S_KROT}"), salu(f"s_and_b32 s{t}, s{t}, 15"), salu(f"s_cmp_lt_u32 s{c}, 16"),
            salu(f"s_cselect_b32 s{t}, s{t}, 16"), salu(f"s_lshl_b32 s{t}, s{t}, 13"), salu(f"s_add_u32 s{a}, s{t}, s{S_KB}"),
            salu(f"s_add_u32 s{b}, s{a}, 4096"), salu(f"s_add_u32 s{c}, s{c}, 1")]
def kv_dma(kslot, vslot, flags):
    out = []
    for j in range(4):
        sl = kslot if j < 2 else vslot
        if KVROT:
            pre = kv_addr(j // 2) if j % 2 == 0 else []
            post = nop(0)
        else:
            pre = []
            post = salu(f"s_add_u32 s{S_O[j]}, s{S_O[j]}, 8192")
        out.append([pre + [m0set(S_L[j], sl * ASLOT)], dma(V_L16, SRDK if j < 2 else SRDV, S_O[j], flags), post])
    return out

def q_frag_reads(slot, e, st):
    out = []
    for qt in range(3): out.append(ds128(QB[st] + 4*qt, A_X[e], slot * QSLOT + qt * 2048))
    for T in range(8):
        o = slot * QSLOT + e * 8192
        out.append(dstr(QA[st] + 4*T, A_W[T], o)); out.append(dstr(QA[st] + 4*T + 2, A_W[T], o + 1024))
    return out

_pl = [0]
def polite(n):
    _pl[0] += 1
    lab = f"Lpol{_pl[0]}"
    return [raw(f"s_cmp_eq_u32 s{S_BR}, 0"), raw(f"s_cbranch_scc1 {lab}"), waitcnt(vm=n), label(lab)]
POL = None
QRD = 19
def q_half(st, reads, extra):
    mf = [mfma16(acc(T, qt), QA[st] + 4*T, QB[st] + 4*qt, acc(T, qt)) for T in range(8) for qt in range(3)]
    slots = [[] for _ in mf]
    for i, rd in enumerate(reads): slots[(i * QRD) // 19 if i < 19 else 23].append(rd)
    n = len(extra)
    for j, grp in enumerate(extra):
        k = (j * 22) // max(n, 1)
        slots[k].append(grp[0]); slots[k+1] += [x for x in grp[1:] if getattr(x, "kind", "") != "nop"]
    return emit(mf, slots)

def q_iter(p, kind, kvflags=""):
    out = q_half(0, q_frag_reads(p, 1, 1), [])
    out += [waitcnt(vm=0, lgkm=0) if kind != 'K1' else waitcnt(lgkm=0), barrier()]
    if kind == 'Q':
        extra = [q_addr()] + q_dma(p)
        if POL:
            for pos, n in POL: extra[pos] = extra[pos] + polite(n)
    elif kind == 'K0': extra = kv_dma(0, 0, kvflags) + kv_dma(1, 1, kvflags)
    else: extra = kv_dma(2, 2, kvflags) + kv_dma(3, 3, kvflags)
    reads = q_frag_reads(1 - p, 0, 0) if kind != 'K1' else []
    out += q_half(1, reads, extra)
    return out

def q_switch():
    o = []
    A = lambda t: o.append(raw(t))
    t0, t1 = S_T[0], S_T[1]
    A(f"s_lshr_b32 s{t0}, s{S_W}, 1"); A(f"s_lshl_b32 s{t0}, s{t0}, 2"); A(f"s_and_b32 s{t1}, s{S_W}, 1"); A(f"s_add_u32 s{t0}, s{t0}, s{t1}")
    A(f"s_lshl_b32 s{t0}, s{t0}, 4"); A(f"s_lshl_b32 s{t1}, s{S_W}, 10"); A(f"s_add_u32 s{S_L[0]}, s{t0}, s{t1}")
    A(f"s_add_u32 s{S_L[1]}, s{S_L[0]}, {4096+128}")
    A(f"s_mul_i32 s{t0}, s{S_W}, 1056"); A(f"s_add_u32 s{S_L[2]}, s{t0}, {VOFF}"); A(f"s_add_u32 s{S_L[3]}, s{S_L[2]}, {4*1056}")
    A(f"s_lshl_b32 s{S_KB}, s{S_W}, 10"); A(f"s_mov_b32 s{S_KC}, 0"); A(f"s_mov_b32 s{S_VC}, 0")
    if KVROT:
        A(f"s_lshr_b32 s{S_KROT}, s{S_ID}, 3"); A(f"s_add_u32 s{S_KROT}, s{S_KROT}, s{S_ID}"); A(f"s_and_b32 s{S_KROT}, s{S_KROT}, 15")
    else:
        A(f"s_mov_b32 s{S_O[0]}, s{S_KB}"); A(f"s_add_u32 s{S_O[1]}, s{S_KB}, 4096"); A(f"s_mov_b32 s{S_O[2]}, s{S_O[0]}"); A(f"s_mov_b32 s{S_O[3]}, s{S_O[1]}")
    return o

def q_convert():
    o = []
    for qt in range(3):
        for T in range(8):
            a = acc(T, qt)
            o.append(pkmul(a, a, f"s[{S_SC}:{S_SC+1}]")); o.append(pkmul(a+2, a+2, f"s[{S_SC}:{S_SC+1}]"))
    for qt in range(3):
        for c in range(4):
            q = qf(qt, c); a = acc(2*c, qt); b = acc(2*c+1, qt)
            o += [cvtpk(q, a, a+1), cvtpk(q+1, a+2, a+3), cvtpk(q+2, b, b+1), cvtpk(q+3, b+2, b+3)]
    for qt in range(3):
        for c in range(4):
            q = qf(qt, c)
            o += [perm16(q, q+2), perm16(q+1, q+3)]
    for i in range(96): o.append(valu("v_mov_b32", ACC + i, "0"))
    if LMF:
        for qt in range(3):
            for i in range(4): o.append(valu("v_mov_b32", LACC[qt] + i, "0"))
        for i in range(4): o.append(valu("v_mov_b32", ONES + i, "0x3f803f80"))
    else:
        for r in LSUM: o.append(valu("v_mov_b32", r, "0"))
    return o

def sreg(j, Tk, qt):
    if Tk == 0: return SX + 4*qt
    return (SY if j % 2 == 0 else SZ) + 4*qt
def preg(j, part, qt):
    base = PB + 6*qt
    if part == 1: return base + 2
    return base + (0 if j % 2 == 0 else 4)
def pop(j, qt): return PB + 6*qt + (0 if j % 2 == 0 else 2)
def k_read(j, i): return ds128(KF + 4*(i % 4), A_K, (j % 4) * ASLOT + (i % 4) * 64 + (i // 4) * 512)
def v_read(j, T):
    o = (j % 4) * ASLOT + T * 32
    d = VF + 4*(T % 4)
    if j % 2 == 0: return [dstr(d, A_V, o), dstr(d+2, A_V, o + 512)]
    return [dstr(d+2, A_V, o), dstr(d, A_V, o + 512)]
def softmax_ops(j, part):
    if XO.get("nosm"): return [nop(0)]
    ops = []
    for qt in range(3):
        s = sreg(j, part, qt); p = preg(j, part, qt)
        ops.append([vexp(s, s), vexp(s+1, s+1), vexp(s+2, s+2), vexp(s+3, s+3),
                    valu("v_add_f32", LSUM[qt], LSUM[qt], s), cvtpk(p, s, s+1), valu("v_add_f32", LSUM[qt], LSUM[qt], s+1),
                    valu("v_add_f32", LSUM[qt], LSUM[qt], s+2), cvtpk(p+1, s+2, s+3), valu("v_add_f32", LSUM[qt], LSUM[qt], s+3)])
    seq = list(ops[0][:4])
    for qt in range(1, 3):
        e = ops[qt][:4]; f = ops[qt-1][4:]
        seq += [e[0], f[0], f[1], e[1], f[2], e[2], f[3], f[4], e[3], f[5]]
    seq += ops[2][4:]
    if LMF: seq = [x for x in seq if not x.txt.startswith("v_add_f32")]
    if XO.get("noadd"): seq = [x for x in seq if not x.txt.startswith("v_add_f32")]
    if XO.get("noexp"): seq = [x for x in seq if not x.txt.startswith("v_exp")]
    return seq
def qk_mfmas(j):
    mf = []
    for Tk in range(2):
        for c in range(4):
            i = Tk*4 + c
            for qt in range(3):
                s = sreg(j, Tk, qt)
                mf.append(mfma16(s, KF + 4*(i % 4), qf(qt, c), None if c == 0 else s))
    return mf
def pv_mfmas(j):
    return [mfma16(acc(T, qt), VF + 4*(T % 4), pop(j, qt), acc(T, qt)) for T in range(8) for qt in range(3)]
def l_mfmas(j):
    return [mfma16(LACC[qt], ONES, pop(j, qt), LACC[qt]) for qt in range(3)]

def h0(s, tail=False):
    sm = softmax_ops(s, 1)
    vr_ = [v_read(s, T) for T in range(4)]
    if tail:
        out = []
        for v in vr_: out += v
        return out + sm
    mf = qk_mfmas(s + 1)
    slots = [[] for _ in mf]
    for i in range(5): slots[3*i].append(k_read(s + 1, i + 3))
    for T in range(4): slots[14 + 2*T].append(vr_[T][0]); slots[15 + 2*T].append(vr_[T][1])
    spread(slots, sm, 0, 23)
    return emit(mf, slots)
ATTVM = 8
XO = {}
def h1(s, kvflags, tail=False):
    mf = pv_mfmas(s)
    slots = [[] for _ in mf]
    for T in range(4, 8):
        v = v_read(s, T); slots[3*(T-4) + 2].append(v[0]); slots[3*(T-4) + 3].append(v[1])
    if not tail:
        spread(slots, softmax_ops(s + 1, 0), 0, 23)
        if XO.get("nobar"): slots[16].append([waitcnt(lgkm=0)])
        else: slots[16].append([waitcnt(vm=ATTVM, lgkm=0), barrier()])
        for i in range(3): slots[17 + i].append(k_read(s + 2, i))
        if not XO.get("nodma"):
          for j, grp in enumerate(kv_dma((s + 1) % 4, s % 4, kvflags)):
            slots[17 + j].append(grp[0]); slots[18 + j].append(grp[1])
            if grp[2].kind != "nop": slots[19 + j].append(grp[2])
    if LMF:
        lm = l_mfmas(s); slots[2].append(lm[0]); slots[8].append(lm[1]); slots[13].append(lm[2])
    return emit(mf, slots)
def att_prologue(kvflags):
    o = [raw(f"s_sub_u32 s{S_VC}, s{S_VC}, 1")] if KVROT else [raw(f"s_sub_u32 s{S_O[2]}, s{S_O[2]}, 8192"), raw(f"s_sub_u32 s{S_O[3]}, s{S_O[3]}, 8192")]
    o += [waitcnt(vm=14), barrier()]
    for i in range(3): o.append(k_read(0, i))
    mf = qk_mfmas(0)
    slots = [[] for _ in mf]
    for i in range(5): slots[3*i].append(k_read(0, i + 3))
    o += emit(mf, slots)
    o += [waitcnt(vm=8, lgkm=0), barrier()]
    for i in range(3): o.append(k_read(1, i))
    for grp in kv_dma(0, 3, kvflags): o += grp[0] + [nop(0), grp[1], grp[2]]
    o += softmax_ops(0, 0)
    return o

def srd_build(A, dst, ptr, offreg, nrec):
    if offreg is None:
        A(f"s_mov_b32 s{dst}, s{ptr}"); A(f"s_and_b32 s{dst+1}, s{ptr+1}, 0xffff")
    else:
        A(f"s_add_u32 s{dst}, s{ptr}, s{offreg}"); A(f"s_addc_u32 s{dst+1}, s{ptr+1}, 0"); A(f"s_and_b32 s{dst+1}, s{dst+1}, 0xffff")
    A(f"s_mov_b32 s{dst+2}, {nrec}"); A(f"s_mov_b32 s{dst+3}, 0x20000")

def head_prologue(name, opts):
    P = []
    A = lambda t, **k: P.append(raw(t, **k))
    t0, t1, t2 = S_T[0], S_T[1], S_T[2]
    A(f"s_lshr_b32 s{S_BR}, s2, 8"); A(f"s_and_b32 s{S_ID}, s2, 255")
    A(f"s_mul_i32 s3, s{S_BR}, 40")
    A(f"s_load_dwordx4 s[{S_PTR}:{S_PTR+3}], s[0:1], s3")
    A(f"s_add_u32 s{t1}, s3, 16"); A(f"s_load_dwordx4 s[{S_PTR+4}:{S_PTR+7}], s[0:1], s{t1}")
    A(f"s_load_dwordx2 s[{S_PTR+8}:{S_PTR+9}], s[0:1], 96")
    A(f"s_load_dwordx2 s[{S_DBG}:{S_DBG+1}], s[0:1], 88")
    A(f"s_add_u32 s{t1}, s3, 32"); A(f"s_load_dwordx2 s[{S_PTR+10}:{S_PTR+11}], s[0:1], s{t1}")
    A(f"s_and_b32 s3, s{S_ID}, 7"); A(f"s_lshr_b32 s{t0}, s{S_ID}, 3")
    A(f"s_lshr_b32 s{S_B}, s3, 2"); A(f"s_lshl_b32 s{S_B}, s{S_B}, 2"); A(f"s_lshr_b32 s{t1}, s{t0}, 3"); A(f"s_add_u32 s{S_B}, s{S_B}, s{t1}")
    A(f"s_and_b32 s{S_H}, s3, 3"); A(f"s_lshl_b32 s{S_H}, s{S_H}, 3"); A(f"s_and_b32 s{t1}, s{t0}, 7"); A(f"s_add_u32 s{S_H}, s{S_H}, s{t1}")
    P.append(valu("v_lshrrev_b32", G, "6", 0)); P.append(valu("v_and_b32", 0, "63", 0))
    A("s_nop 0"); A(f"v_readfirstlane_b32 s{S_W}, v{G}")
    P.append(valu("v_lshrrev_b32", G, "4", 0)); P.append(valu("v_and_b32", M, "15", 0))
    P.append(valu("v_bfe_u32", RR, 0, "2", "2")); P.append(valu("v_and_b32", C, "3", 0))
    P.append(valu("v_lshlrev_b32", V_L16, "4", 0))
    T0, T1 = 16, 17
    A(f"s_lshr_b32 s{t0}, s{S_W}, 1"); A(f"s_and_b32 s{t0}, s{t0}, 1"); A(f"s_lshl_b32 s{t0}, s{t0}, 2")
    P.append(valu("v_or_b32", T0, f"s{t0}", G))
    P.append(valu("v_lshrrev_b32", T1, "1", M)); P.append(valu("v_xor_b32", T0, T0, T1))
    P.append(valu("v_lshlrev_b32", T0, "5", T0))
    P.append(valu("v_and_b32", T1, "1", M)); P.append(valu("v_lshl_add_u32", T0, T1, "4", T0))
    P.append(valu("v_lshl_add_u32", V_OFFA, G, "13", T0))
    A(f"s_and_b32 s{t0}, s{S_W}, 1"); A(f"s_lshl_b32 s{t0}, s{t0}, 2")
    P.append(valu("v_add_u32", T0, f"s{t0}", G))
    P.append(valu("v_and_b32", T1, "7", 0)); P.append(valu("v_xor_b32", T1, T1, T0)); P.append(valu("v_lshlrev_b32", T1, "4", T1))
    P.append(valu("v_lshrrev_b32", T0, "3", 0)); P.append(valu("v_mul_u32_u24", T0, "1280", T0)); P.append(valu("v_add_u32", V_OFFB, T0, T1))
    A(f"s_lshl_b32 s{S_OW}, s{S_W}, 15"); A(f"s_mul_i32 s{S_OX}, s{S_W}, {8*1280}")
    A(f"s_lshl_b32 s{S_LW}, s{S_W}, 10"); A(f"s_add_u32 s{S_LX}, s{S_LW}, {XOFF}")
    if opts.get("rot", False):
        A(f"s_and_b32 s{t0}, s{S_H}, 7"); A(f"s_lshr_b32 s{t1}, s{t0}, 2"); A(f"s_add_u32 s{t0}, s{t0}, s{t1}")
        A(f"s_and_b32 s{t1}, s{S_B}, 3"); A(f"s_mul_i32 s{t1}, s{t1}, 5"); A(f"s_add_u32 s{t1}, s{t1}, 1"); A(f"s_lshr_b32 s{t1}, s{t1}, 1")
        A(f"s_add_u32 s{S_SIG}, s{t0}, s{t1}")
        A(f"s_cmp_ge_u32 s{S_SIG}, 10"); A(f"s_cselect_b32 s{t0}, 10, 0"); A(f"s_sub_u32 s{S_SIG}, s{S_SIG}, s{t0}")
    else:
        A(f"s_mov_b32 s{S_SIG}, 0")
    A("s_waitcnt lgkmcnt(0)")
    if opts.get("pstamp"): P.extend(stamp(4))
    px, pk, pv, pw, pws = S_PTR, S_PTR+2, S_PTR+4, S_PTR+6, S_PTR+8
    srd_build(A, SRDD, S_DBG, None, 256)
    A(f"s_or_b32 s{t0}, s2, s{S_W}"); A(f"s_cmp_eq_u32 s{t0}, 0"); A(f"s_cbranch_scc0 {name}_nononce")
    A(f"s_memrealtime s[{S_T[3]}:{S_T[4]}]"); A("s_waitcnt lgkmcnt(0)"); A(f"s_or_b32 s{t0}, s{S_T[3]}, 1")
    P.append(valu("v_mov_b32", V_DUMMY, f"s{t0}")); P.append(valu("v_mov_b32", V_TCH, "0"))
    A(f"buffer_store_dword v{V_DUMMY}, v{V_TCH}, s[{SRDD}:{SRDD+3}], 0 offen sc1")
    P.append(label(f"{name}_nononce"))
    if opts.get("hold", True): hold_setup(name, opts, A, P)
    A(f"s_lshl_b32 s{t0}, s{S_H}, 8"); srd_build(A, SRDA, pw, t0, 640*8192 - 31*256)
    A(f"s_mul_i32 s{t0}, s{S_B}, 245760"); srd_build(A, SRDB, px, t0, 245760)
    P.extend(q_addr())
    for grp in q_dma(0): P.extend([grp[0], nop(0)] + grp[1:])
    if opts.get("pstamp"): P.extend(stamp(5))
    A(f"s_cmp_eq_u32 s{S_BR}, 0"); A(f"s_cbranch_scc0 {name}_noprio"); A(f"s_setprio {opts.get('prioA', 3)}"); P.append(label(f"{name}_noprio"))
    A(f"s_lshl_b32 s{t1}, s{S_B}, 5"); A(f"s_add_u32 s{t1}, s{t1}, s{S_H}"); A(f"s_lshl_b32 s{t0}, s{t1}, 17")
    srd_build(A, SRDK, pk, t0, 131072); srd_build(A, SRDV, pv, t0, 131072)
    A(f"s_mul_i32 s{t1}, s{S_BR}, {12*1048576}"); A(f"s_lshl_b32 s{t2}, s{S_H}, 15"); A(f"s_add_u32 s{t0}, s{t1}, s{t2}")
    srd_build(A, SRDO, pws, t0, 12*1048576 - 31*32768)
    A(f"s_mul_i32 s{t0}, s{S_ID}, 20480"); srd_build(A, SRDWO, S_PTR+10, t0, 20480)
    A(f"s_mov_b32 s{S_SC}, 0x3e0293ee"); A(f"s_mov_b32 s{S_SC+1}, 0x3e0293ee")
    P.append(valu("v_and_b32", T0, "1", G)); P.append(valu("v_lshl_or_b32", T0, T0, "2", RR))
    P.append(valu("v_lshl_add_u32", T1, G, "3", RR)); P.append(valu("v_lshlrev_b32", T1, "8", T1))
    P.append(valu("v_lshl_add_u32", T1, C, "3", T1))
    for T in range(8):
        P.append(valu("v_xor_b32", A_W[T], str(T), T0)); P.append(valu("v_lshl_add_u32", A_W[T], A_W[T], "5", T1))
    P.append(valu("v_lshrrev_b32", T0, "1", M)); P.append(valu("v_xor_b32", T0, G, T0)); P.append(valu("v_lshlrev_b32", T0, "4", T0))
    P.append(valu("v_lshl_add_u32", T0, M, "7", T0))
    A(f"s_mul_i32 s3, s{S_W}, {48*128}"); A(f"s_add_u32 s3, s3, {XOFF}")
    P.append(valu("v_add_u32", A_X[0], "s3", T0)); P.append(valu("v_xor_b32", A_X[1], "64", A_X[0]))
    P.append(valu("v_and_b32", T0, "7", M))
    P.append(valu("v_lshrrev_b32", T1, "1", T0)); P.append(valu("v_lshlrev_b32", T1, "2", T1))
    P.append(valu("v_and_b32", A_K, "1", T0)); P.append(valu("v_add_u32", T1, T1, A_K))
    P.append(valu("v_lshlrev_b32", T1, "4", T1)); P.append(valu("v_lshl_add_u32", T1, T0, "10", T1))
    P.append(valu("v_lshrrev_b32", T0, "3", M)); P.append(valu("v_lshl_add_u32", T1, T0, "8", T1))
    P.append(valu("v_and_b32", T0, "1", G)); P.append(valu("v_lshlrev_b32", T0, "1", T0))
    P.append(valu("v_lshrrev_b32", A_K, "1", G)); P.append(valu("v_or_b32", T0, T0, A_K))
    P.append(valu("v_lshl_add_u32", A_K, T0, "4", T1))
    P.append(valu("v_and_b32", T0, "1", G)); P.append(valu("v_lshl_add_u32", T0, T0, "2", RR))
    P.append(valu("v_mul_u32_u24", T0, "1056", T0))
    P.append(valu("v_lshrrev_b32", T1, "1", G)); P.append(valu("v_lshl_add_u32", T0, T1, "8", T0))
    P.append(valu("v_lshl_add_u32", T0, C, "3", T0)); P.append(valu("v_add_u32", A_V, str(VOFF), T0))
    for i in range(96): P.append(valu("v_mov_b32", ACC + i, "0"))
    P.extend(q_addr())
    for grp in q_dma(1): P.extend([grp[0], nop(0)] + grp[1:])
    P.append(waitcnt(vm=10)); P.append(barrier())
    if opts.get("hold"): P.extend(hold_wait(name, opts))
    P.extend(q_frag_reads(0, 0, 0))
    return P

def poll(name, srd, off_sreg, mask_or_val, mode, vtmp, sleep=8):
    o = [raw(f"s_mov_b32 s{S_T[5]}, 200000"), label(f"{name}"), raw(f"v_mov_b32 v{vtmp}, 0", kind="valu", wr=[vtmp]),
         raw(f"buffer_load_dword v{vtmp+1}, v{vtmp}, s[{srd}:{srd+3}], s{off_sreg} offen sc1"),
         raw("s_waitcnt vmcnt(0)"),
         raw(f"v_readfirstlane_b32 s{S_T[6]}, v{vtmp+1}"),
         raw(f"s_sub_u32 s{S_T[5]}, s{S_T[5]}, 1"), raw(f"s_cbranch_scc1 {name}_ok"),
         raw("s_nop 2")]
    if mode == 'bit':
        o += [raw(f"s_and_b32 s{S_T[6]}, s{S_T[6]}, s{mask_or_val}"), raw(f"s_cbranch_scc1 {name}_ok")]
    else:
        o += [raw(f"s_cmp_ge_u32 s{S_T[6]}, {mask_or_val}"), raw(f"s_cbranch_scc1 {name}_ok")]
    o += [raw(f"s_sleep {sleep}"), raw(f"s_branch {name}"), label(f"{name}_ok")]
    return o

FBOFF = 81856
S_FB = 70
S_FB = 78
L_LO, L_HI = "0x2b800000", "0x53800000"
def head_epilogue(name, opts):
    o = [valu("v_mov_b32", V_TCH, "0"), raw(f"buffer_load_dword v{V_DUMMY}, v{V_TCH}, s[{SRDD}:{SRDD+3}], 0 offen sc1", kind="vload", rd=[V_TCH], wr=[V_DUMMY]),
         raw(f"s_mov_b32 s{S_FB}, 0"), label(f"{name}_e0")]
    t = VT
    for qt in range(3):
        l = LSUM[qt]
        o += [valu("v_mov_b32", t[qt], l), perm32(t[qt], l), valu("v_add_f32", l, l, t[qt])]
    for qt in range(3):
        l = LSUM[qt]
        o += [valu("v_mov_b32", t[qt], l), perm16(t[qt], l), valu("v_add_f32", l, l, t[qt])]
    m = S_T[5]
    o += [raw(f"s_mov_b64 s[{m}:{m+1}], 0"), valu("v_mov_b32", 11, L_LO), valu("v_mov_b32", 12, L_HI)]
    for qt in range(3):
        o += [I(f"v_cmp_nle_f32 vcc, v11, v{LSUM[qt]}", rd=[11, LSUM[qt]], kind="valu"), raw("s_nop 1"), raw(f"s_or_b64 s[{m}:{m+1}], s[{m}:{m+1}], vcc"),
              I(f"v_cmp_nge_f32 vcc, v12, v{LSUM[qt]}", rd=[12, LSUM[qt]], kind="valu"), raw("s_nop 1"), raw(f"s_or_b64 s[{m}:{m+1}], s[{m}:{m+1}], vcc")]
    o += [raw(f"s_cmp_lg_u64 s[{m}:{m+1}], 0"), raw(f"s_cselect_b32 s{m}, 1, 0"), raw(f"s_andn2_b32 s{m}, s{m}, s{S_FB}"),
          raw(f"s_lshl_b32 s{m+1}, s{S_W}, 2"), raw(f"s_add_u32 s{m+1}, s{m+1}, {FBOFF}"),
          I(f"v_mov_b32 v11, s{m}", wr=[11], kind="valu"), I(f"v_mov_b32 v12, s{m+1}", wr=[12], kind="valu"), dsw32(12, 11)]
    for qt in range(3): o.append(vrcp(t[qt], LSUM[qt]))
    for qt in range(3):
        o.append(raw(f"s_mul_i32 s{S_T[3]}, s{S_B}, 12")); o.append(raw(f"s_mul_i32 s{S_T[4]}, s{S_W}, 3"))
        o.append(raw(f"s_add_u32 s{S_T[3]}, s{S_T[3]}, s{S_T[4]}")); o.append(raw(f"s_add_u32 s{S_T[3]}, s{S_T[3]}, {qt}"))
        o.append(raw(f"s_lshr_b32 s{S_T[4]}, s{S_T[3]}, 3")); o.append(raw(f"s_lshl_b32 s{S_T[4]}, s{S_T[4]}, 20"))
        o.append(raw(f"s_and_b32 s{S_T[3]}, s{S_T[3]}, 7")); o.append(raw(f"s_lshl_b32 s{S_T[3]}, s{S_T[3]}, 10"))
        o.append(raw(f"s_add_u32 s{S_T[qt]}, s{S_T[3]}, s{S_T[4]}"))
    for qt in range(3):
        for c in range(4):
            a = acc(2*c, qt); b = acc(2*c+1, qt)
            for r in range(4):
                o.append(valu("v_mul_f32", a + r, a + r, t[qt])); o.append(valu("v_mul_f32", b + r, b + r, t[qt]))
            o += [cvtpk(a, a, a+1), cvtpk(a+1, a+2, a+3), cvtpk(a+2, b, b+1), cvtpk(a+3, b+2, b+3)]
            o.append(bstore(a, 4, V_L16, SRDO, S_T[qt], flags=opts.get("stflags", "sc1")))
            if c < 3: o.append(raw(f"s_add_u32 s{S_T[qt]}, s{S_T[qt]}, 8192"))
    o += [waitcnt(vm=0, lgkm=0), barrier()]
    o += [valu("v_mov_b32", 12, str(FBOFF)), ds128(160, 12, 0), waitcnt(lgkm=0),
          valu("v_or_b32", 160, 160, 161), valu("v_or_b32", 162, 162, 163), valu("v_or_b32", 160, 160, 162), raw("s_nop 0"),
          raw(f"v_readfirstlane_b32 s{S_T[2]}, v160"), raw("s_nop 3"), raw(f"s_cmp_lg_u32 s{S_T[2]}, 0"), raw(f"s_cbranch_scc1 {name}_fb")]
    t0, t1 = S_T[0], S_T[1]
    o += [raw(f"s_cmp_eq_u32 s{S_W}, 0"), raw(f"s_cbranch_scc0 {name}_nopub"),
          raw(f"v_readfirstlane_b32 s{S_NONCE}, v{V_DUMMY}"), raw("s_nop 3"),
          raw(f"s_cmp_lg_u32 s{S_NONCE}, 0"), raw(f"s_cbranch_scc1 {name}_pn_done"), raw(f"s_mov_b32 s{t0}, 0")]
    o += poll(f"{name}_pn", SRDD, t0, 1, 'ge', V_TCH)
    o += [raw(f"s_mov_b32 s{S_NONCE}, s{S_T[6]}"), label(f"{name}_pn_done"),
          raw(f"s_lshl_b32 s{t0}, s{S_BR}, 3"), raw(f"s_add_u32 s{t0}, s{t0}, s{S_B}"), raw(f"s_mul_i32 s{t0}, s{t0}, 384"),
          raw(f"s_lshl_b32 s{t1}, s{S_H}, 2"), raw(f"s_add_u32 s{t0}, s{t0}, s{t1}"), raw(f"s_add_u32 s{t0}, s{t0}, {FLAGOFF}")]
    A = lambda t: o.append(raw(t))
    srd_build(A, SRDWO, S_PTR+8, t0, 260)
    o += [raw("v_lshlrev_b32 v16, 7, v0", kind="valu", wr=[16]), raw(f"v_mov_b32 v17, s{S_NONCE}", kind="valu", wr=[17]),
          raw("s_mov_b64 exec, 7"),
          raw(f"buffer_store_dword v17, v16, s[{SRDWO}:{SRDWO+3}], 0 offen sc1"),
          label(f"{name}_nopub")]
    return o

def head_fallback(name):
    MX = [246, 247, 248]; NM = [184, 188, 192]; TT = 249
    def reset_off():
        return [raw(f"s_lshl_b32 s{S_O[0]}, s{S_W}, 10"), raw(f"s_add_u32 s{S_O[1]}, s{S_O[0]}, 4096"),
                raw(f"s_mov_b32 s{S_O[2]}, s{S_O[0]}"), raw(f"s_mov_b32 s{S_O[3]}, s{S_O[1]}"), raw(f"s_mov_b32 s{S_CNT}, 16")]
    def load(js):
        o = [barrier()]
        for j in js:
            o += [m0set(S_L[j], 0), nop(0), dma(V_L16, SRDK if j < 2 else SRDV, S_O[j]), salu(f"s_add_u32 s{S_O[j]}, s{S_O[j]}, 8192")]
        return o + [waitcnt(vm=0), barrier()]
    def qk(cinit):
        o = []
        for Tk in range(2):
            for c in range(4): o.append(k_read(0, Tk*4 + c))
            for c in range(4):
                for qt in range(3):
                    s = sreg(0, Tk, qt)
                    o.append(mfma16(s, KF + 4*c, qf(qt, c), cinit[qt] if c == 0 else s))
        return o
    pre = [label(f"{name}_fb")] + [valu("v_mov_b32", r, "0xff800000") for r in MX] + reset_off()
    b1 = [label(f"{name}_fb1")] + load([0, 1]) + qk([None]*3)
    for qt in range(3):
        for Tk in range(2):
            s = sreg(0, Tk, qt)
            b1 += [valu("v_max3_f32", MX[qt], MX[qt], s, s+1), valu("v_max3_f32", MX[qt], MX[qt], s+2, s+3)]
    b1 += [waitcnt(lgkm=0), raw(f"s_sub_u32 s{S_CNT}, s{S_CNT}, 1"), raw(f"s_cmp_lg_u32 s{S_CNT}, 0"), raw(f"s_cbranch_scc1 {name}_fb1")]
    mid = []
    for qt in range(3):
        mid += [valu("v_mov_b32", TT, MX[qt]), perm32(TT, MX[qt]), valu("v_max_f32", MX[qt], MX[qt], TT),
                valu("v_mov_b32", TT, MX[qt]), perm16(TT, MX[qt]), valu("v_max_f32", MX[qt], MX[qt], TT)]
        for i in range(4): mid.append(I(f"v_sub_f32 v{NM[qt]+i}, 0, v{MX[qt]}", rd=[MX[qt]], wr=[NM[qt]+i], kind="valu"))
    for i in range(96): mid.append(valu("v_mov_b32", ACC + i, "0"))
    for r in LSUM: mid.append(valu("v_mov_b32", r, "0"))
    mid += reset_off()
    b2 = [label(f"{name}_fb2")] + load([0, 1, 2, 3]) + qk(NM)
    for part in range(2):
        for qt in range(3):
            s = sreg(0, part, qt); p = preg(0, part, qt)
            b2 += [vexp(s+i, s+i) for i in range(4)] + [valu("v_add_f32", LSUM[qt], LSUM[qt], s+i) for i in range(4)] + [cvtpk(p, s, s+1), cvtpk(p+1, s+2, s+3)]
    for half in range(2):
        for T in range(4*half, 4*half + 4): b2 += v_read(0, T)
        for T in range(4*half, 4*half + 4):
            for qt in range(3): b2.append(mfma16(acc(T, qt), VF + 4*(T % 4), pop(0, qt), acc(T, qt)))
    b2 += [waitcnt(lgkm=0), raw(f"s_sub_u32 s{S_CNT}, s{S_CNT}, 1"), raw(f"s_cmp_lg_u32 s{S_CNT}, 0"), raw(f"s_cbranch_scc1 {name}_fb2")]
    post = [nop(15), raw(f"s_mov_b32 s{S_FB}, 1"), raw(f"s_branch {name}_e0")]
    p1, l1, st = resolve_loop([nop(15)] + pre, b1)
    p2, l2, st = resolve_loop(mid, b2, st)
    po, _ = resolve(post, st)
    return p1 + l1 + p2 + l2 + po

V_HOLD = 253
SRDH = 24
SRDH = 100 - 4
def hold_setup(name, opts, A, P):
    t0 = S_T[0]
    A(f"s_lshl_b32 s{t0}, s{S_ID}, 7"); A(f"s_add_u32 s{t0}, s{t0}, {FLAGOFF + 65536}")
    srd_build(A, SRDH, S_PTR+8, t0, 4)
    P.append(valu("v_mov_b32", V_TCH, "0"))
    A(f"buffer_load_dword v{V_HOLD}, v{V_TCH}, s[{SRDH}:{SRDH+3}], 0 offen sc1")
def hold_wait(name, opts):
    o = []
    A = lambda t: o.append(raw(t))
    A(f"s_cmp_eq_u32 s{S_BR}, 0"); A(f"s_cbranch_scc1 {name}_hw_end")
    A(f"s_cmp_eq_u32 s{S_W}, 0"); A(f"s_cbranch_scc0 {name}_hw_done")
    A("s_waitcnt vmcnt(0)"); A(f"v_readfirstlane_b32 s{S_T[4]}, v{V_HOLD}"); A(f"s_mov_b32 s{S_T[5]}, {opts.get('hold_polls', 24)}")
    o.append(label(f"{name}_hw"))
    A(f"buffer_load_dword v{V_HOLD}, v{V_TCH}, s[{SRDH}:{SRDH+3}], 0 offen sc1"); A("s_waitcnt vmcnt(0)")
    A(f"v_readfirstlane_b32 s{S_T[6]}, v{V_HOLD}")
    A(f"s_sub_u32 s{S_T[5]}, s{S_T[5]}, 1"); A(f"s_cbranch_scc1 {name}_hw_done"); A("s_nop 2")
    A(f"s_cmp_lg_u32 s{S_T[6]}, s{S_T[4]}"); A(f"s_cbranch_scc1 {name}_hw_done")
    A(f"s_sleep {opts.get('hold_sleep', 8)}"); A(f"s_branch {name}_hw")
    o.append(label(f"{name}_hw_done")); o.append(barrier()); o.append(label(f"{name}_hw_end"))
    return o
def hold_release(name):
    return [raw(f"s_or_b32 s{S_T[0]}, s{S_BR}, s{S_W}"), raw(f"s_cmp_eq_u32 s{S_T[0]}, 0"), raw(f"s_cbranch_scc0 {name}_hr"),
            raw(f"v_add_u32 v{V_HOLD}, 1, v{V_HOLD}", kind="valu", rd=[V_HOLD], wr=[V_HOLD]), raw(f"v_mov_b32 v{V_TCH}, 0", kind="valu", wr=[V_TCH]),
            raw("s_mov_b64 exec, 1"),
            raw(f"buffer_store_dword v{V_HOLD}, v{V_TCH}, s[{SRDH}:{SRDH+3}], 0 offen sc1"),
            raw("s_mov_b64 exec, -1"), raw("s_nop 1"), label(f"{name}_hr")]

def build_head(name, opts, ST):
    global POL, KVROT, ATTVM, XO, LMF, QRD
    QRD = opts.get('qrd', 19)
    LMF = opts.get('lmfma', False)
    XO = opts.get('x', {})
    ATTVM = opts.get('att_vm', 8)
    POL = opts.get("polite"); KVROT = opts.get("kvrot", True)
    kvflags = opts.get("kvflags", "nt")
    pro = head_prologue(name, opts) + ST(1) + [raw(f"s_mov_b32 s{S_CNT}, 4")]
    qb = [label(f"{name}_qloop")]
    for p in range(2): qb += q_iter(p, 'Q')
    qb += [raw(f"s_sub_u32 s{S_CNT}, s{S_CNT}, 1"), raw(f"s_cmp_lg_u32 s{S_CNT}, 0"), raw(f"s_cbranch_scc1 {name}_qloop")]
    pro2, qb2, st = resolve_loop(pro, qb)
    last = ST(2)
    if opts.get("hold", True):
        if opts.get("hold_at", "q") == "q": last += hold_release(name)
    last += q_switch() + q_iter(0, 'K0', kvflags) + q_iter(1, 'K1', kvflags)
    last2, st = resolve(last, st)
    wot = []
    if opts.get("touch_wo", True):
        wot = [valu("v_lshlrev_b32", V_TCH, "7", 0), raw(f"s_lshl_b32 s{S_T[0]}, s{S_W}, 13"), bload(V_DUMMY, 1, V_TCH, SRDWO, S_T[0])]
    mid = [waitcnt(lgkm=0)] + ST(3) + wot + [raw(f"s_setprio {opts.get('prioAtt', 3)}")] + q_convert() + att_prologue(kvflags) + [raw(f"s_mov_b32 s{S_CNT}, 4")]
    body = [label(f"{name}_aloop")]
    for u in range(3): body += h0(u) + h1(u, kvflags)
    body += [raw(f"s_cmp_eq_u32 s{S_CNT}, 1"), raw(f"s_cbranch_scc1 {name}_tail")]
    body += h0(3) + h1(3, kvflags)
    body += [raw(f"s_sub_u32 s{S_CNT}, s{S_CNT}, 1"), raw(f"s_branch {name}_aloop")]
    mid2, st1 = resolve(mid, st)
    _, body2, _ = resolve_loop([], body, st1)
    idx = [i for i, x in enumerate(body2) if x.txt.startswith(f"s_cbranch_scc1 {name}_tail")][0]
    _, sA = resolve(body2, st1.copy(), insert=False)
    _, sB = resolve(body2[:idx+1], sA.copy(), insert=False)
    tail = [label(f"{name}_tail")] + h0(3, tail=True) + h1(3, kvflags, tail=True) + ([] if opts.get("pstamp") else ST(4)) + head_epilogue(name, opts)
    tail2, _ = resolve(tail, sB)
    return pro2 + qb2 + last2 + mid2 + body2 + tail2

WSLOT = 4224; NR = 3
OACC = 16
OBF = 144
OAF = 240
O_OFFO, O_OFFW, O_AW, O_FL, O_PV = [1, 2], 3, 4, 5, 6
OG, OM, ORR, OC = 7, 8, 9, 10
OS_OO = 32; OS_OW = [33, 34, 35, 36]; OS_L = 37
OSRDO, OSRDW, OSRDOUT, OSRDF = 12, 16, 20, 24
OS_OFF, OS_WO0, OS_OO0 = 8, 40, 41
OS_AV, OS_ISS, OS_ROT = 38, 39, 9
OS_A2 = 46
OS_WB = 10
def oacc(rt, Tc): return OACC + (rt * 4 + Tc) * 4
_sel = [0]
def o_select(name, opts):
    _sel[0] += 1
    L = f"{name}_s{_sel[0]}"
    t0, t1 = S_T[0], S_T[1]
    return [raw(f"s_cmp_lg_u32 s{OS_AV}, 0"), raw(f"s_cbranch_scc1 {L}_have"),
         raw(f"s_mov_b32 s{t0}, 32"), raw(f"s_cmp_eq_u32 s{OS_ISS}, -1"), raw(f"s_cbranch_scc1 {L}_addr"),
         raw(f"s_mov_b32 s{S_T[5]}, 200000"),
         label(f"{L}_poll"),
         raw(f"buffer_load_dword v{O_PV}, v{O_FL}, s[{OSRDF}:{OSRDF+3}], 0 offen sc1")] + ([
         raw(f"buffer_load_dword v11, v{O_FL}, s[{OSRDF}:{OSRDF+3}], s{OS_WB} offen sc1"), raw("s_waitcnt vmcnt(0)"),
         raw(f"v_cmp_eq_u32 s[{OS_A2}:{OS_A2+1}], s{S_NONCE}, v11"),
         raw(f"v_cmp_eq_u32 vcc, s{S_NONCE}, v{O_PV}"), raw("s_nop 3"), raw(f"s_and_b64 vcc, vcc, s[{OS_A2}:{OS_A2+1}]")] if opts.get("waitB") else [raw("s_waitcnt vmcnt(0)"),
         raw(f"v_cmp_eq_u32 vcc, s{S_NONCE}, v{O_PV}")]) + [
         raw(f"s_sub_u32 s{S_T[5]}, s{S_T[5]}, 1"), raw(f"s_cselect_b32 s{t1}, -1, 0"), raw("s_nop 2"),
         raw(f"s_and_b32 s{t0}, vcc_lo, vcc_hi"),
         raw(f"s_or_b32 s{t1}, s{t1}, s{t0}"), raw(f"s_andn2_b32 s{OS_AV}, s{t1}, s{OS_ISS}"),
         raw(f"s_cbranch_scc1 {L}_have"), raw(f"s_sleep {opts.get('sleep', 8)}"), raw(f"s_branch {L}_poll"),
         label(f"{L}_have"),
         raw(f"s_mov_b32 s{OS_A2}, s{OS_AV}"), raw(f"s_mov_b32 s{OS_A2+1}, s{OS_AV}"),
         raw(f"s_lshr_b64 s[{OS_A2}:{OS_A2+1}], s[{OS_A2}:{OS_A2+1}], s{OS_ROT}"),
         raw(f"s_ff1_i32_b32 s{t0}, s{OS_A2}"), raw(f"s_add_u32 s{t0}, s{t0}, s{OS_ROT}"), raw(f"s_and_b32 s{t0}, s{t0}, 31"),
         raw(f"s_lshl_b32 s{t1}, 1, s{t0}"), raw(f"s_or_b32 s{OS_ISS}, s{OS_ISS}, s{t1}"), raw(f"s_andn2_b32 s{OS_AV}, s{OS_AV}, s{t1}"),
         label(f"{L}_addr"),
         raw(f"s_lshl_b32 s{t1}, s{t0}, 15"), raw(f"s_add_u32 s{OS_OO}, s{OS_OO0}, s{t1}"),
         raw(f"s_mul_i32 s{t1}, s{t0}, {128*1280}"), raw(f"s_add_u32 s{OS_OW[0]}, s{OS_WO0}, s{t1}"),
         raw(f"s_add_u32 s{OS_OW[1]}, s{OS_OW[0]}, 1280"), raw(f"s_add_u32 s{OS_OW[2]}, s{OS_OW[0]}, 2560"), raw(f"s_add_u32 s{OS_OW[3]}, s{OS_OW[0]}, 3840")]
OFL = 'sc1'
def o_loads(u):
    o = []
    for j in range(8): o.append([bload(OBF + 32*u + 4*j, 4, O_OFFO[j//4], OSRDO, OS_OO, off=(j%4)*1024, flags=OFL)])
    for b in range(4): o.append([m0set(OS_L, u * WSLOT + b * 1056), dma(O_OFFW, OSRDW, OS_OW[b])])
    return o
def o_aread(u, Tc):
    off = u * WSLOT + Tc * 32
    return [dstr(OAF + 4*Tc, O_AW, off), dstr(OAF + 4*Tc + 2, O_AW, off + 512)]

def build_oproj(name, opts, ST):
    global OFL
    OFL = opts.get('oflags', 'sc1')
    P = []
    A = lambda t, **k: P.append(raw(t, **k))
    t0, t1, t2 = S_T[0], S_T[1], S_T[2]
    A(f"s_sub_u32 s{S_ID}, s2, 512")
    if opts.get("omap", "xcd") == "xcd":
        A(f"s_and_b32 s3, s{S_ID}, 7"); A(f"s_lshr_b32 s{S_BR}, s3, 2"); A(f"s_lshr_b32 s{OS_OFF}, s{S_ID}, 3")
        A(f"s_mul_i32 s{t1}, s{OS_OFF}, 6554"); A(f"s_lshr_b32 s{t1}, s{t1}, 16")
        A(f"s_and_b32 s{t2}, s3, 3"); A(f"s_mul_i32 s{t2}, s{t2}, 3"); A(f"s_add_u32 s6, s{t2}, s{t1}")
        A(f"s_mul_i32 s{t1}, s{t1}, 10"); A(f"s_sub_u32 s7, s{OS_OFF}, s{t1}")
    else:
        A(f"s_cmp_ge_u32 s{S_ID}, 120"); A(f"s_cselect_b32 s{S_BR}, 1, 0")
        A(f"s_mul_i32 s{t0}, s{S_BR}, 120"); A(f"s_sub_u32 s{S_ID}, s{S_ID}, s{t0}")
        A(f"s_and_b32 s3, s{S_ID}, 7"); A(f"s_lshr_b32 s{OS_OFF}, s{S_ID}, 3")
        A(f"s_mul_i32 s{t1}, s{OS_OFF}, 13108"); A(f"s_lshr_b32 s{t1}, s{t1}, 16")
        A(f"s_lshr_b32 s{t2}, s3, 1"); A(f"s_mul_i32 s{t2}, s{t2}, 3"); A(f"s_add_u32 s6, s{t2}, s{t1}")
        A(f"s_mul_i32 s{t1}, s{t1}, 5"); A(f"s_sub_u32 s7, s{OS_OFF}, s{t1}"); A(f"s_and_b32 s{t2}, s3, 1"); A(f"s_mul_i32 s{t2}, s{t2}, 5"); A(f"s_add_u32 s7, s7, s{t2}")
    A(f"s_mul_i32 s3, s{S_BR}, 40"); A("s_add_u32 s3, s3, 32")
    A(f"s_load_dwordx2 s[{S_PTR}:{S_PTR+1}], s[0:1], s3")
    A(f"s_load_dwordx4 s[{S_PTR+4}:{S_PTR+7}], s[0:1], 80")
    A(f"s_load_dwordx2 s[{S_PTR+8}:{S_PTR+9}], s[0:1], 96")
    P.append(valu("v_lshrrev_b32", OG, "6", 0)); P.append(valu("v_and_b32", 0, "63", 0))
    A("s_nop 0"); A(f"v_readfirstlane_b32 s{S_W}, v{OG}")
    P.append(valu("v_lshrrev_b32", OG, "4", 0)); P.append(valu("v_and_b32", OM, "15", 0))
    P.append(valu("v_bfe_u32", ORR, 0, "2", "2")); P.append(valu("v_and_b32", OC, "3", 0))
    P.append(valu("v_lshlrev_b32", O_OFFO[0], "4", 0)); P.append(valu("v_add_u32", O_OFFO[1], "4096", O_OFFO[0]))
    P.append(valu("v_lshrrev_b32", 16, "3", 0)); P.append(valu("v_mul_u32_u24", 16, "5120", 16))
    P.append(valu("v_and_b32", 17, "7", 0)); P.append(valu("v_lshl_add_u32", O_OFFW, 17, "4", 16))
    A(f"s_mul_i32 s{OS_L}, s{S_W}, {NR*WSLOT}")
    P.append(valu("v_mul_u32_u24", 16, "1056", ORR)); P.append(valu("v_lshl_add_u32", 16, OG, "7", 16)); P.append(valu("v_lshl_add_u32", 16, OC, "3", 16))
    P.append(valu("v_add_u32", O_AW, f"s{OS_L}", 16))
    A(f"s_lshl_b32 s{OS_OO0}, s{S_W}, 13"); A(f"s_mul_i32 s{OS_WO0}, s{S_W}, {32*1280}")
    A("s_waitcnt lgkmcnt(0)")
    A(f"s_mul_i32 s{t0}, s{S_BR}, 12"); A(f"s_add_u32 s{t0}, s{t0}, s6"); A(f"s_lshl_b32 s{t0}, s{t0}, 20")
    srd_build(A, OSRDO, S_PTR+8, t0, 1048576)
    A(f"s_lshl_b32 s{t0}, s7, 7"); srd_build(A, OSRDW, S_PTR, t0, 4096*1280 - 9*128)
    A(f"s_mul_i32 s{t0}, s6, {128*2560}"); A(f"s_mul_i32 s{t1}, s{S_BR}, 1280"); A(f"s_add_u32 s{t0}, s{t0}, s{t1}")
    A(f"s_lshl_b32 s{t1}, s7, 7"); A(f"s_add_u32 s{t0}, s{t0}, s{t1}")
    srd_build(A, OSRDOUT, S_PTR+4, t0, 127*2560 + 128)
    srd_build(A, SRDD, S_PTR+6, None, 256)
    A(f"s_mov_b32 s{t0}, 0")
    P.extend(poll(f"{name}_pn", SRDD, t0, 1, 'ge', O_FL, sleep=8))
    A(f"s_mov_b32 s{S_NONCE}, s{S_T[6]}")
    A(f"s_mul_i32 s{t0}, s6, 43691"); A(f"s_lshr_b32 s{t0}, s{t0}, 16")
    A(f"s_lshl_b32 s{t1}, s6, 7"); A(f"s_add_u32 s{t1}, s{t1}, 127"); A(f"s_mul_i32 s{t1}, s{t1}, 21846"); A(f"s_lshr_b32 s{t1}, s{t1}, 22")
    A(f"s_sub_u32 s{t1}, s{t1}, s{t0}"); A(f"s_mul_i32 s{t1}, s{t1}, 384")
    A(f"s_lshl_b32 s{t2}, s{S_BR}, 3"); A(f"s_add_u32 s{t0}, s{t0}, s{t2}"); A(f"s_mul_i32 s{t0}, s{t0}, 384")
    A(f"s_mul_i32 s{t2}, s7, 21846"); A(f"s_lshr_b32 s{t2}, s{t2}, 16"); A(f"s_mul_i32 s{t2}, s{t2}, 3"); A(f"s_sub_u32 s{t2}, s7, s{t2}")
    A(f"s_lshl_b32 s{t2}, s{t2}, 7"); A(f"s_add_u32 s{t0}, s{t0}, s{t2}"); A(f"s_add_u32 s{t0}, s{t0}, {FLAGOFF}")
    srd_build(A, OSRDF, S_PTR+8, t0, 512 + (8*384 if opts.get("waitB") else 0))
    A(f"s_cmp_eq_u32 s{S_BR}, 0"); A(f"s_cselect_b32 s{OS_WB}, {8*384}, 0")
    P.append(valu("v_and_b32", O_FL, "31", 0)); P.append(valu("v_lshlrev_b32", O_FL, "2", O_FL))
    P.append(valu("v_lshrrev_b32", 16, "5", 0)); P.append(valu("v_mul_lo_u32", 16, f"s{t1}", 16)); P.append(valu("v_add_u32", O_FL, O_FL, 16))
    A(f"s_mov_b32 s{OS_AV}, 0"); A(f"s_mov_b32 s{OS_ISS}, 0")
    if opts.get("trot"):
        A(f"s_memrealtime s[{OS_A2}:{OS_A2+1}]"); A("s_waitcnt lgkmcnt(0)")
        A(f"s_sub_u32 s{t0}, s{OS_A2}, s{S_NONCE}"); A(f"s_mul_i32 s{t0}, s{t0}, {65536 // opts['trot']}"); A(f"s_lshr_b32 s{t0}, s{t0}, 16")
        A(f"s_and_b32 s{t1}, s{OS_OFF}, {opts.get('rotmask', 3)}"); A(f"s_add_u32 s{t0}, s{t0}, s{t1}"); A(f"s_and_b32 s{OS_ROT}, s{t0}, 31")
    else:
        A(f"s_and_b32 s{OS_ROT}, s{OS_OFF}, {opts.get('rotmask', 7)}")
    for i in range(128): P.append(valu("v_mov_b32", OACC + i, "0"))
    P.extend(ST(1))
    for u in range(2):
        P.extend(o_select(name, opts))
        for grp in o_loads(u): P.extend(grp if len(grp) == 1 else [grp[0], nop(0)] + grp[1:])
    P.append(waitcnt(vm=12))
    for Tc in range(4): P.extend(o_aread(0, Tc))
    A(f"s_mov_b32 s{S_CNT}, 11")
    body = [label(f"{name}_loop")]
    for u in range(3):
        mf = [mfma16(oacc(rt, Tc), OAF + 4*Tc, OBF + 32*u + 4*rt, oacc(rt, Tc)) for Tc in range(4) for rt in range(8)]
        slots = [[] for _ in mf]
        slots[0] += o_select(name, opts)
        for j, grp in enumerate(o_loads((u + 2) % 3)):
            k = 1 + (j * 22) // 12
            if len(grp) == 1: slots[k] += grp
            else: slots[k].append(grp[0]); slots[k+1] += grp[1:]
        slots[24].append(waitcnt(vm=12))
        n = (u + 1) % 3
        slots[24] += o_aread(n, 0); slots[25] += o_aread(n, 1); slots[26] += o_aread(n, 2); slots[31] += o_aread(n, 3)
        body += emit(mf, slots)
    if opts.get("ostamp"):
        for cnt, idx in ((9, 2), (5, 3)):
            body += [raw(f"s_cmp_eq_u32 s{S_CNT}, {cnt}"), raw(f"s_cbranch_scc0 {name}_os{idx}")] + ST(idx) + [label(f"{name}_os{idx}")]
    body += [raw(f"s_sub_u32 s{S_CNT}, s{S_CNT}, 1"), raw(f"s_cmp_lg_u32 s{S_CNT}, 0"), raw(f"s_cbranch_scc1 {name}_loop")]
    P2, body2, st = resolve_loop(P, body)
    E = []
    A = lambda t, **k: E.append(raw(t, **k))
    E.extend(ST(4 if opts.get("ostamp") else 2))
    E.append(valu("v_lshlrev_b32", 11, "4", 0))
    A(f"s_lshl_b32 s{t0}, s{S_W}, 14"); E.append(valu("v_add_u32", 12, f"s{t0}", 11))
    A(f"s_lshl_b32 s{t0}, s{S_W}, 12"); E.append(valu("v_add_u32", 13, f"s{t0}", 11))
    E.append(valu("v_and_b32", 14, "1", OG)); E.append(valu("v_lshlrev_b32", 14, "1", 14)); E.append(valu("v_lshrrev_b32", 15, "1", OG))
    E.append(valu("v_or_b32", 14, 14, 15)); E.append(valu("v_lshlrev_b32", 14, "4", 14))
    E.append(valu("v_mul_u32_u24", 15, "2560", OM)); E.append(valu("v_add_u32", 14, 14, 15))
    A(f"s_mul_i32 s{t0}, s{S_W}, {16*2560}"); A(f"s_add_u32 s{t1}, s{t0}, {64*2560}")
    E.append(waitcnt(vm=0, lgkm=0)); E.append(barrier())
    for r in range(2):
        for tl in range(16): E.append(dsw128(12, OACC + (16*r + tl)*4, tl*1024))
        E.append(waitcnt(lgkm=0)); E.append(barrier())
        for t in range(4):
            for p in range(4): E.append(ds128(144 + (p*4 + t)*4, 13, p*16384 + t*1024))
        for pr in range(2):
            for h in range(2):
                t = 2*pr + h
                for i in range(4):
                    a = 144 + t*4 + i
                    E.append(valu("v_add_f32", a, a, a + 16)); E.append(valu("v_add_f32", a + 32, a + 32, a + 48))
                for i in range(4):
                    a = 144 + t*4 + i
                    E.append(valu("v_add_f32", a, a, a + 32))
            a = 144 + 2*pr*4; b = a + 4; q = 240 + (r*2 + pr)*4
            E += [cvtpk(q, a, a+1), cvtpk(q+1, a+2, a+3), cvtpk(q+2, b, b+1), cvtpk(q+3, b+2, b+3), perm16(q, q+2), perm16(q+1, q+3)]
            E.append(bstore(q, 4, 14, OSRDOUT, t0 if r == 0 else t1, off=pr*64))
        if r == 0: E.append(waitcnt(lgkm=0)); E.append(barrier())
    E2, _ = resolve(E, st)
    return P2 + body2 + E2

def build(name, stamps=False, **opts):
    ST = (lambda i, real=False: stamp(i, real)) if stamps else (lambda i, real=False: [])
    out = [label(name)] + ST(0) + ST(6, True)
    out += [raw("s_cmp_ge_u32 s2, 752"), raw(f"s_cbranch_scc1 {name}_end"), raw("s_cmp_ge_u32 s2, 512"), raw(f"s_cbranch_scc1 {name}_oproj")]
    if opts.get("skip_heads") == "holdB":
        out += [raw("s_cmp_lt_u32 s2, 256"), raw(f"s_cbranch_scc1 {name}_end"), raw("s_mov_b32 s4, 40"), label(f"{name}_hb"), raw("s_sleep 32"),
                raw("s_sub_u32 s4, s4, 1"), raw("s_cmp_lg_u32 s4, 0"), raw(f"s_cbranch_scc1 {name}_hb"), raw("s_endpgm")]
    elif opts.get("skip_heads"): out += [raw("s_endpgm")]
    fin_h = []; fin_o = []
    if stamps:
        fin_h = [waitcnt(vm=0), raw("s_mov_b64 exec, -1")] + ([] if opts.get("pstamp") else ST(5)) + ST(7, True) + stamp_dump(8, S_PTR+8, S_W, 64<<20, 16, nwaves_shift=2)
        fin_o = [waitcnt(vm=0)] + ([] if opts.get("ostamp") else ST(3) + ST(4)) + ST(5) + ST(7, True) + stamp_dump(8, S_PTR+8, S_W, 64<<20, 16, nwaves_shift=2)
    out += build_head(name + "_h", opts, ST) + fin_h + [raw("s_endpgm")] + head_fallback(name + "_h")
    out += [label(f"{name}_oproj")] + build_oproj(name + "_o", opts, ST) + fin_o
    out += [label(f"{name}_end"), raw("s_endpgm")]
    return out
```

```python
from asmlib import *

QSLOT = 40960; XOFF = 16384
ASLOT = 16896; VOFF = 8448
ACC = 16; QF = 112
SX, SY, SZ = 160, 172, 184
PB = 196; KF = 214; VF = 230
QA = [160, 204]; QB = [192, 236]
V_OFFA, V_OFFB, V_L16 = 1, 2, 3
A_W = [4, 5, 6, 7, 8, 9, 10, 11]; A_X = [12, 15]; A_K = 13; A_V = 14
LSUM = [4, 5, 6]; VT = [7, 8, 9, 10]
ONES = 250
LACC = [4, 8, 246]
LMF = False
G, M, RR, C = 248, 249, 250, 251
V_DUMMY = 255; V_TCH = 254
S_W, S_BR, S_B, S_H = 4, 5, 6, 7
SRDA, SRDB, SRDK, SRDV, SRDO, SRDD = 12, 16, 20, 24, 28, 64
S_O = [32, 33, 34, 35]; S_L = [38, 39, 40, 41]; S_CNT = 42
S_OW, S_OX, S_LW, S_LX, S_SIG, S_TT = 8, 9, 36, 37, 10, 11
S_KC, S_VC, S_KB, S_KROT = 8, 9, 36, 37
S_T = [43, 44, 45, 46, 47, 48, 49]
S_SC = 50
S_PTR = 52
SRDWO = 68
S_ID = 72
S_DBG = 74
FLAGOFF = 32 << 20
S_NONCE = 73

def acc(T, qt): return ACC + (T * 3 + qt) * 4
def qf(qt, c): return QF + (qt * 4 + c) * 4

def emit(mf, slots):
    out = []
    for m, fs in zip(mf, slots):
        out.append(m)
        for f in fs:
            if isinstance(f, list): out.extend(f)
            else: out.append(f)
    return out
def spread(slots, items, lo, hi):
    n = len(items); m = hi - lo
    for i, it in enumerate(items): slots[lo + (i * m) // n].append(it)

def q_addr():
    t0 = S_T[0]
    return [salu(f"s_lshl_b32 s{t0}, s{S_SIG}, 19"), salu(f"s_add_u32 s{S_O[0]}, s{S_OW}, s{t0}"),
            salu(f"s_lshl_b32 s{t0}, s{S_SIG}, 7"), salu(f"s_add_u32 s{S_O[1]}, s{S_OX}, s{t0}"),
            salu(f"s_add_u32 s{S_SIG}, s{S_SIG}, 1"), salu(f"s_cmp_eq_u32 s{S_SIG}, 10"), salu(f"s_cselect_b32 s{S_SIG}, 0, s{S_SIG}")]
def q_dma(slot):
    out = []
    for i in range(4):
        g = [m0set(S_LW, slot * QSLOT + i * 4096)]
        if i == 0: g += [dma(V_OFFA, SRDA, S_O[0])]
        else: g += [salu(f"s_add_u32 s{S_TT}, s{S_O[0]}, {i*16*8192}"), dma(V_OFFA, SRDA, S_TT)]
        out.append(g)
    for i in range(6):
        g = [m0set(S_LX, slot * QSLOT + i * 4096)]
        if i == 0: g += [dma(V_OFFB, SRDB, S_O[1])]
        else: g += [salu(f"s_add_u32 s{S_TT}, s{S_O[1]}, {i*32*1280}"), dma(V_OFFB, SRDB, S_TT)]
        out.append(g)
    return out
KVROT = True
def kv_addr(which):
    c = S_KC if which == 0 else S_VC
    a, b = (S_O[0], S_O[1]) if which == 0 else (S_O[2], S_O[3])
    t = S_TT
    return [salu(f"s_add_u32 s{t}, s{c}, s{S_KROT}"), salu(f"s_and_b32 s{t}, s{t}, 15"), salu(f"s_cmp_lt_u32 s{c}, 16"),
            salu(f"s_cselect_b32 s{t}, s{t}, 16"), salu(f"s_lshl_b32 s{t}, s{t}, 13"), salu(f"s_add_u32 s{a}, s{t}, s{S_KB}"),
            salu(f"s_add_u32 s{b}, s{a}, 4096"), salu(f"s_add_u32 s{c}, s{c}, 1")]
def kv_dma(kslot, vslot, flags):
    out = []
    for j in range(4):
        sl = kslot if j < 2 else vslot
        if KVROT:
            pre = kv_addr(j // 2) if j % 2 == 0 else []
            post = nop(0)
        else:
            pre = []
            post = salu(f"s_add_u32 s{S_O[j]}, s{S_O[j]}, 8192")
        out.append([pre + [m0set(S_L[j], sl * ASLOT)], dma(V_L16, SRDK if j < 2 else SRDV, S_O[j], flags), post])
    return out

def q_frag_reads(slot, e, st):
    out = []
    for qt in range(3): out.append(ds128(QB[st] + 4*qt, A_X[e], slot * QSLOT + qt * 2048))
    for T in range(8):
        o = slot * QSLOT + e * 8192
        out.append(dstr(QA[st] + 4*T, A_W[T], o)); out.append(dstr(QA[st] + 4*T + 2, A_W[T], o + 1024))
    return out

_pl = [0]
def polite(n):
    _pl[0] += 1
    lab = f"Lpol{_pl[0]}"
    return [raw(f"s_cmp_eq_u32 s{S_BR}, 0"), raw(f"s_cbranch_scc1 {lab}"), waitcnt(vm=n), label(lab)]
POL = None
QRD = 19
def q_half(st, reads, extra):
    mf = [mfma16(acc(T, qt), QA[st] + 4*T, QB[st] + 4*qt, acc(T, qt)) for T in range(8) for qt in range(3)]
    slots = [[] for _ in mf]
    for i, rd in enumerate(reads): slots[(i * QRD) // 19 if i < 19 else 23].append(rd)
    n = len(extra)
    for j, grp in enumerate(extra):
        k = (j * 22) // max(n, 1)
        slots[k].append(grp[0]); slots[k+1] += [x for x in grp[1:] if getattr(x, "kind", "") != "nop"]
    return emit(mf, slots)

def q_iter(p, kind, kvflags=""):
    out = q_half(0, q_frag_reads(p, 1, 1), [])
    out += [waitcnt(vm=0, lgkm=0) if kind != 'K1' else waitcnt(lgkm=0), barrier()]
    if kind == 'Q':
        extra = [q_addr()] + q_dma(p)
        if POL:
            for pos, n in POL: extra[pos] = extra[pos] + polite(n)
    elif kind == 'K0': extra = kv_dma(0, 0, kvflags) + kv_dma(1, 1, kvflags)
    else: extra = kv_dma(2, 2, kvflags) + kv_dma(3, 3, kvflags)
    reads = q_frag_reads(1 - p, 0, 0) if kind != 'K1' else []
    out += q_half(1, reads, extra)
    return out

def q_switch():
    o = []
    A = lambda t: o.append(raw(t))
    t0, t1 = S_T[0], S_T[1]
    A(f"s_lshr_b32 s{t0}, s{S_W}, 1"); A(f"s_lshl_b32 s{t0}, s{t0}, 2"); A(f"s_and_b32 s{t1}, s{S_W}, 1"); A(f"s_add_u32 s{t0}, s{t0}, s{t1}")
    A(f"s_lshl_b32 s{t0}, s{t0}, 4"); A(f"s_lshl_b32 s{t1}, s{S_W}, 10"); A(f"s_add_u32 s{S_L[0]}, s{t0}, s{t1}")
    A(f"s_add_u32 s{S_L[1]}, s{S_L[0]}, {4096+128}")
    A(f"s_mul_i32 s{t0}, s{S_W}, 1056"); A(f"s_add_u32 s{S_L[2]}, s{t0}, {VOFF}"); A(f"s_add_u32 s{S_L[3]}, s{S_L[2]}, {4*1056}")
    A(f"s_lshl_b32 s{S_KB}, s{S_W}, 10"); A(f"s_mov_b32 s{S_KC}, 0"); A(f"s_mov_b32 s{S_VC}, 0")
    if KVROT:
        A(f"s_lshr_b32 s{S_KROT}, s{S_ID}, 3"); A(f"s_add_u32 s{S_KROT}, s{S_KROT}, s{S_ID}"); A(f"s_and_b32 s{S_KROT}, s{S_KROT}, 15")
    else:
        A(f"s_mov_b32 s{S_O[0]}, s{S_KB}"); A(f"s_add_u32 s{S_O[1]}, s{S_KB}, 4096"); A(f"s_mov_b32 s{S_O[2]}, s{S_O[0]}"); A(f"s_mov_b32 s{S_O[3]}, s{S_O[1]}")
    return o

def q_convert():
    o = []
    for qt in range(3):
        for T in range(8):
            a = acc(T, qt)
            o.append(pkmul(a, a, f"s[{S_SC}:{S_SC+1}]")); o.append(pkmul(a+2, a+2, f"s[{S_SC}:{S_SC+1}]"))
    for qt in range(3):
        for c in range(4):
            q = qf(qt, c); a = acc(2*c, qt); b = acc(2*c+1, qt)
            o += [cvtpk(q, a, a+1), cvtpk(q+1, a+2, a+3), cvtpk(q+2, b, b+1), cvtpk(q+3, b+2, b+3)]
    for qt in range(3):
        for c in range(4):
            q = qf(qt, c)
            o += [perm16(q, q+2), perm16(q+1, q+3)]
    for i in range(96): o.append(valu("v_mov_b32", ACC + i, "0"))
    if LMF:
        for qt in range(3):
            for i in range(4): o.append(valu("v_mov_b32", LACC[qt] + i, "0"))
        for i in range(4): o.append(valu("v_mov_b32", ONES + i, "0x3f803f80"))
    else:
        for r in LSUM: o.append(valu("v_mov_b32", r, "0"))
    return o

def sreg(j, Tk, qt):
    if Tk == 0: return SX + 4*qt
    return (SY if j % 2 == 0 else SZ) + 4*qt
def preg(j, part, qt):
    base = PB + 6*qt
    if part == 1: return base + 2
    return base + (0 if j % 2 == 0 else 4)
def pop(j, qt): return PB + 6*qt + (0 if j % 2 == 0 else 2)
def k_read(j, i): return ds128(KF + 4*(i % 4), A_K, (j % 4) * ASLOT + (i % 4) * 64 + (i // 4) * 512)
def v_read(j, T):
    o = (j % 4) * ASLOT + T * 32
    d = VF + 4*(T % 4)
    if j % 2 == 0: return [dstr(d, A_V, o), dstr(d+2, A_V, o + 512)]
    return [dstr(d+2, A_V, o), dstr(d, A_V, o + 512)]
def softmax_ops(j, part):
    if XO.get("nosm"): return [nop(0)]
    ops = []
    for qt in range(3):
        s = sreg(j, part, qt); p = preg(j, part, qt)
        ops.append([vexp(s, s), vexp(s+1, s+1), vexp(s+2, s+2), vexp(s+3, s+3),
                    valu("v_add_f32", LSUM[qt], LSUM[qt], s), cvtpk(p, s, s+1), valu("v_add_f32", LSUM[qt], LSUM[qt], s+1),
                    valu("v_add_f32", LSUM[qt], LSUM[qt], s+2), cvtpk(p+1, s+2, s+3), valu("v_add_f32", LSUM[qt], LSUM[qt], s+3)])
    seq = list(ops[0][:4])
    for qt in range(1, 3):
        e = ops[qt][:4]; f = ops[qt-1][4:]
        seq += [e[0], f[0], f[1], e[1], f[2], e[2], f[3], f[4], e[3], f[5]]
    seq += ops[2][4:]
    if LMF: seq = [x for x in seq if not x.txt.startswith("v_add_f32")]
    if XO.get("noadd"): seq = [x for x in seq if not x.txt.startswith("v_add_f32")]
    if XO.get("noexp"): seq = [x for x in seq if not x.txt.startswith("v_exp")]
    return seq
def qk_mfmas(j):
    mf = []
    for Tk in range(2):
        for c in range(4):
            i = Tk*4 + c
            for qt in range(3):
                s = sreg(j, Tk, qt)
                mf.append(mfma16(s, KF + 4*(i % 4), qf(qt, c), None if c == 0 else s))
    return mf
def pv_mfmas(j):
    return [mfma16(acc(T, qt), VF + 4*(T % 4), pop(j, qt), acc(T, qt)) for T in range(8) for qt in range(3)]
def l_mfmas(j):
    return [mfma16(LACC[qt], ONES, pop(j, qt), LACC[qt]) for qt in range(3)]

def h0(s, tail=False):
    sm = softmax_ops(s, 1)
    vr_ = [v_read(s, T) for T in range(4)]
    if tail:
        out = []
        for v in vr_: out += v
        return out + sm
    mf = qk_mfmas(s + 1)
    slots = [[] for _ in mf]
    for i in range(5): slots[3*i].append(k_read(s + 1, i + 3))
    for T in range(4): slots[14 + 2*T].append(vr_[T][0]); slots[15 + 2*T].append(vr_[T][1])
    spread(slots, sm, 0, 23)
    return emit(mf, slots)
ATTVM = 8
XO = {}
BAR2 = False
def h1(s, kvflags, tail=False):
    mf = pv_mfmas(s)
    slots = [[] for _ in mf]
    for T in range(4, 8):
        v = v_read(s, T); slots[3*(T-4) + 2].append(v[0]); slots[3*(T-4) + 3].append(v[1])
    if not tail:
        spread(slots, softmax_ops(s + 1, 0), 0, 23)
        if BAR2:
            if s % 2 == 0:
                slots[16].append([waitcnt(vm=0, lgkm=0), barrier()])
                grps = kv_dma(s % 4, (s + 3) % 4, kvflags) + kv_dma((s + 1) % 4, s % 4, kvflags)
                for j, grp in enumerate(grps):
                    k = 16 + j
                    slots[k].append(grp[0]); slots[k].append(grp[2] if grp[2].kind == "nop" else nop(0)); slots[k].append(grp[1])
                    if grp[2].kind != "nop": slots[k].append(grp[2])
            for i in range(3): slots[17 + i].append(k_read(s + 2, i))
        else:
          if XO.get("nobar"): slots[16].append([waitcnt(lgkm=0)])
          else: slots[16].append([waitcnt(vm=ATTVM, lgkm=0), barrier()])
          for i in range(3): slots[17 + i].append(k_read(s + 2, i))
          if not XO.get("nodma"):
            for j, grp in enumerate(kv_dma((s + 1) % 4, s % 4, kvflags)):
              slots[17 + j].append(grp[0]); slots[18 + j].append(grp[1])
              if grp[2].kind != "nop": slots[19 + j].append(grp[2])
    if LMF:
        lm = l_mfmas(s); slots[2].append(lm[0]); slots[8].append(lm[1]); slots[13].append(lm[2])
    return emit(mf, slots)
def att_prologue(kvflags):
    o = [raw(f"s_sub_u32 s{S_VC}, s{S_VC}, 1")] if KVROT else [raw(f"s_sub_u32 s{S_O[2]}, s{S_O[2]}, 8192"), raw(f"s_sub_u32 s{S_O[3]}, s{S_O[3]}, 8192")]
    o += [waitcnt(vm=14), barrier()]
    for i in range(3): o.append(k_read(0, i))
    mf = qk_mfmas(0)
    slots = [[] for _ in mf]
    for i in range(5): slots[3*i].append(k_read(0, i + 3))
    o += emit(mf, slots)
    o += [waitcnt(vm=8, lgkm=0), barrier()]
    for i in range(3): o.append(k_read(1, i))
    if not BAR2:
        for grp in kv_dma(0, 3, kvflags): o += grp[0] + [nop(0), grp[1], grp[2]]
    o += softmax_ops(0, 0)
    return o

def srd_build(A, dst, ptr, offreg, nrec):
    if offreg is None:
        A(f"s_mov_b32 s{dst}, s{ptr}"); A(f"s_and_b32 s{dst+1}, s{ptr+1}, 0xffff")
    else:
        A(f"s_add_u32 s{dst}, s{ptr}, s{offreg}"); A(f"s_addc_u32 s{dst+1}, s{ptr+1}, 0"); A(f"s_and_b32 s{dst+1}, s{dst+1}, 0xffff")
    A(f"s_mov_b32 s{dst+2}, {nrec}"); A(f"s_mov_b32 s{dst+3}, 0x20000")

def head_prologue(name, opts):
    P = []
    A = lambda t, **k: P.append(raw(t, **k))
    t0, t1, t2 = S_T[0], S_T[1], S_T[2]
    A(f"s_lshr_b32 s{S_BR}, s2, 8"); A(f"s_and_b32 s{S_ID}, s2, 255")
    A(f"s_mul_i32 s3, s{S_BR}, 40")
    A(f"s_load_dwordx4 s[{S_PTR}:{S_PTR+3}], s[0:1], s3")
    A(f"s_add_u32 s{t1}, s3, 16"); A(f"s_load_dwordx4 s[{S_PTR+4}:{S_PTR+7}], s[0:1], s{t1}")
    A(f"s_load_dwordx2 s[{S_PTR+8}:{S_PTR+9}], s[0:1], 96")
    A(f"s_load_dwordx2 s[{S_DBG}:{S_DBG+1}], s[0:1], 88")
    A(f"s_add_u32 s{t1}, s3, 32"); A(f"s_load_dwordx2 s[{S_PTR+10}:{S_PTR+11}], s[0:1], s{t1}")
    A(f"s_and_b32 s3, s{S_ID}, 7"); A(f"s_lshr_b32 s{t0}, s{S_ID}, 3")
    A(f"s_lshr_b32 s{S_B}, s3, 2"); A(f"s_lshl_b32 s{S_B}, s{S_B}, 2"); A(f"s_lshr_b32 s{t1}, s{t0}, 3"); A(f"s_add_u32 s{S_B}, s{S_B}, s{t1}")
    A(f"s_and_b32 s{S_H}, s3, 3"); A(f"s_lshl_b32 s{S_H}, s{S_H}, 3"); A(f"s_and_b32 s{t1}, s{t0}, 7"); A(f"s_add_u32 s{S_H}, s{S_H}, s{t1}")
    P.append(valu("v_lshrrev_b32", G, "6", 0)); P.append(valu("v_and_b32", 0, "63", 0))
    A("s_nop 0"); A(f"v_readfirstlane_b32 s{S_W}, v{G}")
    P.append(valu("v_lshrrev_b32", G, "4", 0)); P.append(valu("v_and_b32", M, "15", 0))
    P.append(valu("v_bfe_u32", RR, 0, "2", "2")); P.append(valu("v_and_b32", C, "3", 0))
    P.append(valu("v_lshlrev_b32", V_L16, "4", 0))
    T0, T1 = 16, 17
    A(f"s_lshr_b32 s{t0}, s{S_W}, 1"); A(f"s_and_b32 s{t0}, s{t0}, 1"); A(f"s_lshl_b32 s{t0}, s{t0}, 2")
    P.append(valu("v_or_b32", T0, f"s{t0}", G))
    P.append(valu("v_lshrrev_b32", T1, "1", M)); P.append(valu("v_xor_b32", T0, T0, T1))
    P.append(valu("v_lshlrev_b32", T0, "5", T0))
    P.append(valu("v_and_b32", T1, "1", M)); P.append(valu("v_lshl_add_u32", T0, T1, "4", T0))
    P.append(valu("v_lshl_add_u32", V_OFFA, G, "13", T0))
    A(f"s_and_b32 s{t0}, s{S_W}, 1"); A(f"s_lshl_b32 s{t0}, s{t0}, 2")
    P.append(valu("v_add_u32", T0, f"s{t0}", G))
    P.append(valu("v_and_b32", T1, "7", 0)); P.append(valu("v_xor_b32", T1, T1, T0)); P.append(valu("v_lshlrev_b32", T1, "4", T1))
    P.append(valu("v_lshrrev_b32", T0, "3", 0)); P.append(valu("v_mul_u32_u24", T0, "1280", T0)); P.append(valu("v_add_u32", V_OFFB, T0, T1))
    A(f"s_lshl_b32 s{S_OW}, s{S_W}, 15"); A(f"s_mul_i32 s{S_OX}, s{S_W}, {8*1280}")
    A(f"s_lshl_b32 s{S_LW}, s{S_W}, 10"); A(f"s_add_u32 s{S_LX}, s{S_LW}, {XOFF}")
    if opts.get("rot", False):
        A(f"s_and_b32 s{t0}, s{S_H}, 7"); A(f"s_lshr_b32 s{t1}, s{t0}, 2"); A(f"s_add_u32 s{t0}, s{t0}, s{t1}")
        A(f"s_and_b32 s{t1}, s{S_B}, 3"); A(f"s_mul_i32 s{t1}, s{t1}, 5"); A(f"s_add_u32 s{t1}, s{t1}, 1"); A(f"s_lshr_b32 s{t1}, s{t1}, 1")
        A(f"s_add_u32 s{S_SIG}, s{t0}, s{t1}")
        A(f"s_cmp_ge_u32 s{S_SIG}, 10"); A(f"s_cselect_b32 s{t0}, 10, 0"); A(f"s_sub_u32 s{S_SIG}, s{S_SIG}, s{t0}")
    else:
        A(f"s_mov_b32 s{S_SIG}, 0")
    A("s_waitcnt lgkmcnt(0)")
    if opts.get("pstamp"): P.extend(stamp(4))
    px, pk, pv, pw, pws = S_PTR, S_PTR+2, S_PTR+4, S_PTR+6, S_PTR+8
    srd_build(A, SRDD, S_DBG, None, 256)
    A(f"s_or_b32 s{t0}, s2, s{S_W}"); A(f"s_cmp_eq_u32 s{t0}, 0"); A(f"s_cbranch_scc0 {name}_nononce")
    A(f"s_memrealtime s[{S_T[3]}:{S_T[4]}]"); A("s_waitcnt lgkmcnt(0)"); A(f"s_or_b32 s{t0}, s{S_T[3]}, 1")
    P.append(valu("v_mov_b32", V_DUMMY, f"s{t0}")); P.append(valu("v_mov_b32", V_TCH, "0"))
    A(f"buffer_store_dword v{V_DUMMY}, v{V_TCH}, s[{SRDD}:{SRDD+3}], 0 offen sc1")
    P.append(label(f"{name}_nononce"))
    if opts.get("hold", True): hold_setup(name, opts, A, P)
    A(f"s_lshl_b32 s{t0}, s{S_H}, 8"); srd_build(A, SRDA, pw, t0, 640*8192 - 31*256)
    A(f"s_mul_i32 s{t0}, s{S_B}, 245760"); srd_build(A, SRDB, px, t0, 245760)
    P.extend(q_addr())
    for grp in q_dma(0): P.extend([grp[0], nop(0)] + grp[1:])
    if opts.get("pstamp"): P.extend(stamp(5))
    A(f"s_cmp_eq_u32 s{S_BR}, 0"); A(f"s_cbranch_scc0 {name}_noprio"); A(f"s_setprio {opts.get('prioA', 3)}"); P.append(label(f"{name}_noprio"))
    A(f"s_lshl_b32 s{t1}, s{S_B}, 5"); A(f"s_add_u32 s{t1}, s{t1}, s{S_H}"); A(f"s_lshl_b32 s{t0}, s{t1}, 17")
    srd_build(A, SRDK, pk, t0, 131072); srd_build(A, SRDV, pv, t0, 131072)
    A(f"s_mul_i32 s{t1}, s{S_BR}, {12*1048576}"); A(f"s_lshl_b32 s{t2}, s{S_H}, 15"); A(f"s_add_u32 s{t0}, s{t1}, s{t2}")
    srd_build(A, SRDO, pws, t0, 12*1048576 - 31*32768)
    A(f"s_mul_i32 s{t0}, s{S_ID}, 20480"); srd_build(A, SRDWO, S_PTR+10, t0, 20480)
    A(f"s_mov_b32 s{S_SC}, 0x3e0293ee"); A(f"s_mov_b32 s{S_SC+1}, 0x3e0293ee")
    P.append(valu("v_and_b32", T0, "1", G)); P.append(valu("v_lshl_or_b32", T0, T0, "2", RR))
    P.append(valu("v_lshl_add_u32", T1, G, "3", RR)); P.append(valu("v_lshlrev_b32", T1, "8", T1))
    P.append(valu("v_lshl_add_u32", T1, C, "3", T1))
    for T in range(8):
        P.append(valu("v_xor_b32", A_W[T], str(T), T0)); P.append(valu("v_lshl_add_u32", A_W[T], A_W[T], "5", T1))
    P.append(valu("v_lshrrev_b32", T0, "1", M)); P.append(valu("v_xor_b32", T0, G, T0)); P.append(valu("v_lshlrev_b32", T0, "4", T0))
    P.append(valu("v_lshl_add_u32", T0, M, "7", T0))
    A(f"s_mul_i32 s3, s{S_W}, {48*128}"); A(f"s_add_u32 s3, s3, {XOFF}")
    P.append(valu("v_add_u32", A_X[0], "s3", T0)); P.append(valu("v_xor_b32", A_X[1], "64", A_X[0]))
    P.append(valu("v_and_b32", T0, "7", M))
    P.append(valu("v_lshrrev_b32", T1, "1", T0)); P.append(valu("v_lshlrev_b32", T1, "2", T1))
    P.append(valu("v_and_b32", A_K, "1", T0)); P.append(valu("v_add_u32", T1, T1, A_K))
    P.append(valu("v_lshlrev_b32", T1, "4", T1)); P.append(valu("v_lshl_add_u32", T1, T0, "10", T1))
    P.append(valu("v_lshrrev_b32", T0, "3", M)); P.append(valu("v_lshl_add_u32", T1, T0, "8", T1))
    P.append(valu("v_and_b32", T0, "1", G)); P.append(valu("v_lshlrev_b32", T0, "1", T0))
    P.append(valu("v_lshrrev_b32", A_K, "1", G)); P.append(valu("v_or_b32", T0, T0, A_K))
    P.append(valu("v_lshl_add_u32", A_K, T0, "4", T1))
    P.append(valu("v_and_b32", T0, "1", G)); P.append(valu("v_lshl_add_u32", T0, T0, "2", RR))
    P.append(valu("v_mul_u32_u24", T0, "1056", T0))
    P.append(valu("v_lshrrev_b32", T1, "1", G)); P.append(valu("v_lshl_add_u32", T0, T1, "8", T0))
    P.append(valu("v_lshl_add_u32", T0, C, "3", T0)); P.append(valu("v_add_u32", A_V, str(VOFF), T0))
    for i in range(96): P.append(valu("v_mov_b32", ACC + i, "0"))
    P.extend(q_addr())
    for grp in q_dma(1): P.extend([grp[0], nop(0)] + grp[1:])
    P.append(waitcnt(vm=10)); P.append(barrier())
    if opts.get("hold"): P.extend(hold_wait(name, opts))
    P.extend(q_frag_reads(0, 0, 0))
    return P

def poll(name, srd, off_sreg, mask_or_val, mode, vtmp, sleep=8):
    o = [raw(f"s_mov_b32 s{S_T[5]}, 200000"), label(f"{name}"), raw(f"v_mov_b32 v{vtmp}, 0", kind="valu", wr=[vtmp]),
         raw(f"buffer_load_dword v{vtmp+1}, v{vtmp}, s[{srd}:{srd+3}], s{off_sreg} offen sc1"),
         raw("s_waitcnt vmcnt(0)"),
         raw(f"v_readfirstlane_b32 s{S_T[6]}, v{vtmp+1}"),
         raw(f"s_sub_u32 s{S_T[5]}, s{S_T[5]}, 1"), raw(f"s_cbranch_scc1 {name}_ok"),
         raw("s_nop 2")]
    if mode == 'bit':
        o += [raw(f"s_and_b32 s{S_T[6]}, s{S_T[6]}, s{mask_or_val}"), raw(f"s_cbranch_scc1 {name}_ok")]
    else:
        o += [raw(f"s_cmp_ge_u32 s{S_T[6]}, {mask_or_val}"), raw(f"s_cbranch_scc1 {name}_ok")]
    o += [raw(f"s_sleep {sleep}"), raw(f"s_branch {name}"), label(f"{name}_ok")]
    return o

FBOFF = 81856
S_FB = 70
S_FB = 78
L_LO, L_HI = "0x2b800000", "0x53800000"
def head_epilogue(name, opts):
    o = [valu("v_mov_b32", V_TCH, "0"), raw(f"buffer_load_dword v{V_DUMMY}, v{V_TCH}, s[{SRDD}:{SRDD+3}], 0 offen sc1", kind="vload", rd=[V_TCH], wr=[V_DUMMY]),
         raw(f"s_mov_b32 s{S_FB}, 0"), label(f"{name}_e0")]
    t = VT
    for qt in range(3):
        l = LSUM[qt]
        o += [valu("v_mov_b32", t[qt], l), perm32(t[qt], l), valu("v_add_f32", l, l, t[qt])]
    for qt in range(3):
        l = LSUM[qt]
        o += [valu("v_mov_b32", t[qt], l), perm16(t[qt], l), valu("v_add_f32", l, l, t[qt])]
    m = S_T[5]
    o += [raw(f"s_mov_b64 s[{m}:{m+1}], 0"), valu("v_mov_b32", 11, L_LO), valu("v_mov_b32", 12, L_HI)]
    for qt in range(3):
        o += [I(f"v_cmp_nle_f32 vcc, v11, v{LSUM[qt]}", rd=[11, LSUM[qt]], kind="valu"), raw("s_nop 1"), raw(f"s_or_b64 s[{m}:{m+1}], s[{m}:{m+1}], vcc"),
              I(f"v_cmp_nge_f32 vcc, v12, v{LSUM[qt]}", rd=[12, LSUM[qt]], kind="valu"), raw("s_nop 1"), raw(f"s_or_b64 s[{m}:{m+1}], s[{m}:{m+1}], vcc")]
    o += [raw(f"s_cmp_lg_u64 s[{m}:{m+1}], 0"), raw(f"s_cselect_b32 s{m}, 1, 0"), raw(f"s_andn2_b32 s{m}, s{m}, s{S_FB}"),
          raw(f"s_lshl_b32 s{m+1}, s{S_W}, 2"), raw(f"s_add_u32 s{m+1}, s{m+1}, {FBOFF}"),
          I(f"v_mov_b32 v11, s{m}", wr=[11], kind="valu"), I(f"v_mov_b32 v12, s{m+1}", wr=[12], kind="valu"), dsw32(12, 11)]
    for qt in range(3): o.append(vrcp(t[qt], LSUM[qt]))
    for qt in range(3):
        o.append(raw(f"s_mul_i32 s{S_T[3]}, s{S_B}, 12")); o.append(raw(f"s_mul_i32 s{S_T[4]}, s{S_W}, 3"))
        o.append(raw(f"s_add_u32 s{S_T[3]}, s{S_T[3]}, s{S_T[4]}")); o.append(raw(f"s_add_u32 s{S_T[3]}, s{S_T[3]}, {qt}"))
        o.append(raw(f"s_lshr_b32 s{S_T[4]}, s{S_T[3]}, 3")); o.append(raw(f"s_lshl_b32 s{S_T[4]}, s{S_T[4]}, 20"))
        o.append(raw(f"s_and_b32 s{S_T[3]}, s{S_T[3]}, 7")); o.append(raw(f"s_lshl_b32 s{S_T[3]}, s{S_T[3]}, 10"))
        o.append(raw(f"s_add_u32 s{S_T[qt]}, s{S_T[3]}, s{S_T[4]}"))
    for qt in range(3):
        for c in range(4):
            a = acc(2*c, qt); b = acc(2*c+1, qt)
            for r in range(4):
                o.append(valu("v_mul_f32", a + r, a + r, t[qt])); o.append(valu("v_mul_f32", b + r, b + r, t[qt]))
            o += [cvtpk(a, a, a+1), cvtpk(a+1, a+2, a+3), cvtpk(a+2, b, b+1), cvtpk(a+3, b+2, b+3)]
            o.append(bstore(a, 4, V_L16, SRDO, S_T[qt], flags=opts.get("stflags", "sc1")))
            if c < 3: o.append(raw(f"s_add_u32 s{S_T[qt]}, s{S_T[qt]}, 8192"))
    o += [waitcnt(vm=0, lgkm=0), barrier()]
    o += [valu("v_mov_b32", 12, str(FBOFF)), ds128(160, 12, 0), waitcnt(lgkm=0),
          valu("v_or_b32", 160, 160, 161), valu("v_or_b32", 162, 162, 163), valu("v_or_b32", 160, 160, 162), raw("s_nop 0"),
          raw(f"v_readfirstlane_b32 s{S_T[2]}, v160"), raw("s_nop 3"), raw(f"s_cmp_lg_u32 s{S_T[2]}, 0"), raw(f"s_cbranch_scc1 {name}_fb")]
    t0, t1 = S_T[0], S_T[1]
    o += [raw(f"s_cmp_eq_u32 s{S_W}, 0"), raw(f"s_cbranch_scc0 {name}_nopub"),
          raw(f"v_readfirstlane_b32 s{S_NONCE}, v{V_DUMMY}"), raw("s_nop 3"),
          raw(f"s_cmp_lg_u32 s{S_NONCE}, 0"), raw(f"s_cbranch_scc1 {name}_pn_done"), raw(f"s_mov_b32 s{t0}, 0")]
    o += poll(f"{name}_pn", SRDD, t0, 1, 'ge', V_TCH)
    o += [raw(f"s_mov_b32 s{S_NONCE}, s{S_T[6]}"), label(f"{name}_pn_done"),
          raw(f"s_lshl_b32 s{t0}, s{S_BR}, 3"), raw(f"s_add_u32 s{t0}, s{t0}, s{S_B}"), raw(f"s_mul_i32 s{t0}, s{t0}, 384"),
          raw(f"s_lshl_b32 s{t1}, s{S_H}, 2"), raw(f"s_add_u32 s{t0}, s{t0}, s{t1}"), raw(f"s_add_u32 s{t0}, s{t0}, {FLAGOFF}")]
    A = lambda t: o.append(raw(t))
    srd_build(A, SRDWO, S_PTR+8, t0, 260)
    o += [raw("v_lshlrev_b32 v16, 7, v0", kind="valu", wr=[16]), raw(f"v_mov_b32 v17, s{S_NONCE}", kind="valu", wr=[17]),
          raw("s_mov_b64 exec, 7"),
          raw(f"buffer_store_dword v17, v16, s[{SRDWO}:{SRDWO+3}], 0 offen sc1"),
          label(f"{name}_nopub")]
    return o

def head_fallback(name):
    MX = [246, 247, 248]; NM = [184, 188, 192]; TT = 249
    def reset_off():
        return [raw(f"s_lshl_b32 s{S_O[0]}, s{S_W}, 10"), raw(f"s_add_u32 s{S_O[1]}, s{S_O[0]}, 4096"),
                raw(f"s_mov_b32 s{S_O[2]}, s{S_O[0]}"), raw(f"s_mov_b32 s{S_O[3]}, s{S_O[1]}"), raw(f"s_mov_b32 s{S_CNT}, 16")]
    def load(js):
        o = [barrier()]
        for j in js:
            o += [m0set(S_L[j], 0), nop(0), dma(V_L16, SRDK if j < 2 else SRDV, S_O[j]), salu(f"s_add_u32 s{S_O[j]}, s{S_O[j]}, 8192")]
        return o + [waitcnt(vm=0), barrier()]
    def qk(cinit):
        o = []
        for Tk in range(2):
            for c in range(4): o.append(k_read(0, Tk*4 + c))
            for c in range(4):
                for qt in range(3):
                    s = sreg(0, Tk, qt)
                    o.append(mfma16(s, KF + 4*c, qf(qt, c), cinit[qt] if c == 0 else s))
        return o
    pre = [label(f"{name}_fb")] + [valu("v_mov_b32", r, "0xff800000") for r in MX] + reset_off()
    b1 = [label(f"{name}_fb1")] + load([0, 1]) + qk([None]*3)
    for qt in range(3):
        for Tk in range(2):
            s = sreg(0, Tk, qt)
            b1 += [valu("v_max3_f32", MX[qt], MX[qt], s, s+1), valu("v_max3_f32", MX[qt], MX[qt], s+2, s+3)]
    b1 += [waitcnt(lgkm=0), raw(f"s_sub_u32 s{S_CNT}, s{S_CNT}, 1"), raw(f"s_cmp_lg_u32 s{S_CNT}, 0"), raw(f"s_cbranch_scc1 {name}_fb1")]
    mid = []
    for qt in range(3):
        mid += [valu("v_mov_b32", TT, MX[qt]), perm32(TT, MX[qt]), valu("v_max_f32", MX[qt], MX[qt], TT),
                valu("v_mov_b32", TT, MX[qt]), perm16(TT, MX[qt]), valu("v_max_f32", MX[qt], MX[qt], TT)]
        for i in range(4): mid.append(I(f"v_sub_f32 v{NM[qt]+i}, 0, v{MX[qt]}", rd=[MX[qt]], wr=[NM[qt]+i], kind="valu"))
    for i in range(96): mid.append(valu("v_mov_b32", ACC + i, "0"))
    for r in LSUM: mid.append(valu("v_mov_b32", r, "0"))
    mid += reset_off()
    b2 = [label(f"{name}_fb2")] + load([0, 1, 2, 3]) + qk(NM)
    for part in range(2):
        for qt in range(3):
            s = sreg(0, part, qt); p = preg(0, part, qt)
            b2 += [vexp(s+i, s+i) for i in range(4)] + [valu("v_add_f32", LSUM[qt], LSUM[qt], s+i) for i in range(4)] + [cvtpk(p, s, s+1), cvtpk(p+1, s+2, s+3)]
    for half in range(2):
        for T in range(4*half, 4*half + 4): b2 += v_read(0, T)
        for T in range(4*half, 4*half + 4):
            for qt in range(3): b2.append(mfma16(acc(T, qt), VF + 4*(T % 4), pop(0, qt), acc(T, qt)))
    b2 += [waitcnt(lgkm=0), raw(f"s_sub_u32 s{S_CNT}, s{S_CNT}, 1"), raw(f"s_cmp_lg_u32 s{S_CNT}, 0"), raw(f"s_cbranch_scc1 {name}_fb2")]
    post = [nop(15), raw(f"s_mov_b32 s{S_FB}, 1"), raw(f"s_branch {name}_e0")]
    p1, l1, st = resolve_loop([nop(15)] + pre, b1)
    p2, l2, st = resolve_loop(mid, b2, st)
    po, _ = resolve(post, st)
    return p1 + l1 + p2 + l2 + po

V_HOLD = 253
SRDH = 24
SRDH = 100 - 4
def hold_setup(name, opts, A, P):
    t0 = S_T[0]
    A(f"s_lshl_b32 s{t0}, s{S_ID}, 7"); A(f"s_add_u32 s{t0}, s{t0}, {FLAGOFF + 65536}")
    srd_build(A, SRDH, S_PTR+8, t0, 4)
    P.append(valu("v_mov_b32", V_TCH, "0"))
    A(f"buffer_load_dword v{V_HOLD}, v{V_TCH}, s[{SRDH}:{SRDH+3}], 0 offen sc1")
def hold_wait(name, opts):
    o = []
    A = lambda t: o.append(raw(t))
    A(f"s_cmp_eq_u32 s{S_BR}, 0"); A(f"s_cbranch_scc1 {name}_hw_end")
    A(f"s_cmp_eq_u32 s{S_W}, 0"); A(f"s_cbranch_scc0 {name}_hw_done")
    A("s_waitcnt vmcnt(0)"); A(f"v_readfirstlane_b32 s{S_T[4]}, v{V_HOLD}"); A(f"s_mov_b32 s{S_T[5]}, {opts.get('hold_polls', 24)}")
    o.append(label(f"{name}_hw"))
    A(f"buffer_load_dword v{V_HOLD}, v{V_TCH}, s[{SRDH}:{SRDH+3}], 0 offen sc1"); A("s_waitcnt vmcnt(0)")
    A(f"v_readfirstlane_b32 s{S_T[6]}, v{V_HOLD}")
    A(f"s_sub_u32 s{S_T[5]}, s{S_T[5]}, 1"); A(f"s_cbranch_scc1 {name}_hw_done"); A("s_nop 2")
    A(f"s_cmp_lg_u32 s{S_T[6]}, s{S_T[4]}"); A(f"s_cbranch_scc1 {name}_hw_done")
    A(f"s_sleep {opts.get('hold_sleep', 8)}"); A(f"s_branch {name}_hw")
    o.append(label(f"{name}_hw_done")); o.append(barrier()); o.append(label(f"{name}_hw_end"))
    return o
def hold_release(name):
    return [raw(f"s_or_b32 s{S_T[0]}, s{S_BR}, s{S_W}"), raw(f"s_cmp_eq_u32 s{S_T[0]}, 0"), raw(f"s_cbranch_scc0 {name}_hr"),
            raw(f"v_add_u32 v{V_HOLD}, 1, v{V_HOLD}", kind="valu", rd=[V_HOLD], wr=[V_HOLD]), raw(f"v_mov_b32 v{V_TCH}, 0", kind="valu", wr=[V_TCH]),
            raw("s_mov_b64 exec, 1"),
            raw(f"buffer_store_dword v{V_HOLD}, v{V_TCH}, s[{SRDH}:{SRDH+3}], 0 offen sc1"),
            raw("s_mov_b64 exec, -1"), raw("s_nop 1"), label(f"{name}_hr")]

def build_head(name, opts, ST):
    global POL, KVROT, ATTVM, XO, LMF, QRD, BAR2
    BAR2 = opts.get('bar2', False)
    QRD = opts.get('qrd', 19)
    LMF = opts.get('lmfma', False)
    XO = opts.get('x', {})
    ATTVM = opts.get('att_vm', 8)
    POL = opts.get("polite"); KVROT = opts.get("kvrot", True)
    kvflags = opts.get("kvflags", "nt")
    pro = head_prologue(name, opts) + ST(1) + [raw(f"s_mov_b32 s{S_CNT}, 4")]
    qb = [label(f"{name}_qloop")]
    for p in range(2): qb += q_iter(p, 'Q')
    qb += [raw(f"s_sub_u32 s{S_CNT}, s{S_CNT}, 1"), raw(f"s_cmp_lg_u32 s{S_CNT}, 0"), raw(f"s_cbranch_scc1 {name}_qloop")]
    pro2, qb2, st = resolve_loop(pro, qb)
    last = ST(2)
    if opts.get("hold", True):
        if opts.get("hold_at", "q") == "q": last += hold_release(name)
    last += q_switch() + q_iter(0, 'K0', kvflags) + q_iter(1, 'K1', kvflags)
    last2, st = resolve(last, st)
    wot = []
    if opts.get("touch_wo", True):
        wot = [valu("v_lshlrev_b32", V_TCH, "7", 0), raw(f"s_lshl_b32 s{S_T[0]}, s{S_W}, 13"), bload(V_DUMMY, 1, V_TCH, SRDWO, S_T[0])]
    mid = [waitcnt(lgkm=0)] + ST(3) + wot + [raw(f"s_setprio {opts.get('prioAtt', 3)}")] + q_convert() + att_prologue(kvflags) + [raw(f"s_mov_b32 s{S_CNT}, 4")]
    body = [label(f"{name}_aloop")]
    for u in range(3): body += h0(u) + h1(u, kvflags)
    body += [raw(f"s_cmp_eq_u32 s{S_CNT}, 1"), raw(f"s_cbranch_scc1 {name}_tail")]
    body += h0(3) + h1(3, kvflags)
    body += [raw(f"s_sub_u32 s{S_CNT}, s{S_CNT}, 1"), raw(f"s_branch {name}_aloop")]
    mid2, st1 = resolve(mid, st)
    _, body2, _ = resolve_loop([], body, st1)
    idx = [i for i, x in enumerate(body2) if x.txt.startswith(f"s_cbranch_scc1 {name}_tail")][0]
    _, sA = resolve(body2, st1.copy(), insert=False)
    _, sB = resolve(body2[:idx+1], sA.copy(), insert=False)
    tail = [label(f"{name}_tail")] + h0(3, tail=True) + h1(3, kvflags, tail=True) + ([] if opts.get("pstamp") else ST(4)) + head_epilogue(name, opts)
    tail2, _ = resolve(tail, sB)
    return pro2 + qb2 + last2 + mid2 + body2 + tail2

WSLOT = 4224; NR = 3
OACC = 16
OBF = 144
OAF = 240
O_OFFO, O_OFFW, O_AW, O_FL, O_PV = [1, 2], 3, 4, 5, 6
OG, OM, ORR, OC = 7, 8, 9, 10
OS_OO = 32; OS_OW = [33, 34, 35, 36]; OS_L = 37
OSRDO, OSRDW, OSRDOUT, OSRDF = 12, 16, 20, 24
OS_OFF, OS_WO0, OS_OO0 = 8, 40, 41
OS_AV, OS_ISS, OS_ROT = 38, 39, 9
OS_A2 = 46
OS_WB = 10
def oacc(rt, Tc): return OACC + (rt * 4 + Tc) * 4
_sel = [0]
def o_select(name, opts):
    _sel[0] += 1
    L = f"{name}_s{_sel[0]}"
    t0, t1 = S_T[0], S_T[1]
    return [raw(f"s_cmp_lg_u32 s{OS_AV}, 0"), raw(f"s_cbranch_scc1 {L}_have"),
         raw(f"s_mov_b32 s{t0}, 32"), raw(f"s_cmp_eq_u32 s{OS_ISS}, -1"), raw(f"s_cbranch_scc1 {L}_addr"),
         raw(f"s_mov_b32 s{S_T[5]}, 200000"),
         label(f"{L}_poll"),
         raw(f"buffer_load_dword v{O_PV}, v{O_FL}, s[{OSRDF}:{OSRDF+3}], 0 offen sc1")] + ([
         raw(f"buffer_load_dword v11, v{O_FL}, s[{OSRDF}:{OSRDF+3}], s{OS_WB} offen sc1"), raw("s_waitcnt vmcnt(0)"),
         raw(f"v_cmp_eq_u32 s[{OS_A2}:{OS_A2+1}], s{S_NONCE}, v11"),
         raw(f"v_cmp_eq_u32 vcc, s{S_NONCE}, v{O_PV}"), raw("s_nop 3"), raw(f"s_and_b64 vcc, vcc, s[{OS_A2}:{OS_A2+1}]")] if opts.get("waitB") else [raw("s_waitcnt vmcnt(0)"),
         raw(f"v_cmp_eq_u32 vcc, s{S_NONCE}, v{O_PV}")]) + [
         raw(f"s_sub_u32 s{S_T[5]}, s{S_T[5]}, 1"), raw(f"s_cselect_b32 s{t1}, -1, 0"), raw("s_nop 2"),
         raw(f"s_and_b32 s{t0}, vcc_lo, vcc_hi"),
         raw(f"s_or_b32 s{t1}, s{t1}, s{t0}"), raw(f"s_andn2_b32 s{OS_AV}, s{t1}, s{OS_ISS}"),
         raw(f"s_cbranch_scc1 {L}_have"), raw(f"s_sleep {opts.get('sleep', 8)}"), raw(f"s_branch {L}_poll"),
         label(f"{L}_have"),
         raw(f"s_mov_b32 s{OS_A2}, s{OS_AV}"), raw(f"s_mov_b32 s{OS_A2+1}, s{OS_AV}"),
         raw(f"s_lshr_b64 s[{OS_A2}:{OS_A2+1}], s[{OS_A2}:{OS_A2+1}], s{OS_ROT}"),
         raw(f"s_ff1_i32_b32 s{t0}, s{OS_A2}"), raw(f"s_add_u32 s{t0}, s{t0}, s{OS_ROT}"), raw(f"s_and_b32 s{t0}, s{t0}, 31"),
         raw(f"s_lshl_b32 s{t1}, 1, s{t0}"), raw(f"s_or_b32 s{OS_ISS}, s{OS_ISS}, s{t1}"), raw(f"s_andn2_b32 s{OS_AV}, s{OS_AV}, s{t1}"),
         label(f"{L}_addr"),
         raw(f"s_lshl_b32 s{t1}, s{t0}, 15"), raw(f"s_add_u32 s{OS_OO}, s{OS_OO0}, s{t1}"),
         raw(f"s_mul_i32 s{t1}, s{t0}, {128*1280}"), raw(f"s_add_u32 s{OS_OW[0]}, s{OS_WO0}, s{t1}"),
         raw(f"s_add_u32 s{OS_OW[1]}, s{OS_OW[0]}, 1280"), raw(f"s_add_u32 s{OS_OW[2]}, s{OS_OW[0]}, 2560"), raw(f"s_add_u32 s{OS_OW[3]}, s{OS_OW[0]}, 3840")]
OFL = 'sc1'
def o_loads(u):
    o = []
    for j in range(8): o.append([bload(OBF + 32*u + 4*j, 4, O_OFFO[j//4], OSRDO, OS_OO, off=(j%4)*1024, flags=OFL)])
    for b in range(4): o.append([m0set(OS_L, u * WSLOT + b * 1056), dma(O_OFFW, OSRDW, OS_OW[b])])
    return o
def o_aread(u, Tc):
    off = u * WSLOT + Tc * 32
    return [dstr(OAF + 4*Tc, O_AW, off), dstr(OAF + 4*Tc + 2, O_AW, off + 512)]

def build_oproj(name, opts, ST):
    global OFL
    OFL = opts.get('oflags', 'sc1')
    P = []
    A = lambda t, **k: P.append(raw(t, **k))
    t0, t1, t2 = S_T[0], S_T[1], S_T[2]
    A(f"s_sub_u32 s{S_ID}, s2, 512")
    if opts.get("omap", "xcd") == "xcd":
        A(f"s_and_b32 s3, s{S_ID}, 7"); A(f"s_lshr_b32 s{S_BR}, s3, 2"); A(f"s_lshr_b32 s{OS_OFF}, s{S_ID}, 3")
        A(f"s_mul_i32 s{t1}, s{OS_OFF}, 6554"); A(f"s_lshr_b32 s{t1}, s{t1}, 16")
        A(f"s_and_b32 s{t2}, s3, 3"); A(f"s_mul_i32 s{t2}, s{t2}, 3"); A(f"s_add_u32 s6, s{t2}, s{t1}")
        A(f"s_mul_i32 s{t1}, s{t1}, 10"); A(f"s_sub_u32 s7, s{OS_OFF}, s{t1}")
    else:
        A(f"s_cmp_ge_u32 s{S_ID}, 120"); A(f"s_cselect_b32 s{S_BR}, 1, 0")
        A(f"s_mul_i32 s{t0}, s{S_BR}, 120"); A(f"s_sub_u32 s{S_ID}, s{S_ID}, s{t0}")
        A(f"s_and_b32 s3, s{S_ID}, 7"); A(f"s_lshr_b32 s{OS_OFF}, s{S_ID}, 3")
        A(f"s_mul_i32 s{t1}, s{OS_OFF}, 13108"); A(f"s_lshr_b32 s{t1}, s{t1}, 16")
        A(f"s_lshr_b32 s{t2}, s3, 1"); A(f"s_mul_i32 s{t2}, s{t2}, 3"); A(f"s_add_u32 s6, s{t2}, s{t1}")
        A(f"s_mul_i32 s{t1}, s{t1}, 5"); A(f"s_sub_u32 s7, s{OS_OFF}, s{t1}"); A(f"s_and_b32 s{t2}, s3, 1"); A(f"s_mul_i32 s{t2}, s{t2}, 5"); A(f"s_add_u32 s7, s7, s{t2}")
    A(f"s_mul_i32 s3, s{S_BR}, 40"); A("s_add_u32 s3, s3, 32")
    A(f"s_load_dwordx2 s[{S_PTR}:{S_PTR+1}], s[0:1], s3")
    A(f"s_load_dwordx4 s[{S_PTR+4}:{S_PTR+7}], s[0:1], 80")
    A(f"s_load_dwordx2 s[{S_PTR+8}:{S_PTR+9}], s[0:1], 96")
    P.append(valu("v_lshrrev_b32", OG, "6", 0)); P.append(valu("v_and_b32", 0, "63", 0))
    A("s_nop 0"); A(f"v_readfirstlane_b32 s{S_W}, v{OG}")
    P.append(valu("v_lshrrev_b32", OG, "4", 0)); P.append(valu("v_and_b32", OM, "15", 0))
    P.append(valu("v_bfe_u32", ORR, 0, "2", "2")); P.append(valu("v_and_b32", OC, "3", 0))
    P.append(valu("v_lshlrev_b32", O_OFFO[0], "4", 0)); P.append(valu("v_add_u32", O_OFFO[1], "4096", O_OFFO[0]))
    P.append(valu("v_lshrrev_b32", 16, "3", 0)); P.append(valu("v_mul_u32_u24", 16, "5120", 16))
    P.append(valu("v_and_b32", 17, "7", 0)); P.append(valu("v_lshl_add_u32", O_OFFW, 17, "4", 16))
    A(f"s_mul_i32 s{OS_L}, s{S_W}, {NR*WSLOT}")
    P.append(valu("v_mul_u32_u24", 16, "1056", ORR)); P.append(valu("v_lshl_add_u32", 16, OG, "7", 16)); P.append(valu("v_lshl_add_u32", 16, OC, "3", 16))
    P.append(valu("v_add_u32", O_AW, f"s{OS_L}", 16))
    A(f"s_lshl_b32 s{OS_OO0}, s{S_W}, 13"); A(f"s_mul_i32 s{OS_WO0}, s{S_W}, {32*1280}")
    A("s_waitcnt lgkmcnt(0)")
    A(f"s_mul_i32 s{t0}, s{S_BR}, 12"); A(f"s_add_u32 s{t0}, s{t0}, s6"); A(f"s_lshl_b32 s{t0}, s{t0}, 20")
    srd_build(A, OSRDO, S_PTR+8, t0, 1048576)
    A(f"s_lshl_b32 s{t0}, s7, 7"); srd_build(A, OSRDW, S_PTR, t0, 4096*1280 - 9*128)
    A(f"s_mul_i32 s{t0}, s6, {128*2560}"); A(f"s_mul_i32 s{t1}, s{S_BR}, 1280"); A(f"s_add_u32 s{t0}, s{t0}, s{t1}")
    A(f"s_lshl_b32 s{t1}, s7, 7"); A(f"s_add_u32 s{t0}, s{t0}, s{t1}")
    srd_build(A, OSRDOUT, S_PTR+4, t0, 127*2560 + 128)
    srd_build(A, SRDD, S_PTR+6, None, 256)
    A(f"s_mov_b32 s{t0}, 0")
    P.extend(poll(f"{name}_pn", SRDD, t0, 1, 'ge', O_FL, sleep=8))
    A(f"s_mov_b32 s{S_NONCE}, s{S_T[6]}")
    A(f"s_mul_i32 s{t0}, s6, 43691"); A(f"s_lshr_b32 s{t0}, s{t0}, 16")
    A(f"s_lshl_b32 s{t1}, s6, 7"); A(f"s_add_u32 s{t1}, s{t1}, 127"); A(f"s_mul_i32 s{t1}, s{t1}, 21846"); A(f"s_lshr_b32 s{t1}, s{t1}, 22")
    A(f"s_sub_u32 s{t1}, s{t1}, s{t0}"); A(f"s_mul_i32 s{t1}, s{t1}, 384")
    A(f"s_lshl_b32 s{t2}, s{S_BR}, 3"); A(f"s_add_u32 s{t0}, s{t0}, s{t2}"); A(f"s_mul_i32 s{t0}, s{t0}, 384")
    A(f"s_mul_i32 s{t2}, s7, 21846"); A(f"s_lshr_b32 s{t2}, s{t2}, 16"); A(f"s_mul_i32 s{t2}, s{t2}, 3"); A(f"s_sub_u32 s{t2}, s7, s{t2}")
    A(f"s_lshl_b32 s{t2}, s{t2}, 7"); A(f"s_add_u32 s{t0}, s{t0}, s{t2}"); A(f"s_add_u32 s{t0}, s{t0}, {FLAGOFF}")
    srd_build(A, OSRDF, S_PTR+8, t0, 512 + (8*384 if opts.get("waitB") else 0))
    A(f"s_cmp_eq_u32 s{S_BR}, 0"); A(f"s_cselect_b32 s{OS_WB}, {8*384}, 0")
    P.append(valu("v_and_b32", O_FL, "31", 0)); P.append(valu("v_lshlrev_b32", O_FL, "2", O_FL))
    P.append(valu("v_lshrrev_b32", 16, "5", 0)); P.append(valu("v_mul_lo_u32", 16, f"s{t1}", 16)); P.append(valu("v_add_u32", O_FL, O_FL, 16))
    A(f"s_mov_b32 s{OS_AV}, 0"); A(f"s_mov_b32 s{OS_ISS}, 0")
    if opts.get("trot"):
        A(f"s_memrealtime s[{OS_A2}:{OS_A2+1}]"); A("s_waitcnt lgkmcnt(0)")
        A(f"s_sub_u32 s{t0}, s{OS_A2}, s{S_NONCE}"); A(f"s_mul_i32 s{t0}, s{t0}, {65536 // opts['trot']}"); A(f"s_lshr_b32 s{t0}, s{t0}, 16")
        A(f"s_and_b32 s{t1}, s{OS_OFF}, {opts.get('rotmask', 3)}"); A(f"s_add_u32 s{t0}, s{t0}, s{t1}"); A(f"s_and_b32 s{OS_ROT}, s{t0}, 31")
    else:
        A(f"s_and_b32 s{OS_ROT}, s{OS_OFF}, {opts.get('rotmask', 7)}")
    for i in range(128): P.append(valu("v_mov_b32", OACC + i, "0"))
    P.extend(ST(1))
    for u in range(2):
        P.extend(o_select(name, opts))
        for grp in o_loads(u): P.extend(grp if len(grp) == 1 else [grp[0], nop(0)] + grp[1:])
    P.append(waitcnt(vm=12))
    for Tc in range(4): P.extend(o_aread(0, Tc))
    A(f"s_mov_b32 s{S_CNT}, 11")
    body = [label(f"{name}_loop")]
    for u in range(3):
        mf = [mfma16(oacc(rt, Tc), OAF + 4*Tc, OBF + 32*u + 4*rt, oacc(rt, Tc)) for Tc in range(4) for rt in range(8)]
        slots = [[] for _ in mf]
        slots[0] += o_select(name, opts)
        for j, grp in enumerate(o_loads((u + 2) % 3)):
            k = 1 + (j * 22) // 12
            if len(grp) == 1: slots[k] += grp
            else: slots[k].append(grp[0]); slots[k+1] += grp[1:]
        slots[24].append(waitcnt(vm=12))
        n = (u + 1) % 3
        slots[24] += o_aread(n, 0); slots[25] += o_aread(n, 1); slots[26] += o_aread(n, 2); slots[31] += o_aread(n, 3)
        body += emit(mf, slots)
    if opts.get("ostamp"):
        for cnt, idx in ((9, 2), (5, 3)):
            body += [raw(f"s_cmp_eq_u32 s{S_CNT}, {cnt}"), raw(f"s_cbranch_scc0 {name}_os{idx}")] + ST(idx) + [label(f"{name}_os{idx}")]
    body += [raw(f"s_sub_u32 s{S_CNT}, s{S_CNT}, 1"), raw(f"s_cmp_lg_u32 s{S_CNT}, 0"), raw(f"s_cbranch_scc1 {name}_loop")]
    P2, body2, st = resolve_loop(P, body)
    E = []
    A = lambda t, **k: E.append(raw(t, **k))
    E.extend(ST(4 if opts.get("ostamp") else 2))
    E.append(valu("v_lshlrev_b32", 11, "4", 0))
    A(f"s_lshl_b32 s{t0}, s{S_W}, 14"); E.append(valu("v_add_u32", 12, f"s{t0}", 11))
    A(f"s_lshl_b32 s{t0}, s{S_W}, 12"); E.append(valu("v_add_u32", 13, f"s{t0}", 11))
    E.append(valu("v_and_b32", 14, "1", OG)); E.append(valu("v_lshlrev_b32", 14, "1", 14)); E.append(valu("v_lshrrev_b32", 15, "1", OG))
    E.append(valu("v_or_b32", 14, 14, 15)); E.append(valu("v_lshlrev_b32", 14, "4", 14))
    E.append(valu("v_mul_u32_u24", 15, "2560", OM)); E.append(valu("v_add_u32", 14, 14, 15))
    A(f"s_mul_i32 s{t0}, s{S_W}, {16*2560}"); A(f"s_add_u32 s{t1}, s{t0}, {64*2560}")
    E.append(waitcnt(vm=0, lgkm=0)); E.append(barrier())
    for r in range(2):
        for tl in range(16): E.append(dsw128(12, OACC + (16*r + tl)*4, tl*1024))
        E.append(waitcnt(lgkm=0)); E.append(barrier())
        for t in range(4):
            for p in range(4): E.append(ds128(144 + (p*4 + t)*4, 13, p*16384 + t*1024))
        for pr in range(2):
            for h in range(2):
                t = 2*pr + h
                for i in range(4):
                    a = 144 + t*4 + i
                    E.append(valu("v_add_f32", a, a, a + 16)); E.append(valu("v_add_f32", a + 32, a + 32, a + 48))
                for i in range(4):
                    a = 144 + t*4 + i
                    E.append(valu("v_add_f32", a, a, a + 32))
            a = 144 + 2*pr*4; b = a + 4; q = 240 + (r*2 + pr)*4
            E += [cvtpk(q, a, a+1), cvtpk(q+1, a+2, a+3), cvtpk(q+2, b, b+1), cvtpk(q+3, b+2, b+3), perm16(q, q+2), perm16(q+1, q+3)]
            E.append(bstore(q, 4, 14, OSRDOUT, t0 if r == 0 else t1, off=pr*64))
        if r == 0: E.append(waitcnt(lgkm=0)); E.append(barrier())
    E2, _ = resolve(E, st)
    return P2 + body2 + E2

def build(name, stamps=False, **opts):
    ST = (lambda i, real=False: stamp(i, real)) if stamps else (lambda i, real=False: [])
    out = [label(name)] + ST(0) + ST(6, True)
    out += [raw("s_cmp_ge_u32 s2, 752"), raw(f"s_cbranch_scc1 {name}_end"), raw("s_cmp_ge_u32 s2, 512"), raw(f"s_cbranch_scc1 {name}_oproj")]
    if opts.get("skip_heads") == "holdB":
        out += [raw("s_cmp_lt_u32 s2, 256"), raw(f"s_cbranch_scc1 {name}_end"), raw("s_mov_b32 s4, 40"), label(f"{name}_hb"), raw("s_sleep 32"),
                raw("s_sub_u32 s4, s4, 1"), raw("s_cmp_lg_u32 s4, 0"), raw(f"s_cbranch_scc1 {name}_hb"), raw("s_endpgm")]
    elif opts.get("skip_heads"): out += [raw("s_endpgm")]
    fin_h = []; fin_o = []
    if stamps:
        fin_h = [waitcnt(vm=0), raw("s_mov_b64 exec, -1")] + ([] if opts.get("pstamp") else ST(5)) + ST(7, True) + stamp_dump(8, S_PTR+8, S_W, 64<<20, 16, nwaves_shift=2)
        fin_o = [waitcnt(vm=0)] + ([] if opts.get("ostamp") else ST(3) + ST(4)) + ST(5) + ST(7, True) + stamp_dump(8, S_PTR+8, S_W, 64<<20, 16, nwaves_shift=2)
    out += build_head(name + "_h", opts, ST) + fin_h + [raw("s_endpgm")] + head_fallback(name + "_h")
    out += [label(f"{name}_oproj")] + build_oproj(name + "_o", opts, ST) + fin_o
    out += [label(f"{name}_end"), raw("s_endpgm")]
    return out
```

```python
from asmlib import *

QSLOT = 40960; XOFF = 16384
ASLOT = 16896; VOFF = 8448
ACC = 16; QF = 112
SX, SY, SZ = 160, 172, 184
PB = 196; KF = 214; VF = 230
QA = [160, 204]; QB = [192, 236]
V_OFFA, V_OFFB, V_L16 = 1, 2, 3
A_W = [4, 5, 6, 7, 8, 9, 10, 11]; A_X = [12, 15]; A_K = 13; A_V = 14
LSUM = [4, 5, 6]; VT = [7, 8, 9, 10]
ONES = 250
LACC = [4, 8, 246]
LMF = False
G, M, RR, C = 248, 249, 250, 251
V_DUMMY = 255; V_TCH = 254
S_W, S_BR, S_B, S_H = 4, 5, 6, 7
SRDA, SRDB, SRDK, SRDV, SRDO, SRDD = 12, 16, 20, 24, 28, 64
S_O = [32, 33, 34, 35]; S_L = [38, 39, 40, 41]; S_CNT = 42
S_OW, S_OX, S_LW, S_LX, S_SIG, S_TT = 8, 9, 36, 37, 10, 11
S_KC, S_VC, S_KB, S_KROT = 8, 9, 36, 37
S_T = [43, 44, 45, 46, 47, 48, 49]
S_SC = 50
S_PTR = 52
SRDWO = 68
S_ID = 72
S_DBG = 74
FLAGOFF = 32 << 20
S_NONCE = 73

def acc(T, qt): return ACC + (T * 3 + qt) * 4
def qf(qt, c): return QF + (qt * 4 + c) * 4

def emit(mf, slots):
    out = []
    for m, fs in zip(mf, slots):
        out.append(m)
        for f in fs:
            if isinstance(f, list): out.extend(f)
            else: out.append(f)
    return out
def spread(slots, items, lo, hi):
    n = len(items); m = hi - lo
    for i, it in enumerate(items): slots[lo + (i * m) // n].append(it)

def q_addr():
    t0 = S_T[0]
    return [salu(f"s_lshl_b32 s{t0}, s{S_SIG}, 19"), salu(f"s_add_u32 s{S_O[0]}, s{S_OW}, s{t0}"),
            salu(f"s_lshl_b32 s{t0}, s{S_SIG}, 7"), salu(f"s_add_u32 s{S_O[1]}, s{S_OX}, s{t0}"),
            salu(f"s_add_u32 s{S_SIG}, s{S_SIG}, 1"), salu(f"s_cmp_eq_u32 s{S_SIG}, 10"), salu(f"s_cselect_b32 s{S_SIG}, 0, s{S_SIG}")]
def q_dma(slot):
    out = []
    for i in range(4):
        g = [m0set(S_LW, slot * QSLOT + i * 4096)]
        if i == 0: g += [dma(V_OFFA, SRDA, S_O[0])]
        else: g += [salu(f"s_add_u32 s{S_TT}, s{S_O[0]}, {i*16*8192}"), dma(V_OFFA, SRDA, S_TT)]
        out.append(g)
    for i in range(6):
        g = [m0set(S_LX, slot * QSLOT + i * 4096)]
        if i == 0: g += [dma(V_OFFB, SRDB, S_O[1])]
        else: g += [salu(f"s_add_u32 s{S_TT}, s{S_O[1]}, {i*32*1280}"), dma(V_OFFB, SRDB, S_TT)]
        out.append(g)
    return out
KVROT = True
def kv_addr(which):
    c = S_KC if which == 0 else S_VC
    a, b = (S_O[0], S_O[1]) if which == 0 else (S_O[2], S_O[3])
    t = S_TT
    return [salu(f"s_add_u32 s{t}, s{c}, s{S_KROT}"), salu(f"s_and_b32 s{t}, s{t}, 15"), salu(f"s_cmp_lt_u32 s{c}, 16"),
            salu(f"s_cselect_b32 s{t}, s{t}, 16"), salu(f"s_lshl_b32 s{t}, s{t}, 13"), salu(f"s_add_u32 s{a}, s{t}, s{S_KB}"),
            salu(f"s_add_u32 s{b}, s{a}, 4096"), salu(f"s_add_u32 s{c}, s{c}, 1")]
def kv_dma(kslot, vslot, flags):
    out = []
    for j in range(4):
        sl = kslot if j < 2 else vslot
        if KVROT:
            pre = kv_addr(j // 2) if j % 2 == 0 else []
            post = nop(0)
        else:
            pre = []
            post = salu(f"s_add_u32 s{S_O[j]}, s{S_O[j]}, 8192")
        out.append([pre + [m0set(S_L[j], sl * ASLOT)], dma(V_L16, SRDK if j < 2 else SRDV, S_O[j], flags), post])
    return out

def q_frag_reads(slot, e, st):
    out = []
    for qt in range(3): out.append(ds128(QB[st] + 4*qt, A_X[e], slot * QSLOT + qt * 2048))
    for T in range(8):
        o = slot * QSLOT + e * 8192
        out.append(dstr(QA[st] + 4*T, A_W[T], o)); out.append(dstr(QA[st] + 4*T + 2, A_W[T], o + 1024))
    return out

_pl = [0]
def polite(n):
    _pl[0] += 1
    lab = f"Lpol{_pl[0]}"
    return [raw(f"s_cmp_eq_u32 s{S_BR}, 0"), raw(f"s_cbranch_scc1 {lab}"), waitcnt(vm=n), label(lab)]
POL = None
QRD = 19
def q_half(st, reads, extra):
    mf = [mfma16(acc(T, qt), QA[st] + 4*T, QB[st] + 4*qt, acc(T, qt)) for T in range(8) for qt in range(3)]
    slots = [[] for _ in mf]
    for i, rd in enumerate(reads): slots[(i * QRD) // 19 if i < 19 else 23].append(rd)
    n = len(extra)
    for j, grp in enumerate(extra):
        k = (j * 22) // max(n, 1)
        slots[k].append(grp[0]); slots[k+1] += [x for x in grp[1:] if getattr(x, "kind", "") != "nop"]
    return emit(mf, slots)

def q_iter(p, kind, kvflags=""):
    out = q_half(0, q_frag_reads(p, 1, 1), [])
    out += [waitcnt(vm=0, lgkm=0) if kind != 'K1' else waitcnt(lgkm=0), barrier()]
    if kind == 'Q':
        extra = [q_addr()] + q_dma(p)
        if POL:
            for pos, n in POL: extra[pos] = extra[pos] + polite(n)
    elif kind == 'K0': extra = kv_dma(0, 0, kvflags) + kv_dma(1, 1, kvflags)
    else: extra = kv_dma(2, 2, kvflags) + kv_dma(3, 3, kvflags)
    reads = q_frag_reads(1 - p, 0, 0) if kind != 'K1' else []
    out += q_half(1, reads, extra)
    return out

def q_switch():
    o = []
    A = lambda t: o.append(raw(t))
    t0, t1 = S_T[0], S_T[1]
    A(f"s_lshr_b32 s{t0}, s{S_W}, 1"); A(f"s_lshl_b32 s{t0}, s{t0}, 2"); A(f"s_and_b32 s{t1}, s{S_W}, 1"); A(f"s_add_u32 s{t0}, s{t0}, s{t1}")
    A(f"s_lshl_b32 s{t0}, s{t0}, 4"); A(f"s_lshl_b32 s{t1}, s{S_W}, 10"); A(f"s_add_u32 s{S_L[0]}, s{t0}, s{t1}")
    A(f"s_add_u32 s{S_L[1]}, s{S_L[0]}, {4096+128}")
    A(f"s_mul_i32 s{t0}, s{S_W}, 1056"); A(f"s_add_u32 s{S_L[2]}, s{t0}, {VOFF}"); A(f"s_add_u32 s{S_L[3]}, s{S_L[2]}, {4*1056}")
    A(f"s_lshl_b32 s{S_KB}, s{S_W}, 10"); A(f"s_mov_b32 s{S_KC}, 0"); A(f"s_mov_b32 s{S_VC}, 0")
    if KVROT:
        A(f"s_lshr_b32 s{S_KROT}, s{S_ID}, 3"); A(f"s_add_u32 s{S_KROT}, s{S_KROT}, s{S_ID}"); A(f"s_and_b32 s{S_KROT}, s{S_KROT}, 15")
    else:
        A(f"s_mov_b32 s{S_O[0]}, s{S_KB}"); A(f"s_add_u32 s{S_O[1]}, s{S_KB}, 4096"); A(f"s_mov_b32 s{S_O[2]}, s{S_O[0]}"); A(f"s_mov_b32 s{S_O[3]}, s{S_O[1]}")
    return o

def q_convert():
    o = []
    for qt in range(3):
        for T in range(8):
            a = acc(T, qt)
            o.append(pkmul(a, a, f"s[{S_SC}:{S_SC+1}]")); o.append(pkmul(a+2, a+2, f"s[{S_SC}:{S_SC+1}]"))
    for qt in range(3):
        for c in range(4):
            q = qf(qt, c); a = acc(2*c, qt); b = acc(2*c+1, qt)
            o += [cvtpk(q, a, a+1), cvtpk(q+1, a+2, a+3), cvtpk(q+2, b, b+1), cvtpk(q+3, b+2, b+3)]
    for qt in range(3):
        for c in range(4):
            q = qf(qt, c)
            o += [perm16(q, q+2), perm16(q+1, q+3)]
    for i in range(96): o.append(valu("v_mov_b32", ACC + i, "0"))
    if LMF:
        for qt in range(3):
            for i in range(4): o.append(valu("v_mov_b32", LACC[qt] + i, "0"))
        for i in range(4): o.append(valu("v_mov_b32", ONES + i, "0x3f803f80"))
    else:
        for r in LSUM: o.append(valu("v_mov_b32", r, "0"))
    return o

def sreg(j, Tk, qt):
    if Tk == 0: return SX + 4*qt
    return (SY if j % 2 == 0 else SZ) + 4*qt
def preg(j, part, qt):
    base = PB + 6*qt
    if part == 1: return base + 2
    return base + (0 if j % 2 == 0 else 4)
def pop(j, qt): return PB + 6*qt + (0 if j % 2 == 0 else 2)
def k_read(j, i): return ds128(KF + 4*(i % 4), A_K, (j % 4) * ASLOT + (i % 4) * 64 + (i // 4) * 512)
def v_read(j, T):
    o = (j % 4) * ASLOT + T * 32
    d = VF + 4*(T % 4)
    if j % 2 == 0: return [dstr(d, A_V, o), dstr(d+2, A_V, o + 512)]
    return [dstr(d+2, A_V, o), dstr(d, A_V, o + 512)]
def softmax_ops(j, part):
    if XO.get("nosm"): return [nop(0)]
    ops = []
    for qt in range(3):
        s = sreg(j, part, qt); p = preg(j, part, qt)
        ops.append([vexp(s, s), vexp(s+1, s+1), vexp(s+2, s+2), vexp(s+3, s+3),
                    valu("v_add_f32", LSUM[qt], LSUM[qt], s), cvtpk(p, s, s+1), valu("v_add_f32", LSUM[qt], LSUM[qt], s+1),
                    valu("v_add_f32", LSUM[qt], LSUM[qt], s+2), cvtpk(p+1, s+2, s+3), valu("v_add_f32", LSUM[qt], LSUM[qt], s+3)])
    seq = list(ops[0][:4])
    for qt in range(1, 3):
        e = ops[qt][:4]; f = ops[qt-1][4:]
        seq += [e[0], f[0], f[1], e[1], f[2], e[2], f[3], f[4], e[3], f[5]]
    seq += ops[2][4:]
    if LMF: seq = [x for x in seq if not x.txt.startswith("v_add_f32")]
    if XO.get("noadd"): seq = [x for x in seq if not x.txt.startswith("v_add_f32")]
    if XO.get("noexp"): seq = [x for x in seq if not x.txt.startswith("v_exp")]
    return seq
def qk_mfmas(j):
    mf = []
    for Tk in range(2):
        for c in range(4):
            i = Tk*4 + c
            for qt in range(3):
                s = sreg(j, Tk, qt)
                mf.append(mfma16(s, KF + 4*(i % 4), qf(qt, c), None if c == 0 else s))
    return mf
def pv_mfmas(j):
    return [mfma16(acc(T, qt), VF + 4*(T % 4), pop(j, qt), acc(T, qt)) for T in range(8) for qt in range(3)]
def l_mfmas(j):
    return [mfma16(LACC[qt], ONES, pop(j, qt), LACC[qt]) for qt in range(3)]

def h0(s, tail=False):
    sm = softmax_ops(s, 1)
    vr_ = [v_read(s, T) for T in range(4)]
    if tail:
        out = []
        for v in vr_: out += v
        return out + sm
    mf = qk_mfmas(s + 1)
    slots = [[] for _ in mf]
    for i in range(5): slots[3*i].append(k_read(s + 1, i + 3))
    for T in range(4): slots[14 + 2*T].append(vr_[T][0]); slots[15 + 2*T].append(vr_[T][1])
    spread(slots, sm, 0, 23)
    return emit(mf, slots)
ATTVM = 8
XO = {}
BAR2 = False
def h1(s, kvflags, tail=False):
    mf = pv_mfmas(s)
    slots = [[] for _ in mf]
    for T in range(4, 8):
        v = v_read(s, T); slots[3*(T-4) + 2].append(v[0]); slots[3*(T-4) + 3].append(v[1])
    if not tail:
        spread(slots, softmax_ops(s + 1, 0), 0, 23)
        if BAR2:
            if s % 2 == 0:
                slots[16].append([waitcnt(vm=0, lgkm=0), barrier()])
                grps = kv_dma(s % 4, (s + 3) % 4, kvflags) + kv_dma((s + 1) % 4, s % 4, kvflags)
                for j, grp in enumerate(grps):
                    k = 16 + j
                    slots[k].append(grp[0]); slots[k].append(grp[2] if grp[2].kind == "nop" else nop(0)); slots[k].append(grp[1])
                    if grp[2].kind != "nop": slots[k].append(grp[2])
            for i in range(3): slots[17 + i].append(k_read(s + 2, i))
        else:
          if XO.get("nobar"): slots[16].append([waitcnt(lgkm=0)])
          else: slots[16].append([waitcnt(vm=ATTVM, lgkm=0), barrier()])
          for i in range(3): slots[17 + i].append(k_read(s + 2, i))
          if not XO.get("nodma"):
            for j, grp in enumerate(kv_dma((s + 1) % 4, s % 4, kvflags)):
              slots[17 + j].append(grp[0]); slots[18 + j].append(grp[1])
              if grp[2].kind != "nop": slots[19 + j].append(grp[2])
    if LMF:
        lm = l_mfmas(s); slots[2].append(lm[0]); slots[8].append(lm[1]); slots[13].append(lm[2])
    return emit(mf, slots)
def att_prologue(kvflags):
    o = [raw(f"s_sub_u32 s{S_VC}, s{S_VC}, 1")] if KVROT else [raw(f"s_sub_u32 s{S_O[2]}, s{S_O[2]}, 8192"), raw(f"s_sub_u32 s{S_O[3]}, s{S_O[3]}, 8192")]
    o += [waitcnt(vm=14), barrier()]
    for i in range(3): o.append(k_read(0, i))
    mf = qk_mfmas(0)
    slots = [[] for _ in mf]
    for i in range(5): slots[3*i].append(k_read(0, i + 3))
    o += emit(mf, slots)
    o += [waitcnt(vm=8, lgkm=0), barrier()]
    for i in range(3): o.append(k_read(1, i))
    if not BAR2:
        for grp in kv_dma(0, 3, kvflags): o += grp[0] + [nop(0), grp[1], grp[2]]
    o += softmax_ops(0, 0)
    return o

def srd_build(A, dst, ptr, offreg, nrec):
    if offreg is None:
        A(f"s_mov_b32 s{dst}, s{ptr}"); A(f"s_and_b32 s{dst+1}, s{ptr+1}, 0xffff")
    else:
        A(f"s_add_u32 s{dst}, s{ptr}, s{offreg}"); A(f"s_addc_u32 s{dst+1}, s{ptr+1}, 0"); A(f"s_and_b32 s{dst+1}, s{dst+1}, 0xffff")
    A(f"s_mov_b32 s{dst+2}, {nrec}"); A(f"s_mov_b32 s{dst+3}, 0x20000")

def head_prologue(name, opts):
    P = []
    A = lambda t, **k: P.append(raw(t, **k))
    t0, t1, t2 = S_T[0], S_T[1], S_T[2]
    A(f"s_lshr_b32 s{S_BR}, s2, 8"); A(f"s_and_b32 s{S_ID}, s2, 255")
    A(f"s_mul_i32 s3, s{S_BR}, 40")
    A(f"s_load_dwordx4 s[{S_PTR}:{S_PTR+3}], s[0:1], s3")
    A(f"s_add_u32 s{t1}, s3, 16"); A(f"s_load_dwordx4 s[{S_PTR+4}:{S_PTR+7}], s[0:1], s{t1}")
    A(f"s_load_dwordx2 s[{S_PTR+8}:{S_PTR+9}], s[0:1], 96")
    A(f"s_load_dwordx2 s[{S_DBG}:{S_DBG+1}], s[0:1], 88")
    A(f"s_add_u32 s{t1}, s3, 32"); A(f"s_load_dwordx2 s[{S_PTR+10}:{S_PTR+11}], s[0:1], s{t1}")
    A(f"s_load_dwordx2 s[76:77], s[0:1], 32")
    A(f"s_and_b32 s3, s{S_ID}, 7"); A(f"s_lshr_b32 s{t0}, s{S_ID}, 3")
    A(f"s_lshr_b32 s{S_B}, s3, 2"); A(f"s_lshl_b32 s{S_B}, s{S_B}, 2"); A(f"s_lshr_b32 s{t1}, s{t0}, 3"); A(f"s_add_u32 s{S_B}, s{S_B}, s{t1}")
    A(f"s_and_b32 s{S_H}, s3, 3"); A(f"s_lshl_b32 s{S_H}, s{S_H}, 3"); A(f"s_and_b32 s{t1}, s{t0}, 7"); A(f"s_add_u32 s{S_H}, s{S_H}, s{t1}")
    P.append(valu("v_lshrrev_b32", G, "6", 0)); P.append(valu("v_and_b32", 0, "63", 0))
    A("s_nop 0"); A(f"v_readfirstlane_b32 s{S_W}, v{G}")
    P.append(valu("v_lshrrev_b32", G, "4", 0)); P.append(valu("v_and_b32", M, "15", 0))
    P.append(valu("v_bfe_u32", RR, 0, "2", "2")); P.append(valu("v_and_b32", C, "3", 0))
    P.append(valu("v_lshlrev_b32", V_L16, "4", 0))
    T0, T1 = 16, 17
    A(f"s_lshr_b32 s{t0}, s{S_W}, 1"); A(f"s_and_b32 s{t0}, s{t0}, 1"); A(f"s_lshl_b32 s{t0}, s{t0}, 2")
    P.append(valu("v_or_b32", T0, f"s{t0}", G))
    P.append(valu("v_lshrrev_b32", T1, "1", M)); P.append(valu("v_xor_b32", T0, T0, T1))
    P.append(valu("v_lshlrev_b32", T0, "5", T0))
    P.append(valu("v_and_b32", T1, "1", M)); P.append(valu("v_lshl_add_u32", T0, T1, "4", T0))
    P.append(valu("v_lshl_add_u32", V_OFFA, G, "13", T0))
    A(f"s_and_b32 s{t0}, s{S_W}, 1"); A(f"s_lshl_b32 s{t0}, s{t0}, 2")
    P.append(valu("v_add_u32", T0, f"s{t0}", G))
    P.append(valu("v_and_b32", T1, "7", 0)); P.append(valu("v_xor_b32", T1, T1, T0)); P.append(valu("v_lshlrev_b32", T1, "4", T1))
    P.append(valu("v_lshrrev_b32", T0, "3", 0)); P.append(valu("v_mul_u32_u24", T0, "1280", T0)); P.append(valu("v_add_u32", V_OFFB, T0, T1))
    A(f"s_lshl_b32 s{S_OW}, s{S_W}, 15"); A(f"s_mul_i32 s{S_OX}, s{S_W}, {8*1280}")
    A(f"s_lshl_b32 s{S_LW}, s{S_W}, 10"); A(f"s_add_u32 s{S_LX}, s{S_LW}, {XOFF}")
    if opts.get("rot", False):
        A(f"s_and_b32 s{t0}, s{S_H}, 7"); A(f"s_lshr_b32 s{t1}, s{t0}, 2"); A(f"s_add_u32 s{t0}, s{t0}, s{t1}")
        A(f"s_and_b32 s{t1}, s{S_B}, 3"); A(f"s_mul_i32 s{t1}, s{t1}, 5"); A(f"s_add_u32 s{t1}, s{t1}, 1"); A(f"s_lshr_b32 s{t1}, s{t1}, 1")
        A(f"s_add_u32 s{S_SIG}, s{t0}, s{t1}")
        A(f"s_cmp_ge_u32 s{S_SIG}, 10"); A(f"s_cselect_b32 s{t0}, 10, 0"); A(f"s_sub_u32 s{S_SIG}, s{S_SIG}, s{t0}")
    else:
        A(f"s_mov_b32 s{S_SIG}, 0")
    A("s_waitcnt lgkmcnt(0)")
    if opts.get("pstamp"): P.extend(stamp(4))
    px, pk, pv, pw, pws = S_PTR, S_PTR+2, S_PTR+4, S_PTR+6, S_PTR+8
    srd_build(A, SRDD, S_DBG, None, 256)
    A(f"s_or_b32 s{t0}, s2, s{S_W}"); A(f"s_cmp_eq_u32 s{t0}, 0"); A(f"s_cbranch_scc0 {name}_nononce")
    A(f"s_memrealtime s[{S_T[3]}:{S_T[4]}]"); A("s_waitcnt lgkmcnt(0)"); A(f"s_or_b32 s{t0}, s{S_T[3]}, 1")
    P.append(valu("v_mov_b32", V_DUMMY, f"s{t0}")); P.append(valu("v_mov_b32", V_TCH, "0"))
    A(f"buffer_store_dword v{V_DUMMY}, v{V_TCH}, s[{SRDD}:{SRDD+3}], 0 offen sc1")
    P.append(label(f"{name}_nononce"))
    if opts.get("hold", True): hold_setup(name, opts, A, P)
    A(f"s_lshl_b32 s{t0}, s{S_H}, 8"); srd_build(A, SRDA, pw, t0, 640*8192 - 31*256)
    A(f"s_mul_i32 s{t0}, s{S_B}, 245760"); srd_build(A, SRDB, px, t0, 245760)
    P.extend(q_addr())
    for grp in q_dma(0): P.extend([grp[0], nop(0)] + grp[1:])
    if opts.get("pstamp"): P.extend(stamp(5))
    A(f"s_cmp_eq_u32 s{S_BR}, 0"); A(f"s_cbranch_scc0 {name}_noprio"); A(f"s_setprio {opts.get('prioA', 3)}"); P.append(label(f"{name}_noprio"))
    A(f"s_lshl_b32 s{t1}, s{S_B}, 5"); A(f"s_add_u32 s{t1}, s{t1}, s{S_H}"); A(f"s_lshl_b32 s{t0}, s{t1}, 17")
    srd_build(A, SRDK, pk, t0, 131072); srd_build(A, SRDV, pv, t0, 131072)
    A(f"s_mul_i32 s{t1}, s{S_BR}, {12*1048576}"); A(f"s_lshl_b32 s{t2}, s{S_H}, 15"); A(f"s_add_u32 s{t0}, s{t1}, s{t2}")
    srd_build(A, SRDO, pws, t0, 12*1048576 - 31*32768)
    A(f"s_mul_i32 s{t0}, s{S_ID}, 20480"); srd_build(A, SRDWO, S_PTR+10, t0, 20480)
    A(f"s_mov_b32 s{S_SC}, 0x3e0293ee"); A(f"s_mov_b32 s{S_SC+1}, 0x3e0293ee")
    P.append(valu("v_and_b32", T0, "1", G)); P.append(valu("v_lshl_or_b32", T0, T0, "2", RR))
    P.append(valu("v_lshl_add_u32", T1, G, "3", RR)); P.append(valu("v_lshlrev_b32", T1, "8", T1))
    P.append(valu("v_lshl_add_u32", T1, C, "3", T1))
    for T in range(8):
        P.append(valu("v_xor_b32", A_W[T], str(T), T0)); P.append(valu("v_lshl_add_u32", A_W[T], A_W[T], "5", T1))
    P.append(valu("v_lshrrev_b32", T0, "1", M)); P.append(valu("v_xor_b32", T0, G, T0)); P.append(valu("v_lshlrev_b32", T0, "4", T0))
    P.append(valu("v_lshl_add_u32", T0, M, "7", T0))
    A(f"s_mul_i32 s3, s{S_W}, {48*128}"); A(f"s_add_u32 s3, s3, {XOFF}")
    P.append(valu("v_add_u32", A_X[0], "s3", T0)); P.append(valu("v_xor_b32", A_X[1], "64", A_X[0]))
    P.append(valu("v_and_b32", T0, "7", M))
    P.append(valu("v_lshrrev_b32", T1, "1", T0)); P.append(valu("v_lshlrev_b32", T1, "2", T1))
    P.append(valu("v_and_b32", A_K, "1", T0)); P.append(valu("v_add_u32", T1, T1, A_K))
    P.append(valu("v_lshlrev_b32", T1, "4", T1)); P.append(valu("v_lshl_add_u32", T1, T0, "10", T1))
    P.append(valu("v_lshrrev_b32", T0, "3", M)); P.append(valu("v_lshl_add_u32", T1, T0, "8", T1))
    P.append(valu("v_and_b32", T0, "1", G)); P.append(valu("v_lshlrev_b32", T0, "1", T0))
    P.append(valu("v_lshrrev_b32", A_K, "1", G)); P.append(valu("v_or_b32", T0, T0, A_K))
    P.append(valu("v_lshl_add_u32", A_K, T0, "4", T1))
    P.append(valu("v_and_b32", T0, "1", G)); P.append(valu("v_lshl_add_u32", T0, T0, "2", RR))
    P.append(valu("v_mul_u32_u24", T0, "1056", T0))
    P.append(valu("v_lshrrev_b32", T1, "1", G)); P.append(valu("v_lshl_add_u32", T0, T1, "8", T0))
    P.append(valu("v_lshl_add_u32", T0, C, "3", T0)); P.append(valu("v_add_u32", A_V, str(VOFF), T0))
    for i in range(96): P.append(valu("v_mov_b32", ACC + i, "0"))
    if opts.get("touch_wo", True) and opts.get("wo_pos") == "pro": P.extend(wo_touch())
    if opts.get("touch_wo", True) and opts.get("wo_pos") == "Bpro":
        A(f"s_cmp_eq_u32 s{S_BR}, 0"); A(f"s_cbranch_scc1 {name}_nowot")
        P.extend(wo_touch())
        A(f"s_mul_i32 s{t0}, s{S_ID}, 20480"); srd_build(A, SRDWO, 76, t0, 20480)
        P.extend(wo_touch()[1:])
        P.append(label(f"{name}_nowot"))
    P.extend(q_addr())
    for grp in q_dma(1): P.extend([grp[0], nop(0)] + grp[1:])
    P.append(waitcnt(vm=10)); P.append(barrier())
    if opts.get("hold"): P.extend(hold_wait(name, opts))
    P.extend(q_frag_reads(0, 0, 0))
    return P

def poll(name, srd, off_sreg, mask_or_val, mode, vtmp, sleep=8):
    o = [raw(f"s_mov_b32 s{S_T[5]}, 200000"), label(f"{name}"), raw(f"v_mov_b32 v{vtmp}, 0", kind="valu", wr=[vtmp]),
         raw(f"buffer_load_dword v{vtmp+1}, v{vtmp}, s[{srd}:{srd+3}], s{off_sreg} offen sc1"),
         raw("s_waitcnt vmcnt(0)"),
         raw(f"v_readfirstlane_b32 s{S_T[6]}, v{vtmp+1}"),
         raw(f"s_sub_u32 s{S_T[5]}, s{S_T[5]}, 1"), raw(f"s_cbranch_scc1 {name}_ok"),
         raw("s_nop 2")]
    if mode == 'bit':
        o += [raw(f"s_and_b32 s{S_T[6]}, s{S_T[6]}, s{mask_or_val}"), raw(f"s_cbranch_scc1 {name}_ok")]
    else:
        o += [raw(f"s_cmp_ge_u32 s{S_T[6]}, {mask_or_val}"), raw(f"s_cbranch_scc1 {name}_ok")]
    o += [raw(f"s_sleep {sleep}"), raw(f"s_branch {name}"), label(f"{name}_ok")]
    return o

FBOFF = 81856
S_FB = 70
S_FB = 78
L_LO, L_HI = "0x2b800000", "0x53800000"
def head_epilogue(name, opts):
    o = [valu("v_mov_b32", V_TCH, "0"), raw(f"buffer_load_dword v{V_DUMMY}, v{V_TCH}, s[{SRDD}:{SRDD+3}], 0 offen sc1", kind="vload", rd=[V_TCH], wr=[V_DUMMY]),
         raw(f"s_mov_b32 s{S_FB}, 0"), label(f"{name}_e0")]
    t = VT
    for qt in range(3):
        l = LSUM[qt]
        o += [valu("v_mov_b32", t[qt], l), perm32(t[qt], l), valu("v_add_f32", l, l, t[qt])]
    for qt in range(3):
        l = LSUM[qt]
        o += [valu("v_mov_b32", t[qt], l), perm16(t[qt], l), valu("v_add_f32", l, l, t[qt])]
    m = S_T[5]
    o += [raw(f"s_mov_b64 s[{m}:{m+1}], 0"), valu("v_mov_b32", 11, L_LO), valu("v_mov_b32", 12, L_HI)]
    for qt in range(3):
        o += [I(f"v_cmp_nle_f32 vcc, v11, v{LSUM[qt]}", rd=[11, LSUM[qt]], kind="valu"), raw("s_nop 1"), raw(f"s_or_b64 s[{m}:{m+1}], s[{m}:{m+1}], vcc"),
              I(f"v_cmp_nge_f32 vcc, v12, v{LSUM[qt]}", rd=[12, LSUM[qt]], kind="valu"), raw("s_nop 1"), raw(f"s_or_b64 s[{m}:{m+1}], s[{m}:{m+1}], vcc")]
    o += [raw(f"s_cmp_lg_u64 s[{m}:{m+1}], 0"), raw(f"s_cselect_b32 s{m}, 1, 0"), raw(f"s_andn2_b32 s{m}, s{m}, s{S_FB}"),
          raw(f"s_lshl_b32 s{m+1}, s{S_W}, 2"), raw(f"s_add_u32 s{m+1}, s{m+1}, {FBOFF}"),
          I(f"v_mov_b32 v11, s{m}", wr=[11], kind="valu"), I(f"v_mov_b32 v12, s{m+1}", wr=[12], kind="valu"), dsw32(12, 11)]
    for qt in range(3): o.append(vrcp(t[qt], LSUM[qt]))
    for qt in range(3):
        o.append(raw(f"s_mul_i32 s{S_T[3]}, s{S_B}, 12")); o.append(raw(f"s_mul_i32 s{S_T[4]}, s{S_W}, 3"))
        o.append(raw(f"s_add_u32 s{S_T[3]}, s{S_T[3]}, s{S_T[4]}")); o.append(raw(f"s_add_u32 s{S_T[3]}, s{S_T[3]}, {qt}"))
        o.append(raw(f"s_lshr_b32 s{S_T[4]}, s{S_T[3]}, 3")); o.append(raw(f"s_lshl_b32 s{S_T[4]}, s{S_T[4]}, 20"))
        o.append(raw(f"s_and_b32 s{S_T[3]}, s{S_T[3]}, 7")); o.append(raw(f"s_lshl_b32 s{S_T[3]}, s{S_T[3]}, 10"))
        o.append(raw(f"s_add_u32 s{S_T[qt]}, s{S_T[3]}, s{S_T[4]}"))
    for qt in range(3):
        for c in range(4):
            a = acc(2*c, qt); b = acc(2*c+1, qt)
            for r in range(4):
                o.append(valu("v_mul_f32", a + r, a + r, t[qt])); o.append(valu("v_mul_f32", b + r, b + r, t[qt]))
            o += [cvtpk(a, a, a+1), cvtpk(a+1, a+2, a+3), cvtpk(a+2, b, b+1), cvtpk(a+3, b+2, b+3)]
            o.append(bstore(a, 4, V_L16, SRDO, S_T[qt], flags=opts.get("stflags", "sc1")))
            if c < 3: o.append(raw(f"s_add_u32 s{S_T[qt]}, s{S_T[qt]}, 8192"))
    o += [waitcnt(vm=0, lgkm=0), barrier()]
    o += [valu("v_mov_b32", 12, str(FBOFF)), ds128(160, 12, 0), waitcnt(lgkm=0),
          valu("v_or_b32", 160, 160, 161), valu("v_or_b32", 162, 162, 163), valu("v_or_b32", 160, 160, 162), raw("s_nop 0"),
          raw(f"v_readfirstlane_b32 s{S_T[2]}, v160"), raw("s_nop 3"), raw(f"s_cmp_lg_u32 s{S_T[2]}, 0"), raw(f"s_cbranch_scc1 {name}_fb")]
    t0, t1 = S_T[0], S_T[1]
    o += [raw(f"s_cmp_eq_u32 s{S_W}, 0"), raw(f"s_cbranch_scc0 {name}_nopub"),
          raw(f"v_readfirstlane_b32 s{S_NONCE}, v{V_DUMMY}"), raw("s_nop 3"),
          raw(f"s_cmp_lg_u32 s{S_NONCE}, 0"), raw(f"s_cbranch_scc1 {name}_pn_done"), raw(f"s_mov_b32 s{t0}, 0")]
    o += poll(f"{name}_pn", SRDD, t0, 1, 'ge', V_TCH)
    o += [raw(f"s_mov_b32 s{S_NONCE}, s{S_T[6]}"), label(f"{name}_pn_done"),
          raw(f"s_lshl_b32 s{t0}, s{S_BR}, 3"), raw(f"s_add_u32 s{t0}, s{t0}, s{S_B}"), raw(f"s_mul_i32 s{t0}, s{t0}, 384"),
          raw(f"s_lshl_b32 s{t1}, s{S_H}, 2"), raw(f"s_add_u32 s{t0}, s{t0}, s{t1}"), raw(f"s_add_u32 s{t0}, s{t0}, {FLAGOFF}")]
    A = lambda t: o.append(raw(t))
    srd_build(A, SRDWO, S_PTR+8, t0, 260)
    o += [raw("v_lshlrev_b32 v16, 7, v0", kind="valu", wr=[16]), raw(f"v_mov_b32 v17, s{S_NONCE}", kind="valu", wr=[17]),
          raw("s_mov_b64 exec, 7"),
          raw(f"buffer_store_dword v17, v16, s[{SRDWO}:{SRDWO+3}], 0 offen sc1"),
          label(f"{name}_nopub")]
    return o

def head_fallback(name):
    MX = [246, 247, 248]; NM = [184, 188, 192]; TT = 249
    def reset_off():
        return [raw(f"s_lshl_b32 s{S_O[0]}, s{S_W}, 10"), raw(f"s_add_u32 s{S_O[1]}, s{S_O[0]}, 4096"),
                raw(f"s_mov_b32 s{S_O[2]}, s{S_O[0]}"), raw(f"s_mov_b32 s{S_O[3]}, s{S_O[1]}"), raw(f"s_mov_b32 s{S_CNT}, 16")]
    def load(js):
        o = [barrier()]
        for j in js:
            o += [m0set(S_L[j], 0), nop(0), dma(V_L16, SRDK if j < 2 else SRDV, S_O[j]), salu(f"s_add_u32 s{S_O[j]}, s{S_O[j]}, 8192")]
        return o + [waitcnt(vm=0), barrier()]
    def qk(cinit):
        o = []
        for Tk in range(2):
            for c in range(4): o.append(k_read(0, Tk*4 + c))
            for c in range(4):
                for qt in range(3):
                    s = sreg(0, Tk, qt)
                    o.append(mfma16(s, KF + 4*c, qf(qt, c), cinit[qt] if c == 0 else s))
        return o
    pre = [label(f"{name}_fb")] + [valu("v_mov_b32", r, "0xff800000") for r in MX] + reset_off()
    b1 = [label(f"{name}_fb1")] + load([0, 1]) + qk([None]*3)
    for qt in range(3):
        for Tk in range(2):
            s = sreg(0, Tk, qt)
            b1 += [valu("v_max3_f32", MX[qt], MX[qt], s, s+1), valu("v_max3_f32", MX[qt], MX[qt], s+2, s+3)]
    b1 += [waitcnt(lgkm=0), raw(f"s_sub_u32 s{S_CNT}, s{S_CNT}, 1"), raw(f"s_cmp_lg_u32 s{S_CNT}, 0"), raw(f"s_cbranch_scc1 {name}_fb1")]
    mid = []
    for qt in range(3):
        mid += [valu("v_mov_b32", TT, MX[qt]), perm32(TT, MX[qt]), valu("v_max_f32", MX[qt], MX[qt], TT),
                valu("v_mov_b32", TT, MX[qt]), perm16(TT, MX[qt]), valu("v_max_f32", MX[qt], MX[qt], TT)]
        for i in range(4): mid.append(I(f"v_sub_f32 v{NM[qt]+i}, 0, v{MX[qt]}", rd=[MX[qt]], wr=[NM[qt]+i], kind="valu"))
    for i in range(96): mid.append(valu("v_mov_b32", ACC + i, "0"))
    for r in LSUM: mid.append(valu("v_mov_b32", r, "0"))
    mid += reset_off()
    b2 = [label(f"{name}_fb2")] + load([0, 1, 2, 3]) + qk(NM)
    for part in range(2):
        for qt in range(3):
            s = sreg(0, part, qt); p = preg(0, part, qt)
            b2 += [vexp(s+i, s+i) for i in range(4)] + [valu("v_add_f32", LSUM[qt], LSUM[qt], s+i) for i in range(4)] + [cvtpk(p, s, s+1), cvtpk(p+1, s+2, s+3)]
    for half in range(2):
        for T in range(4*half, 4*half + 4): b2 += v_read(0, T)
        for T in range(4*half, 4*half + 4):
            for qt in range(3): b2.append(mfma16(acc(T, qt), VF + 4*(T % 4), pop(0, qt), acc(T, qt)))
    b2 += [waitcnt(lgkm=0), raw(f"s_sub_u32 s{S_CNT}, s{S_CNT}, 1"), raw(f"s_cmp_lg_u32 s{S_CNT}, 0"), raw(f"s_cbranch_scc1 {name}_fb2")]
    post = [nop(15), raw(f"s_mov_b32 s{S_FB}, 1"), raw(f"s_branch {name}_e0")]
    p1, l1, st = resolve_loop([nop(15)] + pre, b1)
    p2, l2, st = resolve_loop(mid, b2, st)
    po, _ = resolve(post, st)
    return p1 + l1 + p2 + l2 + po

V_HOLD = 253
SRDH = 24
SRDH = 100 - 4
def hold_setup(name, opts, A, P):
    t0 = S_T[0]
    A(f"s_lshl_b32 s{t0}, s{S_ID}, 7"); A(f"s_add_u32 s{t0}, s{t0}, {FLAGOFF + 65536}")
    srd_build(A, SRDH, S_PTR+8, t0, 4)
    P.append(valu("v_mov_b32", V_TCH, "0"))
    A(f"buffer_load_dword v{V_HOLD}, v{V_TCH}, s[{SRDH}:{SRDH+3}], 0 offen sc1")
def hold_wait(name, opts):
    o = []
    A = lambda t: o.append(raw(t))
    A(f"s_cmp_eq_u32 s{S_BR}, 0"); A(f"s_cbranch_scc1 {name}_hw_end")
    A(f"s_cmp_eq_u32 s{S_W}, 0"); A(f"s_cbranch_scc0 {name}_hw_done")
    A("s_waitcnt vmcnt(0)"); A(f"v_readfirstlane_b32 s{S_T[4]}, v{V_HOLD}"); A(f"s_mov_b32 s{S_T[5]}, {opts.get('hold_polls', 24)}")
    o.append(label(f"{name}_hw"))
    A(f"buffer_load_dword v{V_HOLD}, v{V_TCH}, s[{SRDH}:{SRDH+3}], 0 offen sc1"); A("s_waitcnt vmcnt(0)")
    A(f"v_readfirstlane_b32 s{S_T[6]}, v{V_HOLD}")
    A(f"s_sub_u32 s{S_T[5]}, s{S_T[5]}, 1"); A(f"s_cbranch_scc1 {name}_hw_done"); A("s_nop 2")
    A(f"s_cmp_lg_u32 s{S_T[6]}, s{S_T[4]}"); A(f"s_cbranch_scc1 {name}_hw_done")
    A(f"s_sleep {opts.get('hold_sleep', 8)}"); A(f"s_branch {name}_hw")
    o.append(label(f"{name}_hw_done")); o.append(barrier()); o.append(label(f"{name}_hw_end"))
    return o
def hold_release(name):
    return [raw(f"s_or_b32 s{S_T[0]}, s{S_BR}, s{S_W}"), raw(f"s_cmp_eq_u32 s{S_T[0]}, 0"), raw(f"s_cbranch_scc0 {name}_hr"),
            raw(f"v_add_u32 v{V_HOLD}, 1, v{V_HOLD}", kind="valu", rd=[V_HOLD], wr=[V_HOLD]), raw(f"v_mov_b32 v{V_TCH}, 0", kind="valu", wr=[V_TCH]),
            raw("s_mov_b64 exec, 1"),
            raw(f"buffer_store_dword v{V_HOLD}, v{V_TCH}, s[{SRDH}:{SRDH+3}], 0 offen sc1"),
            raw("s_mov_b64 exec, -1"), raw("s_nop 1"), label(f"{name}_hr")]

def wo_touch():
    return [valu("v_lshlrev_b32", V_TCH, "7", 0), raw(f"s_lshl_b32 s{S_T[0]}, s{S_W}, 13"), bload(V_DUMMY, 1, V_TCH, SRDWO, S_T[0])]

def build_head(name, opts, ST):
    global POL, KVROT, ATTVM, XO, LMF, QRD, BAR2
    BAR2 = opts.get('bar2', False)
    QRD = opts.get('qrd', 19)
    LMF = opts.get('lmfma', False)
    XO = opts.get('x', {})
    ATTVM = opts.get('att_vm', 8)
    POL = opts.get("polite"); KVROT = opts.get("kvrot", True)
    kvflags = opts.get("kvflags", "nt")
    pro = head_prologue(name, opts) + ST(1) + [raw(f"s_mov_b32 s{S_CNT}, 4")]
    qb = [label(f"{name}_qloop")]
    for p in range(2): qb += q_iter(p, 'Q')
    qb += [raw(f"s_sub_u32 s{S_CNT}, s{S_CNT}, 1"), raw(f"s_cmp_lg_u32 s{S_CNT}, 0"), raw(f"s_cbranch_scc1 {name}_qloop")]
    pro2, qb2, st = resolve_loop(pro, qb)
    last = ST(2)
    if opts.get("hold", True):
        if opts.get("hold_at", "q") == "q": last += hold_release(name)
    if opts.get("touch_wo", True) and opts.get("wo_pos") == "q8": last += wo_touch()
    last += q_switch() + q_iter(0, 'K0', kvflags) + q_iter(1, 'K1', kvflags)
    last2, st = resolve(last, st)
    wot = wo_touch() if opts.get("touch_wo", True) and opts.get("wo_pos", "mid") == "mid" else []
    mid = [waitcnt(lgkm=0)] + ST(3) + wot + [raw(f"s_setprio {opts.get('prioAtt', 3)}")] + q_convert() + att_prologue(kvflags) + [raw(f"s_mov_b32 s{S_CNT}, 4")]
    body = [label(f"{name}_aloop")]
    for u in range(3): body += h0(u) + h1(u, kvflags)
    body += [raw(f"s_cmp_eq_u32 s{S_CNT}, 1"), raw(f"s_cbranch_scc1 {name}_tail")]
    body += h0(3) + h1(3, kvflags)
    body += [raw(f"s_sub_u32 s{S_CNT}, s{S_CNT}, 1"), raw(f"s_branch {name}_aloop")]
    mid2, st1 = resolve(mid, st)
    _, body2, _ = resolve_loop([], body, st1)
    idx = [i for i, x in enumerate(body2) if x.txt.startswith(f"s_cbranch_scc1 {name}_tail")][0]
    _, sA = resolve(body2, st1.copy(), insert=False)
    _, sB = resolve(body2[:idx+1], sA.copy(), insert=False)
    tail = [label(f"{name}_tail")] + h0(3, tail=True) + h1(3, kvflags, tail=True) + ([] if opts.get("pstamp") else ST(4)) + (wo_touch() if opts.get("touch_wo", True) and opts.get("wo_pos") == "epi" else []) + head_epilogue(name, opts)
    tail2, _ = resolve(tail, sB)
    return pro2 + qb2 + last2 + mid2 + body2 + tail2

WSLOT = 4224; NR = 3
OACC = 16
OBF = 144
OAF = 240
O_OFFO, O_OFFW, O_AW, O_FL, O_PV = [1, 2], 3, 4, 5, 6
OG, OM, ORR, OC = 7, 8, 9, 10
OS_OO = 32; OS_OW = [33, 34, 35, 36]; OS_L = 37
OSRDO, OSRDW, OSRDOUT, OSRDF = 12, 16, 20, 24
OS_OFF, OS_WO0, OS_OO0 = 8, 40, 41
OS_AV, OS_ISS, OS_ROT = 38, 39, 9
OS_A2 = 46
OS_WB = 10
def oacc(rt, Tc): return OACC + (rt * 4 + Tc) * 4
_sel = [0]
def o_select(name, opts):
    _sel[0] += 1
    L = f"{name}_s{_sel[0]}"
    t0, t1 = S_T[0], S_T[1]
    return [raw(f"s_cmp_lg_u32 s{OS_AV}, 0"), raw(f"s_cbranch_scc1 {L}_have"),
         raw(f"s_mov_b32 s{t0}, 32"), raw(f"s_cmp_eq_u32 s{OS_ISS}, -1"), raw(f"s_cbranch_scc1 {L}_addr"),
         raw(f"s_mov_b32 s{S_T[5]}, 200000"),
         label(f"{L}_poll"),
         raw(f"buffer_load_dword v{O_PV}, v{O_FL}, s[{OSRDF}:{OSRDF+3}], 0 offen sc1")] + ([
         raw(f"buffer_load_dword v11, v{O_FL}, s[{OSRDF}:{OSRDF+3}], s{OS_WB} offen sc1"), raw("s_waitcnt vmcnt(0)"),
         raw(f"v_cmp_eq_u32 s[{OS_A2}:{OS_A2+1}], s{S_NONCE}, v11"),
         raw(f"v_cmp_eq_u32 vcc, s{S_NONCE}, v{O_PV}"), raw("s_nop 3"), raw(f"s_and_b64 vcc, vcc, s[{OS_A2}:{OS_A2+1}]")] if opts.get("waitB") else [raw("s_waitcnt vmcnt(0)"),
         raw(f"v_cmp_eq_u32 vcc, s{S_NONCE}, v{O_PV}")]) + [
         raw(f"s_sub_u32 s{S_T[5]}, s{S_T[5]}, 1"), raw(f"s_cselect_b32 s{t1}, -1, 0"), raw("s_nop 2"),
         raw(f"s_and_b32 s{t0}, vcc_lo, vcc_hi"),
         raw(f"s_or_b32 s{t1}, s{t1}, s{t0}"), raw(f"s_andn2_b32 s{OS_AV}, s{t1}, s{OS_ISS}"),
         raw(f"s_cbranch_scc1 {L}_have"), raw(f"s_sleep {opts.get('sleep', 8)}"), raw(f"s_branch {L}_poll"),
         label(f"{L}_have"),
         raw(f"s_mov_b32 s{OS_A2}, s{OS_AV}"), raw(f"s_mov_b32 s{OS_A2+1}, s{OS_AV}"),
         raw(f"s_lshr_b64 s[{OS_A2}:{OS_A2+1}], s[{OS_A2}:{OS_A2+1}], s{OS_ROT}"),
         raw(f"s_ff1_i32_b32 s{t0}, s{OS_A2}"), raw(f"s_add_u32 s{t0}, s{t0}, s{OS_ROT}"), raw(f"s_and_b32 s{t0}, s{t0}, 31"),
         raw(f"s_lshl_b32 s{t1}, 1, s{t0}"), raw(f"s_or_b32 s{OS_ISS}, s{OS_ISS}, s{t1}"), raw(f"s_andn2_b32 s{OS_AV}, s{OS_AV}, s{t1}"),
         label(f"{L}_addr"),
         raw(f"s_lshl_b32 s{t1}, s{t0}, 15"), raw(f"s_add_u32 s{OS_OO}, s{OS_OO0}, s{t1}"),
         raw(f"s_mul_i32 s{t1}, s{t0}, {128*1280}"), raw(f"s_add_u32 s{OS_OW[0]}, s{OS_WO0}, s{t1}"),
         raw(f"s_add_u32 s{OS_OW[1]}, s{OS_OW[0]}, 1280"), raw(f"s_add_u32 s{OS_OW[2]}, s{OS_OW[0]}, 2560"), raw(f"s_add_u32 s{OS_OW[3]}, s{OS_OW[0]}, 3840")]
OFL = 'sc1'
def o_loads(u):
    o = []
    for j in range(8): o.append([bload(OBF + 32*u + 4*j, 4, O_OFFO[j//4], OSRDO, OS_OO, off=(j%4)*1024, flags=OFL)])
    for b in range(4): o.append([m0set(OS_L, u * WSLOT + b * 1056), dma(O_OFFW, OSRDW, OS_OW[b])])
    return o
def o_aread(u, Tc):
    off = u * WSLOT + Tc * 32
    return [dstr(OAF + 4*Tc, O_AW, off), dstr(OAF + 4*Tc + 2, O_AW, off + 512)]

def build_oproj(name, opts, ST):
    global OFL
    OFL = opts.get('oflags', 'sc1')
    P = []
    A = lambda t, **k: P.append(raw(t, **k))
    t0, t1, t2 = S_T[0], S_T[1], S_T[2]
    A(f"s_sub_u32 s{S_ID}, s2, 512")
    if opts.get("omap", "xcd") == "xcd":
        A(f"s_and_b32 s3, s{S_ID}, 7"); A(f"s_lshr_b32 s{S_BR}, s3, 2"); A(f"s_lshr_b32 s{OS_OFF}, s{S_ID}, 3")
        A(f"s_mul_i32 s{t1}, s{OS_OFF}, 6554"); A(f"s_lshr_b32 s{t1}, s{t1}, 16")
        A(f"s_and_b32 s{t2}, s3, 3"); A(f"s_mul_i32 s{t2}, s{t2}, 3"); A(f"s_add_u32 s6, s{t2}, s{t1}")
        A(f"s_mul_i32 s{t1}, s{t1}, 10"); A(f"s_sub_u32 s7, s{OS_OFF}, s{t1}")
    else:
        A(f"s_cmp_ge_u32 s{S_ID}, 120"); A(f"s_cselect_b32 s{S_BR}, 1, 0")
        A(f"s_mul_i32 s{t0}, s{S_BR}, 120"); A(f"s_sub_u32 s{S_ID}, s{S_ID}, s{t0}")
        A(f"s_and_b32 s3, s{S_ID}, 7"); A(f"s_lshr_b32 s{OS_OFF}, s{S_ID}, 3")
        A(f"s_mul_i32 s{t1}, s{OS_OFF}, 13108"); A(f"s_lshr_b32 s{t1}, s{t1}, 16")
        A(f"s_lshr_b32 s{t2}, s3, 1"); A(f"s_mul_i32 s{t2}, s{t2}, 3"); A(f"s_add_u32 s6, s{t2}, s{t1}")
        A(f"s_mul_i32 s{t1}, s{t1}, 5"); A(f"s_sub_u32 s7, s{OS_OFF}, s{t1}"); A(f"s_and_b32 s{t2}, s3, 1"); A(f"s_mul_i32 s{t2}, s{t2}, 5"); A(f"s_add_u32 s7, s7, s{t2}")
    A(f"s_mul_i32 s3, s{S_BR}, 40"); A("s_add_u32 s3, s3, 32")
    A(f"s_load_dwordx2 s[{S_PTR}:{S_PTR+1}], s[0:1], s3")
    A(f"s_load_dwordx4 s[{S_PTR+4}:{S_PTR+7}], s[0:1], 80")
    A(f"s_load_dwordx2 s[{S_PTR+8}:{S_PTR+9}], s[0:1], 96")
    P.append(valu("v_lshrrev_b32", OG, "6", 0)); P.append(valu("v_and_b32", 0, "63", 0))
    A("s_nop 0"); A(f"v_readfirstlane_b32 s{S_W}, v{OG}")
    P.append(valu("v_lshrrev_b32", OG, "4", 0)); P.append(valu("v_and_b32", OM, "15", 0))
    P.append(valu("v_bfe_u32", ORR, 0, "2", "2")); P.append(valu("v_and_b32", OC, "3", 0))
    P.append(valu("v_lshlrev_b32", O_OFFO[0], "4", 0)); P.append(valu("v_add_u32", O_OFFO[1], "4096", O_OFFO[0]))
    P.append(valu("v_lshrrev_b32", 16, "3", 0)); P.append(valu("v_mul_u32_u24", 16, "5120", 16))
    P.append(valu("v_and_b32", 17, "7", 0)); P.append(valu("v_lshl_add_u32", O_OFFW, 17, "4", 16))
    A(f"s_mul_i32 s{OS_L}, s{S_W}, {NR*WSLOT}")
    P.append(valu("v_mul_u32_u24", 16, "1056", ORR)); P.append(valu("v_lshl_add_u32", 16, OG, "7", 16)); P.append(valu("v_lshl_add_u32", 16, OC, "3", 16))
    P.append(valu("v_add_u32", O_AW, f"s{OS_L}", 16))
    A(f"s_lshl_b32 s{OS_OO0}, s{S_W}, 13"); A(f"s_mul_i32 s{OS_WO0}, s{S_W}, {32*1280}")
    A("s_waitcnt lgkmcnt(0)")
    A(f"s_mul_i32 s{t0}, s{S_BR}, 12"); A(f"s_add_u32 s{t0}, s{t0}, s6"); A(f"s_lshl_b32 s{t0}, s{t0}, 20")
    srd_build(A, OSRDO, S_PTR+8, t0, 1048576)
    A(f"s_lshl_b32 s{t0}, s7, 7"); srd_build(A, OSRDW, S_PTR, t0, 4096*1280 - 9*128)
    A(f"s_mul_i32 s{t0}, s6, {128*2560}"); A(f"s_mul_i32 s{t1}, s{S_BR}, 1280"); A(f"s_add_u32 s{t0}, s{t0}, s{t1}")
    A(f"s_lshl_b32 s{t1}, s7, 7"); A(f"s_add_u32 s{t0}, s{t0}, s{t1}")
    srd_build(A, OSRDOUT, S_PTR+4, t0, 127*2560 + 128)
    srd_build(A, SRDD, S_PTR+6, None, 256)
    A(f"s_mov_b32 s{t0}, 0")
    P.extend(poll(f"{name}_pn", SRDD, t0, 1, 'ge', O_FL, sleep=8))
    A(f"s_mov_b32 s{S_NONCE}, s{S_T[6]}")
    A(f"s_mul_i32 s{t0}, s6, 43691"); A(f"s_lshr_b32 s{t0}, s{t0}, 16")
    A(f"s_lshl_b32 s{t1}, s6, 7"); A(f"s_add_u32 s{t1}, s{t1}, 127"); A(f"s_mul_i32 s{t1}, s{t1}, 21846"); A(f"s_lshr_b32 s{t1}, s{t1}, 22")
    A(f"s_sub_u32 s{t1}, s{t1}, s{t0}"); A(f"s_mul_i32 s{t1}, s{t1}, 384")
    A(f"s_lshl_b32 s{t2}, s{S_BR}, 3"); A(f"s_add_u32 s{t0}, s{t0}, s{t2}"); A(f"s_mul_i32 s{t0}, s{t0}, 384")
    A(f"s_mul_i32 s{t2}, s7, 21846"); A(f"s_lshr_b32 s{t2}, s{t2}, 16"); A(f"s_mul_i32 s{t2}, s{t2}, 3"); A(f"s_sub_u32 s{t2}, s7, s{t2}")
    A(f"s_lshl_b32 s{t2}, s{t2}, 7"); A(f"s_add_u32 s{t0}, s{t0}, s{t2}"); A(f"s_add_u32 s{t0}, s{t0}, {FLAGOFF}")
    srd_build(A, OSRDF, S_PTR+8, t0, 512 + (8*384 if opts.get("waitB") else 0))
    A(f"s_cmp_eq_u32 s{S_BR}, 0"); A(f"s_cselect_b32 s{OS_WB}, {8*384}, 0")
    P.append(valu("v_and_b32", O_FL, "31", 0)); P.append(valu("v_lshlrev_b32", O_FL, "2", O_FL))
    P.append(valu("v_lshrrev_b32", 16, "5", 0)); P.append(valu("v_mul_lo_u32", 16, f"s{t1}", 16)); P.append(valu("v_add_u32", O_FL, O_FL, 16))
    A(f"s_mov_b32 s{OS_AV}, 0"); A(f"s_mov_b32 s{OS_ISS}, 0")
    if opts.get("trot"):
        A(f"s_memrealtime s[{OS_A2}:{OS_A2+1}]"); A("s_waitcnt lgkmcnt(0)")
        A(f"s_sub_u32 s{t0}, s{OS_A2}, s{S_NONCE}"); A(f"s_mul_i32 s{t0}, s{t0}, {65536 // opts['trot']}"); A(f"s_lshr_b32 s{t0}, s{t0}, 16")
        A(f"s_and_b32 s{t1}, s{OS_OFF}, {opts.get('rotmask', 3)}"); A(f"s_add_u32 s{t0}, s{t0}, s{t1}"); A(f"s_and_b32 s{OS_ROT}, s{t0}, 31")
    else:
        A(f"s_and_b32 s{OS_ROT}, s{OS_OFF}, {opts.get('rotmask', 7)}")
    for i in range(128): P.append(valu("v_mov_b32", OACC + i, "0"))
    P.extend(ST(1))
    for u in range(2):
        P.extend(o_select(name, opts))
        for grp in o_loads(u): P.extend(grp if len(grp) == 1 else [grp[0], nop(0)] + grp[1:])
    P.append(waitcnt(vm=12))
    for Tc in range(4): P.extend(o_aread(0, Tc))
    A(f"s_mov_b32 s{S_CNT}, 11")
    body = [label(f"{name}_loop")]
    for u in range(3):
        mf = [mfma16(oacc(rt, Tc), OAF + 4*Tc, OBF + 32*u + 4*rt, oacc(rt, Tc)) for Tc in range(4) for rt in range(8)]
        slots = [[] for _ in mf]
        slots[0] += o_select(name, opts)
        for j, grp in enumerate(o_loads((u + 2) % 3)):
            k = 1 + (j * 22) // 12
            if len(grp) == 1: slots[k] += grp
            else: slots[k].append(grp[0]); slots[k+1] += grp[1:]
        slots[24].append(waitcnt(vm=12))
        n = (u + 1) % 3
        slots[24] += o_aread(n, 0); slots[25] += o_aread(n, 1); slots[26] += o_aread(n, 2); slots[31] += o_aread(n, 3)
        body += emit(mf, slots)
    if opts.get("ostamp"):
        for cnt, idx in ((9, 2), (5, 3)):
            body += [raw(f"s_cmp_eq_u32 s{S_CNT}, {cnt}"), raw(f"s_cbranch_scc0 {name}_os{idx}")] + ST(idx) + [label(f"{name}_os{idx}")]
    body += [raw(f"s_sub_u32 s{S_CNT}, s{S_CNT}, 1"), raw(f"s_cmp_lg_u32 s{S_CNT}, 0"), raw(f"s_cbranch_scc1 {name}_loop")]
    P2, body2, st = resolve_loop(P, body)
    E = []
    A = lambda t, **k: E.append(raw(t, **k))
    E.extend(ST(4 if opts.get("ostamp") else 2))
    E.append(valu("v_lshlrev_b32", 11, "4", 0))
    A(f"s_lshl_b32 s{t0}, s{S_W}, 14"); E.append(valu("v_add_u32", 12, f"s{t0}", 11))
    A(f"s_lshl_b32 s{t0}, s{S_W}, 12"); E.append(valu("v_add_u32", 13, f"s{t0}", 11))
    E.append(valu("v_and_b32", 14, "1", OG)); E.append(valu("v_lshlrev_b32", 14, "1", 14)); E.append(valu("v_lshrrev_b32", 15, "1", OG))
    E.append(valu("v_or_b32", 14, 14, 15)); E.append(valu("v_lshlrev_b32", 14, "4", 14))
    E.append(valu("v_mul_u32_u24", 15, "2560", OM)); E.append(valu("v_add_u32", 14, 14, 15))
    A(f"s_mul_i32 s{t0}, s{S_W}, {16*2560}"); A(f"s_add_u32 s{t1}, s{t0}, {64*2560}")
    E.append(waitcnt(vm=0, lgkm=0)); E.append(barrier())
    for r in range(2):
        for tl in range(16): E.append(dsw128(12, OACC + (16*r + tl)*4, tl*1024))
        E.append(waitcnt(lgkm=0)); E.append(barrier())
        for t in range(4):
            for p in range(4): E.append(ds128(144 + (p*4 + t)*4, 13, p*16384 + t*1024))
        for pr in range(2):
            for h in range(2):
                t = 2*pr + h
                for i in range(4):
                    a = 144 + t*4 + i
                    E.append(valu("v_add_f32", a, a, a + 16)); E.append(valu("v_add_f32", a + 32, a + 32, a + 48))
                for i in range(4):
                    a = 144 + t*4 + i
                    E.append(valu("v_add_f32", a, a, a + 32))
            a = 144 + 2*pr*4; b = a + 4; q = 240 + (r*2 + pr)*4
            E += [cvtpk(q, a, a+1), cvtpk(q+1, a+2, a+3), cvtpk(q+2, b, b+1), cvtpk(q+3, b+2, b+3), perm16(q, q+2), perm16(q+1, q+3)]
            E.append(bstore(q, 4, 14, OSRDOUT, t0 if r == 0 else t1, off=pr*64))
        if r == 0: E.append(waitcnt(lgkm=0)); E.append(barrier())
    E2, _ = resolve(E, st)
    return P2 + body2 + E2

def build(name, stamps=False, **opts):
    ST = (lambda i, real=False: stamp(i, real)) if stamps else (lambda i, real=False: [])
    out = [label(name)] + ST(0) + ST(6, True)
    out += [raw("s_cmp_ge_u32 s2, 752"), raw(f"s_cbranch_scc1 {name}_end"), raw("s_cmp_ge_u32 s2, 512"), raw(f"s_cbranch_scc1 {name}_oproj")]
    if opts.get("skip_heads") == "holdB":
        out += [raw("s_cmp_lt_u32 s2, 256"), raw(f"s_cbranch_scc1 {name}_end"), raw("s_mov_b32 s4, 40"), label(f"{name}_hb"), raw("s_sleep 32"),
                raw("s_sub_u32 s4, s4, 1"), raw("s_cmp_lg_u32 s4, 0"), raw(f"s_cbranch_scc1 {name}_hb"), raw("s_endpgm")]
    elif opts.get("skip_heads"): out += [raw("s_endpgm")]
    fin_h = []; fin_o = []
    if stamps:
        fin_h = [waitcnt(vm=0), raw("s_mov_b64 exec, -1")] + ([] if opts.get("pstamp") else ST(5)) + ST(7, True) + stamp_dump(8, S_PTR+8, S_W, 64<<20, 16, nwaves_shift=2)
        fin_o = [waitcnt(vm=0)] + ([] if opts.get("ostamp") else ST(3) + ST(4)) + ST(5) + ST(7, True) + stamp_dump(8, S_PTR+8, S_W, 64<<20, 16, nwaves_shift=2)
    out += build_head(name + "_h", opts, ST) + fin_h + [raw("s_endpgm")] + head_fallback(name + "_h")
    out += [label(f"{name}_oproj")] + build_oproj(name + "_o", opts, ST) + fin_o
    out += [label(f"{name}_end"), raw("s_endpgm")]
    return out
```

```python
from asmlib import *

QSLOT = 40960; XOFF = 16384
ASLOT = 16896; VOFF = 8448
ACC = 16; QF = 112
SX, SY, SZ = 160, 172, 184
PB = 196; KF = 214; VF = 230
QA = [160, 204]; QB = [192, 236]
V_OFFA, V_OFFB, V_L16 = 1, 2, 3
A_W = [4, 5, 6, 7, 8, 9, 10, 11]; A_X = [12, 15]; A_K = 13; A_V = 14
LSUM = [4, 5, 6]; VT = [7, 8, 9, 10]
ONES = 250
LACC = [4, 8, 246]
LMF = False
G, M, RR, C = 248, 249, 250, 251
V_DUMMY = 255; V_TCH = 254
S_W, S_BR, S_B, S_H = 4, 5, 6, 7
SRDA, SRDB, SRDK, SRDV, SRDO, SRDD = 12, 16, 20, 24, 28, 64
S_O = [32, 33, 34, 35]; S_L = [38, 39, 40, 41]; S_CNT = 42
S_OW, S_OX, S_LW, S_LX, S_SIG, S_TT = 8, 9, 36, 37, 10, 11
S_KC, S_VC, S_KB, S_KROT = 8, 9, 36, 37
S_T = [43, 44, 45, 46, 47, 48, 49]
S_SC = 50
S_PTR = 52
SRDWO = 68
S_ID = 72
S_DBG = 74
FLAGOFF = 32 << 20
S_NONCE = 73

def acc(T, qt): return ACC + (T * 3 + qt) * 4
def qf(qt, c): return QF + (qt * 4 + c) * 4

def emit(mf, slots):
    out = []
    for m, fs in zip(mf, slots):
        out.append(m)
        for f in fs:
            if isinstance(f, list): out.extend(f)
            else: out.append(f)
    return out
def spread(slots, items, lo, hi):
    n = len(items); m = hi - lo
    for i, it in enumerate(items): slots[lo + (i * m) // n].append(it)

def q_addr():
    t0 = S_T[0]
    return [salu(f"s_lshl_b32 s{t0}, s{S_SIG}, 19"), salu(f"s_add_u32 s{S_O[0]}, s{S_OW}, s{t0}"),
            salu(f"s_lshl_b32 s{t0}, s{S_SIG}, 7"), salu(f"s_add_u32 s{S_O[1]}, s{S_OX}, s{t0}"),
            salu(f"s_add_u32 s{S_SIG}, s{S_SIG}, 1"), salu(f"s_cmp_eq_u32 s{S_SIG}, 10"), salu(f"s_cselect_b32 s{S_SIG}, 0, s{S_SIG}")]
def q_dma(slot):
    out = []
    for i in range(4):
        g = [m0set(S_LW, slot * QSLOT + i * 4096)]
        if i == 0: g += [dma(V_OFFA, SRDA, S_O[0])]
        else: g += [salu(f"s_add_u32 s{S_TT}, s{S_O[0]}, {i*16*8192}"), dma(V_OFFA, SRDA, S_TT)]
        out.append(g)
    for i in range(6):
        g = [m0set(S_LX, slot * QSLOT + i * 4096)]
        if i == 0: g += [dma(V_OFFB, SRDB, S_O[1])]
        else: g += [salu(f"s_add_u32 s{S_TT}, s{S_O[1]}, {i*32*1280}"), dma(V_OFFB, SRDB, S_TT)]
        out.append(g)
    return out
KVROT = True
def kv_addr(which):
    c = S_KC if which == 0 else S_VC
    a, b = (S_O[0], S_O[1]) if which == 0 else (S_O[2], S_O[3])
    t = S_TT
    return [salu(f"s_add_u32 s{t}, s{c}, s{S_KROT}"), salu(f"s_and_b32 s{t}, s{t}, 15"), salu(f"s_cmp_lt_u32 s{c}, 16"),
            salu(f"s_cselect_b32 s{t}, s{t}, 16"), salu(f"s_lshl_b32 s{t}, s{t}, 13"), salu(f"s_add_u32 s{a}, s{t}, s{S_KB}"),
            salu(f"s_add_u32 s{b}, s{a}, 4096"), salu(f"s_add_u32 s{c}, s{c}, 1")]
def kv_dma(kslot, vslot, flags):
    out = []
    for j in range(4):
        sl = kslot if j < 2 else vslot
        if KVROT:
            pre = kv_addr(j // 2) if j % 2 == 0 else []
            post = nop(0)
        else:
            pre = []
            post = salu(f"s_add_u32 s{S_O[j]}, s{S_O[j]}, 8192")
        out.append([pre + [m0set(S_L[j], sl * ASLOT)], dma(V_L16, SRDK if j < 2 else SRDV, S_O[j], flags), post])
    return out

def q_frag_reads(slot, e, st):
    out = []
    for qt in range(3): out.append(ds128(QB[st] + 4*qt, A_X[e], slot * QSLOT + qt * 2048))
    for T in range(8):
        o = slot * QSLOT + e * 8192
        out.append(dstr(QA[st] + 4*T, A_W[T], o)); out.append(dstr(QA[st] + 4*T + 2, A_W[T], o + 1024))
    return out

_pl = [0]
def polite(n):
    _pl[0] += 1
    lab = f"Lpol{_pl[0]}"
    return [raw(f"s_cmp_eq_u32 s{S_BR}, 0"), raw(f"s_cbranch_scc1 {lab}"), waitcnt(vm=n), label(lab)]
POL = None
QRD = 19
def q_half(st, reads, extra):
    mf = [mfma16(acc(T, qt), QA[st] + 4*T, QB[st] + 4*qt, acc(T, qt)) for T in range(8) for qt in range(3)]
    slots = [[] for _ in mf]
    for i, rd in enumerate(reads): slots[(i * QRD) // 19 if i < 19 else 23].append(rd)
    n = len(extra)
    for j, grp in enumerate(extra):
        k = (j * 22) // max(n, 1)
        slots[k].append(grp[0]); slots[k+1] += [x for x in grp[1:] if getattr(x, "kind", "") != "nop"]
    return emit(mf, slots)

def q_iter(p, kind, kvflags=""):
    out = q_half(0, q_frag_reads(p, 1, 1), [])
    out += [waitcnt(vm=0, lgkm=0) if kind != 'K1' else waitcnt(lgkm=0), barrier()]
    if kind == 'Q':
        extra = [q_addr()] + q_dma(p)
        if POL:
            for pos, n in POL: extra[pos] = extra[pos] + polite(n)
    elif kind == 'K0': extra = kv_dma(0, 0, kvflags) + kv_dma(1, 1, kvflags)
    else: extra = kv_dma(2, 2, kvflags) + kv_dma(3, 3, kvflags)
    reads = q_frag_reads(1 - p, 0, 0) if kind != 'K1' else []
    out += q_half(1, reads, extra)
    return out

def q_switch():
    o = []
    A = lambda t: o.append(raw(t))
    t0, t1 = S_T[0], S_T[1]
    A(f"s_lshr_b32 s{t0}, s{S_W}, 1"); A(f"s_lshl_b32 s{t0}, s{t0}, 2"); A(f"s_and_b32 s{t1}, s{S_W}, 1"); A(f"s_add_u32 s{t0}, s{t0}, s{t1}")
    A(f"s_lshl_b32 s{t0}, s{t0}, 4"); A(f"s_lshl_b32 s{t1}, s{S_W}, 10"); A(f"s_add_u32 s{S_L[0]}, s{t0}, s{t1}")
    A(f"s_add_u32 s{S_L[1]}, s{S_L[0]}, {4096+128}")
    A(f"s_mul_i32 s{t0}, s{S_W}, 1056"); A(f"s_add_u32 s{S_L[2]}, s{t0}, {VOFF}"); A(f"s_add_u32 s{S_L[3]}, s{S_L[2]}, {4*1056}")
    A(f"s_lshl_b32 s{S_KB}, s{S_W}, 10"); A(f"s_mov_b32 s{S_KC}, 0"); A(f"s_mov_b32 s{S_VC}, 0")
    if KVROT:
        A(f"s_lshr_b32 s{S_KROT}, s{S_ID}, 3"); A(f"s_add_u32 s{S_KROT}, s{S_KROT}, s{S_ID}"); A(f"s_and_b32 s{S_KROT}, s{S_KROT}, 15")
    else:
        A(f"s_mov_b32 s{S_O[0]}, s{S_KB}"); A(f"s_add_u32 s{S_O[1]}, s{S_KB}, 4096"); A(f"s_mov_b32 s{S_O[2]}, s{S_O[0]}"); A(f"s_mov_b32 s{S_O[3]}, s{S_O[1]}")
    return o

def q_convert():
    o = []
    for qt in range(3):
        for T in range(8):
            a = acc(T, qt)
            o.append(pkmul(a, a, f"s[{S_SC}:{S_SC+1}]")); o.append(pkmul(a+2, a+2, f"s[{S_SC}:{S_SC+1}]"))
    for qt in range(3):
        for c in range(4):
            q = qf(qt, c); a = acc(2*c, qt); b = acc(2*c+1, qt)
            o += [cvtpk(q, a, a+1), cvtpk(q+1, a+2, a+3), cvtpk(q+2, b, b+1), cvtpk(q+3, b+2, b+3)]
    for qt in range(3):
        for c in range(4):
            q = qf(qt, c)
            o += [perm16(q, q+2), perm16(q+1, q+3)]
    for i in range(96): o.append(valu("v_mov_b32", ACC + i, "0"))
    if LMF:
        for qt in range(3):
            for i in range(4): o.append(valu("v_mov_b32", LACC[qt] + i, "0"))
        for i in range(4): o.append(valu("v_mov_b32", ONES + i, "0x3f803f80"))
    else:
        for r in LSUM: o.append(valu("v_mov_b32", r, "0"))
    return o

def sreg(j, Tk, qt):
    if Tk == 0: return SX + 4*qt
    return (SY if j % 2 == 0 else SZ) + 4*qt
def preg(j, part, qt):
    base = PB + 6*qt
    if part == 1: return base + 2
    return base + (0 if j % 2 == 0 else 4)
def pop(j, qt): return PB + 6*qt + (0 if j % 2 == 0 else 2)
def k_read(j, i): return ds128(KF + 4*(i % 4), A_K, (j % 4) * ASLOT + (i % 4) * 64 + (i // 4) * 512)
def v_read(j, T):
    o = (j % 4) * ASLOT + T * 32
    d = VF + 4*(T % 4)
    if j % 2 == 0: return [dstr(d, A_V, o), dstr(d+2, A_V, o + 512)]
    return [dstr(d+2, A_V, o), dstr(d, A_V, o + 512)]
def softmax_ops(j, part):
    if XO.get("nosm"): return [nop(0)]
    ops = []
    for qt in range(3):
        s = sreg(j, part, qt); p = preg(j, part, qt)
        ops.append([vexp(s, s), vexp(s+1, s+1), vexp(s+2, s+2), vexp(s+3, s+3),
                    valu("v_add_f32", LSUM[qt], LSUM[qt], s), cvtpk(p, s, s+1), valu("v_add_f32", LSUM[qt], LSUM[qt], s+1),
                    valu("v_add_f32", LSUM[qt], LSUM[qt], s+2), cvtpk(p+1, s+2, s+3), valu("v_add_f32", LSUM[qt], LSUM[qt], s+3)])
    seq = list(ops[0][:4])
    for qt in range(1, 3):
        e = ops[qt][:4]; f = ops[qt-1][4:]
        seq += [e[0], f[0], f[1], e[1], f[2], e[2], f[3], f[4], e[3], f[5]]
    seq += ops[2][4:]
    if LMF: seq = [x for x in seq if not x.txt.startswith("v_add_f32")]
    if XO.get("noadd"): seq = [x for x in seq if not x.txt.startswith("v_add_f32")]
    if XO.get("noexp"): seq = [x for x in seq if not x.txt.startswith("v_exp")]
    return seq
def qk_mfmas(j):
    mf = []
    for Tk in range(2):
        for c in range(4):
            i = Tk*4 + c
            for qt in range(3):
                s = sreg(j, Tk, qt)
                mf.append(mfma16(s, KF + 4*(i % 4), qf(qt, c), None if c == 0 else s))
    return mf
def pv_mfmas(j):
    return [mfma16(acc(T, qt), VF + 4*(T % 4), pop(j, qt), acc(T, qt)) for T in range(8) for qt in range(3)]
def l_mfmas(j):
    return [mfma16(LACC[qt], ONES, pop(j, qt), LACC[qt]) for qt in range(3)]

def h0(s, tail=False):
    sm = softmax_ops(s, 1)
    vr_ = [v_read(s, T) for T in range(4)]
    if tail:
        out = []
        for v in vr_: out += v
        return out + sm
    mf = qk_mfmas(s + 1)
    slots = [[] for _ in mf]
    for i in range(5): slots[3*i].append(k_read(s + 1, i + 3))
    for T in range(4): slots[14 + 2*T].append(vr_[T][0]); slots[15 + 2*T].append(vr_[T][1])
    spread(slots, sm, 0, 23)
    return emit(mf, slots)
ATTVM = 8
XO = {}
BAR2 = False
def h1(s, kvflags, tail=False):
    mf = pv_mfmas(s)
    slots = [[] for _ in mf]
    for T in range(4, 8):
        v = v_read(s, T); slots[3*(T-4) + 2].append(v[0]); slots[3*(T-4) + 3].append(v[1])
    if not tail:
        spread(slots, softmax_ops(s + 1, 0), 0, 23)
        if BAR2:
            if s % 2 == 0:
                slots[16].append([waitcnt(vm=0, lgkm=0), barrier()])
                grps = kv_dma(s % 4, (s + 3) % 4, kvflags) + kv_dma((s + 1) % 4, s % 4, kvflags)
                for j, grp in enumerate(grps):
                    k = 16 + j
                    slots[k].append(grp[0]); slots[k].append(grp[2] if grp[2].kind == "nop" else nop(0)); slots[k].append(grp[1])
                    if grp[2].kind != "nop": slots[k].append(grp[2])
            for i in range(3): slots[17 + i].append(k_read(s + 2, i))
        else:
          if XO.get("nobar"): slots[16].append([waitcnt(lgkm=0)])
          else: slots[16].append([waitcnt(vm=ATTVM, lgkm=0), barrier()])
          for i in range(3): slots[17 + i].append(k_read(s + 2, i))
          if not XO.get("nodma"):
            for j, grp in enumerate(kv_dma((s + 1) % 4, s % 4, kvflags)):
              slots[17 + j].append(grp[0]); slots[18 + j].append(grp[1])
              if grp[2].kind != "nop": slots[19 + j].append(grp[2])
    if LMF:
        lm = l_mfmas(s); slots[2].append(lm[0]); slots[8].append(lm[1]); slots[13].append(lm[2])
    return emit(mf, slots)
def att_prologue(kvflags):
    o = [raw(f"s_sub_u32 s{S_VC}, s{S_VC}, 1")] if KVROT else [raw(f"s_sub_u32 s{S_O[2]}, s{S_O[2]}, 8192"), raw(f"s_sub_u32 s{S_O[3]}, s{S_O[3]}, 8192")]
    o += [waitcnt(vm=14), barrier()]
    for i in range(3): o.append(k_read(0, i))
    mf = qk_mfmas(0)
    slots = [[] for _ in mf]
    for i in range(5): slots[3*i].append(k_read(0, i + 3))
    o += emit(mf, slots)
    o += [waitcnt(vm=8, lgkm=0), barrier()]
    for i in range(3): o.append(k_read(1, i))
    if not BAR2:
        for grp in kv_dma(0, 3, kvflags): o += grp[0] + [nop(0), grp[1], grp[2]]
    o += softmax_ops(0, 0)
    return o

def srd_build(A, dst, ptr, offreg, nrec):
    if offreg is None:
        A(f"s_mov_b32 s{dst}, s{ptr}"); A(f"s_and_b32 s{dst+1}, s{ptr+1}, 0xffff")
    else:
        A(f"s_add_u32 s{dst}, s{ptr}, s{offreg}"); A(f"s_addc_u32 s{dst+1}, s{ptr+1}, 0"); A(f"s_and_b32 s{dst+1}, s{dst+1}, 0xffff")
    A(f"s_mov_b32 s{dst+2}, {nrec}"); A(f"s_mov_b32 s{dst+3}, 0x20000")

def head_prologue(name, opts):
    P = []
    A = lambda t, **k: P.append(raw(t, **k))
    t0, t1, t2 = S_T[0], S_T[1], S_T[2]
    A(f"s_lshr_b32 s{S_BR}, s2, 8"); A(f"s_and_b32 s{S_ID}, s2, 255")
    A(f"s_mul_i32 s3, s{S_BR}, 40")
    A(f"s_load_dwordx4 s[{S_PTR}:{S_PTR+3}], s[0:1], s3")
    A(f"s_add_u32 s{t1}, s3, 16"); A(f"s_load_dwordx4 s[{S_PTR+4}:{S_PTR+7}], s[0:1], s{t1}")
    A(f"s_load_dwordx2 s[{S_PTR+8}:{S_PTR+9}], s[0:1], 96")
    A(f"s_load_dwordx2 s[{S_DBG}:{S_DBG+1}], s[0:1], 88")
    A(f"s_add_u32 s{t1}, s3, 32"); A(f"s_load_dwordx2 s[{S_PTR+10}:{S_PTR+11}], s[0:1], s{t1}")
    A(f"s_load_dwordx2 s[76:77], s[0:1], 32")
    A(f"s_and_b32 s3, s{S_ID}, 7"); A(f"s_lshr_b32 s{t0}, s{S_ID}, 3")
    A(f"s_lshr_b32 s{S_B}, s3, 2"); A(f"s_lshl_b32 s{S_B}, s{S_B}, 2"); A(f"s_lshr_b32 s{t1}, s{t0}, 3"); A(f"s_add_u32 s{S_B}, s{S_B}, s{t1}")
    A(f"s_and_b32 s{S_H}, s3, 3"); A(f"s_lshl_b32 s{S_H}, s{S_H}, 3"); A(f"s_and_b32 s{t1}, s{t0}, 7"); A(f"s_add_u32 s{S_H}, s{S_H}, s{t1}")
    P.append(valu("v_lshrrev_b32", G, "6", 0)); P.append(valu("v_and_b32", 0, "63", 0))
    A("s_nop 0"); A(f"v_readfirstlane_b32 s{S_W}, v{G}")
    P.append(valu("v_lshrrev_b32", G, "4", 0)); P.append(valu("v_and_b32", M, "15", 0))
    P.append(valu("v_bfe_u32", RR, 0, "2", "2")); P.append(valu("v_and_b32", C, "3", 0))
    P.append(valu("v_lshlrev_b32", V_L16, "4", 0))
    T0, T1 = 16, 17
    A(f"s_lshr_b32 s{t0}, s{S_W}, 1"); A(f"s_and_b32 s{t0}, s{t0}, 1"); A(f"s_lshl_b32 s{t0}, s{t0}, 2")
    P.append(valu("v_or_b32", T0, f"s{t0}", G))
    P.append(valu("v_lshrrev_b32", T1, "1", M)); P.append(valu("v_xor_b32", T0, T0, T1))
    P.append(valu("v_lshlrev_b32", T0, "5", T0))
    P.append(valu("v_and_b32", T1, "1", M)); P.append(valu("v_lshl_add_u32", T0, T1, "4", T0))
    P.append(valu("v_lshl_add_u32", V_OFFA, G, "13", T0))
    A(f"s_and_b32 s{t0}, s{S_W}, 1"); A(f"s_lshl_b32 s{t0}, s{t0}, 2")
    P.append(valu("v_add_u32", T0, f"s{t0}", G))
    P.append(valu("v_and_b32", T1, "7", 0)); P.append(valu("v_xor_b32", T1, T1, T0)); P.append(valu("v_lshlrev_b32", T1, "4", T1))
    P.append(valu("v_lshrrev_b32", T0, "3", 0)); P.append(valu("v_mul_u32_u24", T0, "1280", T0)); P.append(valu("v_add_u32", V_OFFB, T0, T1))
    A(f"s_lshl_b32 s{S_OW}, s{S_W}, 15"); A(f"s_mul_i32 s{S_OX}, s{S_W}, {8*1280}")
    A(f"s_lshl_b32 s{S_LW}, s{S_W}, 10"); A(f"s_add_u32 s{S_LX}, s{S_LW}, {XOFF}")
    if opts.get("rot", False):
        A(f"s_and_b32 s{t0}, s{S_H}, 7"); A(f"s_lshr_b32 s{t1}, s{t0}, 2"); A(f"s_add_u32 s{t0}, s{t0}, s{t1}")
        A(f"s_and_b32 s{t1}, s{S_B}, 3"); A(f"s_mul_i32 s{t1}, s{t1}, 5"); A(f"s_add_u32 s{t1}, s{t1}, 1"); A(f"s_lshr_b32 s{t1}, s{t1}, 1")
        A(f"s_add_u32 s{S_SIG}, s{t0}, s{t1}")
        A(f"s_cmp_ge_u32 s{S_SIG}, 10"); A(f"s_cselect_b32 s{t0}, 10, 0"); A(f"s_sub_u32 s{S_SIG}, s{S_SIG}, s{t0}")
    else:
        A(f"s_mov_b32 s{S_SIG}, 0")
    A("s_waitcnt lgkmcnt(0)")
    if opts.get("pstamp"): P.extend(stamp(4))
    px, pk, pv, pw, pws = S_PTR, S_PTR+2, S_PTR+4, S_PTR+6, S_PTR+8
    srd_build(A, SRDD, S_DBG, None, 256)
    A(f"s_or_b32 s{t0}, s2, s{S_W}"); A(f"s_cmp_eq_u32 s{t0}, 0"); A(f"s_cbranch_scc0 {name}_nononce")
    A(f"s_memrealtime s[{S_T[3]}:{S_T[4]}]"); A("s_waitcnt lgkmcnt(0)"); A(f"s_or_b32 s{t0}, s{S_T[3]}, 1")
    P.append(valu("v_mov_b32", V_DUMMY, f"s{t0}")); P.append(valu("v_mov_b32", V_TCH, "0"))
    A(f"buffer_store_dword v{V_DUMMY}, v{V_TCH}, s[{SRDD}:{SRDD+3}], 0 offen sc1")
    P.append(label(f"{name}_nononce"))
    if opts.get("hold", True): hold_setup(name, opts, A, P)
    A(f"s_lshl_b32 s{t0}, s{S_H}, 8"); srd_build(A, SRDA, pw, t0, 640*8192 - 31*256)
    A(f"s_mul_i32 s{t0}, s{S_B}, 245760"); srd_build(A, SRDB, px, t0, 245760)
    P.extend(q_addr())
    for grp in q_dma(0): P.extend([grp[0], nop(0)] + grp[1:])
    if opts.get("pstamp"): P.extend(stamp(5))
    pa, pb = opts.get('prioA', 0), opts.get('prioBq', 0)
    if pa or pb:
        A(f"s_cmp_eq_u32 s{S_BR}, 0"); A(f"s_cbranch_scc0 {name}_prb"); A(f"s_setprio {pa}"); A(f"s_branch {name}_noprio")
        P.append(label(f"{name}_prb")); A(f"s_setprio {pb}"); P.append(label(f"{name}_noprio"))
    A(f"s_lshl_b32 s{t1}, s{S_B}, 5"); A(f"s_add_u32 s{t1}, s{t1}, s{S_H}"); A(f"s_lshl_b32 s{t0}, s{t1}, 17")
    srd_build(A, SRDK, pk, t0, 131072); srd_build(A, SRDV, pv, t0, 131072)
    A(f"s_mul_i32 s{t1}, s{S_BR}, {12*1048576}"); A(f"s_lshl_b32 s{t2}, s{S_H}, 15"); A(f"s_add_u32 s{t0}, s{t1}, s{t2}")
    srd_build(A, SRDO, pws, t0, 12*1048576 - 31*32768)
    A(f"s_mul_i32 s{t0}, s{S_ID}, 20480"); srd_build(A, SRDWO, S_PTR+10, t0, 20480)
    A(f"s_mov_b32 s{S_SC}, 0x3e0293ee"); A(f"s_mov_b32 s{S_SC+1}, 0x3e0293ee")
    P.append(valu("v_and_b32", T0, "1", G)); P.append(valu("v_lshl_or_b32", T0, T0, "2", RR))
    P.append(valu("v_lshl_add_u32", T1, G, "3", RR)); P.append(valu("v_lshlrev_b32", T1, "8", T1))
    P.append(valu("v_lshl_add_u32", T1, C, "3", T1))
    for T in range(8):
        P.append(valu("v_xor_b32", A_W[T], str(T), T0)); P.append(valu("v_lshl_add_u32", A_W[T], A_W[T], "5", T1))
    P.append(valu("v_lshrrev_b32", T0, "1", M)); P.append(valu("v_xor_b32", T0, G, T0)); P.append(valu("v_lshlrev_b32", T0, "4", T0))
    P.append(valu("v_lshl_add_u32", T0, M, "7", T0))
    A(f"s_mul_i32 s3, s{S_W}, {48*128}"); A(f"s_add_u32 s3, s3, {XOFF}")
    P.append(valu("v_add_u32", A_X[0], "s3", T0)); P.append(valu("v_xor_b32", A_X[1], "64", A_X[0]))
    P.append(valu("v_and_b32", T0, "7", M))
    P.append(valu("v_lshrrev_b32", T1, "1", T0)); P.append(valu("v_lshlrev_b32", T1, "2", T1))
    P.append(valu("v_and_b32", A_K, "1", T0)); P.append(valu("v_add_u32", T1, T1, A_K))
    P.append(valu("v_lshlrev_b32", T1, "4", T1)); P.append(valu("v_lshl_add_u32", T1, T0, "10", T1))
    P.append(valu("v_lshrrev_b32", T0, "3", M)); P.append(valu("v_lshl_add_u32", T1, T0, "8", T1))
    P.append(valu("v_and_b32", T0, "1", G)); P.append(valu("v_lshlrev_b32", T0, "1", T0))
    P.append(valu("v_lshrrev_b32", A_K, "1", G)); P.append(valu("v_or_b32", T0, T0, A_K))
    P.append(valu("v_lshl_add_u32", A_K, T0, "4", T1))
    P.append(valu("v_and_b32", T0, "1", G)); P.append(valu("v_lshl_add_u32", T0, T0, "2", RR))
    P.append(valu("v_mul_u32_u24", T0, "1056", T0))
    P.append(valu("v_lshrrev_b32", T1, "1", G)); P.append(valu("v_lshl_add_u32", T0, T1, "8", T0))
    P.append(valu("v_lshl_add_u32", T0, C, "3", T0)); P.append(valu("v_add_u32", A_V, str(VOFF), T0))
    for i in range(96): P.append(valu("v_mov_b32", ACC + i, "0"))
    if opts.get("touch_wo", True) and opts.get("wo_pos") == "pro": P.extend(wo_touch())
    if opts.get("touch_wo", True) and opts.get("wo_pos") == "Bpro":
        A(f"s_cmp_eq_u32 s{S_BR}, 0"); A(f"s_cbranch_scc1 {name}_nowot")
        P.extend(wo_touch())
        A(f"s_mul_i32 s{t0}, s{S_ID}, 20480"); srd_build(A, SRDWO, 76, t0, 20480)
        P.extend(wo_touch()[1:])
        P.append(label(f"{name}_nowot"))
    P.extend(q_addr())
    for grp in q_dma(1): P.extend([grp[0], nop(0)] + grp[1:])
    P.append(waitcnt(vm=10)); P.append(barrier())
    if opts.get("hold"): P.extend(hold_wait(name, opts))
    P.extend(q_frag_reads(0, 0, 0))
    return P

def poll(name, srd, off_sreg, mask_or_val, mode, vtmp, sleep=8):
    o = [raw(f"s_mov_b32 s{S_T[5]}, 200000"), label(f"{name}"), raw(f"v_mov_b32 v{vtmp}, 0", kind="valu", wr=[vtmp]),
         raw(f"buffer_load_dword v{vtmp+1}, v{vtmp}, s[{srd}:{srd+3}], s{off_sreg} offen sc1"),
         raw("s_waitcnt vmcnt(0)"),
         raw(f"v_readfirstlane_b32 s{S_T[6]}, v{vtmp+1}"),
         raw(f"s_sub_u32 s{S_T[5]}, s{S_T[5]}, 1"), raw(f"s_cbranch_scc1 {name}_ok"),
         raw("s_nop 2")]
    if mode == 'bit':
        o += [raw(f"s_and_b32 s{S_T[6]}, s{S_T[6]}, s{mask_or_val}"), raw(f"s_cbranch_scc1 {name}_ok")]
    else:
        o += [raw(f"s_cmp_ge_u32 s{S_T[6]}, {mask_or_val}"), raw(f"s_cbranch_scc1 {name}_ok")]
    o += [raw(f"s_sleep {sleep}"), raw(f"s_branch {name}"), label(f"{name}_ok")]
    return o

FBOFF = 81856
S_FB = 70
S_FB = 78
L_LO, L_HI = "0x2b800000", "0x53800000"
def head_epilogue(name, opts):
    o = [valu("v_mov_b32", V_TCH, "0"), raw(f"buffer_load_dword v{V_DUMMY}, v{V_TCH}, s[{SRDD}:{SRDD+3}], 0 offen sc1", kind="vload", rd=[V_TCH], wr=[V_DUMMY]),
         raw(f"s_mov_b32 s{S_FB}, 0"), label(f"{name}_e0")]
    t = VT
    for qt in range(3):
        l = LSUM[qt]
        o += [valu("v_mov_b32", t[qt], l), perm32(t[qt], l), valu("v_add_f32", l, l, t[qt])]
    for qt in range(3):
        l = LSUM[qt]
        o += [valu("v_mov_b32", t[qt], l), perm16(t[qt], l), valu("v_add_f32", l, l, t[qt])]
    m = S_T[5]
    o += [raw(f"s_mov_b64 s[{m}:{m+1}], 0"), valu("v_mov_b32", 11, L_LO), valu("v_mov_b32", 12, L_HI)]
    for qt in range(3):
        o += [I(f"v_cmp_nle_f32 vcc, v11, v{LSUM[qt]}", rd=[11, LSUM[qt]], kind="valu"), raw("s_nop 1"), raw(f"s_or_b64 s[{m}:{m+1}], s[{m}:{m+1}], vcc"),
              I(f"v_cmp_nge_f32 vcc, v12, v{LSUM[qt]}", rd=[12, LSUM[qt]], kind="valu"), raw("s_nop 1"), raw(f"s_or_b64 s[{m}:{m+1}], s[{m}:{m+1}], vcc")]
    o += [raw(f"s_cmp_lg_u64 s[{m}:{m+1}], 0"), raw(f"s_cselect_b32 s{m}, 1, 0"), raw(f"s_andn2_b32 s{m}, s{m}, s{S_FB}"),
          raw(f"s_lshl_b32 s{m+1}, s{S_W}, 2"), raw(f"s_add_u32 s{m+1}, s{m+1}, {FBOFF}"),
          I(f"v_mov_b32 v11, s{m}", wr=[11], kind="valu"), I(f"v_mov_b32 v12, s{m+1}", wr=[12], kind="valu"), dsw32(12, 11)]
    for qt in range(3): o.append(vrcp(t[qt], LSUM[qt]))
    for qt in range(3):
        o.append(raw(f"s_mul_i32 s{S_T[3]}, s{S_B}, 12")); o.append(raw(f"s_mul_i32 s{S_T[4]}, s{S_W}, 3"))
        o.append(raw(f"s_add_u32 s{S_T[3]}, s{S_T[3]}, s{S_T[4]}")); o.append(raw(f"s_add_u32 s{S_T[3]}, s{S_T[3]}, {qt}"))
        o.append(raw(f"s_lshr_b32 s{S_T[4]}, s{S_T[3]}, 3")); o.append(raw(f"s_lshl_b32 s{S_T[4]}, s{S_T[4]}, 20"))
        o.append(raw(f"s_and_b32 s{S_T[3]}, s{S_T[3]}, 7")); o.append(raw(f"s_lshl_b32 s{S_T[3]}, s{S_T[3]}, 10"))
        o.append(raw(f"s_add_u32 s{S_T[qt]}, s{S_T[3]}, s{S_T[4]}"))
    for qt in range(3):
        for c in range(4):
            a = acc(2*c, qt); b = acc(2*c+1, qt)
            for r in range(4):
                o.append(valu("v_mul_f32", a + r, a + r, t[qt])); o.append(valu("v_mul_f32", b + r, b + r, t[qt]))
            o += [cvtpk(a, a, a+1), cvtpk(a+1, a+2, a+3), cvtpk(a+2, b, b+1), cvtpk(a+3, b+2, b+3)]
            o.append(bstore(a, 4, V_L16, SRDO, S_T[qt], flags=opts.get("stflags", "sc1")))
            if c < 3: o.append(raw(f"s_add_u32 s{S_T[qt]}, s{S_T[qt]}, 8192"))
    o += [waitcnt(vm=0, lgkm=0), barrier()]
    o += [valu("v_mov_b32", 12, str(FBOFF)), ds128(160, 12, 0), waitcnt(lgkm=0),
          valu("v_or_b32", 160, 160, 161), valu("v_or_b32", 162, 162, 163), valu("v_or_b32", 160, 160, 162), raw("s_nop 0"),
          raw(f"v_readfirstlane_b32 s{S_T[2]}, v160"), raw("s_nop 3"), raw(f"s_cmp_lg_u32 s{S_T[2]}, 0"), raw(f"s_cbranch_scc1 {name}_fb")]
    t0, t1 = S_T[0], S_T[1]
    o += [raw(f"s_cmp_eq_u32 s{S_W}, 0"), raw(f"s_cbranch_scc0 {name}_nopub"),
          raw(f"v_readfirstlane_b32 s{S_NONCE}, v{V_DUMMY}"), raw("s_nop 3"),
          raw(f"s_cmp_lg_u32 s{S_NONCE}, 0"), raw(f"s_cbranch_scc1 {name}_pn_done"), raw(f"s_mov_b32 s{t0}, 0")]
    o += poll(f"{name}_pn", SRDD, t0, 1, 'ge', V_TCH)
    o += [raw(f"s_mov_b32 s{S_NONCE}, s{S_T[6]}"), label(f"{name}_pn_done"),
          raw(f"s_lshl_b32 s{t0}, s{S_BR}, 3"), raw(f"s_add_u32 s{t0}, s{t0}, s{S_B}"), raw(f"s_mul_i32 s{t0}, s{t0}, 384"),
          raw(f"s_lshl_b32 s{t1}, s{S_H}, 2"), raw(f"s_add_u32 s{t0}, s{t0}, s{t1}"), raw(f"s_add_u32 s{t0}, s{t0}, {FLAGOFF}")]
    A = lambda t: o.append(raw(t))
    srd_build(A, SRDWO, S_PTR+8, t0, 260)
    o += [raw("v_lshlrev_b32 v16, 7, v0", kind="valu", wr=[16]), raw(f"v_mov_b32 v17, s{S_NONCE}", kind="valu", wr=[17]),
          raw("s_mov_b64 exec, 7"),
          raw(f"buffer_store_dword v17, v16, s[{SRDWO}:{SRDWO+3}], 0 offen sc1"),
          label(f"{name}_nopub")]
    return o

def head_fallback(name):
    MX = [246, 247, 248]; NM = [184, 188, 192]; TT = 249
    def reset_off():
        return [raw(f"s_lshl_b32 s{S_O[0]}, s{S_W}, 10"), raw(f"s_add_u32 s{S_O[1]}, s{S_O[0]}, 4096"),
                raw(f"s_mov_b32 s{S_O[2]}, s{S_O[0]}"), raw(f"s_mov_b32 s{S_O[3]}, s{S_O[1]}"), raw(f"s_mov_b32 s{S_CNT}, 16")]
    def load(js):
        o = [barrier()]
        for j in js:
            o += [m0set(S_L[j], 0), nop(0), dma(V_L16, SRDK if j < 2 else SRDV, S_O[j]), salu(f"s_add_u32 s{S_O[j]}, s{S_O[j]}, 8192")]
        return o + [waitcnt(vm=0), barrier()]
    def qk(cinit):
        o = []
        for Tk in range(2):
            for c in range(4): o.append(k_read(0, Tk*4 + c))
            for c in range(4):
                for qt in range(3):
                    s = sreg(0, Tk, qt)
                    o.append(mfma16(s, KF + 4*c, qf(qt, c), cinit[qt] if c == 0 else s))
        return o
    pre = [label(f"{name}_fb")] + [valu("v_mov_b32", r, "0xff800000") for r in MX] + reset_off()
    b1 = [label(f"{name}_fb1")] + load([0, 1]) + qk([None]*3)
    for qt in range(3):
        for Tk in range(2):
            s = sreg(0, Tk, qt)
            b1 += [valu("v_max3_f32", MX[qt], MX[qt], s, s+1), valu("v_max3_f32", MX[qt], MX[qt], s+2, s+3)]
    b1 += [waitcnt(lgkm=0), raw(f"s_sub_u32 s{S_CNT}, s{S_CNT}, 1"), raw(f"s_cmp_lg_u32 s{S_CNT}, 0"), raw(f"s_cbranch_scc1 {name}_fb1")]
    mid = []
    for qt in range(3):
        mid += [valu("v_mov_b32", TT, MX[qt]), perm32(TT, MX[qt]), valu("v_max_f32", MX[qt], MX[qt], TT),
                valu("v_mov_b32", TT, MX[qt]), perm16(TT, MX[qt]), valu("v_max_f32", MX[qt], MX[qt], TT)]
        for i in range(4): mid.append(I(f"v_sub_f32 v{NM[qt]+i}, 0, v{MX[qt]}", rd=[MX[qt]], wr=[NM[qt]+i], kind="valu"))
    for i in range(96): mid.append(valu("v_mov_b32", ACC + i, "0"))
    for r in LSUM: mid.append(valu("v_mov_b32", r, "0"))
    mid += reset_off()
    b2 = [label(f"{name}_fb2")] + load([0, 1, 2, 3]) + qk(NM)
    for part in range(2):
        for qt in range(3):
            s = sreg(0, part, qt); p = preg(0, part, qt)
            b2 += [vexp(s+i, s+i) for i in range(4)] + [valu("v_add_f32", LSUM[qt], LSUM[qt], s+i) for i in range(4)] + [cvtpk(p, s, s+1), cvtpk(p+1, s+2, s+3)]
    for half in range(2):
        for T in range(4*half, 4*half + 4): b2 += v_read(0, T)
        for T in range(4*half, 4*half + 4):
            for qt in range(3): b2.append(mfma16(acc(T, qt), VF + 4*(T % 4), pop(0, qt), acc(T, qt)))
    b2 += [waitcnt(lgkm=0), raw(f"s_sub_u32 s{S_CNT}, s{S_CNT}, 1"), raw(f"s_cmp_lg_u32 s{S_CNT}, 0"), raw(f"s_cbranch_scc1 {name}_fb2")]
    post = [nop(15), raw(f"s_mov_b32 s{S_FB}, 1"), raw(f"s_branch {name}_e0")]
    p1, l1, st = resolve_loop([nop(15)] + pre, b1)
    p2, l2, st = resolve_loop(mid, b2, st)
    po, _ = resolve(post, st)
    return p1 + l1 + p2 + l2 + po

V_HOLD = 253
SRDH = 24
SRDH = 100 - 4
def hold_setup(name, opts, A, P):
    t0 = S_T[0]
    A(f"s_lshl_b32 s{t0}, s{S_ID}, 7"); A(f"s_add_u32 s{t0}, s{t0}, {FLAGOFF + 65536}")
    srd_build(A, SRDH, S_PTR+8, t0, 4)
    P.append(valu("v_mov_b32", V_TCH, "0"))
    A(f"buffer_load_dword v{V_HOLD}, v{V_TCH}, s[{SRDH}:{SRDH+3}], 0 offen sc1")
def hold_wait(name, opts):
    o = []
    A = lambda t: o.append(raw(t))
    A(f"s_cmp_eq_u32 s{S_BR}, 0"); A(f"s_cbranch_scc1 {name}_hw_end")
    A(f"s_cmp_eq_u32 s{S_W}, 0"); A(f"s_cbranch_scc0 {name}_hw_done")
    A("s_waitcnt vmcnt(0)"); A(f"v_readfirstlane_b32 s{S_T[4]}, v{V_HOLD}"); A(f"s_mov_b32 s{S_T[5]}, {opts.get('hold_polls', 24)}")
    o.append(label(f"{name}_hw"))
    A(f"buffer_load_dword v{V_HOLD}, v{V_TCH}, s[{SRDH}:{SRDH+3}], 0 offen sc1"); A("s_waitcnt vmcnt(0)")
    A(f"v_readfirstlane_b32 s{S_T[6]}, v{V_HOLD}")
    A(f"s_sub_u32 s{S_T[5]}, s{S_T[5]}, 1"); A(f"s_cbranch_scc1 {name}_hw_done"); A("s_nop 2")
    A(f"s_cmp_lg_u32 s{S_T[6]}, s{S_T[4]}"); A(f"s_cbranch_scc1 {name}_hw_done")
    A(f"s_sleep {opts.get('hold_sleep', 8)}"); A(f"s_branch {name}_hw")
    o.append(label(f"{name}_hw_done")); o.append(barrier()); o.append(label(f"{name}_hw_end"))
    return o
def hold_release(name):
    return [raw(f"s_or_b32 s{S_T[0]}, s{S_BR}, s{S_W}"), raw(f"s_cmp_eq_u32 s{S_T[0]}, 0"), raw(f"s_cbranch_scc0 {name}_hr"),
            raw(f"v_add_u32 v{V_HOLD}, 1, v{V_HOLD}", kind="valu", rd=[V_HOLD], wr=[V_HOLD]), raw(f"v_mov_b32 v{V_TCH}, 0", kind="valu", wr=[V_TCH]),
            raw("s_mov_b64 exec, 1"),
            raw(f"buffer_store_dword v{V_HOLD}, v{V_TCH}, s[{SRDH}:{SRDH+3}], 0 offen sc1"),
            raw("s_mov_b64 exec, -1"), raw("s_nop 1"), label(f"{name}_hr")]

WOT = "sc"
def wo_touch():
    if WOT == "sc":
        return [valu("v_lshlrev_b32", V_TCH, "7", 0), raw(f"s_lshl_b32 s{S_T[0]}, s{S_W}, 13"), bload(V_DUMMY, 1, V_TCH, SRDWO, S_T[0])]
    o = [nop(0), raw(f"s_mul_i32 s{S_T[0]}, s{S_W}, 5120")]
    o += [bload(V_DUMMY, 1, V_L16, SRDWO, S_T[0], off=j*1024 if j < 4 else 0) for j in range(4)]
    o += [raw(f"s_add_u32 s{S_T[0]}, s{S_T[0]}, 4096"), bload(V_DUMMY, 1, V_L16, SRDWO, S_T[0])]
    return o

def att_prio(name, opts):
    pa, pb = opts.get('prioAttA', opts.get('prioAtt', 0)), opts.get('prioAttB', opts.get('prioAtt', 0))
    if pa == pb: return [raw(f"s_setprio {pa}")]
    return [raw(f"s_cmp_eq_u32 s{S_BR}, 0"), raw(f"s_cbranch_scc0 {name}_apb"), raw(f"s_setprio {pa}"), raw(f"s_branch {name}_apd"),
            label(f"{name}_apb"), raw(f"s_setprio {pb}"), label(f"{name}_apd")]

def build_head(name, opts, ST):
    global POL, KVROT, ATTVM, XO, LMF, QRD, BAR2, WOT
    WOT = opts.get('wot', 'sc')
    BAR2 = opts.get('bar2', False)
    QRD = opts.get('qrd', 19)
    LMF = opts.get('lmfma', False)
    XO = opts.get('x', {})
    ATTVM = opts.get('att_vm', 8)
    POL = opts.get("polite"); KVROT = opts.get("kvrot", True)
    kvflags = opts.get("kvflags", "nt")
    pro = head_prologue(name, opts) + ST(1) + [raw(f"s_mov_b32 s{S_CNT}, 4")]
    qb = [label(f"{name}_qloop")]
    for p in range(2): qb += q_iter(p, 'Q')
    qb += [raw(f"s_sub_u32 s{S_CNT}, s{S_CNT}, 1"), raw(f"s_cmp_lg_u32 s{S_CNT}, 0"), raw(f"s_cbranch_scc1 {name}_qloop")]
    pro2, qb2, st = resolve_loop(pro, qb)
    last = ST(2)
    if opts.get("hold", True):
        if opts.get("hold_at", "q") == "q": last += hold_release(name)
    if opts.get("touch_wo", True) and opts.get("wo_pos") == "q8": last += wo_touch()
    last += q_switch() + q_iter(0, 'K0', kvflags) + q_iter(1, 'K1', kvflags)
    last2, st = resolve(last, st)
    wot = wo_touch() if opts.get("touch_wo", True) and opts.get("wo_pos", "mid") == "mid" else []
    mid = [waitcnt(lgkm=0)] + ST(3) + wot + att_prio(name, opts) + q_convert() + att_prologue(kvflags) + [raw(f"s_mov_b32 s{S_CNT}, 4")]
    body = [label(f"{name}_aloop")]
    for u in range(3): body += h0(u) + h1(u, kvflags)
    body += [raw(f"s_cmp_eq_u32 s{S_CNT}, 1"), raw(f"s_cbranch_scc1 {name}_tail")]
    body += h0(3) + h1(3, kvflags)
    body += [raw(f"s_sub_u32 s{S_CNT}, s{S_CNT}, 1"), raw(f"s_branch {name}_aloop")]
    mid2, st1 = resolve(mid, st)
    _, body2, _ = resolve_loop([], body, st1)
    idx = [i for i, x in enumerate(body2) if x.txt.startswith(f"s_cbranch_scc1 {name}_tail")][0]
    _, sA = resolve(body2, st1.copy(), insert=False)
    _, sB = resolve(body2[:idx+1], sA.copy(), insert=False)
    tail = [label(f"{name}_tail")] + h0(3, tail=True) + h1(3, kvflags, tail=True) + ([] if opts.get("pstamp") else ST(4)) + (wo_touch() if opts.get("touch_wo", True) and opts.get("wo_pos") == "epi" else []) + head_epilogue(name, opts)
    tail2, _ = resolve(tail, sB)
    return pro2 + qb2 + last2 + mid2 + body2 + tail2

WSLOT = 4224; NR = 3
OACC = 16
OBF = 144
OAF = 240
O_OFFO, O_OFFW, O_AW, O_FL, O_PV = [1, 2], 3, 4, 5, 6
OG, OM, ORR, OC = 7, 8, 9, 10
OS_OO = 32; OS_OW = [33, 34, 35, 36]; OS_L = 37
OSRDO, OSRDW, OSRDOUT, OSRDF = 12, 16, 20, 24
OS_OFF, OS_WO0, OS_OO0 = 8, 40, 41
OS_AV, OS_ISS, OS_ROT = 38, 39, 9
OS_A2 = 46
OS_WB = 10
def oacc(rt, Tc): return OACC + (rt * 4 + Tc) * 4
_sel = [0]
def o_select(name, opts):
    _sel[0] += 1
    L = f"{name}_s{_sel[0]}"
    t0, t1 = S_T[0], S_T[1]
    return [raw(f"s_cmp_lg_u32 s{OS_AV}, 0"), raw(f"s_cbranch_scc1 {L}_have"),
         raw(f"s_mov_b32 s{t0}, 32"), raw(f"s_cmp_eq_u32 s{OS_ISS}, -1"), raw(f"s_cbranch_scc1 {L}_addr"),
         raw(f"s_mov_b32 s{S_T[5]}, 200000"),
         label(f"{L}_poll"),
         raw(f"buffer_load_dword v{O_PV}, v{O_FL}, s[{OSRDF}:{OSRDF+3}], 0 offen sc1")] + ([
         raw(f"buffer_load_dword v11, v{O_FL}, s[{OSRDF}:{OSRDF+3}], s{OS_WB} offen sc1"), raw("s_waitcnt vmcnt(0)"),
         raw(f"v_cmp_eq_u32 s[{OS_A2}:{OS_A2+1}], s{S_NONCE}, v11"),
         raw(f"v_cmp_eq_u32 vcc, s{S_NONCE}, v{O_PV}"), raw("s_nop 3"), raw(f"s_and_b64 vcc, vcc, s[{OS_A2}:{OS_A2+1}]")] if opts.get("waitB") else [raw("s_waitcnt vmcnt(0)"),
         raw(f"v_cmp_eq_u32 vcc, s{S_NONCE}, v{O_PV}")]) + [
         raw(f"s_sub_u32 s{S_T[5]}, s{S_T[5]}, 1"), raw(f"s_cselect_b32 s{t1}, -1, 0"), raw("s_nop 2"),
         raw(f"s_and_b32 s{t0}, vcc_lo, vcc_hi"),
         raw(f"s_or_b32 s{t1}, s{t1}, s{t0}"), raw(f"s_andn2_b32 s{OS_AV}, s{t1}, s{OS_ISS}"),
         raw(f"s_cbranch_scc1 {L}_have"), raw(f"s_sleep {opts.get('sleep', 8)}"), raw(f"s_branch {L}_poll"),
         label(f"{L}_have"),
         raw(f"s_mov_b32 s{OS_A2}, s{OS_AV}"), raw(f"s_mov_b32 s{OS_A2+1}, s{OS_AV}"),
         raw(f"s_lshr_b64 s[{OS_A2}:{OS_A2+1}], s[{OS_A2}:{OS_A2+1}], s{OS_ROT}"),
         raw(f"s_ff1_i32_b32 s{t0}, s{OS_A2}"), raw(f"s_add_u32 s{t0}, s{t0}, s{OS_ROT}"), raw(f"s_and_b32 s{t0}, s{t0}, 31"),
         raw(f"s_lshl_b32 s{t1}, 1, s{t0}"), raw(f"s_or_b32 s{OS_ISS}, s{OS_ISS}, s{t1}"), raw(f"s_andn2_b32 s{OS_AV}, s{OS_AV}, s{t1}"),
         label(f"{L}_addr"),
         raw(f"s_lshl_b32 s{t1}, s{t0}, 15"), raw(f"s_add_u32 s{OS_OO}, s{OS_OO0}, s{t1}"),
         raw(f"s_mul_i32 s{t1}, s{t0}, {128*1280}"), raw(f"s_add_u32 s{OS_OW[0]}, s{OS_WO0}, s{t1}"),
         raw(f"s_add_u32 s{OS_OW[1]}, s{OS_OW[0]}, 1280"), raw(f"s_add_u32 s{OS_OW[2]}, s{OS_OW[0]}, 2560"), raw(f"s_add_u32 s{OS_OW[3]}, s{OS_OW[0]}, 3840")]
OFL = 'sc1'
def o_loads(u):
    o = []
    for j in range(8): o.append([bload(OBF + 32*u + 4*j, 4, O_OFFO[j//4], OSRDO, OS_OO, off=(j%4)*1024, flags=OFL)])
    for b in range(4): o.append([m0set(OS_L, u * WSLOT + b * 1056), dma(O_OFFW, OSRDW, OS_OW[b])])
    return o
def o_aread(u, Tc):
    off = u * WSLOT + Tc * 32
    return [dstr(OAF + 4*Tc, O_AW, off), dstr(OAF + 4*Tc + 2, O_AW, off + 512)]

def build_oproj(name, opts, ST):
    global OFL
    OFL = opts.get('oflags', 'sc1')
    P = []
    A = lambda t, **k: P.append(raw(t, **k))
    t0, t1, t2 = S_T[0], S_T[1], S_T[2]
    A(f"s_sub_u32 s{S_ID}, s2, 512")
    if opts.get("omap", "xcd") == "xcd":
        A(f"s_and_b32 s3, s{S_ID}, 7"); A(f"s_lshr_b32 s{S_BR}, s3, 2"); A(f"s_lshr_b32 s{OS_OFF}, s{S_ID}, 3")
        A(f"s_mul_i32 s{t1}, s{OS_OFF}, 6554"); A(f"s_lshr_b32 s{t1}, s{t1}, 16")
        A(f"s_and_b32 s{t2}, s3, 3"); A(f"s_mul_i32 s{t2}, s{t2}, 3"); A(f"s_add_u32 s6, s{t2}, s{t1}")
        A(f"s_mul_i32 s{t1}, s{t1}, 10"); A(f"s_sub_u32 s7, s{OS_OFF}, s{t1}")
    else:
        A(f"s_cmp_ge_u32 s{S_ID}, 120"); A(f"s_cselect_b32 s{S_BR}, 1, 0")
        A(f"s_mul_i32 s{t0}, s{S_BR}, 120"); A(f"s_sub_u32 s{S_ID}, s{S_ID}, s{t0}")
        A(f"s_and_b32 s3, s{S_ID}, 7"); A(f"s_lshr_b32 s{OS_OFF}, s{S_ID}, 3")
        A(f"s_mul_i32 s{t1}, s{OS_OFF}, 13108"); A(f"s_lshr_b32 s{t1}, s{t1}, 16")
        A(f"s_lshr_b32 s{t2}, s3, 1"); A(f"s_mul_i32 s{t2}, s{t2}, 3"); A(f"s_add_u32 s6, s{t2}, s{t1}")
        A(f"s_mul_i32 s{t1}, s{t1}, 5"); A(f"s_sub_u32 s7, s{OS_OFF}, s{t1}"); A(f"s_and_b32 s{t2}, s3, 1"); A(f"s_mul_i32 s{t2}, s{t2}, 5"); A(f"s_add_u32 s7, s7, s{t2}")
    A(f"s_mul_i32 s3, s{S_BR}, 40"); A("s_add_u32 s3, s3, 32")
    A(f"s_load_dwordx2 s[{S_PTR}:{S_PTR+1}], s[0:1], s3")
    A(f"s_load_dwordx4 s[{S_PTR+4}:{S_PTR+7}], s[0:1], 80")
    A(f"s_load_dwordx2 s[{S_PTR+8}:{S_PTR+9}], s[0:1], 96")
    P.append(valu("v_lshrrev_b32", OG, "6", 0)); P.append(valu("v_and_b32", 0, "63", 0))
    A("s_nop 0"); A(f"v_readfirstlane_b32 s{S_W}, v{OG}")
    P.append(valu("v_lshrrev_b32", OG, "4", 0)); P.append(valu("v_and_b32", OM, "15", 0))
    P.append(valu("v_bfe_u32", ORR, 0, "2", "2")); P.append(valu("v_and_b32", OC, "3", 0))
    P.append(valu("v_lshlrev_b32", O_OFFO[0], "4", 0)); P.append(valu("v_add_u32", O_OFFO[1], "4096", O_OFFO[0]))
    P.append(valu("v_lshrrev_b32", 16, "3", 0)); P.append(valu("v_mul_u32_u24", 16, "5120", 16))
    P.append(valu("v_and_b32", 17, "7", 0)); P.append(valu("v_lshl_add_u32", O_OFFW, 17, "4", 16))
    A(f"s_mul_i32 s{OS_L}, s{S_W}, {NR*WSLOT}")
    P.append(valu("v_mul_u32_u24", 16, "1056", ORR)); P.append(valu("v_lshl_add_u32", 16, OG, "7", 16)); P.append(valu("v_lshl_add_u32", 16, OC, "3", 16))
    P.append(valu("v_add_u32", O_AW, f"s{OS_L}", 16))
    A(f"s_lshl_b32 s{OS_OO0}, s{S_W}, 13"); A(f"s_mul_i32 s{OS_WO0}, s{S_W}, {32*1280}")
    A("s_waitcnt lgkmcnt(0)")
    A(f"s_mul_i32 s{t0}, s{S_BR}, 12"); A(f"s_add_u32 s{t0}, s{t0}, s6"); A(f"s_lshl_b32 s{t0}, s{t0}, 20")
    srd_build(A, OSRDO, S_PTR+8, t0, 1048576)
    A(f"s_lshl_b32 s{t0}, s7, 7"); srd_build(A, OSRDW, S_PTR, t0, 4096*1280 - 9*128)
    A(f"s_mul_i32 s{t0}, s6, {128*2560}"); A(f"s_mul_i32 s{t1}, s{S_BR}, 1280"); A(f"s_add_u32 s{t0}, s{t0}, s{t1}")
    A(f"s_lshl_b32 s{t1}, s7, 7"); A(f"s_add_u32 s{t0}, s{t0}, s{t1}")
    srd_build(A, OSRDOUT, S_PTR+4, t0, 127*2560 + 128)
    srd_build(A, SRDD, S_PTR+6, None, 256)
    A(f"s_mov_b32 s{t0}, 0")
    P.extend(poll(f"{name}_pn", SRDD, t0, 1, 'ge', O_FL, sleep=8))
    A(f"s_mov_b32 s{S_NONCE}, s{S_T[6]}")
    A(f"s_mul_i32 s{t0}, s6, 43691"); A(f"s_lshr_b32 s{t0}, s{t0}, 16")
    A(f"s_lshl_b32 s{t1}, s6, 7"); A(f"s_add_u32 s{t1}, s{t1}, 127"); A(f"s_mul_i32 s{t1}, s{t1}, 21846"); A(f"s_lshr_b32 s{t1}, s{t1}, 22")
    A(f"s_sub_u32 s{t1}, s{t1}, s{t0}"); A(f"s_mul_i32 s{t1}, s{t1}, 384")
    A(f"s_lshl_b32 s{t2}, s{S_BR}, 3"); A(f"s_add_u32 s{t0}, s{t0}, s{t2}"); A(f"s_mul_i32 s{t0}, s{t0}, 384")
    A(f"s_mul_i32 s{t2}, s7, 21846"); A(f"s_lshr_b32 s{t2}, s{t2}, 16"); A(f"s_mul_i32 s{t2}, s{t2}, 3"); A(f"s_sub_u32 s{t2}, s7, s{t2}")
    A(f"s_lshl_b32 s{t2}, s{t2}, 7"); A(f"s_add_u32 s{t0}, s{t0}, s{t2}"); A(f"s_add_u32 s{t0}, s{t0}, {FLAGOFF}")
    srd_build(A, OSRDF, S_PTR+8, t0, 512 + (8*384 if opts.get("waitB") else 0))
    A(f"s_cmp_eq_u32 s{S_BR}, 0"); A(f"s_cselect_b32 s{OS_WB}, {8*384}, 0")
    P.append(valu("v_and_b32", O_FL, "31", 0)); P.append(valu("v_lshlrev_b32", O_FL, "2", O_FL))
    P.append(valu("v_lshrrev_b32", 16, "5", 0)); P.append(valu("v_mul_lo_u32", 16, f"s{t1}", 16)); P.append(valu("v_add_u32", O_FL, O_FL, 16))
    A(f"s_mov_b32 s{OS_AV}, 0"); A(f"s_mov_b32 s{OS_ISS}, 0")
    if opts.get("trot"):
        A(f"s_memrealtime s[{OS_A2}:{OS_A2+1}]"); A("s_waitcnt lgkmcnt(0)")
        A(f"s_sub_u32 s{t0}, s{OS_A2}, s{S_NONCE}"); A(f"s_mul_i32 s{t0}, s{t0}, {65536 // opts['trot']}"); A(f"s_lshr_b32 s{t0}, s{t0}, 16")
        A(f"s_and_b32 s{t1}, s{OS_OFF}, {opts.get('rotmask', 3)}"); A(f"s_add_u32 s{t0}, s{t0}, s{t1}"); A(f"s_and_b32 s{OS_ROT}, s{t0}, 31")
    else:
        A(f"s_and_b32 s{OS_ROT}, s{OS_OFF}, {opts.get('rotmask', 7)}")
    for i in range(128): P.append(valu("v_mov_b32", OACC + i, "0"))
    P.extend(ST(1))
    for u in range(2):
        P.extend(o_select(name, opts))
        for grp in o_loads(u): P.extend(grp if len(grp) == 1 else [grp[0], nop(0)] + grp[1:])
    P.append(waitcnt(vm=12))
    for Tc in range(4): P.extend(o_aread(0, Tc))
    A(f"s_mov_b32 s{S_CNT}, 11")
    body = [label(f"{name}_loop")]
    for u in range(3):
        mf = [mfma16(oacc(rt, Tc), OAF + 4*Tc, OBF + 32*u + 4*rt, oacc(rt, Tc)) for Tc in range(4) for rt in range(8)]
        slots = [[] for _ in mf]
        slots[0] += o_select(name, opts)
        for j, grp in enumerate(o_loads((u + 2) % 3)):
            k = 1 + (j * 22) // 12
            if len(grp) == 1: slots[k] += grp
            else: slots[k].append(grp[0]); slots[k+1] += grp[1:]
        slots[24].append(waitcnt(vm=12))
        n = (u + 1) % 3
        slots[24] += o_aread(n, 0); slots[25] += o_aread(n, 1); slots[26] += o_aread(n, 2); slots[31] += o_aread(n, 3)
        body += emit(mf, slots)
    if opts.get("ostamp"):
        for cnt, idx in ((9, 2), (5, 3)):
            body += [raw(f"s_cmp_eq_u32 s{S_CNT}, {cnt}"), raw(f"s_cbranch_scc0 {name}_os{idx}")] + ST(idx) + [label(f"{name}_os{idx}")]
    body += [raw(f"s_sub_u32 s{S_CNT}, s{S_CNT}, 1"), raw(f"s_cmp_lg_u32 s{S_CNT}, 0"), raw(f"s_cbranch_scc1 {name}_loop")]
    P2, body2, st = resolve_loop(P, body)
    E = []
    A = lambda t, **k: E.append(raw(t, **k))
    E.extend(ST(4 if opts.get("ostamp") else 2))
    E.append(valu("v_lshlrev_b32", 11, "4", 0))
    A(f"s_lshl_b32 s{t0}, s{S_W}, 14"); E.append(valu("v_add_u32", 12, f"s{t0}", 11))
    A(f"s_lshl_b32 s{t0}, s{S_W}, 12"); E.append(valu("v_add_u32", 13, f"s{t0}", 11))
    E.append(valu("v_and_b32", 14, "1", OG)); E.append(valu("v_lshlrev_b32", 14, "1", 14)); E.append(valu("v_lshrrev_b32", 15, "1", OG))
    E.append(valu("v_or_b32", 14, 14, 15)); E.append(valu("v_lshlrev_b32", 14, "4", 14))
    E.append(valu("v_mul_u32_u24", 15, "2560", OM)); E.append(valu("v_add_u32", 14, 14, 15))
    A(f"s_mul_i32 s{t0}, s{S_W}, {16*2560}"); A(f"s_add_u32 s{t1}, s{t0}, {64*2560}")
    E.append(waitcnt(vm=0, lgkm=0)); E.append(barrier())
    for r in range(2):
        for tl in range(16): E.append(dsw128(12, OACC + (16*r + tl)*4, tl*1024))
        E.append(waitcnt(lgkm=0)); E.append(barrier())
        for t in range(4):
            for p in range(4): E.append(ds128(144 + (p*4 + t)*4, 13, p*16384 + t*1024))
        for pr in range(2):
            for h in range(2):
                t = 2*pr + h
                for i in range(4):
                    a = 144 + t*4 + i
                    E.append(valu("v_add_f32", a, a, a + 16)); E.append(valu("v_add_f32", a + 32, a + 32, a + 48))
                for i in range(4):
                    a = 144 + t*4 + i
                    E.append(valu("v_add_f32", a, a, a + 32))
            a = 144 + 2*pr*4; b = a + 4; q = 240 + (r*2 + pr)*4
            E += [cvtpk(q, a, a+1), cvtpk(q+1, a+2, a+3), cvtpk(q+2, b, b+1), cvtpk(q+3, b+2, b+3), perm16(q, q+2), perm16(q+1, q+3)]
            E.append(bstore(q, 4, 14, OSRDOUT, t0 if r == 0 else t1, off=pr*64))
        if r == 0: E.append(waitcnt(lgkm=0)); E.append(barrier())
    E2, _ = resolve(E, st)
    return P2 + body2 + E2

def build(name, stamps=False, **opts):
    ST = (lambda i, real=False: stamp(i, real)) if stamps else (lambda i, real=False: [])
    out = [label(name)] + ST(0) + ST(6, True)
    out += [raw("s_cmp_ge_u32 s2, 752"), raw(f"s_cbranch_scc1 {name}_end"), raw("s_cmp_ge_u32 s2, 512"), raw(f"s_cbranch_scc1 {name}_oproj")]
    if opts.get("skip_heads") == "holdB":
        out += [raw("s_cmp_lt_u32 s2, 256"), raw(f"s_cbranch_scc1 {name}_end"), raw("s_mov_b32 s4, 40"), label(f"{name}_hb"), raw("s_sleep 32"),
                raw("s_sub_u32 s4, s4, 1"), raw("s_cmp_lg_u32 s4, 0"), raw(f"s_cbranch_scc1 {name}_hb"), raw("s_endpgm")]
    elif opts.get("skip_heads"): out += [raw("s_endpgm")]
    fin_h = []; fin_o = []
    if stamps:
        fin_h = [waitcnt(vm=0), raw("s_mov_b64 exec, -1")] + ([] if opts.get("pstamp") else ST(5)) + ST(7, True) + stamp_dump(8, S_PTR+8, S_W, 64<<20, 16, nwaves_shift=2)
        fin_o = [waitcnt(vm=0)] + ([] if opts.get("ostamp") else ST(3) + ST(4)) + ST(5) + ST(7, True) + stamp_dump(8, S_PTR+8, S_W, 64<<20, 16, nwaves_shift=2)
    out += build_head(name + "_h", opts, ST) + fin_h + [raw("s_endpgm")] + head_fallback(name + "_h")
    out += [label(f"{name}_oproj")] + build_oproj(name + "_o", opts, ST) + fin_o
    out += [label(f"{name}_end"), raw("s_endpgm")]
    return out
```

```python
from asmlib import *

QSLOT = 40960; XOFF = 16384
ASLOT = 16896; VOFF = 8448
ACC = 16; QF = 112
SX, SY, SZ = 160, 172, 184
PB = 196; KF = 214; VF = 230
QA = [160, 204]; QB = [192, 236]
V_OFFA, V_OFFB, V_L16 = 1, 2, 3
A_W = [4, 5, 6, 7, 8, 9, 10, 11]; A_X = [12, 15]; A_K = 13; A_V = 14
LSUM = [4, 5, 6]; VT = [7, 8, 9, 10]
ONES = 250
LACC = [4, 8, 246]
LMF = False
G, M, RR, C = 248, 249, 250, 251
V_DUMMY = 255; V_TCH = 254
S_W, S_BR, S_B, S_H = 4, 5, 6, 7
SRDA, SRDB, SRDK, SRDV, SRDO, SRDD = 12, 16, 20, 24, 28, 64
S_O = [32, 33, 34, 35]; S_L = [38, 39, 40, 41]; S_CNT = 42
S_OW, S_OX, S_LW, S_LX, S_SIG, S_TT = 8, 9, 36, 37, 10, 11
S_KC, S_VC, S_KB, S_KROT = 8, 9, 36, 37
S_T = [43, 44, 45, 46, 47, 48, 49]
S_SC = 50
S_PTR = 52
SRDWO = 68
S_ID = 72
S_DBG = 74
FLAGOFF = 32 << 20
S_NONCE = 73

def acc(T, qt): return ACC + (T * 3 + qt) * 4
def qf(qt, c): return QF + (qt * 4 + c) * 4

def emit(mf, slots):
    out = []
    for m, fs in zip(mf, slots):
        out.append(m)
        for f in fs:
            if isinstance(f, list): out.extend(f)
            else: out.append(f)
    return out
def spread(slots, items, lo, hi):
    n = len(items); m = hi - lo
    for i, it in enumerate(items): slots[lo + (i * m) // n].append(it)

def q_addr():
    t0 = S_T[0]
    return [salu(f"s_lshl_b32 s{t0}, s{S_SIG}, 19"), salu(f"s_add_u32 s{S_O[0]}, s{S_OW}, s{t0}"),
            salu(f"s_lshl_b32 s{t0}, s{S_SIG}, 7"), salu(f"s_add_u32 s{S_O[1]}, s{S_OX}, s{t0}"),
            salu(f"s_add_u32 s{S_SIG}, s{S_SIG}, 1"), salu(f"s_cmp_eq_u32 s{S_SIG}, 10"), salu(f"s_cselect_b32 s{S_SIG}, 0, s{S_SIG}")]
def q_dma(slot):
    out = []
    for i in range(4):
        g = [m0set(S_LW, slot * QSLOT + i * 4096)]
        if i == 0: g += [dma(V_OFFA, SRDA, S_O[0])]
        else: g += [salu(f"s_add_u32 s{S_TT}, s{S_O[0]}, {i*16*8192}"), dma(V_OFFA, SRDA, S_TT)]
        out.append(g)
    for i in range(6):
        g = [m0set(S_LX, slot * QSLOT + i * 4096)]
        if i == 0: g += [dma(V_OFFB, SRDB, S_O[1])]
        else: g += [salu(f"s_add_u32 s{S_TT}, s{S_O[1]}, {i*32*1280}"), dma(V_OFFB, SRDB, S_TT)]
        out.append(g)
    return out
KVROT = True
def kv_addr(which):
    c = S_KC if which == 0 else S_VC
    a, b = (S_O[0], S_O[1]) if which == 0 else (S_O[2], S_O[3])
    t = S_TT
    return [salu(f"s_add_u32 s{t}, s{c}, s{S_KROT}"), salu(f"s_and_b32 s{t}, s{t}, 15"), salu(f"s_cmp_lt_u32 s{c}, 16"),
            salu(f"s_cselect_b32 s{t}, s{t}, 16"), salu(f"s_lshl_b32 s{t}, s{t}, 13"), salu(f"s_add_u32 s{a}, s{t}, s{S_KB}"),
            salu(f"s_add_u32 s{b}, s{a}, 4096"), salu(f"s_add_u32 s{c}, s{c}, 1")]
def kv_dma(kslot, vslot, flags):
    out = []
    for j in range(4):
        sl = kslot if j < 2 else vslot
        if KVROT:
            pre = kv_addr(j // 2) if j % 2 == 0 else []
            post = nop(0)
        else:
            pre = []
            post = salu(f"s_add_u32 s{S_O[j]}, s{S_O[j]}, 8192")
        out.append([pre + [m0set(S_L[j], sl * ASLOT)], dma(V_L16, SRDK if j < 2 else SRDV, S_O[j], flags), post])
    return out

def q_frag_reads(slot, e, st):
    out = []
    for qt in range(3): out.append(ds128(QB[st] + 4*qt, A_X[e], slot * QSLOT + qt * 2048))
    for T in range(8):
        o = slot * QSLOT + e * 8192
        out.append(dstr(QA[st] + 4*T, A_W[T], o)); out.append(dstr(QA[st] + 4*T + 2, A_W[T], o + 1024))
    return out

_pl = [0]
def polite(n):
    _pl[0] += 1
    lab = f"Lpol{_pl[0]}"
    return [raw(f"s_cmp_eq_u32 s{S_BR}, 0"), raw(f"s_cbranch_scc1 {lab}"), waitcnt(vm=n), label(lab)]
POL = None
QRD = 19
def q_half(st, reads, extra):
    mf = [mfma16(acc(T, qt), QA[st] + 4*T, QB[st] + 4*qt, acc(T, qt)) for T in range(8) for qt in range(3)]
    slots = [[] for _ in mf]
    for i, rd in enumerate(reads): slots[(i * QRD) // 19 if i < 19 else 23].append(rd)
    n = len(extra)
    for j, grp in enumerate(extra):
        k = (j * 22) // max(n, 1)
        slots[k].append(grp[0]); slots[k+1] += [x for x in grp[1:] if getattr(x, "kind", "") != "nop"]
    return emit(mf, slots)

def q_iter(p, kind, kvflags=""):
    out = q_half(0, q_frag_reads(p, 1, 1), [])
    out += [waitcnt(vm=0, lgkm=0) if kind != 'K1' else waitcnt(lgkm=0), barrier()]
    if kind == 'Q':
        extra = [q_addr()] + q_dma(p)
        if POL:
            for pos, n in POL: extra[pos] = extra[pos] + polite(n)
    elif kind == 'K0': extra = kv_dma(0, 0, kvflags) + kv_dma(1, 1, kvflags)
    else: extra = kv_dma(2, 2, kvflags) + kv_dma(3, 3, kvflags)
    reads = q_frag_reads(1 - p, 0, 0) if kind != 'K1' else []
    out += q_half(1, reads, extra)
    return out

def q_switch():
    o = []
    A = lambda t: o.append(raw(t))
    t0, t1 = S_T[0], S_T[1]
    A(f"s_lshr_b32 s{t0}, s{S_W}, 1"); A(f"s_lshl_b32 s{t0}, s{t0}, 2"); A(f"s_and_b32 s{t1}, s{S_W}, 1"); A(f"s_add_u32 s{t0}, s{t0}, s{t1}")
    A(f"s_lshl_b32 s{t0}, s{t0}, 4"); A(f"s_lshl_b32 s{t1}, s{S_W}, 10"); A(f"s_add_u32 s{S_L[0]}, s{t0}, s{t1}")
    A(f"s_add_u32 s{S_L[1]}, s{S_L[0]}, {4096+128}")
    A(f"s_mul_i32 s{t0}, s{S_W}, 1056"); A(f"s_add_u32 s{S_L[2]}, s{t0}, {VOFF}"); A(f"s_add_u32 s{S_L[3]}, s{S_L[2]}, {4*1056}")
    A(f"s_lshl_b32 s{S_KB}, s{S_W}, 10"); A(f"s_mov_b32 s{S_KC}, 0"); A(f"s_mov_b32 s{S_VC}, 0")
    if KVROT:
        A(f"s_lshr_b32 s{S_KROT}, s{S_ID}, 3"); A(f"s_add_u32 s{S_KROT}, s{S_KROT}, s{S_ID}"); A(f"s_and_b32 s{S_KROT}, s{S_KROT}, 15")
    else:
        A(f"s_mov_b32 s{S_O[0]}, s{S_KB}"); A(f"s_add_u32 s{S_O[1]}, s{S_KB}, 4096"); A(f"s_mov_b32 s{S_O[2]}, s{S_O[0]}"); A(f"s_mov_b32 s{S_O[3]}, s{S_O[1]}")
    return o

def q_convert():
    o = []
    for qt in range(3):
        for T in range(8):
            a = acc(T, qt)
            o.append(pkmul(a, a, f"s[{S_SC}:{S_SC+1}]")); o.append(pkmul(a+2, a+2, f"s[{S_SC}:{S_SC+1}]"))
    for qt in range(3):
        for c in range(4):
            q = qf(qt, c); a = acc(2*c, qt); b = acc(2*c+1, qt)
            o += [cvtpk(q, a, a+1), cvtpk(q+1, a+2, a+3), cvtpk(q+2, b, b+1), cvtpk(q+3, b+2, b+3)]
    for qt in range(3):
        for c in range(4):
            q = qf(qt, c)
            o += [perm16(q, q+2), perm16(q+1, q+3)]
    for i in range(96): o.append(valu("v_mov_b32", ACC + i, "0"))
    if LMF:
        for qt in range(3):
            for i in range(4): o.append(valu("v_mov_b32", LACC[qt] + i, "0"))
        for i in range(4): o.append(valu("v_mov_b32", ONES + i, "0x3f803f80"))
    else:
        for r in LSUM: o.append(valu("v_mov_b32", r, "0"))
    return o

def sreg(j, Tk, qt):
    if Tk == 0: return SX + 4*qt
    return (SY if j % 2 == 0 else SZ) + 4*qt
def preg(j, part, qt):
    base = PB + 6*qt
    if part == 1: return base + 2
    return base + (0 if j % 2 == 0 else 4)
def pop(j, qt): return PB + 6*qt + (0 if j % 2 == 0 else 2)
def k_read(j, i): return ds128(KF + 4*(i % 4), A_K, (j % 4) * ASLOT + (i % 4) * 64 + (i // 4) * 512)
def v_read(j, T):
    o = (j % 4) * ASLOT + T * 32
    d = VF + 4*(T % 4)
    if j % 2 == 0: return [dstr(d, A_V, o), dstr(d+2, A_V, o + 512)]
    return [dstr(d+2, A_V, o), dstr(d, A_V, o + 512)]
def softmax_ops(j, part):
    if XO.get("nosm"): return [nop(0)]
    ops = []
    for qt in range(3):
        s = sreg(j, part, qt); p = preg(j, part, qt)
        ops.append([vexp(s, s), vexp(s+1, s+1), vexp(s+2, s+2), vexp(s+3, s+3),
                    valu("v_add_f32", LSUM[qt], LSUM[qt], s), cvtpk(p, s, s+1), valu("v_add_f32", LSUM[qt], LSUM[qt], s+1),
                    valu("v_add_f32", LSUM[qt], LSUM[qt], s+2), cvtpk(p+1, s+2, s+3), valu("v_add_f32", LSUM[qt], LSUM[qt], s+3)])
    seq = list(ops[0][:4])
    for qt in range(1, 3):
        e = ops[qt][:4]; f = ops[qt-1][4:]
        seq += [e[0], f[0], f[1], e[1], f[2], e[2], f[3], f[4], e[3], f[5]]
    seq += ops[2][4:]
    if LMF: seq = [x for x in seq if not x.txt.startswith("v_add_f32")]
    if XO.get("noadd"): seq = [x for x in seq if not x.txt.startswith("v_add_f32")]
    if XO.get("noexp"): seq = [x for x in seq if not x.txt.startswith("v_exp")]
    return seq
def qk_mfmas(j):
    mf = []
    for Tk in range(2):
        for c in range(4):
            i = Tk*4 + c
            for qt in range(3):
                s = sreg(j, Tk, qt)
                mf.append(mfma16(s, KF + 4*(i % 4), qf(qt, c), None if c == 0 else s))
    return mf
def pv_mfmas(j):
    return [mfma16(acc(T, qt), VF + 4*(T % 4), pop(j, qt), acc(T, qt)) for T in range(8) for qt in range(3)]
def l_mfmas(j):
    return [mfma16(LACC[qt], ONES, pop(j, qt), LACC[qt]) for qt in range(3)]

def h0(s, tail=False):
    sm = softmax_ops(s, 1)
    vr_ = [v_read(s, T) for T in range(4)]
    if tail:
        out = []
        for v in vr_: out += v
        return out + sm
    mf = qk_mfmas(s + 1)
    slots = [[] for _ in mf]
    for i in range(5): slots[3*i].append(k_read(s + 1, i + 3))
    for T in range(4): slots[14 + 2*T].append(vr_[T][0]); slots[15 + 2*T].append(vr_[T][1])
    spread(slots, sm, 0, 23)
    return emit(mf, slots)
ATTVM = 8
XO = {}
BAR2 = False
def h1(s, kvflags, tail=False):
    mf = pv_mfmas(s)
    slots = [[] for _ in mf]
    for T in range(4, 8):
        v = v_read(s, T); slots[3*(T-4) + 2].append(v[0]); slots[3*(T-4) + 3].append(v[1])
    if not tail:
        spread(slots, softmax_ops(s + 1, 0), 0, 23)
        if BAR2:
            if s % 2 == 0:
                slots[16].append([waitcnt(vm=0, lgkm=0), barrier()])
                grps = kv_dma(s % 4, (s + 3) % 4, kvflags) + kv_dma((s + 1) % 4, s % 4, kvflags)
                for j, grp in enumerate(grps):
                    k = 16 + j
                    slots[k].append(grp[0]); slots[k].append(grp[2] if grp[2].kind == "nop" else nop(0)); slots[k].append(grp[1])
                    if grp[2].kind != "nop": slots[k].append(grp[2])
            for i in range(3): slots[17 + i].append(k_read(s + 2, i))
        else:
          if XO.get("nobar"): slots[16].append([waitcnt(lgkm=0)])
          else: slots[16].append([waitcnt(vm=ATTVM, lgkm=0), barrier()])
          for i in range(3): slots[17 + i].append(k_read(s + 2, i))
          if not XO.get("nodma"):
            for j, grp in enumerate(kv_dma((s + 1) % 4, s % 4, kvflags)):
              slots[17 + j].append(grp[0]); slots[18 + j].append(grp[1])
              if grp[2].kind != "nop": slots[19 + j].append(grp[2])
    if LMF:
        lm = l_mfmas(s); slots[2].append(lm[0]); slots[8].append(lm[1]); slots[13].append(lm[2])
    return emit(mf, slots)
def att_prologue(kvflags):
    o = [raw(f"s_sub_u32 s{S_VC}, s{S_VC}, 1")] if KVROT else [raw(f"s_sub_u32 s{S_O[2]}, s{S_O[2]}, 8192"), raw(f"s_sub_u32 s{S_O[3]}, s{S_O[3]}, 8192")]
    o += [waitcnt(vm=14), barrier()]
    for i in range(3): o.append(k_read(0, i))
    mf = qk_mfmas(0)
    slots = [[] for _ in mf]
    for i in range(5): slots[3*i].append(k_read(0, i + 3))
    o += emit(mf, slots)
    o += [waitcnt(vm=8, lgkm=0), barrier()]
    for i in range(3): o.append(k_read(1, i))
    if not BAR2:
        for grp in kv_dma(0, 3, kvflags): o += grp[0] + [nop(0), grp[1], grp[2]]
    o += softmax_ops(0, 0)
    return o

def srd_build(A, dst, ptr, offreg, nrec):
    if offreg is None:
        A(f"s_mov_b32 s{dst}, s{ptr}"); A(f"s_and_b32 s{dst+1}, s{ptr+1}, 0xffff")
    else:
        A(f"s_add_u32 s{dst}, s{ptr}, s{offreg}"); A(f"s_addc_u32 s{dst+1}, s{ptr+1}, 0"); A(f"s_and_b32 s{dst+1}, s{dst+1}, 0xffff")
    A(f"s_mov_b32 s{dst+2}, {nrec}"); A(f"s_mov_b32 s{dst+3}, 0x20000")

def head_prologue(name, opts):
    P = []
    A = lambda t, **k: P.append(raw(t, **k))
    t0, t1, t2 = S_T[0], S_T[1], S_T[2]
    A(f"s_lshr_b32 s{S_BR}, s2, 8"); A(f"s_and_b32 s{S_ID}, s2, 255")
    A(f"s_mul_i32 s3, s{S_BR}, 40")
    A(f"s_load_dwordx4 s[{S_PTR}:{S_PTR+3}], s[0:1], s3")
    A(f"s_add_u32 s{t1}, s3, 16"); A(f"s_load_dwordx4 s[{S_PTR+4}:{S_PTR+7}], s[0:1], s{t1}")
    A(f"s_load_dwordx2 s[{S_PTR+8}:{S_PTR+9}], s[0:1], 96")
    A(f"s_load_dwordx2 s[{S_DBG}:{S_DBG+1}], s[0:1], 88")
    A(f"s_add_u32 s{t1}, s3, 32"); A(f"s_load_dwordx2 s[{S_PTR+10}:{S_PTR+11}], s[0:1], s{t1}")
    A(f"s_load_dwordx2 s[76:77], s[0:1], 32")
    A(f"s_and_b32 s3, s{S_ID}, 7"); A(f"s_lshr_b32 s{t0}, s{S_ID}, 3")
    A(f"s_lshr_b32 s{S_B}, s3, 2"); A(f"s_lshl_b32 s{S_B}, s{S_B}, 2"); A(f"s_lshr_b32 s{t1}, s{t0}, 3"); A(f"s_add_u32 s{S_B}, s{S_B}, s{t1}")
    A(f"s_and_b32 s{S_H}, s3, 3"); A(f"s_lshl_b32 s{S_H}, s{S_H}, 3"); A(f"s_and_b32 s{t1}, s{t0}, 7"); A(f"s_add_u32 s{S_H}, s{S_H}, s{t1}")
    P.append(valu("v_lshrrev_b32", G, "6", 0)); P.append(valu("v_and_b32", 0, "63", 0))
    A("s_nop 0"); A(f"v_readfirstlane_b32 s{S_W}, v{G}")
    P.append(valu("v_lshrrev_b32", G, "4", 0)); P.append(valu("v_and_b32", M, "15", 0))
    P.append(valu("v_bfe_u32", RR, 0, "2", "2")); P.append(valu("v_and_b32", C, "3", 0))
    P.append(valu("v_lshlrev_b32", V_L16, "4", 0))
    T0, T1 = 16, 17
    A(f"s_lshr_b32 s{t0}, s{S_W}, 1"); A(f"s_and_b32 s{t0}, s{t0}, 1"); A(f"s_lshl_b32 s{t0}, s{t0}, 2")
    P.append(valu("v_or_b32", T0, f"s{t0}", G))
    P.append(valu("v_lshrrev_b32", T1, "1", M)); P.append(valu("v_xor_b32", T0, T0, T1))
    P.append(valu("v_lshlrev_b32", T0, "5", T0))
    P.append(valu("v_and_b32", T1, "1", M)); P.append(valu("v_lshl_add_u32", T0, T1, "4", T0))
    P.append(valu("v_lshl_add_u32", V_OFFA, G, "13", T0))
    A(f"s_and_b32 s{t0}, s{S_W}, 1"); A(f"s_lshl_b32 s{t0}, s{t0}, 2")
    P.append(valu("v_add_u32", T0, f"s{t0}", G))
    P.append(valu("v_and_b32", T1, "7", 0)); P.append(valu("v_xor_b32", T1, T1, T0)); P.append(valu("v_lshlrev_b32", T1, "4", T1))
    P.append(valu("v_lshrrev_b32", T0, "3", 0)); P.append(valu("v_mul_u32_u24", T0, "1280", T0)); P.append(valu("v_add_u32", V_OFFB, T0, T1))
    A(f"s_lshl_b32 s{S_OW}, s{S_W}, 15"); A(f"s_mul_i32 s{S_OX}, s{S_W}, {8*1280}")
    A(f"s_lshl_b32 s{S_LW}, s{S_W}, 10"); A(f"s_add_u32 s{S_LX}, s{S_LW}, {XOFF}")
    if opts.get("rot", False):
        A(f"s_and_b32 s{t0}, s{S_H}, 7"); A(f"s_lshr_b32 s{t1}, s{t0}, 2"); A(f"s_add_u32 s{t0}, s{t0}, s{t1}")
        A(f"s_and_b32 s{t1}, s{S_B}, 3"); A(f"s_mul_i32 s{t1}, s{t1}, 5"); A(f"s_add_u32 s{t1}, s{t1}, 1"); A(f"s_lshr_b32 s{t1}, s{t1}, 1")
        A(f"s_add_u32 s{S_SIG}, s{t0}, s{t1}")
        A(f"s_cmp_ge_u32 s{S_SIG}, 10"); A(f"s_cselect_b32 s{t0}, 10, 0"); A(f"s_sub_u32 s{S_SIG}, s{S_SIG}, s{t0}")
    else:
        A(f"s_mov_b32 s{S_SIG}, 0")
    A("s_waitcnt lgkmcnt(0)")
    if opts.get("pstamp"): P.extend(stamp(4))
    px, pk, pv, pw, pws = S_PTR, S_PTR+2, S_PTR+4, S_PTR+6, S_PTR+8
    srd_build(A, SRDD, S_DBG, None, 256)
    A(f"s_or_b32 s{t0}, s2, s{S_W}"); A(f"s_cmp_eq_u32 s{t0}, 0"); A(f"s_cbranch_scc0 {name}_nononce")
    A(f"s_memrealtime s[{S_T[3]}:{S_T[4]}]"); A("s_waitcnt lgkmcnt(0)"); A(f"s_or_b32 s{t0}, s{S_T[3]}, 1")
    P.append(valu("v_mov_b32", V_DUMMY, f"s{t0}")); P.append(valu("v_mov_b32", V_TCH, "0"))
    A(f"buffer_store_dword v{V_DUMMY}, v{V_TCH}, s[{SRDD}:{SRDD+3}], 0 offen sc1")
    P.append(label(f"{name}_nononce"))
    if opts.get("hold", True): hold_setup(name, opts, A, P)
    A(f"s_lshl_b32 s{t0}, s{S_H}, 8"); srd_build(A, SRDA, pw, t0, 640*8192 - 31*256)
    A(f"s_mul_i32 s{t0}, s{S_B}, 245760"); srd_build(A, SRDB, px, t0, 245760)
    P.extend(q_addr())
    for grp in q_dma(0): P.extend([grp[0], nop(0)] + grp[1:])
    if opts.get("pstamp"): P.extend(stamp(5))
    pa, pb = opts.get('prioA', 0), opts.get('prioBq', 0)
    if pa or pb:
        A(f"s_cmp_eq_u32 s{S_BR}, 0"); A(f"s_cbranch_scc0 {name}_prb"); A(f"s_setprio {pa}"); A(f"s_branch {name}_noprio")
        P.append(label(f"{name}_prb")); A(f"s_setprio {pb}"); P.append(label(f"{name}_noprio"))
    A(f"s_lshl_b32 s{t1}, s{S_B}, 5"); A(f"s_add_u32 s{t1}, s{t1}, s{S_H}"); A(f"s_lshl_b32 s{t0}, s{t1}, 17")
    srd_build(A, SRDK, pk, t0, 131072); srd_build(A, SRDV, pv, t0, 131072)
    A(f"s_mul_i32 s{t1}, s{S_BR}, {12*1048576}"); A(f"s_lshl_b32 s{t2}, s{S_H}, 15"); A(f"s_add_u32 s{t0}, s{t1}, s{t2}")
    srd_build(A, SRDO, pws, t0, 12*1048576 - 31*32768)
    A(f"s_mul_i32 s{t0}, s{S_ID}, 20480"); srd_build(A, SRDWO, S_PTR+10, t0, 20480)
    A(f"s_mov_b32 s{S_SC}, 0x3e0293ee"); A(f"s_mov_b32 s{S_SC+1}, 0x3e0293ee")
    P.append(valu("v_and_b32", T0, "1", G)); P.append(valu("v_lshl_or_b32", T0, T0, "2", RR))
    P.append(valu("v_lshl_add_u32", T1, G, "3", RR)); P.append(valu("v_lshlrev_b32", T1, "8", T1))
    P.append(valu("v_lshl_add_u32", T1, C, "3", T1))
    for T in range(8):
        P.append(valu("v_xor_b32", A_W[T], str(T), T0)); P.append(valu("v_lshl_add_u32", A_W[T], A_W[T], "5", T1))
    P.append(valu("v_lshrrev_b32", T0, "1", M)); P.append(valu("v_xor_b32", T0, G, T0)); P.append(valu("v_lshlrev_b32", T0, "4", T0))
    P.append(valu("v_lshl_add_u32", T0, M, "7", T0))
    A(f"s_mul_i32 s3, s{S_W}, {48*128}"); A(f"s_add_u32 s3, s3, {XOFF}")
    P.append(valu("v_add_u32", A_X[0], "s3", T0)); P.append(valu("v_xor_b32", A_X[1], "64", A_X[0]))
    P.append(valu("v_and_b32", T0, "7", M))
    P.append(valu("v_lshrrev_b32", T1, "1", T0)); P.append(valu("v_lshlrev_b32", T1, "2", T1))
    P.append(valu("v_and_b32", A_K, "1", T0)); P.append(valu("v_add_u32", T1, T1, A_K))
    P.append(valu("v_lshlrev_b32", T1, "4", T1)); P.append(valu("v_lshl_add_u32", T1, T0, "10", T1))
    P.append(valu("v_lshrrev_b32", T0, "3", M)); P.append(valu("v_lshl_add_u32", T1, T0, "8", T1))
    P.append(valu("v_and_b32", T0, "1", G)); P.append(valu("v_lshlrev_b32", T0, "1", T0))
    P.append(valu("v_lshrrev_b32", A_K, "1", G)); P.append(valu("v_or_b32", T0, T0, A_K))
    P.append(valu("v_lshl_add_u32", A_K, T0, "4", T1))
    P.append(valu("v_and_b32", T0, "1", G)); P.append(valu("v_lshl_add_u32", T0, T0, "2", RR))
    P.append(valu("v_mul_u32_u24", T0, "1056", T0))
    P.append(valu("v_lshrrev_b32", T1, "1", G)); P.append(valu("v_lshl_add_u32", T0, T1, "8", T0))
    P.append(valu("v_lshl_add_u32", T0, C, "3", T0)); P.append(valu("v_add_u32", A_V, str(VOFF), T0))
    for i in range(96): P.append(valu("v_mov_b32", ACC + i, "0"))
    if opts.get("touch_wo", True) and opts.get("wo_pos") == "pro": P.extend(wo_touch())
    if opts.get("touch_wo", True) and opts.get("wo_pos") == "Bpro":
        A(f"s_cmp_eq_u32 s{S_BR}, 0"); A(f"s_cbranch_scc1 {name}_nowot")
        P.extend(wo_touch())
        A(f"s_mul_i32 s{t0}, s{S_ID}, 20480"); srd_build(A, SRDWO, 76, t0, 20480)
        P.extend(wo_touch()[1:])
        P.append(label(f"{name}_nowot"))
    P.extend(q_addr())
    for grp in q_dma(1): P.extend([grp[0], nop(0)] + grp[1:])
    P.append(waitcnt(vm=10)); P.append(barrier())
    if opts.get("hold"): P.extend(hold_wait(name, opts))
    P.extend(q_frag_reads(0, 0, 0))
    return P

def poll(name, srd, off_sreg, mask_or_val, mode, vtmp, sleep=8):
    o = [raw(f"s_mov_b32 s{S_T[5]}, 200000"), label(f"{name}"), raw(f"v_mov_b32 v{vtmp}, 0", kind="valu", wr=[vtmp]),
         raw(f"buffer_load_dword v{vtmp+1}, v{vtmp}, s[{srd}:{srd+3}], s{off_sreg} offen sc1"),
         raw("s_waitcnt vmcnt(0)"),
         raw(f"v_readfirstlane_b32 s{S_T[6]}, v{vtmp+1}"),
         raw(f"s_sub_u32 s{S_T[5]}, s{S_T[5]}, 1"), raw(f"s_cbranch_scc1 {name}_ok"),
         raw("s_nop 2")]
    if mode == 'bit':
        o += [raw(f"s_and_b32 s{S_T[6]}, s{S_T[6]}, s{mask_or_val}"), raw(f"s_cbranch_scc1 {name}_ok")]
    else:
        o += [raw(f"s_cmp_ge_u32 s{S_T[6]}, {mask_or_val}"), raw(f"s_cbranch_scc1 {name}_ok")]
    o += [raw(f"s_sleep {sleep}"), raw(f"s_branch {name}"), label(f"{name}_ok")]
    return o

FBOFF = 81856
S_FB = 70
S_FB = 78
L_LO, L_HI = "0x2b800000", "0x53800000"
def head_epilogue(name, opts):
    o = [valu("v_mov_b32", V_TCH, "0"), raw(f"s_cmp_eq_u32 s{S_W}, 0"), raw(f"s_cbranch_scc0 {name}_nn"),
         raw(f"buffer_load_dword v{V_DUMMY}, v{V_TCH}, s[{SRDD}:{SRDD+3}], 0 offen sc1", kind="vload", rd=[V_TCH], wr=[V_DUMMY]),
         label(f"{name}_nn"), raw(f"s_mov_b32 s{S_FB}, 0"), label(f"{name}_e0")]
    t = VT
    for qt in range(3):
        l = LSUM[qt]
        o += [valu("v_mov_b32", t[qt], l), perm32(t[qt], l), valu("v_add_f32", l, l, t[qt])]
    for qt in range(3):
        l = LSUM[qt]
        o += [valu("v_mov_b32", t[qt], l), perm16(t[qt], l), valu("v_add_f32", l, l, t[qt])]
    m = S_T[5]
    o += [raw(f"s_mov_b64 s[{m}:{m+1}], 0"), valu("v_mov_b32", 11, L_LO), valu("v_mov_b32", 12, L_HI)]
    for qt in range(3):
        o += [I(f"v_cmp_nle_f32 vcc, v11, v{LSUM[qt]}", rd=[11, LSUM[qt]], kind="valu"), raw("s_nop 1"), raw(f"s_or_b64 s[{m}:{m+1}], s[{m}:{m+1}], vcc"),
              I(f"v_cmp_nge_f32 vcc, v12, v{LSUM[qt]}", rd=[12, LSUM[qt]], kind="valu"), raw("s_nop 1"), raw(f"s_or_b64 s[{m}:{m+1}], s[{m}:{m+1}], vcc")]
    o += [raw(f"s_cmp_lg_u64 s[{m}:{m+1}], 0"), raw(f"s_cselect_b32 s{m}, 1, 0"), raw(f"s_andn2_b32 s{m}, s{m}, s{S_FB}"),
          raw(f"s_lshl_b32 s{m+1}, s{S_W}, 2"), raw(f"s_add_u32 s{m+1}, s{m+1}, {FBOFF}"),
          I(f"v_mov_b32 v11, s{m}", wr=[11], kind="valu"), I(f"v_mov_b32 v12, s{m+1}", wr=[12], kind="valu"), dsw32(12, 11)]
    for qt in range(3): o.append(vrcp(t[qt], LSUM[qt]))
    for qt in range(3):
        o.append(raw(f"s_mul_i32 s{S_T[3]}, s{S_B}, 12")); o.append(raw(f"s_mul_i32 s{S_T[4]}, s{S_W}, 3"))
        o.append(raw(f"s_add_u32 s{S_T[3]}, s{S_T[3]}, s{S_T[4]}")); o.append(raw(f"s_add_u32 s{S_T[3]}, s{S_T[3]}, {qt}"))
        o.append(raw(f"s_lshr_b32 s{S_T[4]}, s{S_T[3]}, 3")); o.append(raw(f"s_lshl_b32 s{S_T[4]}, s{S_T[4]}, 20"))
        o.append(raw(f"s_and_b32 s{S_T[3]}, s{S_T[3]}, 7")); o.append(raw(f"s_lshl_b32 s{S_T[3]}, s{S_T[3]}, 10"))
        o.append(raw(f"s_add_u32 s{S_T[qt]}, s{S_T[3]}, s{S_T[4]}"))
    for qt in range(3):
        for c in range(4):
            a = acc(2*c, qt); b = acc(2*c+1, qt)
            for r in range(4):
                o.append(valu("v_mul_f32", a + r, a + r, t[qt])); o.append(valu("v_mul_f32", b + r, b + r, t[qt]))
            o += [cvtpk(a, a, a+1), cvtpk(a+1, a+2, a+3), cvtpk(a+2, b, b+1), cvtpk(a+3, b+2, b+3)]
            o.append(bstore(a, 4, V_L16, SRDO, S_T[qt], flags=opts.get("stflags", "sc1")))
            if c < 3: o.append(raw(f"s_add_u32 s{S_T[qt]}, s{S_T[qt]}, 8192"))
    o += [waitcnt(vm=0, lgkm=0), barrier()]
    o += [valu("v_mov_b32", 12, str(FBOFF)), ds128(160, 12, 0), waitcnt(lgkm=0),
          valu("v_or_b32", 160, 160, 161), valu("v_or_b32", 162, 162, 163), valu("v_or_b32", 160, 160, 162), raw("s_nop 0"),
          raw(f"v_readfirstlane_b32 s{S_T[2]}, v160"), raw("s_nop 3"), raw(f"s_cmp_lg_u32 s{S_T[2]}, 0"), raw(f"s_cbranch_scc1 {name}_fb")]
    t0, t1 = S_T[0], S_T[1]
    o += [raw(f"s_cmp_eq_u32 s{S_W}, 0"), raw(f"s_cbranch_scc0 {name}_nopub"),
          raw(f"v_readfirstlane_b32 s{S_NONCE}, v{V_DUMMY}"), raw("s_nop 3"),
          raw(f"s_cmp_lg_u32 s{S_NONCE}, 0"), raw(f"s_cbranch_scc1 {name}_pn_done"), raw(f"s_mov_b32 s{t0}, 0")]
    o += poll(f"{name}_pn", SRDD, t0, 1, 'ge', V_TCH)
    o += [raw(f"s_mov_b32 s{S_NONCE}, s{S_T[6]}"), label(f"{name}_pn_done"),
          raw(f"s_lshl_b32 s{t0}, s{S_BR}, 3"), raw(f"s_add_u32 s{t0}, s{t0}, s{S_B}"), raw(f"s_mul_i32 s{t0}, s{t0}, 384"),
          raw(f"s_lshl_b32 s{t1}, s{S_H}, 2"), raw(f"s_add_u32 s{t0}, s{t0}, s{t1}"), raw(f"s_add_u32 s{t0}, s{t0}, {FLAGOFF}")]
    A = lambda t: o.append(raw(t))
    srd_build(A, SRDWO, S_PTR+8, t0, 260)
    o += [raw("v_lshlrev_b32 v16, 7, v0", kind="valu", wr=[16]), raw(f"v_mov_b32 v17, s{S_NONCE}", kind="valu", wr=[17]),
          raw("s_mov_b64 exec, 7"),
          raw(f"buffer_store_dword v17, v16, s[{SRDWO}:{SRDWO+3}], 0 offen sc1")]
    if opts.get("linger"):
        o += [raw("s_mov_b64 exec, 1"), raw(f"s_lshl_b32 s{t0}, s{S_ID}, 7"), raw(f"s_add_u32 s{t0}, s{t0}, {FLAGOFF + 131072}")]
        srd_build(A, SRDWO, S_PTR+8, t0, 4)
        o += [raw("v_mov_b32 v16, 0", kind="valu", wr=[16]), raw("s_nop 1"),
              raw(f"buffer_atomic_swap v17, v16, s[{SRDWO}:{SRDWO+3}], 0 offen sc0 sc1"), raw("s_waitcnt vmcnt(0)"),
              raw(f"v_readfirstlane_b32 s{t1}, v17"), raw("s_nop 3"),
              raw(f"s_cmp_eq_u32 s{t1}, s{S_NONCE}"), raw(f"s_cbranch_scc0 {name}_nopub"),
              raw(f"s_mov_b32 s{S_T[5]}, {opts.get('linger_polls', 6)}"), raw(f"s_mov_b32 s{t0}, 128"),
              label(f"{name}_lg"),
              raw(f"buffer_load_dword v17, v16, s[{SRDD}:{SRDD+3}], s{t0} offen sc1"), raw("s_waitcnt vmcnt(0)"),
              raw(f"v_readfirstlane_b32 s{t1}, v17"),
              raw(f"s_sub_u32 s{S_T[5]}, s{S_T[5]}, 1"), raw(f"s_cbranch_scc1 {name}_nopub"), raw("s_nop 2"),
              raw(f"s_cmp_ge_u32 s{t1}, 240"), raw(f"s_cbranch_scc1 {name}_nopub"),
              raw(f"s_sleep {opts.get('linger_sleep', 96)}"), raw(f"s_branch {name}_lg")]
    o += [label(f"{name}_nopub")]
    return o

def head_fallback(name):
    MX = [246, 247, 248]; NM = [184, 188, 192]; TT = 249
    def reset_off():
        return [raw(f"s_lshl_b32 s{S_O[0]}, s{S_W}, 10"), raw(f"s_add_u32 s{S_O[1]}, s{S_O[0]}, 4096"),
                raw(f"s_mov_b32 s{S_O[2]}, s{S_O[0]}"), raw(f"s_mov_b32 s{S_O[3]}, s{S_O[1]}"), raw(f"s_mov_b32 s{S_CNT}, 16")]
    def load(js):
        o = [barrier()]
        for j in js:
            o += [m0set(S_L[j], 0), nop(0), dma(V_L16, SRDK if j < 2 else SRDV, S_O[j]), salu(f"s_add_u32 s{S_O[j]}, s{S_O[j]}, 8192")]
        return o + [waitcnt(vm=0), barrier()]
    def qk(cinit):
        o = []
        for Tk in range(2):
            for c in range(4): o.append(k_read(0, Tk*4 + c))
            for c in range(4):
                for qt in range(3):
                    s = sreg(0, Tk, qt)
                    o.append(mfma16(s, KF + 4*c, qf(qt, c), cinit[qt] if c == 0 else s))
        return o
    pre = [label(f"{name}_fb")] + [valu("v_mov_b32", r, "0xff800000") for r in MX] + reset_off()
    b1 = [label(f"{name}_fb1")] + load([0, 1]) + qk([None]*3)
    for qt in range(3):
        for Tk in range(2):
            s = sreg(0, Tk, qt)
            b1 += [valu("v_max3_f32", MX[qt], MX[qt], s, s+1), valu("v_max3_f32", MX[qt], MX[qt], s+2, s+3)]
    b1 += [waitcnt(lgkm=0), raw(f"s_sub_u32 s{S_CNT}, s{S_CNT}, 1"), raw(f"s_cmp_lg_u32 s{S_CNT}, 0"), raw(f"s_cbranch_scc1 {name}_fb1")]
    mid = []
    for qt in range(3):
        mid += [valu("v_mov_b32", TT, MX[qt]), perm32(TT, MX[qt]), valu("v_max_f32", MX[qt], MX[qt], TT),
                valu("v_mov_b32", TT, MX[qt]), perm16(TT, MX[qt]), valu("v_max_f32", MX[qt], MX[qt], TT)]
        for i in range(4): mid.append(I(f"v_sub_f32 v{NM[qt]+i}, 0, v{MX[qt]}", rd=[MX[qt]], wr=[NM[qt]+i], kind="valu"))
    for i in range(96): mid.append(valu("v_mov_b32", ACC + i, "0"))
    for r in LSUM: mid.append(valu("v_mov_b32", r, "0"))
    mid += reset_off()
    b2 = [label(f"{name}_fb2")] + load([0, 1, 2, 3]) + qk(NM)
    for part in range(2):
        for qt in range(3):
            s = sreg(0, part, qt); p = preg(0, part, qt)
            b2 += [vexp(s+i, s+i) for i in range(4)] + [valu("v_add_f32", LSUM[qt], LSUM[qt], s+i) for i in range(4)] + [cvtpk(p, s, s+1), cvtpk(p+1, s+2, s+3)]
    for half in range(2):
        for T in range(4*half, 4*half + 4): b2 += v_read(0, T)
        for T in range(4*half, 4*half + 4):
            for qt in range(3): b2.append(mfma16(acc(T, qt), VF + 4*(T % 4), pop(0, qt), acc(T, qt)))
    b2 += [waitcnt(lgkm=0), raw(f"s_sub_u32 s{S_CNT}, s{S_CNT}, 1"), raw(f"s_cmp_lg_u32 s{S_CNT}, 0"), raw(f"s_cbranch_scc1 {name}_fb2")]
    post = [nop(15), raw(f"s_mov_b32 s{S_FB}, 1"), raw(f"s_branch {name}_e0")]
    p1, l1, st = resolve_loop([nop(15)] + pre, b1)
    p2, l2, st = resolve_loop(mid, b2, st)
    po, _ = resolve(post, st)
    return p1 + l1 + p2 + l2 + po

V_HOLD = 253
SRDH = 24
SRDH = 100 - 4
def hold_setup(name, opts, A, P):
    t0 = S_T[0]
    A(f"s_lshl_b32 s{t0}, s{S_ID}, 7"); A(f"s_add_u32 s{t0}, s{t0}, {FLAGOFF + 65536}")
    srd_build(A, SRDH, S_PTR+8, t0, 4)
    P.append(valu("v_mov_b32", V_TCH, "0"))
    A(f"buffer_load_dword v{V_HOLD}, v{V_TCH}, s[{SRDH}:{SRDH+3}], 0 offen sc1")
def hold_wait(name, opts):
    o = []
    A = lambda t: o.append(raw(t))
    A(f"s_cmp_eq_u32 s{S_BR}, 0"); A(f"s_cbranch_scc1 {name}_hw_end")
    A(f"s_cmp_eq_u32 s{S_W}, 0"); A(f"s_cbranch_scc0 {name}_hw_done")
    A("s_waitcnt vmcnt(0)"); A(f"v_readfirstlane_b32 s{S_T[4]}, v{V_HOLD}"); A(f"s_mov_b32 s{S_T[5]}, {opts.get('hold_polls', 24)}")
    o.append(label(f"{name}_hw"))
    A(f"buffer_load_dword v{V_HOLD}, v{V_TCH}, s[{SRDH}:{SRDH+3}], 0 offen sc1"); A("s_waitcnt vmcnt(0)")
    A(f"v_readfirstlane_b32 s{S_T[6]}, v{V_HOLD}")
    A(f"s_sub_u32 s{S_T[5]}, s{S_T[5]}, 1"); A(f"s_cbranch_scc1 {name}_hw_done"); A("s_nop 2")
    A(f"s_cmp_lg_u32 s{S_T[6]}, s{S_T[4]}"); A(f"s_cbranch_scc1 {name}_hw_done")
    A(f"s_sleep {opts.get('hold_sleep', 8)}"); A(f"s_branch {name}_hw")
    o.append(label(f"{name}_hw_done")); o.append(barrier()); o.append(label(f"{name}_hw_end"))
    return o
def hold_release(name):
    return [raw(f"s_or_b32 s{S_T[0]}, s{S_BR}, s{S_W}"), raw(f"s_cmp_eq_u32 s{S_T[0]}, 0"), raw(f"s_cbranch_scc0 {name}_hr"),
            raw(f"v_add_u32 v{V_HOLD}, 1, v{V_HOLD}", kind="valu", rd=[V_HOLD], wr=[V_HOLD]), raw(f"v_mov_b32 v{V_TCH}, 0", kind="valu", wr=[V_TCH]),
            raw("s_mov_b64 exec, 1"),
            raw(f"buffer_store_dword v{V_HOLD}, v{V_TCH}, s[{SRDH}:{SRDH+3}], 0 offen sc1"),
            raw("s_mov_b64 exec, -1"), raw("s_nop 1"), label(f"{name}_hr")]

WOT = "sc"
def wo_touch():
    if WOT == "sc":
        return [valu("v_lshlrev_b32", V_TCH, "7", 0), raw(f"s_lshl_b32 s{S_T[0]}, s{S_W}, 13"), bload(V_DUMMY, 1, V_TCH, SRDWO, S_T[0])]
    o = [nop(0), raw(f"s_mul_i32 s{S_T[0]}, s{S_W}, 5120")]
    o += [bload(V_DUMMY, 1, V_L16, SRDWO, S_T[0], off=j*1024 if j < 4 else 0) for j in range(4)]
    o += [raw(f"s_add_u32 s{S_T[0]}, s{S_T[0]}, 4096"), bload(V_DUMMY, 1, V_L16, SRDWO, S_T[0])]
    return o

def att_prio(name, opts):
    pa, pb = opts.get('prioAttA', opts.get('prioAtt', 0)), opts.get('prioAttB', opts.get('prioAtt', 0))
    if pa == pb: return [raw(f"s_setprio {pa}")]
    return [raw(f"s_cmp_eq_u32 s{S_BR}, 0"), raw(f"s_cbranch_scc0 {name}_apb"), raw(f"s_setprio {pa}"), raw(f"s_branch {name}_apd"),
            label(f"{name}_apb"), raw(f"s_setprio {pb}"), label(f"{name}_apd")]

def build_head(name, opts, ST):
    global POL, KVROT, ATTVM, XO, LMF, QRD, BAR2, WOT
    WOT = opts.get('wot', 'sc')
    BAR2 = opts.get('bar2', False)
    QRD = opts.get('qrd', 19)
    LMF = opts.get('lmfma', False)
    XO = opts.get('x', {})
    ATTVM = opts.get('att_vm', 8)
    POL = opts.get("polite"); KVROT = opts.get("kvrot", True)
    kvflags = opts.get("kvflags", "nt")
    pro = head_prologue(name, opts) + ST(1) + [raw(f"s_mov_b32 s{S_CNT}, 4")]
    qb = [label(f"{name}_qloop")]
    for p in range(2): qb += q_iter(p, 'Q')
    qb += [raw(f"s_sub_u32 s{S_CNT}, s{S_CNT}, 1"), raw(f"s_cmp_lg_u32 s{S_CNT}, 0"), raw(f"s_cbranch_scc1 {name}_qloop")]
    pro2, qb2, st = resolve_loop(pro, qb)
    last = ST(2)
    if opts.get("hold", True):
        if opts.get("hold_at", "q") == "q": last += hold_release(name)
    if opts.get("touch_wo", True) and opts.get("wo_pos") == "q8": last += wo_touch()
    last += q_switch() + q_iter(0, 'K0', kvflags) + q_iter(1, 'K1', kvflags)
    last2, st = resolve(last, st)
    wot = wo_touch() if opts.get("touch_wo", True) and opts.get("wo_pos", "mid") == "mid" else []
    mid = [waitcnt(lgkm=0)] + ST(3) + wot + att_prio(name, opts) + q_convert() + att_prologue(kvflags) + [raw(f"s_mov_b32 s{S_CNT}, 4")]
    body = [label(f"{name}_aloop")]
    for u in range(3): body += h0(u) + h1(u, kvflags)
    body += [raw(f"s_cmp_eq_u32 s{S_CNT}, 1"), raw(f"s_cbranch_scc1 {name}_tail")]
    body += h0(3) + h1(3, kvflags)
    body += [raw(f"s_sub_u32 s{S_CNT}, s{S_CNT}, 1"), raw(f"s_branch {name}_aloop")]
    mid2, st1 = resolve(mid, st)
    _, body2, _ = resolve_loop([], body, st1)
    idx = [i for i, x in enumerate(body2) if x.txt.startswith(f"s_cbranch_scc1 {name}_tail")][0]
    _, sA = resolve(body2, st1.copy(), insert=False)
    _, sB = resolve(body2[:idx+1], sA.copy(), insert=False)
    tail = [label(f"{name}_tail")] + h0(3, tail=True) + h1(3, kvflags, tail=True) + ([] if opts.get("pstamp") else ST(4)) + (wo_touch() if opts.get("touch_wo", True) and opts.get("wo_pos") == "epi" else []) + head_epilogue(name, opts)
    tail2, _ = resolve(tail, sB)
    return pro2 + qb2 + last2 + mid2 + body2 + tail2

WSLOT = 4224; NR = 3
OACC = 16
OBF = 144
OAF = 240
O_OFFO, O_OFFW, O_AW, O_FL, O_PV = [1, 2], 3, 4, 5, 6
OG, OM, ORR, OC = 7, 8, 9, 10
OS_OO = 32; OS_OW = [33, 34, 35, 36]; OS_L = 37
OSRDO, OSRDW, OSRDOUT, OSRDF = 12, 16, 20, 24
OS_OFF, OS_WO0, OS_OO0 = 8, 40, 41
OS_AV, OS_ISS, OS_ROT = 38, 39, 9
OS_A2 = 46
OS_WB = 10
def oacc(rt, Tc): return OACC + (rt * 4 + Tc) * 4
_sel = [0]
def o_select(name, opts):
    _sel[0] += 1
    L = f"{name}_s{_sel[0]}"
    t0, t1 = S_T[0], S_T[1]
    return [raw(f"s_cmp_lg_u32 s{OS_AV}, 0"), raw(f"s_cbranch_scc1 {L}_have"),
         raw(f"s_mov_b32 s{t0}, 32"), raw(f"s_cmp_eq_u32 s{OS_ISS}, -1"), raw(f"s_cbranch_scc1 {L}_addr"),
         raw(f"s_mov_b32 s{S_T[5]}, 200000"),
         label(f"{L}_poll"),
         raw(f"buffer_load_dword v{O_PV}, v{O_FL}, s[{OSRDF}:{OSRDF+3}], 0 offen sc1")] + ([
         raw(f"buffer_load_dword v11, v{O_FL}, s[{OSRDF}:{OSRDF+3}], s{OS_WB} offen sc1"), raw("s_waitcnt vmcnt(0)"),
         raw(f"v_cmp_eq_u32 s[{OS_A2}:{OS_A2+1}], s{S_NONCE}, v11"),
         raw(f"v_cmp_eq_u32 vcc, s{S_NONCE}, v{O_PV}"), raw("s_nop 3"), raw(f"s_and_b64 vcc, vcc, s[{OS_A2}:{OS_A2+1}]")] if opts.get("waitB") else [raw("s_waitcnt vmcnt(0)"),
         raw(f"v_cmp_eq_u32 vcc, s{S_NONCE}, v{O_PV}")]) + [
         raw(f"s_sub_u32 s{S_T[5]}, s{S_T[5]}, 1"), raw(f"s_cselect_b32 s{t1}, -1, 0"), raw("s_nop 2"),
         raw(f"s_and_b32 s{t0}, vcc_lo, vcc_hi"),
         raw(f"s_or_b32 s{t1}, s{t1}, s{t0}"), raw(f"s_andn2_b32 s{OS_AV}, s{t1}, s{OS_ISS}"),
         raw(f"s_cbranch_scc1 {L}_have"), raw(f"s_sleep {opts.get('sleep', 8)}"), raw(f"s_branch {L}_poll"),
         label(f"{L}_have"),
         raw(f"s_mov_b32 s{OS_A2}, s{OS_AV}"), raw(f"s_mov_b32 s{OS_A2+1}, s{OS_AV}"),
         raw(f"s_lshr_b64 s[{OS_A2}:{OS_A2+1}], s[{OS_A2}:{OS_A2+1}], s{OS_ROT}"),
         raw(f"s_ff1_i32_b32 s{t0}, s{OS_A2}"), raw(f"s_add_u32 s{t0}, s{t0}, s{OS_ROT}"), raw(f"s_and_b32 s{t0}, s{t0}, 31"),
         raw(f"s_lshl_b32 s{t1}, 1, s{t0}"), raw(f"s_or_b32 s{OS_ISS}, s{OS_ISS}, s{t1}"), raw(f"s_andn2_b32 s{OS_AV}, s{OS_AV}, s{t1}"),
         label(f"{L}_addr"),
         raw(f"s_lshl_b32 s{t1}, s{t0}, 15"), raw(f"s_add_u32 s{OS_OO}, s{OS_OO0}, s{t1}"),
         raw(f"s_mul_i32 s{t1}, s{t0}, {128*1280}"), raw(f"s_add_u32 s{OS_OW[0]}, s{OS_WO0}, s{t1}"),
         raw(f"s_add_u32 s{OS_OW[1]}, s{OS_OW[0]}, 1280"), raw(f"s_add_u32 s{OS_OW[2]}, s{OS_OW[0]}, 2560"), raw(f"s_add_u32 s{OS_OW[3]}, s{OS_OW[0]}, 3840")]
OFL = 'sc1'
def o_loads(u):
    o = []
    for j in range(8): o.append([bload(OBF + 32*u + 4*j, 4, O_OFFO[j//4], OSRDO, OS_OO, off=(j%4)*1024, flags=OFL)])
    for b in range(4): o.append([m0set(OS_L, u * WSLOT + b * 1056), dma(O_OFFW, OSRDW, OS_OW[b])])
    return o
def o_aread(u, Tc):
    off = u * WSLOT + Tc * 32
    return [dstr(OAF + 4*Tc, O_AW, off), dstr(OAF + 4*Tc + 2, O_AW, off + 512)]

def build_oproj(name, opts, ST):
    global OFL
    OFL = opts.get('oflags', 'sc1')
    P = []
    A = lambda t, **k: P.append(raw(t, **k))
    t0, t1, t2 = S_T[0], S_T[1], S_T[2]
    A(f"s_sub_u32 s{S_ID}, s2, 512")
    if opts.get("omap", "xcd") == "xcd":
        A(f"s_and_b32 s3, s{S_ID}, 7"); A(f"s_lshr_b32 s{S_BR}, s3, 2"); A(f"s_lshr_b32 s{OS_OFF}, s{S_ID}, 3")
        A(f"s_mul_i32 s{t1}, s{OS_OFF}, 6554"); A(f"s_lshr_b32 s{t1}, s{t1}, 16")
        A(f"s_and_b32 s{t2}, s3, 3"); A(f"s_mul_i32 s{t2}, s{t2}, 3"); A(f"s_add_u32 s6, s{t2}, s{t1}")
        A(f"s_mul_i32 s{t1}, s{t1}, 10"); A(f"s_sub_u32 s7, s{OS_OFF}, s{t1}")
    else:
        A(f"s_cmp_ge_u32 s{S_ID}, 120"); A(f"s_cselect_b32 s{S_BR}, 1, 0")
        A(f"s_mul_i32 s{t0}, s{S_BR}, 120"); A(f"s_sub_u32 s{S_ID}, s{S_ID}, s{t0}")
        A(f"s_and_b32 s3, s{S_ID}, 7"); A(f"s_lshr_b32 s{OS_OFF}, s{S_ID}, 3")
        A(f"s_mul_i32 s{t1}, s{OS_OFF}, 13108"); A(f"s_lshr_b32 s{t1}, s{t1}, 16")
        A(f"s_lshr_b32 s{t2}, s3, 1"); A(f"s_mul_i32 s{t2}, s{t2}, 3"); A(f"s_add_u32 s6, s{t2}, s{t1}")
        A(f"s_mul_i32 s{t1}, s{t1}, 5"); A(f"s_sub_u32 s7, s{OS_OFF}, s{t1}"); A(f"s_and_b32 s{t2}, s3, 1"); A(f"s_mul_i32 s{t2}, s{t2}, 5"); A(f"s_add_u32 s7, s7, s{t2}")
    A(f"s_mul_i32 s3, s{S_BR}, 40"); A("s_add_u32 s3, s3, 32")
    A(f"s_load_dwordx2 s[{S_PTR}:{S_PTR+1}], s[0:1], s3")
    A(f"s_load_dwordx4 s[{S_PTR+4}:{S_PTR+7}], s[0:1], 80")
    A(f"s_load_dwordx2 s[{S_PTR+8}:{S_PTR+9}], s[0:1], 96")
    P.append(valu("v_lshrrev_b32", OG, "6", 0)); P.append(valu("v_and_b32", 0, "63", 0))
    A("s_nop 0"); A(f"v_readfirstlane_b32 s{S_W}, v{OG}")
    P.append(valu("v_lshrrev_b32", OG, "4", 0)); P.append(valu("v_and_b32", OM, "15", 0))
    P.append(valu("v_bfe_u32", ORR, 0, "2", "2")); P.append(valu("v_and_b32", OC, "3", 0))
    P.append(valu("v_lshlrev_b32", O_OFFO[0], "4", 0)); P.append(valu("v_add_u32", O_OFFO[1], "4096", O_OFFO[0]))
    P.append(valu("v_lshrrev_b32", 16, "3", 0)); P.append(valu("v_mul_u32_u24", 16, "5120", 16))
    P.append(valu("v_and_b32", 17, "7", 0)); P.append(valu("v_lshl_add_u32", O_OFFW, 17, "4", 16))
    A(f"s_mul_i32 s{OS_L}, s{S_W}, {NR*WSLOT}")
    P.append(valu("v_mul_u32_u24", 16, "1056", ORR)); P.append(valu("v_lshl_add_u32", 16, OG, "7", 16)); P.append(valu("v_lshl_add_u32", 16, OC, "3", 16))
    P.append(valu("v_add_u32", O_AW, f"s{OS_L}", 16))
    A(f"s_lshl_b32 s{OS_OO0}, s{S_W}, 13"); A(f"s_mul_i32 s{OS_WO0}, s{S_W}, {32*1280}")
    A("s_waitcnt lgkmcnt(0)")
    A(f"s_mul_i32 s{t0}, s{S_BR}, 12"); A(f"s_add_u32 s{t0}, s{t0}, s6"); A(f"s_lshl_b32 s{t0}, s{t0}, 20")
    srd_build(A, OSRDO, S_PTR+8, t0, 1048576)
    A(f"s_lshl_b32 s{t0}, s7, 7"); srd_build(A, OSRDW, S_PTR, t0, 4096*1280 - 9*128)
    A(f"s_mul_i32 s{t0}, s6, {128*2560}"); A(f"s_mul_i32 s{t1}, s{S_BR}, 1280"); A(f"s_add_u32 s{t0}, s{t0}, s{t1}")
    A(f"s_lshl_b32 s{t1}, s7, 7"); A(f"s_add_u32 s{t0}, s{t0}, s{t1}")
    srd_build(A, OSRDOUT, S_PTR+4, t0, 127*2560 + 128)
    srd_build(A, SRDD, S_PTR+6, None, 256)
    if opts.get("linger"):
        A(f"s_cmp_eq_u32 s{S_W}, 0"); A(f"s_cbranch_scc0 {name}_nocnt")
        P.append(valu("v_mov_b32", 16, "128")); P.append(valu("v_mov_b32", 17, "1"))
        A("s_mov_b64 exec, 1"); A(f"buffer_atomic_add v17, v16, s[{SRDD}:{SRDD+3}], 0 offen sc1"); A("s_mov_b64 exec, -1")
        P.append(label(f"{name}_nocnt"))
    A(f"s_mov_b32 s{t0}, 0")
    A(f"s_cmp_eq_u32 s{S_W}, 0"); A(f"s_cbranch_scc0 {name}_nw")
    P.extend(poll(f"{name}_pn", SRDD, t0, 1, 'ge', O_FL, sleep=8))
    P.append(I(f"v_mov_b32 v{O_PV}, s{S_T[6]}", wr=[O_PV], kind="valu")); P.append(valu("v_mov_b32", O_FL, str(FBOFF)))
    P.append(dsw32(O_FL, O_PV)); P.append(waitcnt(lgkm=0))
    P.append(label(f"{name}_nw"))
    P.append(barrier())
    P.append(valu("v_mov_b32", O_FL, str(FBOFF))); P.append(dsr32(O_PV, O_FL)); P.append(waitcnt(lgkm=0))
    A(f"v_readfirstlane_b32 s{S_NONCE}, v{O_PV}"); A("s_nop 3")
    A(f"s_mul_i32 s{t0}, s6, 43691"); A(f"s_lshr_b32 s{t0}, s{t0}, 16")
    A(f"s_lshl_b32 s{t1}, s6, 7"); A(f"s_add_u32 s{t1}, s{t1}, 127"); A(f"s_mul_i32 s{t1}, s{t1}, 21846"); A(f"s_lshr_b32 s{t1}, s{t1}, 22")
    A(f"s_sub_u32 s{t1}, s{t1}, s{t0}"); A(f"s_mul_i32 s{t1}, s{t1}, 384")
    A(f"s_lshl_b32 s{t2}, s{S_BR}, 3"); A(f"s_add_u32 s{t0}, s{t0}, s{t2}"); A(f"s_mul_i32 s{t0}, s{t0}, 384")
    A(f"s_mul_i32 s{t2}, s7, 21846"); A(f"s_lshr_b32 s{t2}, s{t2}, 16"); A(f"s_mul_i32 s{t2}, s{t2}, 3"); A(f"s_sub_u32 s{t2}, s7, s{t2}")
    A(f"s_lshl_b32 s{t2}, s{t2}, 7"); A(f"s_add_u32 s{t0}, s{t0}, s{t2}"); A(f"s_add_u32 s{t0}, s{t0}, {FLAGOFF}")
    srd_build(A, OSRDF, S_PTR+8, t0, 512 + (8*384 if opts.get("waitB") else 0))
    A(f"s_cmp_eq_u32 s{S_BR}, 0"); A(f"s_cselect_b32 s{OS_WB}, {8*384}, 0")
    P.append(valu("v_and_b32", O_FL, "31", 0)); P.append(valu("v_lshlrev_b32", O_FL, "2", O_FL))
    P.append(valu("v_lshrrev_b32", 16, "5", 0)); P.append(valu("v_mul_lo_u32", 16, f"s{t1}", 16)); P.append(valu("v_add_u32", O_FL, O_FL, 16))
    A(f"s_mov_b32 s{OS_AV}, 0"); A(f"s_mov_b32 s{OS_ISS}, 0")
    if opts.get("trot"):
        A(f"s_memrealtime s[{OS_A2}:{OS_A2+1}]"); A("s_waitcnt lgkmcnt(0)")
        A(f"s_sub_u32 s{t0}, s{OS_A2}, s{S_NONCE}"); A(f"s_mul_i32 s{t0}, s{t0}, {65536 // opts['trot']}"); A(f"s_lshr_b32 s{t0}, s{t0}, 16")
        A(f"s_and_b32 s{t1}, s{OS_OFF}, {opts.get('rotmask', 3)}"); A(f"s_add_u32 s{t0}, s{t0}, s{t1}"); A(f"s_and_b32 s{OS_ROT}, s{t0}, 31")
    else:
        A(f"s_and_b32 s{OS_ROT}, s{OS_OFF}, {opts.get('rotmask', 7)}")
    for i in range(128): P.append(valu("v_mov_b32", OACC + i, "0"))
    P.extend(ST(1))
    for u in range(2):
        P.extend(o_select(name, opts))
        for grp in o_loads(u): P.extend(grp if len(grp) == 1 else [grp[0], nop(0)] + grp[1:])
    P.append(waitcnt(vm=12))
    for Tc in range(4): P.extend(o_aread(0, Tc))
    A(f"s_mov_b32 s{S_CNT}, 11")
    body = [label(f"{name}_loop")]
    for u in range(3):
        mf = [mfma16(oacc(rt, Tc), OAF + 4*Tc, OBF + 32*u + 4*rt, oacc(rt, Tc)) for Tc in range(4) for rt in range(8)]
        slots = [[] for _ in mf]
        slots[0] += o_select(name, opts)
        for j, grp in enumerate(o_loads((u + 2) % 3)):
            k = 1 + (j * 22) // 12
            if len(grp) == 1: slots[k] += grp
            else: slots[k].append(grp[0]); slots[k+1] += grp[1:]
        slots[24].append(waitcnt(vm=12))
        n = (u + 1) % 3
        slots[24] += o_aread(n, 0); slots[25] += o_aread(n, 1); slots[26] += o_aread(n, 2); slots[31] += o_aread(n, 3)
        body += emit(mf, slots)
    if opts.get("ostamp"):
        for cnt, idx in ((9, 2), (5, 3)):
            body += [raw(f"s_cmp_eq_u32 s{S_CNT}, {cnt}"), raw(f"s_cbranch_scc0 {name}_os{idx}")] + ST(idx) + [label(f"{name}_os{idx}")]
    body += [raw(f"s_sub_u32 s{S_CNT}, s{S_CNT}, 1"), raw(f"s_cmp_lg_u32 s{S_CNT}, 0"), raw(f"s_cbranch_scc1 {name}_loop")]
    P2, body2, st = resolve_loop(P, body)
    E = []
    A = lambda t, **k: E.append(raw(t, **k))
    E.extend(ST(4 if opts.get("ostamp") else 2))
    E.append(valu("v_lshlrev_b32", 11, "4", 0))
    A(f"s_lshl_b32 s{t0}, s{S_W}, 14"); E.append(valu("v_add_u32", 12, f"s{t0}", 11))
    A(f"s_lshl_b32 s{t0}, s{S_W}, 12"); E.append(valu("v_add_u32", 13, f"s{t0}", 11))
    E.append(valu("v_and_b32", 14, "1", OG)); E.append(valu("v_lshlrev_b32", 14, "1", 14)); E.append(valu("v_lshrrev_b32", 15, "1", OG))
    E.append(valu("v_or_b32", 14, 14, 15)); E.append(valu("v_lshlrev_b32", 14, "4", 14))
    E.append(valu("v_mul_u32_u24", 15, "2560", OM)); E.append(valu("v_add_u32", 14, 14, 15))
    A(f"s_mul_i32 s{t0}, s{S_W}, {16*2560}"); A(f"s_add_u32 s{t1}, s{t0}, {64*2560}")
    E.append(waitcnt(vm=0, lgkm=0)); E.append(barrier())
    for r in range(2):
        for tl in range(16): E.append(dsw128(12, OACC + (16*r + tl)*4, tl*1024))
        E.append(waitcnt(lgkm=0)); E.append(barrier())
        for t in range(4):
            for p in range(4): E.append(ds128(144 + (p*4 + t)*4, 13, p*16384 + t*1024))
        for pr in range(2):
            for h in range(2):
                t = 2*pr + h
                for i in range(4):
                    a = 144 + t*4 + i
                    E.append(valu("v_add_f32", a, a, a + 16)); E.append(valu("v_add_f32", a + 32, a + 32, a + 48))
                for i in range(4):
                    a = 144 + t*4 + i
                    E.append(valu("v_add_f32", a, a, a + 32))
            a = 144 + 2*pr*4; b = a + 4; q = 240 + (r*2 + pr)*4
            E += [cvtpk(q, a, a+1), cvtpk(q+1, a+2, a+3), cvtpk(q+2, b, b+1), cvtpk(q+3, b+2, b+3), perm16(q, q+2), perm16(q+1, q+3)]
            E.append(bstore(q, 4, 14, OSRDOUT, t0 if r == 0 else t1, off=pr*64, flags=opts.get('outflags', '')))
        if r == 0: E.append(waitcnt(lgkm=0)); E.append(barrier())
    E2, _ = resolve(E, st)
    return P2 + body2 + E2

def build(name, stamps=False, **opts):
    ST = (lambda i, real=False: stamp(i, real)) if stamps else (lambda i, real=False: [])
    out = [label(name)] + ST(0) + ST(6, True)
    out += [raw("s_cmp_ge_u32 s2, 752"), raw(f"s_cbranch_scc1 {name}_end"), raw("s_cmp_ge_u32 s2, 512"), raw(f"s_cbranch_scc1 {name}_oproj")]
    if opts.get("skip_heads") == "holdB":
        out += [raw("s_cmp_lt_u32 s2, 256"), raw(f"s_cbranch_scc1 {name}_end"), raw("s_mov_b32 s4, 40"), label(f"{name}_hb"), raw("s_sleep 32"),
                raw("s_sub_u32 s4, s4, 1"), raw("s_cmp_lg_u32 s4, 0"), raw(f"s_cbranch_scc1 {name}_hb"), raw("s_endpgm")]
    elif opts.get("skip_heads"): out += [raw("s_endpgm")]
    fin_h = []; fin_o = []
    if stamps:
        fin_h = [waitcnt(vm=0), raw("s_mov_b64 exec, -1")] + ([] if opts.get("pstamp") else ST(5)) + ST(7, True) + stamp_dump(8, S_PTR+8, S_W, 64<<20, 16, nwaves_shift=2)
        fin_o = [waitcnt(vm=0)] + ([] if opts.get("ostamp") else ST(3) + ST(4)) + ST(5) + ST(7, True) + stamp_dump(8, S_PTR+8, S_W, 64<<20, 16, nwaves_shift=2)
    out += build_head(name + "_h", opts, ST) + fin_h + [raw("s_endpgm")] + head_fallback(name + "_h")
    out += [label(f"{name}_oproj")] + build_oproj(name + "_o", opts, ST) + fin_o
    out += [label(f"{name}_end"), raw("s_endpgm")]
    return out
```

```python
from asmlib import *

QSLOT = 40960; XOFF = 16384
ASLOT = 16896; VOFF = 8448
ACC = 16; QF = 112
SX, SY, SZ = 160, 172, 184
PB = 196; KF = 214; VF = 230
QA = [160, 204]; QB = [192, 236]
V_OFFA, V_OFFB, V_L16 = 1, 2, 3
A_W = [4, 5, 6, 7, 8, 9, 10, 11]; A_X = [12, 15]; A_K = 13; A_V = 14
LSUM = [4, 5, 6]; VT = [7, 8, 9, 10]
ONES = 250
LACC = [4, 8, 246]
LMF = False
G, M, RR, C = 248, 249, 250, 251
V_DUMMY = 255; V_TCH = 254
S_W, S_BR, S_B, S_H = 4, 5, 6, 7
SRDA, SRDB, SRDK, SRDV, SRDO, SRDD = 12, 16, 20, 24, 28, 64
S_O = [32, 33, 34, 35]; S_L = [38, 39, 40, 41]; S_CNT = 42
S_OW, S_OX, S_LW, S_LX, S_SIG, S_TT = 8, 9, 36, 37, 10, 11
S_KC, S_VC, S_KB, S_KROT = 8, 9, 36, 37
S_T = [43, 44, 45, 46, 47, 48, 49]
S_SC = 50
S_PTR = 52
SRDWO = 68
S_ID = 72
S_DBG = 74
FLAGOFF = 32 << 20
S_NONCE = 73

def acc(T, qt): return ACC + (T * 3 + qt) * 4
def qf(qt, c): return QF + (qt * 4 + c) * 4

def emit(mf, slots):
    out = []
    for m, fs in zip(mf, slots):
        out.append(m)
        for f in fs:
            if isinstance(f, list): out.extend(f)
            else: out.append(f)
    return out
def spread(slots, items, lo, hi):
    n = len(items); m = hi - lo
    for i, it in enumerate(items): slots[lo + (i * m) // n].append(it)

def q_addr():
    t0 = S_T[0]
    return [salu(f"s_lshl_b32 s{t0}, s{S_SIG}, 19"), salu(f"s_add_u32 s{S_O[0]}, s{S_OW}, s{t0}"),
            salu(f"s_lshl_b32 s{t0}, s{S_SIG}, 7"), salu(f"s_add_u32 s{S_O[1]}, s{S_OX}, s{t0}"),
            salu(f"s_add_u32 s{S_SIG}, s{S_SIG}, 1"), salu(f"s_cmp_eq_u32 s{S_SIG}, 10"), salu(f"s_cselect_b32 s{S_SIG}, 0, s{S_SIG}")]
def q_dma(slot):
    out = []
    for i in range(4):
        g = [m0set(S_LW, slot * QSLOT + i * 4096)]
        if i == 0: g += [dma(V_OFFA, SRDA, S_O[0])]
        else: g += [salu(f"s_add_u32 s{S_TT}, s{S_O[0]}, {i*16*8192}"), dma(V_OFFA, SRDA, S_TT)]
        out.append(g)
    for i in range(6):
        g = [m0set(S_LX, slot * QSLOT + i * 4096)]
        if i == 0: g += [dma(V_OFFB, SRDB, S_O[1])]
        else: g += [salu(f"s_add_u32 s{S_TT}, s{S_O[1]}, {i*32*1280}"), dma(V_OFFB, SRDB, S_TT)]
        out.append(g)
    return out
KVROT = True
def kv_addr(which):
    c = S_KC if which == 0 else S_VC
    a, b = (S_O[0], S_O[1]) if which == 0 else (S_O[2], S_O[3])
    t = S_TT
    return [salu(f"s_add_u32 s{t}, s{c}, s{S_KROT}"), salu(f"s_and_b32 s{t}, s{t}, 15"), salu(f"s_cmp_lt_u32 s{c}, 16"),
            salu(f"s_cselect_b32 s{t}, s{t}, 16"), salu(f"s_lshl_b32 s{t}, s{t}, 13"), salu(f"s_add_u32 s{a}, s{t}, s{S_KB}"),
            salu(f"s_add_u32 s{b}, s{a}, 4096"), salu(f"s_add_u32 s{c}, s{c}, 1")]
def kv_dma(kslot, vslot, flags):
    out = []
    for j in range(4):
        sl = kslot if j < 2 else vslot
        if KVROT:
            pre = kv_addr(j // 2) if j % 2 == 0 else []
            post = nop(0)
        else:
            pre = []
            post = salu(f"s_add_u32 s{S_O[j]}, s{S_O[j]}, 8192")
        out.append([pre + [m0set(S_L[j], sl * ASLOT)], dma(V_L16, SRDK if j < 2 else SRDV, S_O[j], flags), post])
    return out

def q_frag_reads(slot, e, st):
    out = []
    for qt in range(3): out.append(ds128(QB[st] + 4*qt, A_X[e], slot * QSLOT + qt * 2048))
    for T in range(8):
        o = slot * QSLOT + e * 8192
        out.append(dstr(QA[st] + 4*T, A_W[T], o)); out.append(dstr(QA[st] + 4*T + 2, A_W[T], o + 1024))
    return out

_pl = [0]
def polite(n):
    _pl[0] += 1
    lab = f"Lpol{_pl[0]}"
    return [raw(f"s_cmp_eq_u32 s{S_BR}, 0"), raw(f"s_cbranch_scc1 {lab}"), waitcnt(vm=n), label(lab)]
POL = None
QRD = 19
def q_half(st, reads, extra):
    mf = [mfma16(acc(T, qt), QA[st] + 4*T, QB[st] + 4*qt, acc(T, qt)) for T in range(8) for qt in range(3)]
    slots = [[] for _ in mf]
    for i, rd in enumerate(reads): slots[(i * QRD) // 19 if i < 19 else 23].append(rd)
    n = len(extra)
    for j, grp in enumerate(extra):
        k = (j * 22) // max(n, 1)
        slots[k].append(grp[0]); slots[k+1] += [x for x in grp[1:] if getattr(x, "kind", "") != "nop"]
    return emit(mf, slots)

def q_iter(p, kind, kvflags=""):
    out = q_half(0, q_frag_reads(p, 1, 1), [])
    out += [waitcnt(vm=0, lgkm=0) if kind != 'K1' else waitcnt(lgkm=0), barrier()]
    if kind == 'Q':
        extra = [q_addr()] + q_dma(p)
        if POL:
            for pos, n in POL: extra[pos] = extra[pos] + polite(n)
    elif kind == 'K0': extra = kv_dma(0, 0, kvflags) + kv_dma(1, 1, kvflags)
    else: extra = kv_dma(2, 2, kvflags) + kv_dma(3, 3, kvflags)
    reads = q_frag_reads(1 - p, 0, 0) if kind != 'K1' else []
    out += q_half(1, reads, extra)
    return out

def q_switch():
    o = []
    A = lambda t: o.append(raw(t))
    t0, t1 = S_T[0], S_T[1]
    A(f"s_lshr_b32 s{t0}, s{S_W}, 1"); A(f"s_lshl_b32 s{t0}, s{t0}, 2"); A(f"s_and_b32 s{t1}, s{S_W}, 1"); A(f"s_add_u32 s{t0}, s{t0}, s{t1}")
    A(f"s_lshl_b32 s{t0}, s{t0}, 4"); A(f"s_lshl_b32 s{t1}, s{S_W}, 10"); A(f"s_add_u32 s{S_L[0]}, s{t0}, s{t1}")
    A(f"s_add_u32 s{S_L[1]}, s{S_L[0]}, {4096+128}")
    A(f"s_mul_i32 s{t0}, s{S_W}, 1056"); A(f"s_add_u32 s{S_L[2]}, s{t0}, {VOFF}"); A(f"s_add_u32 s{S_L[3]}, s{S_L[2]}, {4*1056}")
    A(f"s_lshl_b32 s{S_KB}, s{S_W}, 10"); A(f"s_mov_b32 s{S_KC}, 0"); A(f"s_mov_b32 s{S_VC}, 0")
    if KVROT:
        A(f"s_lshr_b32 s{S_KROT}, s{S_ID}, 3"); A(f"s_add_u32 s{S_KROT}, s{S_KROT}, s{S_ID}"); A(f"s_and_b32 s{S_KROT}, s{S_KROT}, 15")
    else:
        A(f"s_mov_b32 s{S_O[0]}, s{S_KB}"); A(f"s_add_u32 s{S_O[1]}, s{S_KB}, 4096"); A(f"s_mov_b32 s{S_O[2]}, s{S_O[0]}"); A(f"s_mov_b32 s{S_O[3]}, s{S_O[1]}")
    return o

def q_convert():
    o = []
    for qt in range(3):
        for T in range(8):
            a = acc(T, qt)
            o.append(pkmul(a, a, f"s[{S_SC}:{S_SC+1}]")); o.append(pkmul(a+2, a+2, f"s[{S_SC}:{S_SC+1}]"))
    for qt in range(3):
        for c in range(4):
            q = qf(qt, c); a = acc(2*c, qt); b = acc(2*c+1, qt)
            o += [cvtpk(q, a, a+1), cvtpk(q+1, a+2, a+3), cvtpk(q+2, b, b+1), cvtpk(q+3, b+2, b+3)]
    for qt in range(3):
        for c in range(4):
            q = qf(qt, c)
            o += [perm16(q, q+2), perm16(q+1, q+3)]
    for i in range(96): o.append(valu("v_mov_b32", ACC + i, "0"))
    if LMF:
        for qt in range(3):
            for i in range(4): o.append(valu("v_mov_b32", LACC[qt] + i, "0"))
        for i in range(4): o.append(valu("v_mov_b32", ONES + i, "0x3f803f80"))
    else:
        for r in LSUM: o.append(valu("v_mov_b32", r, "0"))
    return o

def sreg(j, Tk, qt):
    if Tk == 0: return SX + 4*qt
    return (SY if j % 2 == 0 else SZ) + 4*qt
def preg(j, part, qt):
    base = PB + 6*qt
    if part == 1: return base + 2
    return base + (0 if j % 2 == 0 else 4)
def pop(j, qt): return PB + 6*qt + (0 if j % 2 == 0 else 2)
def k_read(j, i): return ds128(KF + 4*(i % 4), A_K, (j % 4) * ASLOT + (i % 4) * 64 + (i // 4) * 512)
def v_read(j, T):
    o = (j % 4) * ASLOT + T * 32
    d = VF + 4*(T % 4)
    if j % 2 == 0: return [dstr(d, A_V, o), dstr(d+2, A_V, o + 512)]
    return [dstr(d+2, A_V, o), dstr(d, A_V, o + 512)]
def softmax_ops(j, part):
    if XO.get("nosm"): return [nop(0)]
    ops = []
    for qt in range(3):
        s = sreg(j, part, qt); p = preg(j, part, qt)
        ops.append([vexp(s, s), vexp(s+1, s+1), vexp(s+2, s+2), vexp(s+3, s+3),
                    valu("v_add_f32", LSUM[qt], LSUM[qt], s), cvtpk(p, s, s+1), valu("v_add_f32", LSUM[qt], LSUM[qt], s+1),
                    valu("v_add_f32", LSUM[qt], LSUM[qt], s+2), cvtpk(p+1, s+2, s+3), valu("v_add_f32", LSUM[qt], LSUM[qt], s+3)])
    seq = list(ops[0][:4])
    for qt in range(1, 3):
        e = ops[qt][:4]; f = ops[qt-1][4:]
        seq += [e[0], f[0], f[1], e[1], f[2], e[2], f[3], f[4], e[3], f[5]]
    seq += ops[2][4:]
    if LMF: seq = [x for x in seq if not x.txt.startswith("v_add_f32")]
    if XO.get("noadd"): seq = [x for x in seq if not x.txt.startswith("v_add_f32")]
    if XO.get("noexp"): seq = [x for x in seq if not x.txt.startswith("v_exp")]
    return seq
def qk_mfmas(j):
    mf = []
    for Tk in range(2):
        for c in range(4):
            i = Tk*4 + c
            for qt in range(3):
                s = sreg(j, Tk, qt)
                mf.append(mfma16(s, KF + 4*(i % 4), qf(qt, c), None if c == 0 else s))
    return mf
def pv_mfmas(j):
    return [mfma16(acc(T, qt), VF + 4*(T % 4), pop(j, qt), acc(T, qt)) for T in range(8) for qt in range(3)]
def l_mfmas(j):
    return [mfma16(LACC[qt], ONES, pop(j, qt), LACC[qt]) for qt in range(3)]

def h0(s, tail=False):
    sm = softmax_ops(s, 1)
    vr_ = [v_read(s, T) for T in range(4)]
    if tail:
        out = []
        for v in vr_: out += v
        return out + sm
    mf = qk_mfmas(s + 1)
    slots = [[] for _ in mf]
    for i in range(5): slots[3*i].append(k_read(s + 1, i + 3))
    for T in range(4): slots[14 + 2*T].append(vr_[T][0]); slots[15 + 2*T].append(vr_[T][1])
    spread(slots, sm, 0, 23)
    return emit(mf, slots)
ATTVM = 8
XO = {}
BAR2 = False
def h1(s, kvflags, tail=False):
    mf = pv_mfmas(s)
    slots = [[] for _ in mf]
    for T in range(4, 8):
        v = v_read(s, T); slots[3*(T-4) + 2].append(v[0]); slots[3*(T-4) + 3].append(v[1])
    if not tail:
        spread(slots, softmax_ops(s + 1, 0), 0, 23)
        if BAR2:
            if s % 2 == 0:
                slots[16].append([waitcnt(vm=0, lgkm=0), barrier()])
                grps = kv_dma(s % 4, (s + 3) % 4, kvflags) + kv_dma((s + 1) % 4, s % 4, kvflags)
                for j, grp in enumerate(grps):
                    k = 16 + j
                    slots[k].append(grp[0]); slots[k].append(grp[2] if grp[2].kind == "nop" else nop(0)); slots[k].append(grp[1])
                    if grp[2].kind != "nop": slots[k].append(grp[2])
            for i in range(3): slots[17 + i].append(k_read(s + 2, i))
        else:
          if XO.get("nobar"): slots[16].append([waitcnt(lgkm=0)])
          else: slots[16].append([waitcnt(vm=ATTVM, lgkm=0), barrier()])
          for i in range(3): slots[17 + i].append(k_read(s + 2, i))
          if not XO.get("nodma"):
            for j, grp in enumerate(kv_dma((s + 1) % 4, s % 4, kvflags)):
              slots[17 + j].append(grp[0]); slots[18 + j].append(grp[1])
              if grp[2].kind != "nop": slots[19 + j].append(grp[2])
    if LMF:
        lm = l_mfmas(s); slots[2].append(lm[0]); slots[8].append(lm[1]); slots[13].append(lm[2])
    return emit(mf, slots)
def att_prologue(kvflags):
    o = [raw(f"s_sub_u32 s{S_VC}, s{S_VC}, 1")] if KVROT else [raw(f"s_sub_u32 s{S_O[2]}, s{S_O[2]}, 8192"), raw(f"s_sub_u32 s{S_O[3]}, s{S_O[3]}, 8192")]
    o += [waitcnt(vm=14), barrier()]
    for i in range(3): o.append(k_read(0, i))
    mf = qk_mfmas(0)
    slots = [[] for _ in mf]
    for i in range(5): slots[3*i].append(k_read(0, i + 3))
    o += emit(mf, slots)
    o += [waitcnt(vm=8, lgkm=0), barrier()]
    for i in range(3): o.append(k_read(1, i))
    if not BAR2:
        for grp in kv_dma(0, 3, kvflags): o += grp[0] + [nop(0), grp[1], grp[2]]
    o += softmax_ops(0, 0)
    return o

def srd_build(A, dst, ptr, offreg, nrec):
    if offreg is None:
        A(f"s_mov_b32 s{dst}, s{ptr}"); A(f"s_and_b32 s{dst+1}, s{ptr+1}, 0xffff")
    else:
        A(f"s_add_u32 s{dst}, s{ptr}, s{offreg}"); A(f"s_addc_u32 s{dst+1}, s{ptr+1}, 0"); A(f"s_and_b32 s{dst+1}, s{dst+1}, 0xffff")
    A(f"s_mov_b32 s{dst+2}, {nrec}"); A(f"s_mov_b32 s{dst+3}, 0x20000")

def head_prologue(name, opts):
    P = []
    A = lambda t, **k: P.append(raw(t, **k))
    t0, t1, t2 = S_T[0], S_T[1], S_T[2]
    A(f"s_lshr_b32 s{S_BR}, s2, 8"); A(f"s_and_b32 s{S_ID}, s2, 255")
    A(f"s_mul_i32 s3, s{S_BR}, 40")
    A(f"s_load_dwordx4 s[{S_PTR}:{S_PTR+3}], s[0:1], s3")
    A(f"s_add_u32 s{t1}, s3, 16"); A(f"s_load_dwordx4 s[{S_PTR+4}:{S_PTR+7}], s[0:1], s{t1}")
    A(f"s_load_dwordx2 s[{S_PTR+8}:{S_PTR+9}], s[0:1], 96")
    A(f"s_load_dwordx2 s[{S_DBG}:{S_DBG+1}], s[0:1], 88")
    A(f"s_add_u32 s{t1}, s3, 32"); A(f"s_load_dwordx2 s[{S_PTR+10}:{S_PTR+11}], s[0:1], s{t1}")
    A(f"s_load_dwordx2 s[76:77], s[0:1], 32")
    A(f"s_and_b32 s3, s{S_ID}, 7"); A(f"s_lshr_b32 s{t0}, s{S_ID}, 3")
    A(f"s_lshr_b32 s{S_B}, s3, 2"); A(f"s_lshl_b32 s{S_B}, s{S_B}, 2"); A(f"s_lshr_b32 s{t1}, s{t0}, 3"); A(f"s_add_u32 s{S_B}, s{S_B}, s{t1}")
    A(f"s_and_b32 s{S_H}, s3, 3"); A(f"s_lshl_b32 s{S_H}, s{S_H}, 3"); A(f"s_and_b32 s{t1}, s{t0}, 7"); A(f"s_add_u32 s{S_H}, s{S_H}, s{t1}")
    P.append(valu("v_lshrrev_b32", G, "6", 0)); P.append(valu("v_and_b32", 0, "63", 0))
    A("s_nop 0"); A(f"v_readfirstlane_b32 s{S_W}, v{G}")
    P.append(valu("v_lshrrev_b32", G, "4", 0)); P.append(valu("v_and_b32", M, "15", 0))
    P.append(valu("v_bfe_u32", RR, 0, "2", "2")); P.append(valu("v_and_b32", C, "3", 0))
    P.append(valu("v_lshlrev_b32", V_L16, "4", 0))
    T0, T1 = 16, 17
    A(f"s_lshr_b32 s{t0}, s{S_W}, 1"); A(f"s_and_b32 s{t0}, s{t0}, 1"); A(f"s_lshl_b32 s{t0}, s{t0}, 2")
    P.append(valu("v_or_b32", T0, f"s{t0}", G))
    P.append(valu("v_lshrrev_b32", T1, "1", M)); P.append(valu("v_xor_b32", T0, T0, T1))
    P.append(valu("v_lshlrev_b32", T0, "5", T0))
    P.append(valu("v_and_b32", T1, "1", M)); P.append(valu("v_lshl_add_u32", T0, T1, "4", T0))
    P.append(valu("v_lshl_add_u32", V_OFFA, G, "13", T0))
    A(f"s_and_b32 s{t0}, s{S_W}, 1"); A(f"s_lshl_b32 s{t0}, s{t0}, 2")
    P.append(valu("v_add_u32", T0, f"s{t0}", G))
    P.append(valu("v_and_b32", T1, "7", 0)); P.append(valu("v_xor_b32", T1, T1, T0)); P.append(valu("v_lshlrev_b32", T1, "4", T1))
    P.append(valu("v_lshrrev_b32", T0, "3", 0)); P.append(valu("v_mul_u32_u24", T0, "1280", T0)); P.append(valu("v_add_u32", V_OFFB, T0, T1))
    A(f"s_lshl_b32 s{S_OW}, s{S_W}, 15"); A(f"s_mul_i32 s{S_OX}, s{S_W}, {8*1280}")
    A(f"s_lshl_b32 s{S_LW}, s{S_W}, 10"); A(f"s_add_u32 s{S_LX}, s{S_LW}, {XOFF}")
    if opts.get("rot", False):
        A(f"s_and_b32 s{t0}, s{S_H}, 7"); A(f"s_lshr_b32 s{t1}, s{t0}, 2"); A(f"s_add_u32 s{t0}, s{t0}, s{t1}")
        A(f"s_and_b32 s{t1}, s{S_B}, 3"); A(f"s_mul_i32 s{t1}, s{t1}, 5"); A(f"s_add_u32 s{t1}, s{t1}, 1"); A(f"s_lshr_b32 s{t1}, s{t1}, 1")
        A(f"s_add_u32 s{S_SIG}, s{t0}, s{t1}")
        A(f"s_cmp_ge_u32 s{S_SIG}, 10"); A(f"s_cselect_b32 s{t0}, 10, 0"); A(f"s_sub_u32 s{S_SIG}, s{S_SIG}, s{t0}")
    else:
        A(f"s_mov_b32 s{S_SIG}, 0")
    A("s_waitcnt lgkmcnt(0)")
    if opts.get("pstamp"): P.extend(stamp(4))
    px, pk, pv, pw, pws = S_PTR, S_PTR+2, S_PTR+4, S_PTR+6, S_PTR+8
    srd_build(A, SRDD, S_DBG, None, 256)
    A(f"s_or_b32 s{t0}, s2, s{S_W}"); A(f"s_cmp_eq_u32 s{t0}, 0"); A(f"s_cbranch_scc0 {name}_nononce")
    A(f"s_memrealtime s[{S_T[3]}:{S_T[4]}]"); A("s_waitcnt lgkmcnt(0)"); A(f"s_or_b32 s{t0}, s{S_T[3]}, 1")
    P.append(valu("v_mov_b32", V_DUMMY, f"s{t0}")); P.append(valu("v_mov_b32", V_TCH, "0"))
    A(f"buffer_store_dword v{V_DUMMY}, v{V_TCH}, s[{SRDD}:{SRDD+3}], 0 offen sc1")
    P.append(label(f"{name}_nononce"))
    if opts.get("hold", True): hold_setup(name, opts, A, P)
    A(f"s_lshl_b32 s{t0}, s{S_H}, 8"); srd_build(A, SRDA, pw, t0, 640*8192 - 31*256)
    A(f"s_mul_i32 s{t0}, s{S_B}, 245760"); srd_build(A, SRDB, px, t0, 245760)
    P.extend(q_addr())
    for grp in q_dma(0): P.extend([grp[0], nop(0)] + grp[1:])
    if opts.get("pstamp"): P.extend(stamp(5))
    pa, pb = opts.get('prioA', 0), opts.get('prioBq', 0)
    if pa or pb:
        A(f"s_cmp_eq_u32 s{S_BR}, 0"); A(f"s_cbranch_scc0 {name}_prb"); A(f"s_setprio {pa}"); A(f"s_branch {name}_noprio")
        P.append(label(f"{name}_prb")); A(f"s_setprio {pb}"); P.append(label(f"{name}_noprio"))
    A(f"s_lshl_b32 s{t1}, s{S_B}, 5"); A(f"s_add_u32 s{t1}, s{t1}, s{S_H}"); A(f"s_lshl_b32 s{t0}, s{t1}, 17")
    srd_build(A, SRDK, pk, t0, 131072); srd_build(A, SRDV, pv, t0, 131072)
    A(f"s_mul_i32 s{t1}, s{S_BR}, {12*1048576}"); A(f"s_lshl_b32 s{t2}, s{S_H}, 15"); A(f"s_add_u32 s{t0}, s{t1}, s{t2}")
    srd_build(A, SRDO, pws, t0, 12*1048576 - 31*32768)
    A(f"s_mul_i32 s{t0}, s{S_ID}, 20480"); srd_build(A, SRDWO, S_PTR+10, t0, 20480)
    A(f"s_mov_b32 s{S_SC}, 0x3e0293ee"); A(f"s_mov_b32 s{S_SC+1}, 0x3e0293ee")
    P.append(valu("v_and_b32", T0, "1", G)); P.append(valu("v_lshl_or_b32", T0, T0, "2", RR))
    P.append(valu("v_lshl_add_u32", T1, G, "3", RR)); P.append(valu("v_lshlrev_b32", T1, "8", T1))
    P.append(valu("v_lshl_add_u32", T1, C, "3", T1))
    for T in range(8):
        P.append(valu("v_xor_b32", A_W[T], str(T), T0)); P.append(valu("v_lshl_add_u32", A_W[T], A_W[T], "5", T1))
    P.append(valu("v_lshrrev_b32", T0, "1", M)); P.append(valu("v_xor_b32", T0, G, T0)); P.append(valu("v_lshlrev_b32", T0, "4", T0))
    P.append(valu("v_lshl_add_u32", T0, M, "7", T0))
    A(f"s_mul_i32 s3, s{S_W}, {48*128}"); A(f"s_add_u32 s3, s3, {XOFF}")
    P.append(valu("v_add_u32", A_X[0], "s3", T0)); P.append(valu("v_xor_b32", A_X[1], "64", A_X[0]))
    P.append(valu("v_and_b32", T0, "7", M))
    P.append(valu("v_lshrrev_b32", T1, "1", T0)); P.append(valu("v_lshlrev_b32", T1, "2", T1))
    P.append(valu("v_and_b32", A_K, "1", T0)); P.append(valu("v_add_u32", T1, T1, A_K))
    P.append(valu("v_lshlrev_b32", T1, "4", T1)); P.append(valu("v_lshl_add_u32", T1, T0, "10", T1))
    P.append(valu("v_lshrrev_b32", T0, "3", M)); P.append(valu("v_lshl_add_u32", T1, T0, "8", T1))
    P.append(valu("v_and_b32", T0, "1", G)); P.append(valu("v_lshlrev_b32", T0, "1", T0))
    P.append(valu("v_lshrrev_b32", A_K, "1", G)); P.append(valu("v_or_b32", T0, T0, A_K))
    P.append(valu("v_lshl_add_u32", A_K, T0, "4", T1))
    P.append(valu("v_and_b32", T0, "1", G)); P.append(valu("v_lshl_add_u32", T0, T0, "2", RR))
    P.append(valu("v_mul_u32_u24", T0, "1056", T0))
    P.append(valu("v_lshrrev_b32", T1, "1", G)); P.append(valu("v_lshl_add_u32", T0, T1, "8", T0))
    P.append(valu("v_lshl_add_u32", T0, C, "3", T0)); P.append(valu("v_add_u32", A_V, str(VOFF), T0))
    for i in range(96): P.append(valu("v_mov_b32", ACC + i, "0"))
    if opts.get("touch_wo", True) and opts.get("wo_pos") == "pro": P.extend(wo_touch())
    if opts.get("touch_wo", True) and opts.get("wo_pos") == "Bpro":
        A(f"s_cmp_eq_u32 s{S_BR}, 0"); A(f"s_cbranch_scc1 {name}_nowot")
        P.extend(wo_touch())
        A(f"s_mul_i32 s{t0}, s{S_ID}, 20480"); srd_build(A, SRDWO, 76, t0, 20480)
        P.extend(wo_touch()[1:])
        P.append(label(f"{name}_nowot"))
    P.extend(q_addr())
    for grp in q_dma(1): P.extend([grp[0], nop(0)] + grp[1:])
    nt_ = 0
    if opts.get("touch_wo", True) and opts.get("wo_pos") == "pro2":
        tw = wo_touch(); P.extend(tw); nt_ = sum(1 for x in tw if x.kind == "vload")
    P.append(waitcnt(vm=10 + nt_)); P.append(barrier())
    if opts.get("hold"): P.extend(hold_wait(name, opts))
    P.extend(q_frag_reads(0, 0, 0))
    return P

def poll(name, srd, off_sreg, mask_or_val, mode, vtmp, sleep=8):
    o = [raw(f"s_mov_b32 s{S_T[5]}, 200000"), label(f"{name}"), raw(f"v_mov_b32 v{vtmp}, 0", kind="valu", wr=[vtmp]),
         raw(f"buffer_load_dword v{vtmp+1}, v{vtmp}, s[{srd}:{srd+3}], s{off_sreg} offen sc1"),
         raw("s_waitcnt vmcnt(0)"),
         raw(f"v_readfirstlane_b32 s{S_T[6]}, v{vtmp+1}"),
         raw(f"s_sub_u32 s{S_T[5]}, s{S_T[5]}, 1"), raw(f"s_cbranch_scc1 {name}_ok"),
         raw("s_nop 2")]
    if mode == 'bit':
        o += [raw(f"s_and_b32 s{S_T[6]}, s{S_T[6]}, s{mask_or_val}"), raw(f"s_cbranch_scc1 {name}_ok")]
    else:
        o += [raw(f"s_cmp_ge_u32 s{S_T[6]}, {mask_or_val}"), raw(f"s_cbranch_scc1 {name}_ok")]
    o += [raw(f"s_sleep {sleep}"), raw(f"s_branch {name}"), label(f"{name}_ok")]
    return o

FBOFF = 81856
S_FB = 70
S_FB = 78
L_LO, L_HI = "0x2b800000", "0x53800000"
def head_epilogue(name, opts):
    o = [valu("v_mov_b32", V_TCH, "0"), raw(f"s_cmp_eq_u32 s{S_W}, 0"), raw(f"s_cbranch_scc0 {name}_nn"),
         raw(f"buffer_load_dword v{V_DUMMY}, v{V_TCH}, s[{SRDD}:{SRDD+3}], 0 offen sc1", kind="vload", rd=[V_TCH], wr=[V_DUMMY]),
         label(f"{name}_nn"), raw(f"s_mov_b32 s{S_FB}, 0"), label(f"{name}_e0")]
    t = VT
    for qt in range(3):
        l = LSUM[qt]
        o += [valu("v_mov_b32", t[qt], l), perm32(t[qt], l), valu("v_add_f32", l, l, t[qt])]
    for qt in range(3):
        l = LSUM[qt]
        o += [valu("v_mov_b32", t[qt], l), perm16(t[qt], l), valu("v_add_f32", l, l, t[qt])]
    m = S_T[5]
    o += [raw(f"s_mov_b64 s[{m}:{m+1}], 0"), valu("v_mov_b32", 11, L_LO), valu("v_mov_b32", 12, L_HI)]
    for qt in range(3):
        o += [I(f"v_cmp_nle_f32 vcc, v11, v{LSUM[qt]}", rd=[11, LSUM[qt]], kind="valu"), raw("s_nop 1"), raw(f"s_or_b64 s[{m}:{m+1}], s[{m}:{m+1}], vcc"),
              I(f"v_cmp_nge_f32 vcc, v12, v{LSUM[qt]}", rd=[12, LSUM[qt]], kind="valu"), raw("s_nop 1"), raw(f"s_or_b64 s[{m}:{m+1}], s[{m}:{m+1}], vcc")]
    o += [raw(f"s_cmp_lg_u64 s[{m}:{m+1}], 0"), raw(f"s_cselect_b32 s{m}, 1, 0"), raw(f"s_andn2_b32 s{m}, s{m}, s{S_FB}"),
          raw(f"s_lshl_b32 s{m+1}, s{S_W}, 2"), raw(f"s_add_u32 s{m+1}, s{m+1}, {FBOFF}"),
          I(f"v_mov_b32 v11, s{m}", wr=[11], kind="valu"), I(f"v_mov_b32 v12, s{m+1}", wr=[12], kind="valu"), dsw32(12, 11)]
    for qt in range(3): o.append(vrcp(t[qt], LSUM[qt]))
    for qt in range(3):
        o.append(raw(f"s_mul_i32 s{S_T[3]}, s{S_B}, 12")); o.append(raw(f"s_mul_i32 s{S_T[4]}, s{S_W}, 3"))
        o.append(raw(f"s_add_u32 s{S_T[3]}, s{S_T[3]}, s{S_T[4]}")); o.append(raw(f"s_add_u32 s{S_T[3]}, s{S_T[3]}, {qt}"))
        o.append(raw(f"s_lshr_b32 s{S_T[4]}, s{S_T[3]}, 3")); o.append(raw(f"s_lshl_b32 s{S_T[4]}, s{S_T[4]}, 20"))
        o.append(raw(f"s_and_b32 s{S_T[3]}, s{S_T[3]}, 7")); o.append(raw(f"s_lshl_b32 s{S_T[3]}, s{S_T[3]}, 10"))
        o.append(raw(f"s_add_u32 s{S_T[qt]}, s{S_T[3]}, s{S_T[4]}"))
    for qt in range(3):
        for c in range(4):
            a = acc(2*c, qt); b = acc(2*c+1, qt)
            for r in range(4):
                o.append(valu("v_mul_f32", a + r, a + r, t[qt])); o.append(valu("v_mul_f32", b + r, b + r, t[qt]))
            o += [cvtpk(a, a, a+1), cvtpk(a+1, a+2, a+3), cvtpk(a+2, b, b+1), cvtpk(a+3, b+2, b+3)]
            o.append(bstore(a, 4, V_L16, SRDO, S_T[qt], flags=opts.get("stflags", "sc1")))
            if c < 3: o.append(raw(f"s_add_u32 s{S_T[qt]}, s{S_T[qt]}, 8192"))
    o += [waitcnt(vm=0, lgkm=0), barrier()]
    o += [valu("v_mov_b32", 12, str(FBOFF)), ds128(160, 12, 0), waitcnt(lgkm=0),
          valu("v_or_b32", 160, 160, 161), valu("v_or_b32", 162, 162, 163), valu("v_or_b32", 160, 160, 162), raw("s_nop 0"),
          raw(f"v_readfirstlane_b32 s{S_T[2]}, v160"), raw("s_nop 3"), raw(f"s_cmp_lg_u32 s{S_T[2]}, 0"), raw(f"s_cbranch_scc1 {name}_fb")]
    t0, t1 = S_T[0], S_T[1]
    o += [raw(f"s_cmp_eq_u32 s{S_W}, 0"), raw(f"s_cbranch_scc0 {name}_nopub"),
          raw(f"v_readfirstlane_b32 s{S_NONCE}, v{V_DUMMY}"), raw("s_nop 3"),
          raw(f"s_cmp_lg_u32 s{S_NONCE}, 0"), raw(f"s_cbranch_scc1 {name}_pn_done"), raw(f"s_mov_b32 s{t0}, 0")]
    o += poll(f"{name}_pn", SRDD, t0, 1, 'ge', V_TCH)
    o += [raw(f"s_mov_b32 s{S_NONCE}, s{S_T[6]}"), label(f"{name}_pn_done"),
          raw(f"s_lshl_b32 s{t0}, s{S_BR}, 3"), raw(f"s_add_u32 s{t0}, s{t0}, s{S_B}"), raw(f"s_mul_i32 s{t0}, s{t0}, 384"),
          raw(f"s_lshl_b32 s{t1}, s{S_H}, 2"), raw(f"s_add_u32 s{t0}, s{t0}, s{t1}"), raw(f"s_add_u32 s{t0}, s{t0}, {FLAGOFF}")]
    A = lambda t: o.append(raw(t))
    srd_build(A, SRDWO, S_PTR+8, t0, 260)
    o += [raw("v_lshlrev_b32 v16, 7, v0", kind="valu", wr=[16]), raw(f"v_mov_b32 v17, s{S_NONCE}", kind="valu", wr=[17]),
          raw("s_mov_b64 exec, 7"),
          raw(f"buffer_store_dword v17, v16, s[{SRDWO}:{SRDWO+3}], 0 offen sc1")]
    if opts.get("linger"):
        o += [raw("s_mov_b64 exec, 1"), raw(f"s_lshl_b32 s{t0}, s{S_ID}, 7"), raw(f"s_add_u32 s{t0}, s{t0}, {FLAGOFF + 131072}")]
        srd_build(A, SRDWO, S_PTR+8, t0, 4)
        o += [raw("v_mov_b32 v16, 0", kind="valu", wr=[16]), raw("s_nop 1"),
              raw(f"buffer_atomic_swap v17, v16, s[{SRDWO}:{SRDWO+3}], 0 offen sc0 sc1"), raw("s_waitcnt vmcnt(0)"),
              raw(f"v_readfirstlane_b32 s{t1}, v17"), raw("s_nop 3"),
              raw(f"s_cmp_eq_u32 s{t1}, s{S_NONCE}"), raw(f"s_cbranch_scc0 {name}_nopub"),
              raw(f"s_mov_b32 s{S_T[5]}, {opts.get('linger_polls', 6)}"), raw(f"s_mov_b32 s{t0}, 128"),
              label(f"{name}_lg"),
              raw(f"buffer_load_dword v17, v16, s[{SRDD}:{SRDD+3}], s{t0} offen sc1"), raw("s_waitcnt vmcnt(0)"),
              raw(f"v_readfirstlane_b32 s{t1}, v17"),
              raw(f"s_sub_u32 s{S_T[5]}, s{S_T[5]}, 1"), raw(f"s_cbranch_scc1 {name}_nopub"), raw("s_nop 2"),
              raw(f"s_cmp_ge_u32 s{t1}, 240"), raw(f"s_cbranch_scc1 {name}_nopub"),
              raw(f"s_sleep {opts.get('linger_sleep', 96)}"), raw(f"s_branch {name}_lg")]
    o += [label(f"{name}_nopub")]
    return o

def head_fallback(name):
    MX = [246, 247, 248]; NM = [184, 188, 192]; TT = 249
    def reset_off():
        return [raw(f"s_lshl_b32 s{S_O[0]}, s{S_W}, 10"), raw(f"s_add_u32 s{S_O[1]}, s{S_O[0]}, 4096"),
                raw(f"s_mov_b32 s{S_O[2]}, s{S_O[0]}"), raw(f"s_mov_b32 s{S_O[3]}, s{S_O[1]}"), raw(f"s_mov_b32 s{S_CNT}, 16")]
    def load(js):
        o = [barrier()]
        for j in js:
            o += [m0set(S_L[j], 0), nop(0), dma(V_L16, SRDK if j < 2 else SRDV, S_O[j]), salu(f"s_add_u32 s{S_O[j]}, s{S_O[j]}, 8192")]
        return o + [waitcnt(vm=0), barrier()]
    def qk(cinit):
        o = []
        for Tk in range(2):
            for c in range(4): o.append(k_read(0, Tk*4 + c))
            for c in range(4):
                for qt in range(3):
                    s = sreg(0, Tk, qt)
                    o.append(mfma16(s, KF + 4*c, qf(qt, c), cinit[qt] if c == 0 else s))
        return o
    pre = [label(f"{name}_fb")] + [valu("v_mov_b32", r, "0xff800000") for r in MX] + reset_off()
    b1 = [label(f"{name}_fb1")] + load([0, 1]) + qk([None]*3)
    for qt in range(3):
        for Tk in range(2):
            s = sreg(0, Tk, qt)
            b1 += [valu("v_max3_f32", MX[qt], MX[qt], s, s+1), valu("v_max3_f32", MX[qt], MX[qt], s+2, s+3)]
    b1 += [waitcnt(lgkm=0), raw(f"s_sub_u32 s{S_CNT}, s{S_CNT}, 1"), raw(f"s_cmp_lg_u32 s{S_CNT}, 0"), raw(f"s_cbranch_scc1 {name}_fb1")]
    mid = []
    for qt in range(3):
        mid += [valu("v_mov_b32", TT, MX[qt]), perm32(TT, MX[qt]), valu("v_max_f32", MX[qt], MX[qt], TT),
                valu("v_mov_b32", TT, MX[qt]), perm16(TT, MX[qt]), valu("v_max_f32", MX[qt], MX[qt], TT)]
        for i in range(4): mid.append(I(f"v_sub_f32 v{NM[qt]+i}, 0, v{MX[qt]}", rd=[MX[qt]], wr=[NM[qt]+i], kind="valu"))
    for i in range(96): mid.append(valu("v_mov_b32", ACC + i, "0"))
    for r in LSUM: mid.append(valu("v_mov_b32", r, "0"))
    mid += reset_off()
    b2 = [label(f"{name}_fb2")] + load([0, 1, 2, 3]) + qk(NM)
    for part in range(2):
        for qt in range(3):
            s = sreg(0, part, qt); p = preg(0, part, qt)
            b2 += [vexp(s+i, s+i) for i in range(4)] + [valu("v_add_f32", LSUM[qt], LSUM[qt], s+i) for i in range(4)] + [cvtpk(p, s, s+1), cvtpk(p+1, s+2, s+3)]
    for half in range(2):
        for T in range(4*half, 4*half + 4): b2 += v_read(0, T)
        for T in range(4*half, 4*half + 4):
            for qt in range(3): b2.append(mfma16(acc(T, qt), VF + 4*(T % 4), pop(0, qt), acc(T, qt)))
    b2 += [waitcnt(lgkm=0), raw(f"s_sub_u32 s{S_CNT}, s{S_CNT}, 1"), raw(f"s_cmp_lg_u32 s{S_CNT}, 0"), raw(f"s_cbranch_scc1 {name}_fb2")]
    post = [nop(15), raw(f"s_mov_b32 s{S_FB}, 1"), raw(f"s_branch {name}_e0")]
    p1, l1, st = resolve_loop([nop(15)] + pre, b1)
    p2, l2, st = resolve_loop(mid, b2, st)
    po, _ = resolve(post, st)
    return p1 + l1 + p2 + l2 + po

V_HOLD = 253
SRDH = 24
SRDH = 100 - 4
def hold_setup(name, opts, A, P):
    t0 = S_T[0]
    A(f"s_lshl_b32 s{t0}, s{S_ID}, 7"); A(f"s_add_u32 s{t0}, s{t0}, {FLAGOFF + 65536}")
    srd_build(A, SRDH, S_PTR+8, t0, 4)
    P.append(valu("v_mov_b32", V_TCH, "0"))
    A(f"buffer_load_dword v{V_HOLD}, v{V_TCH}, s[{SRDH}:{SRDH+3}], 0 offen sc1")
def hold_wait(name, opts):
    o = []
    A = lambda t: o.append(raw(t))
    A(f"s_cmp_eq_u32 s{S_BR}, 0"); A(f"s_cbranch_scc1 {name}_hw_end")
    A(f"s_cmp_eq_u32 s{S_W}, 0"); A(f"s_cbranch_scc0 {name}_hw_done")
    A("s_waitcnt vmcnt(0)"); A(f"v_readfirstlane_b32 s{S_T[4]}, v{V_HOLD}"); A(f"s_mov_b32 s{S_T[5]}, {opts.get('hold_polls', 24)}")
    o.append(label(f"{name}_hw"))
    A(f"buffer_load_dword v{V_HOLD}, v{V_TCH}, s[{SRDH}:{SRDH+3}], 0 offen sc1"); A("s_waitcnt vmcnt(0)")
    A(f"v_readfirstlane_b32 s{S_T[6]}, v{V_HOLD}")
    A(f"s_sub_u32 s{S_T[5]}, s{S_T[5]}, 1"); A(f"s_cbranch_scc1 {name}_hw_done"); A("s_nop 2")
    A(f"s_cmp_lg_u32 s{S_T[6]}, s{S_T[4]}"); A(f"s_cbranch_scc1 {name}_hw_done")
    A(f"s_sleep {opts.get('hold_sleep', 8)}"); A(f"s_branch {name}_hw")
    o.append(label(f"{name}_hw_done")); o.append(barrier()); o.append(label(f"{name}_hw_end"))
    return o
def hold_release(name):
    return [raw(f"s_or_b32 s{S_T[0]}, s{S_BR}, s{S_W}"), raw(f"s_cmp_eq_u32 s{S_T[0]}, 0"), raw(f"s_cbranch_scc0 {name}_hr"),
            raw(f"v_add_u32 v{V_HOLD}, 1, v{V_HOLD}", kind="valu", rd=[V_HOLD], wr=[V_HOLD]), raw(f"v_mov_b32 v{V_TCH}, 0", kind="valu", wr=[V_TCH]),
            raw("s_mov_b64 exec, 1"),
            raw(f"buffer_store_dword v{V_HOLD}, v{V_TCH}, s[{SRDH}:{SRDH+3}], 0 offen sc1"),
            raw("s_mov_b64 exec, -1"), raw("s_nop 1"), label(f"{name}_hr")]

WOT = "sc"
def wo_touch():
    if WOT == "sc":
        return [valu("v_lshlrev_b32", V_TCH, "7", 0), raw(f"s_lshl_b32 s{S_T[0]}, s{S_W}, 13"), bload(V_DUMMY, 1, V_TCH, SRDWO, S_T[0])]
    o = [nop(0), raw(f"s_mul_i32 s{S_T[0]}, s{S_W}, 5120")]
    o += [bload(V_DUMMY, 1, V_L16, SRDWO, S_T[0], off=j*1024 if j < 4 else 0) for j in range(4)]
    o += [raw(f"s_add_u32 s{S_T[0]}, s{S_T[0]}, 4096"), bload(V_DUMMY, 1, V_L16, SRDWO, S_T[0])]
    return o

def att_prio(name, opts):
    pa, pb = opts.get('prioAttA', opts.get('prioAtt', 0)), opts.get('prioAttB', opts.get('prioAtt', 0))
    if pa == pb: return [raw(f"s_setprio {pa}")]
    return [raw(f"s_cmp_eq_u32 s{S_BR}, 0"), raw(f"s_cbranch_scc0 {name}_apb"), raw(f"s_setprio {pa}"), raw(f"s_branch {name}_apd"),
            label(f"{name}_apb"), raw(f"s_setprio {pb}"), label(f"{name}_apd")]

def build_head(name, opts, ST):
    global POL, KVROT, ATTVM, XO, LMF, QRD, BAR2, WOT
    WOT = opts.get('wot', 'sc')
    BAR2 = opts.get('bar2', False)
    QRD = opts.get('qrd', 19)
    LMF = opts.get('lmfma', False)
    XO = opts.get('x', {})
    ATTVM = opts.get('att_vm', 8)
    POL = opts.get("polite"); KVROT = opts.get("kvrot", True)
    kvflags = opts.get("kvflags", "nt")
    pro = head_prologue(name, opts) + ST(1) + [raw(f"s_mov_b32 s{S_CNT}, 4")]
    qb = [label(f"{name}_qloop")]
    for p in range(2): qb += q_iter(p, 'Q')
    qb += [raw(f"s_sub_u32 s{S_CNT}, s{S_CNT}, 1"), raw(f"s_cmp_lg_u32 s{S_CNT}, 0"), raw(f"s_cbranch_scc1 {name}_qloop")]
    pro2, qb2, st = resolve_loop(pro, qb)
    last = ST(2)
    if opts.get("hold", True):
        if opts.get("hold_at", "q") == "q": last += hold_release(name)
    if opts.get("touch_wo", True) and opts.get("wo_pos") == "q8": last += wo_touch()
    last += q_switch() + q_iter(0, 'K0', kvflags) + q_iter(1, 'K1', kvflags)
    last2, st = resolve(last, st)
    wot = wo_touch() if opts.get("touch_wo", True) and opts.get("wo_pos", "mid") == "mid" else []
    mid = [waitcnt(lgkm=0)] + ST(3) + wot + att_prio(name, opts) + q_convert() + att_prologue(kvflags) + [raw(f"s_mov_b32 s{S_CNT}, 4")]
    body = [label(f"{name}_aloop")]
    for u in range(3): body += h0(u) + h1(u, kvflags)
    body += [raw(f"s_cmp_eq_u32 s{S_CNT}, 1"), raw(f"s_cbranch_scc1 {name}_tail")]
    body += h0(3) + h1(3, kvflags)
    body += [raw(f"s_sub_u32 s{S_CNT}, s{S_CNT}, 1"), raw(f"s_branch {name}_aloop")]
    mid2, st1 = resolve(mid, st)
    _, body2, _ = resolve_loop([], body, st1)
    idx = [i for i, x in enumerate(body2) if x.txt.startswith(f"s_cbranch_scc1 {name}_tail")][0]
    _, sA = resolve(body2, st1.copy(), insert=False)
    _, sB = resolve(body2[:idx+1], sA.copy(), insert=False)
    tail = [label(f"{name}_tail")] + h0(3, tail=True) + h1(3, kvflags, tail=True) + ([] if opts.get("pstamp") else ST(4)) + (wo_touch() if opts.get("touch_wo", True) and opts.get("wo_pos") == "epi" else []) + head_epilogue(name, opts)
    tail2, _ = resolve(tail, sB)
    return pro2 + qb2 + last2 + mid2 + body2 + tail2

WSLOT = 4224; NR = 3
OACC = 16
OBF = 144
OAF = 240
O_OFFO, O_OFFW, O_AW, O_FL, O_PV = [1, 2], 3, 4, 5, 6
OG, OM, ORR, OC = 7, 8, 9, 10
OS_OO = 32; OS_OW = [33, 34, 35, 36]; OS_L = 37
OSRDO, OSRDW, OSRDOUT, OSRDF = 12, 16, 20, 24
OS_OFF, OS_WO0, OS_OO0 = 8, 40, 41
OS_AV, OS_ISS, OS_ROT = 38, 39, 9
OS_A2 = 46
OS_WB = 10
def oacc(rt, Tc): return OACC + (rt * 4 + Tc) * 4
_sel = [0]
def o_select(name, opts):
    _sel[0] += 1
    L = f"{name}_s{_sel[0]}"
    t0, t1 = S_T[0], S_T[1]
    return [raw(f"s_cmp_lg_u32 s{OS_AV}, 0"), raw(f"s_cbranch_scc1 {L}_have"),
         raw(f"s_mov_b32 s{t0}, 32"), raw(f"s_cmp_eq_u32 s{OS_ISS}, -1"), raw(f"s_cbranch_scc1 {L}_addr"),
         raw(f"s_mov_b32 s{S_T[5]}, 200000"),
         label(f"{L}_poll"),
         raw(f"buffer_load_dword v{O_PV}, v{O_FL}, s[{OSRDF}:{OSRDF+3}], 0 offen sc1")] + ([
         raw(f"buffer_load_dword v11, v{O_FL}, s[{OSRDF}:{OSRDF+3}], s{OS_WB} offen sc1"), raw("s_waitcnt vmcnt(0)"),
         raw(f"v_cmp_eq_u32 s[{OS_A2}:{OS_A2+1}], s{S_NONCE}, v11"),
         raw(f"v_cmp_eq_u32 vcc, s{S_NONCE}, v{O_PV}"), raw("s_nop 3"), raw(f"s_and_b64 vcc, vcc, s[{OS_A2}:{OS_A2+1}]")] if opts.get("waitB") else [raw("s_waitcnt vmcnt(0)"),
         raw(f"v_cmp_eq_u32 vcc, s{S_NONCE}, v{O_PV}")]) + [
         raw(f"s_sub_u32 s{S_T[5]}, s{S_T[5]}, 1"), raw(f"s_cselect_b32 s{t1}, -1, 0"), raw("s_nop 2"),
         raw(f"s_and_b32 s{t0}, vcc_lo, vcc_hi"),
         raw(f"s_or_b32 s{t1}, s{t1}, s{t0}"), raw(f"s_andn2_b32 s{OS_AV}, s{t1}, s{OS_ISS}"),
         raw(f"s_cbranch_scc1 {L}_have"), raw(f"s_sleep {opts.get('sleep', 8)}"), raw(f"s_branch {L}_poll"),
         label(f"{L}_have"),
         raw(f"s_mov_b32 s{OS_A2}, s{OS_AV}"), raw(f"s_mov_b32 s{OS_A2+1}, s{OS_AV}"),
         raw(f"s_lshr_b64 s[{OS_A2}:{OS_A2+1}], s[{OS_A2}:{OS_A2+1}], s{OS_ROT}"),
         raw(f"s_ff1_i32_b32 s{t0}, s{OS_A2}"), raw(f"s_add_u32 s{t0}, s{t0}, s{OS_ROT}"), raw(f"s_and_b32 s{t0}, s{t0}, 31"),
         raw(f"s_lshl_b32 s{t1}, 1, s{t0}"), raw(f"s_or_b32 s{OS_ISS}, s{OS_ISS}, s{t1}"), raw(f"s_andn2_b32 s{OS_AV}, s{OS_AV}, s{t1}"),
         label(f"{L}_addr"),
         raw(f"s_lshl_b32 s{t1}, s{t0}, 15"), raw(f"s_add_u32 s{OS_OO}, s{OS_OO0}, s{t1}"),
         raw(f"s_mul_i32 s{t1}, s{t0}, {128*1280}"), raw(f"s_add_u32 s{OS_OW[0]}, s{OS_WO0}, s{t1}"),
         raw(f"s_add_u32 s{OS_OW[1]}, s{OS_OW[0]}, 1280"), raw(f"s_add_u32 s{OS_OW[2]}, s{OS_OW[0]}, 2560"), raw(f"s_add_u32 s{OS_OW[3]}, s{OS_OW[0]}, 3840")]
OFL = 'sc1'
def o_loads(u):
    o = []
    for j in range(8): o.append([bload(OBF + 32*u + 4*j, 4, O_OFFO[j//4], OSRDO, OS_OO, off=(j%4)*1024, flags=OFL)])
    for b in range(4): o.append([m0set(OS_L, u * WSLOT + b * 1056), dma(O_OFFW, OSRDW, OS_OW[b])])
    return o
def o_aread(u, Tc):
    off = u * WSLOT + Tc * 32
    return [dstr(OAF + 4*Tc, O_AW, off), dstr(OAF + 4*Tc + 2, O_AW, off + 512)]

def build_oproj(name, opts, ST):
    global OFL
    OFL = opts.get('oflags', 'sc1')
    P = []
    A = lambda t, **k: P.append(raw(t, **k))
    t0, t1, t2 = S_T[0], S_T[1], S_T[2]
    A(f"s_sub_u32 s{S_ID}, s2, 512")
    if opts.get("omap", "xcd") == "xcd":
        A(f"s_and_b32 s3, s{S_ID}, 7"); A(f"s_lshr_b32 s{S_BR}, s3, 2"); A(f"s_lshr_b32 s{OS_OFF}, s{S_ID}, 3")
        A(f"s_mul_i32 s{t1}, s{OS_OFF}, 6554"); A(f"s_lshr_b32 s{t1}, s{t1}, 16")
        A(f"s_and_b32 s{t2}, s3, 3"); A(f"s_mul_i32 s{t2}, s{t2}, 3"); A(f"s_add_u32 s6, s{t2}, s{t1}")
        A(f"s_mul_i32 s{t1}, s{t1}, 10"); A(f"s_sub_u32 s7, s{OS_OFF}, s{t1}")
    else:
        A(f"s_cmp_ge_u32 s{S_ID}, 120"); A(f"s_cselect_b32 s{S_BR}, 1, 0")
        A(f"s_mul_i32 s{t0}, s{S_BR}, 120"); A(f"s_sub_u32 s{S_ID}, s{S_ID}, s{t0}")
        A(f"s_and_b32 s3, s{S_ID}, 7"); A(f"s_lshr_b32 s{OS_OFF}, s{S_ID}, 3")
        A(f"s_mul_i32 s{t1}, s{OS_OFF}, 13108"); A(f"s_lshr_b32 s{t1}, s{t1}, 16")
        A(f"s_lshr_b32 s{t2}, s3, 1"); A(f"s_mul_i32 s{t2}, s{t2}, 3"); A(f"s_add_u32 s6, s{t2}, s{t1}")
        A(f"s_mul_i32 s{t1}, s{t1}, 5"); A(f"s_sub_u32 s7, s{OS_OFF}, s{t1}"); A(f"s_and_b32 s{t2}, s3, 1"); A(f"s_mul_i32 s{t2}, s{t2}, 5"); A(f"s_add_u32 s7, s7, s{t2}")
    A(f"s_mul_i32 s3, s{S_BR}, 40"); A("s_add_u32 s3, s3, 32")
    A(f"s_load_dwordx2 s[{S_PTR}:{S_PTR+1}], s[0:1], s3")
    A(f"s_load_dwordx4 s[{S_PTR+4}:{S_PTR+7}], s[0:1], 80")
    A(f"s_load_dwordx2 s[{S_PTR+8}:{S_PTR+9}], s[0:1], 96")
    P.append(valu("v_lshrrev_b32", OG, "6", 0)); P.append(valu("v_and_b32", 0, "63", 0))
    A("s_nop 0"); A(f"v_readfirstlane_b32 s{S_W}, v{OG}")
    P.append(valu("v_lshrrev_b32", OG, "4", 0)); P.append(valu("v_and_b32", OM, "15", 0))
    P.append(valu("v_bfe_u32", ORR, 0, "2", "2")); P.append(valu("v_and_b32", OC, "3", 0))
    P.append(valu("v_lshlrev_b32", O_OFFO[0], "4", 0)); P.append(valu("v_add_u32", O_OFFO[1], "4096", O_OFFO[0]))
    P.append(valu("v_lshrrev_b32", 16, "3", 0)); P.append(valu("v_mul_u32_u24", 16, "5120", 16))
    P.append(valu("v_and_b32", 17, "7", 0)); P.append(valu("v_lshl_add_u32", O_OFFW, 17, "4", 16))
    A(f"s_mul_i32 s{OS_L}, s{S_W}, {NR*WSLOT}")
    P.append(valu("v_mul_u32_u24", 16, "1056", ORR)); P.append(valu("v_lshl_add_u32", 16, OG, "7", 16)); P.append(valu("v_lshl_add_u32", 16, OC, "3", 16))
    P.append(valu("v_add_u32", O_AW, f"s{OS_L}", 16))
    A(f"s_lshl_b32 s{OS_OO0}, s{S_W}, 13"); A(f"s_mul_i32 s{OS_WO0}, s{S_W}, {32*1280}")
    A("s_waitcnt lgkmcnt(0)")
    A(f"s_mul_i32 s{t0}, s{S_BR}, 12"); A(f"s_add_u32 s{t0}, s{t0}, s6"); A(f"s_lshl_b32 s{t0}, s{t0}, 20")
    srd_build(A, OSRDO, S_PTR+8, t0, 1048576)
    A(f"s_lshl_b32 s{t0}, s7, 7"); srd_build(A, OSRDW, S_PTR, t0, 4096*1280 - 9*128)
    A(f"s_mul_i32 s{t0}, s6, {128*2560}"); A(f"s_mul_i32 s{t1}, s{S_BR}, 1280"); A(f"s_add_u32 s{t0}, s{t0}, s{t1}")
    A(f"s_lshl_b32 s{t1}, s7, 7"); A(f"s_add_u32 s{t0}, s{t0}, s{t1}")
    srd_build(A, OSRDOUT, S_PTR+4, t0, 127*2560 + 128)
    srd_build(A, SRDD, S_PTR+6, None, 256)
    if opts.get("linger"):
        A(f"s_cmp_eq_u32 s{S_W}, 0"); A(f"s_cbranch_scc0 {name}_nocnt")
        P.append(valu("v_mov_b32", 16, "128")); P.append(valu("v_mov_b32", 17, "1"))
        A("s_mov_b64 exec, 1"); A(f"buffer_atomic_add v17, v16, s[{SRDD}:{SRDD+3}], 0 offen sc1"); A("s_mov_b64 exec, -1")
        P.append(label(f"{name}_nocnt"))
    A(f"s_mov_b32 s{t0}, 0")
    A(f"s_cmp_eq_u32 s{S_W}, 0"); A(f"s_cbranch_scc0 {name}_nw")
    P.extend(poll(f"{name}_pn", SRDD, t0, 1, 'ge', O_FL, sleep=8))
    P.append(I(f"v_mov_b32 v{O_PV}, s{S_T[6]}", wr=[O_PV], kind="valu")); P.append(valu("v_mov_b32", O_FL, str(FBOFF)))
    P.append(dsw32(O_FL, O_PV)); P.append(waitcnt(lgkm=0))
    P.append(label(f"{name}_nw"))
    P.append(barrier())
    P.append(valu("v_mov_b32", O_FL, str(FBOFF))); P.append(dsr32(O_PV, O_FL)); P.append(waitcnt(lgkm=0))
    A(f"v_readfirstlane_b32 s{S_NONCE}, v{O_PV}"); A("s_nop 3")
    A(f"s_mul_i32 s{t0}, s6, 43691"); A(f"s_lshr_b32 s{t0}, s{t0}, 16")
    A(f"s_lshl_b32 s{t1}, s6, 7"); A(f"s_add_u32 s{t1}, s{t1}, 127"); A(f"s_mul_i32 s{t1}, s{t1}, 21846"); A(f"s_lshr_b32 s{t1}, s{t1}, 22")
    A(f"s_sub_u32 s{t1}, s{t1}, s{t0}"); A(f"s_mul_i32 s{t1}, s{t1}, 384")
    A(f"s_lshl_b32 s{t2}, s{S_BR}, 3"); A(f"s_add_u32 s{t0}, s{t0}, s{t2}"); A(f"s_mul_i32 s{t0}, s{t0}, 384")
    A(f"s_mul_i32 s{t2}, s7, 21846"); A(f"s_lshr_b32 s{t2}, s{t2}, 16"); A(f"s_mul_i32 s{t2}, s{t2}, 3"); A(f"s_sub_u32 s{t2}, s7, s{t2}")
    A(f"s_lshl_b32 s{t2}, s{t2}, 7"); A(f"s_add_u32 s{t0}, s{t0}, s{t2}"); A(f"s_add_u32 s{t0}, s{t0}, {FLAGOFF}")
    srd_build(A, OSRDF, S_PTR+8, t0, 512 + (8*384 if opts.get("waitB") else 0))
    A(f"s_cmp_eq_u32 s{S_BR}, 0"); A(f"s_cselect_b32 s{OS_WB}, {8*384}, 0")
    P.append(valu("v_and_b32", O_FL, "31", 0)); P.append(valu("v_lshlrev_b32", O_FL, "2", O_FL))
    P.append(valu("v_lshrrev_b32", 16, "5", 0)); P.append(valu("v_mul_lo_u32", 16, f"s{t1}", 16)); P.append(valu("v_add_u32", O_FL, O_FL, 16))
    A(f"s_mov_b32 s{OS_AV}, 0"); A(f"s_mov_b32 s{OS_ISS}, 0")
    if opts.get("trot"):
        A(f"s_memrealtime s[{OS_A2}:{OS_A2+1}]"); A("s_waitcnt lgkmcnt(0)")
        A(f"s_sub_u32 s{t0}, s{OS_A2}, s{S_NONCE}"); A(f"s_mul_i32 s{t0}, s{t0}, {65536 // opts['trot']}"); A(f"s_lshr_b32 s{t0}, s{t0}, 16")
        A(f"s_and_b32 s{t1}, s{OS_OFF}, {opts.get('rotmask', 3)}"); A(f"s_add_u32 s{t0}, s{t0}, s{t1}"); A(f"s_and_b32 s{OS_ROT}, s{t0}, 31")
    else:
        A(f"s_and_b32 s{OS_ROT}, s{OS_OFF}, {opts.get('rotmask', 7)}")
    for i in range(128): P.append(valu("v_mov_b32", OACC + i, "0"))
    P.extend(ST(1))
    for u in range(2):
        P.extend(o_select(name, opts))
        for grp in o_loads(u): P.extend(grp if len(grp) == 1 else [grp[0], nop(0)] + grp[1:])
    P.append(waitcnt(vm=12))
    for Tc in range(4): P.extend(o_aread(0, Tc))
    A(f"s_mov_b32 s{S_CNT}, 11")
    body = [label(f"{name}_loop")]
    for u in range(3):
        mf = [mfma16(oacc(rt, Tc), OAF + 4*Tc, OBF + 32*u + 4*rt, oacc(rt, Tc)) for Tc in range(4) for rt in range(8)]
        slots = [[] for _ in mf]
        slots[0] += o_select(name, opts)
        for j, grp in enumerate(o_loads((u + 2) % 3)):
            k = 1 + (j * 22) // 12
            if len(grp) == 1: slots[k] += grp
            else: slots[k].append(grp[0]); slots[k+1] += grp[1:]
        slots[24].append(waitcnt(vm=12))
        n = (u + 1) % 3
        slots[24] += o_aread(n, 0); slots[25] += o_aread(n, 1); slots[26] += o_aread(n, 2); slots[31] += o_aread(n, 3)
        body += emit(mf, slots)
    if opts.get("ostamp"):
        for cnt, idx in ((9, 2), (5, 3)):
            body += [raw(f"s_cmp_eq_u32 s{S_CNT}, {cnt}"), raw(f"s_cbranch_scc0 {name}_os{idx}")] + ST(idx) + [label(f"{name}_os{idx}")]
    body += [raw(f"s_sub_u32 s{S_CNT}, s{S_CNT}, 1"), raw(f"s_cmp_lg_u32 s{S_CNT}, 0"), raw(f"s_cbranch_scc1 {name}_loop")]
    P2, body2, st = resolve_loop(P, body)
    E = []
    A = lambda t, **k: E.append(raw(t, **k))
    E.extend(ST(4 if opts.get("ostamp") else 2))
    E.append(valu("v_lshlrev_b32", 11, "4", 0))
    A(f"s_lshl_b32 s{t0}, s{S_W}, 14"); E.append(valu("v_add_u32", 12, f"s{t0}", 11))
    A(f"s_lshl_b32 s{t0}, s{S_W}, 12"); E.append(valu("v_add_u32", 13, f"s{t0}", 11))
    E.append(valu("v_and_b32", 14, "1", OG)); E.append(valu("v_lshlrev_b32", 14, "1", 14)); E.append(valu("v_lshrrev_b32", 15, "1", OG))
    E.append(valu("v_or_b32", 14, 14, 15)); E.append(valu("v_lshlrev_b32", 14, "4", 14))
    E.append(valu("v_mul_u32_u24", 15, "2560", OM)); E.append(valu("v_add_u32", 14, 14, 15))
    A(f"s_mul_i32 s{t0}, s{S_W}, {16*2560}"); A(f"s_add_u32 s{t1}, s{t0}, {64*2560}")
    E.append(waitcnt(vm=0, lgkm=0)); E.append(barrier())
    for r in range(2):
        for tl in range(16): E.append(dsw128(12, OACC + (16*r + tl)*4, tl*1024))
        E.append(waitcnt(lgkm=0)); E.append(barrier())
        for t in range(4):
            for p in range(4): E.append(ds128(144 + (p*4 + t)*4, 13, p*16384 + t*1024))
        for pr in range(2):
            for h in range(2):
                t = 2*pr + h
                for i in range(4):
                    a = 144 + t*4 + i
                    E.append(valu("v_add_f32", a, a, a + 16)); E.append(valu("v_add_f32", a + 32, a + 32, a + 48))
                for i in range(4):
                    a = 144 + t*4 + i
                    E.append(valu("v_add_f32", a, a, a + 32))
            a = 144 + 2*pr*4; b = a + 4; q = 240 + (r*2 + pr)*4
            E += [cvtpk(q, a, a+1), cvtpk(q+1, a+2, a+3), cvtpk(q+2, b, b+1), cvtpk(q+3, b+2, b+3), perm16(q, q+2), perm16(q+1, q+3)]
            E.append(bstore(q, 4, 14, OSRDOUT, t0 if r == 0 else t1, off=pr*64, flags=opts.get('outflags', '')))
        if r == 0: E.append(waitcnt(lgkm=0)); E.append(barrier())
    E2, _ = resolve(E, st)
    return P2 + body2 + E2

def build(name, stamps=False, **opts):
    ST = (lambda i, real=False: stamp(i, real)) if stamps else (lambda i, real=False: [])
    out = [label(name)] + ST(0) + ST(6, True)
    out += [raw("s_cmp_ge_u32 s2, 752"), raw(f"s_cbranch_scc1 {name}_end"), raw("s_cmp_ge_u32 s2, 512"), raw(f"s_cbranch_scc1 {name}_oproj")]
    if opts.get("skip_heads") == "holdB":
        out += [raw("s_cmp_lt_u32 s2, 256"), raw(f"s_cbranch_scc1 {name}_end"), raw("s_mov_b32 s4, 40"), label(f"{name}_hb"), raw("s_sleep 32"),
                raw("s_sub_u32 s4, s4, 1"), raw("s_cmp_lg_u32 s4, 0"), raw(f"s_cbranch_scc1 {name}_hb"), raw("s_endpgm")]
    elif opts.get("skip_heads"): out += [raw("s_endpgm")]
    fin_h = []; fin_o = []
    if stamps:
        fin_h = [waitcnt(vm=0), raw("s_mov_b64 exec, -1")] + ([] if opts.get("pstamp") else ST(5)) + ST(7, True) + stamp_dump(8, S_PTR+8, S_W, 64<<20, 16, nwaves_shift=2)
        fin_o = [waitcnt(vm=0)] + ([] if opts.get("ostamp") else ST(3) + ST(4)) + ST(5) + ST(7, True) + stamp_dump(8, S_PTR+8, S_W, 64<<20, 16, nwaves_shift=2)
    out += build_head(name + "_h", opts, ST) + fin_h + [raw("s_endpgm")] + head_fallback(name + "_h")
    out += [label(f"{name}_oproj")] + build_oproj(name + "_o", opts, ST) + fin_o
    out += [label(f"{name}_end"), raw("s_endpgm")]
    return out
```

```python
from asmlib import *

QSLOT = 40960; XOFF = 16384
ASLOT = 16896; VOFF = 8448
ACC = 16; QF = 112
SX, SY, SZ = 160, 172, 184
PB = 196; KF = 214; VF = 230
QA = [160, 204]; QB = [192, 236]
V_OFFA, V_OFFB, V_L16 = 1, 2, 3
A_W = [4, 5, 6, 7, 8, 9, 10, 11]; A_X = [12, 15]; A_K = 13; A_V = 14
LSUM = [4, 5, 6]; VT = [7, 8, 9, 10]
ONES = 250
LACC = [4, 8, 246]
LMF = False
G, M, RR, C = 248, 249, 250, 251
V_DUMMY = 255; V_TCH = 254
S_W, S_BR, S_B, S_H = 4, 5, 6, 7
S_HALF = 79
SRDA, SRDB, SRDK, SRDV, SRDO, SRDD = 12, 16, 20, 24, 28, 64
S_O = [32, 33, 34, 35]; S_L = [38, 39, 40, 41]; S_CNT = 42
S_OW, S_OX, S_LW, S_LX, S_SIG, S_TT = 8, 9, 36, 37, 10, 11
S_KC, S_VC, S_KB, S_KROT = 8, 9, 36, 37
S_T = [43, 44, 45, 46, 47, 48, 49]
S_SC = 50
S_PTR = 52
SRDWO = 68
S_ID = 72
S_DBG = 74
FLAGOFF = 32 << 20
S_NONCE = 73

def acc(T, qt): return ACC + (T * 3 + qt) * 4
def qf(qt, c): return QF + (qt * 4 + c) * 4

def emit(mf, slots):
    out = []
    for m, fs in zip(mf, slots):
        out.append(m)
        for f in fs:
            if isinstance(f, list): out.extend(f)
            else: out.append(f)
    return out
def spread(slots, items, lo, hi):
    n = len(items); m = hi - lo
    for i, it in enumerate(items): slots[lo + (i * m) // n].append(it)

def q_addr():
    t0 = S_T[0]
    return [salu(f"s_lshl_b32 s{t0}, s{S_SIG}, 19"), salu(f"s_add_u32 s{S_O[0]}, s{S_OW}, s{t0}"),
            salu(f"s_lshl_b32 s{t0}, s{S_SIG}, 7"), salu(f"s_add_u32 s{S_O[1]}, s{S_OX}, s{t0}"),
            salu(f"s_add_u32 s{S_SIG}, s{S_SIG}, 1"), salu(f"s_cmp_eq_u32 s{S_SIG}, 10"), salu(f"s_cselect_b32 s{S_SIG}, 0, s{S_SIG}")]
def q_dma(slot):
    out = []
    for i in range(4):
        g = [m0set(S_LW, slot * QSLOT + i * 4096)]
        if i == 0: g += [dma(V_OFFA, SRDA, S_O[0])]
        else: g += [salu(f"s_add_u32 s{S_TT}, s{S_O[0]}, {i*16*8192}"), dma(V_OFFA, SRDA, S_TT)]
        out.append(g)
    for i in range(6):
        g = [m0set(S_LX, slot * QSLOT + i * 4096)]
        if i == 0: g += [dma(V_OFFB, SRDB, S_O[1])]
        else: g += [salu(f"s_add_u32 s{S_TT}, s{S_O[1]}, {i*32*1280}"), dma(V_OFFB, SRDB, S_TT)]
        out.append(g)
    return out
KVROT = True
def kv_addr(which):
    c = S_KC if which == 0 else S_VC
    a, b = (S_O[0], S_O[1]) if which == 0 else (S_O[2], S_O[3])
    t = S_TT
    return [salu(f"s_add_u32 s{t}, s{c}, s{S_KROT}"), salu(f"s_and_b32 s{t}, s{t}, 15"), salu(f"s_cmp_lt_u32 s{c}, 16"),
            salu(f"s_cselect_b32 s{t}, s{t}, 16"), salu(f"s_lshl_b32 s{t}, s{t}, 13"), salu(f"s_add_u32 s{a}, s{t}, s{S_KB}"),
            salu(f"s_add_u32 s{b}, s{a}, 4096"), salu(f"s_add_u32 s{c}, s{c}, 1")]
def kv_dma(kslot, vslot, flags):
    out = []
    for j in range(4):
        sl = kslot if j < 2 else vslot
        if KVROT:
            pre = kv_addr(j // 2) if j % 2 == 0 else []
            post = nop(0)
        else:
            pre = []
            post = salu(f"s_add_u32 s{S_O[j]}, s{S_O[j]}, 8192")
        out.append([pre + [m0set(S_L[j], sl * ASLOT)], dma(V_L16, SRDK if j < 2 else SRDV, S_O[j], flags), post])
    return out

def q_frag_reads(slot, e, st):
    out = []
    for qt in range(3): out.append(ds128(QB[st] + 4*qt, A_X[e], slot * QSLOT + qt * 2048))
    for T in range(8):
        o = slot * QSLOT + e * 8192
        out.append(dstr(QA[st] + 4*T, A_W[T], o)); out.append(dstr(QA[st] + 4*T + 2, A_W[T], o + 1024))
    return out

_pl = [0]
def polite(n):
    _pl[0] += 1
    lab = f"Lpol{_pl[0]}"
    return [raw(f"s_cmp_eq_u32 s{S_BR}, 0"), raw(f"s_cbranch_scc1 {lab}"), waitcnt(vm=n), label(lab)]
POL = None
QRD = 19
def q_half(st, reads, extra):
    mf = [mfma16(acc(T, qt), QA[st] + 4*T, QB[st] + 4*qt, acc(T, qt)) for T in range(8) for qt in range(3)]
    slots = [[] for _ in mf]
    for i, rd in enumerate(reads): slots[(i * QRD) // 19 if i < 19 else 23].append(rd)
    n = len(extra)
    for j, grp in enumerate(extra):
        k = (j * 22) // max(n, 1)
        slots[k].append(grp[0]); slots[k+1] += [x for x in grp[1:] if getattr(x, "kind", "") != "nop"]
    return emit(mf, slots)

def q_iter(p, kind, kvflags=""):
    out = q_half(0, q_frag_reads(p, 1, 1), [])
    out += [waitcnt(vm=0, lgkm=0) if kind != 'K1' else waitcnt(lgkm=0), barrier()]
    if kind == 'Q':
        extra = [q_addr()] + q_dma(p)
        if POL:
            for pos, n in POL: extra[pos] = extra[pos] + polite(n)
    elif kind == 'K0': extra = kv_dma(0, 0, kvflags) + kv_dma(1, 1, kvflags)
    else: extra = kv_dma(2, 2, kvflags) + kv_dma(3, 3, kvflags)
    reads = q_frag_reads(1 - p, 0, 0) if kind != 'K1' else []
    out += q_half(1, reads, extra)
    return out

def q_switch():
    o = []
    A = lambda t: o.append(raw(t))
    t0, t1 = S_T[0], S_T[1]
    A(f"s_lshr_b32 s{t0}, s{S_W}, 1"); A(f"s_lshl_b32 s{t0}, s{t0}, 2"); A(f"s_and_b32 s{t1}, s{S_W}, 1"); A(f"s_add_u32 s{t0}, s{t0}, s{t1}")
    A(f"s_lshl_b32 s{t0}, s{t0}, 4"); A(f"s_lshl_b32 s{t1}, s{S_W}, 10"); A(f"s_add_u32 s{S_L[0]}, s{t0}, s{t1}")
    A(f"s_add_u32 s{S_L[1]}, s{S_L[0]}, {4096+128}")
    A(f"s_mul_i32 s{t0}, s{S_W}, 1056"); A(f"s_add_u32 s{S_L[2]}, s{t0}, {VOFF}"); A(f"s_add_u32 s{S_L[3]}, s{S_L[2]}, {4*1056}")
    A(f"s_lshl_b32 s{S_KB}, s{S_W}, 10"); A(f"s_mov_b32 s{S_KC}, 0"); A(f"s_mov_b32 s{S_VC}, 0")
    if KVROT:
        A(f"s_lshr_b32 s{S_KROT}, s{S_ID}, 3"); A(f"s_add_u32 s{S_KROT}, s{S_KROT}, s{S_ID}"); A(f"s_and_b32 s{S_KROT}, s{S_KROT}, 15")
    else:
        A(f"s_mov_b32 s{S_O[0]}, s{S_KB}"); A(f"s_add_u32 s{S_O[1]}, s{S_KB}, 4096"); A(f"s_mov_b32 s{S_O[2]}, s{S_O[0]}"); A(f"s_mov_b32 s{S_O[3]}, s{S_O[1]}")
    return o

def q_convert():
    o = []
    for qt in range(3):
        for T in range(8):
            a = acc(T, qt)
            o.append(pkmul(a, a, f"s[{S_SC}:{S_SC+1}]")); o.append(pkmul(a+2, a+2, f"s[{S_SC}:{S_SC+1}]"))
    for qt in range(3):
        for c in range(4):
            q = qf(qt, c); a = acc(2*c, qt); b = acc(2*c+1, qt)
            o += [cvtpk(q, a, a+1), cvtpk(q+1, a+2, a+3), cvtpk(q+2, b, b+1), cvtpk(q+3, b+2, b+3)]
    for qt in range(3):
        for c in range(4):
            q = qf(qt, c)
            o += [perm16(q, q+2), perm16(q+1, q+3)]
    for i in range(96): o.append(valu("v_mov_b32", ACC + i, "0"))
    if LMF:
        for qt in range(3):
            for i in range(4): o.append(valu("v_mov_b32", LACC[qt] + i, "0"))
        for i in range(4): o.append(valu("v_mov_b32", ONES + i, "0x3f803f80"))
    else:
        for r in LSUM: o.append(valu("v_mov_b32", r, "0"))
    return o

def sreg(j, Tk, qt):
    if Tk == 0: return SX + 4*qt
    return (SY if j % 2 == 0 else SZ) + 4*qt
def preg(j, part, qt):
    base = PB + 6*qt
    if part == 1: return base + 2
    return base + (0 if j % 2 == 0 else 4)
def pop(j, qt): return PB + 6*qt + (0 if j % 2 == 0 else 2)
def k_read(j, i): return ds128(KF + 4*(i % 4), A_K, (j % 4) * ASLOT + (i % 4) * 64 + (i // 4) * 512)
def v_read(j, T):
    o = (j % 4) * ASLOT + T * 32
    d = VF + 4*(T % 4)
    if j % 2 == 0: return [dstr(d, A_V, o), dstr(d+2, A_V, o + 512)]
    return [dstr(d+2, A_V, o), dstr(d, A_V, o + 512)]
def softmax_ops(j, part):
    if XO.get("nosm"): return [nop(0)]
    ops = []
    for qt in range(3):
        s = sreg(j, part, qt); p = preg(j, part, qt)
        ops.append([vexp(s, s), vexp(s+1, s+1), vexp(s+2, s+2), vexp(s+3, s+3),
                    valu("v_add_f32", LSUM[qt], LSUM[qt], s), cvtpk(p, s, s+1), valu("v_add_f32", LSUM[qt], LSUM[qt], s+1),
                    valu("v_add_f32", LSUM[qt], LSUM[qt], s+2), cvtpk(p+1, s+2, s+3), valu("v_add_f32", LSUM[qt], LSUM[qt], s+3)])
    seq = list(ops[0][:4])
    for qt in range(1, 3):
        e = ops[qt][:4]; f = ops[qt-1][4:]
        seq += [e[0], f[0], f[1], e[1], f[2], e[2], f[3], f[4], e[3], f[5]]
    seq += ops[2][4:]
    if LMF: seq = [x for x in seq if not x.txt.startswith("v_add_f32")]
    if XO.get("noadd"): seq = [x for x in seq if not x.txt.startswith("v_add_f32")]
    if XO.get("noexp"): seq = [x for x in seq if not x.txt.startswith("v_exp")]
    return seq
def qk_mfmas(j):
    mf = []
    for Tk in range(2):
        for c in range(4):
            i = Tk*4 + c
            for qt in range(3):
                s = sreg(j, Tk, qt)
                mf.append(mfma16(s, KF + 4*(i % 4), qf(qt, c), None if c == 0 else s))
    return mf
def pv_mfmas(j):
    return [mfma16(acc(T, qt), VF + 4*(T % 4), pop(j, qt), acc(T, qt)) for T in range(8) for qt in range(3)]
def l_mfmas(j):
    return [mfma16(LACC[qt], ONES, pop(j, qt), LACC[qt]) for qt in range(3)]

def h0(s, tail=False):
    sm = softmax_ops(s, 1)
    vr_ = [v_read(s, T) for T in range(4)]
    if tail:
        out = []
        for v in vr_: out += v
        return out + sm
    mf = qk_mfmas(s + 1)
    slots = [[] for _ in mf]
    for i in range(5): slots[3*i].append(k_read(s + 1, i + 3))
    for T in range(4): slots[14 + 2*T].append(vr_[T][0]); slots[15 + 2*T].append(vr_[T][1])
    spread(slots, sm, 0, 23)
    return emit(mf, slots)
ATTVM = 8
XO = {}
BAR2 = False
def h1(s, kvflags, tail=False):
    mf = pv_mfmas(s)
    slots = [[] for _ in mf]
    for T in range(4, 8):
        v = v_read(s, T); slots[3*(T-4) + 2].append(v[0]); slots[3*(T-4) + 3].append(v[1])
    if not tail:
        spread(slots, softmax_ops(s + 1, 0), 0, 23)
        if BAR2:
            if s % 2 == 0:
                slots[16].append([waitcnt(vm=0, lgkm=0), barrier()])
                grps = kv_dma(s % 4, (s + 3) % 4, kvflags) + kv_dma((s + 1) % 4, s % 4, kvflags)
                for j, grp in enumerate(grps):
                    k = 16 + j
                    slots[k].append(grp[0]); slots[k].append(grp[2] if grp[2].kind == "nop" else nop(0)); slots[k].append(grp[1])
                    if grp[2].kind != "nop": slots[k].append(grp[2])
            for i in range(3): slots[17 + i].append(k_read(s + 2, i))
        else:
          if XO.get("nobar"): slots[16].append([waitcnt(lgkm=0)])
          else: slots[16].append([waitcnt(vm=ATTVM, lgkm=0), barrier()])
          for i in range(3): slots[17 + i].append(k_read(s + 2, i))
          if not XO.get("nodma"):
            for j, grp in enumerate(kv_dma((s + 1) % 4, s % 4, kvflags)):
              slots[17 + j].append(grp[0]); slots[18 + j].append(grp[1])
              if grp[2].kind != "nop": slots[19 + j].append(grp[2])
    if LMF:
        lm = l_mfmas(s); slots[2].append(lm[0]); slots[8].append(lm[1]); slots[13].append(lm[2])
    return emit(mf, slots)
def att_prologue(kvflags):
    o = [raw(f"s_sub_u32 s{S_VC}, s{S_VC}, 1")] if KVROT else [raw(f"s_sub_u32 s{S_O[2]}, s{S_O[2]}, 8192"), raw(f"s_sub_u32 s{S_O[3]}, s{S_O[3]}, 8192")]
    o += [waitcnt(vm=14), barrier()]
    for i in range(3): o.append(k_read(0, i))
    mf = qk_mfmas(0)
    slots = [[] for _ in mf]
    for i in range(5): slots[3*i].append(k_read(0, i + 3))
    o += emit(mf, slots)
    o += [waitcnt(vm=8, lgkm=0), barrier()]
    for i in range(3): o.append(k_read(1, i))
    if not BAR2:
        for grp in kv_dma(0, 3, kvflags): o += grp[0] + [nop(0), grp[1], grp[2]]
    o += softmax_ops(0, 0)
    return o

def srd_build(A, dst, ptr, offreg, nrec):
    if offreg is None:
        A(f"s_mov_b32 s{dst}, s{ptr}"); A(f"s_and_b32 s{dst+1}, s{ptr+1}, 0xffff")
    else:
        A(f"s_add_u32 s{dst}, s{ptr}, s{offreg}"); A(f"s_addc_u32 s{dst+1}, s{ptr+1}, 0"); A(f"s_and_b32 s{dst+1}, s{dst+1}, 0xffff")
    A(f"s_mov_b32 s{dst+2}, {nrec}"); A(f"s_mov_b32 s{dst+3}, 0x20000")

def head_prologue(name, opts):
    P = []
    A = lambda t, **k: P.append(raw(t, **k))
    t0, t1, t2 = S_T[0], S_T[1], S_T[2]
    A(f"s_lshr_b32 s{S_HALF}, s2, 8"); A(f"s_and_b32 s{S_ID}, s2, 255")
    if opts.get("split", "branch") == "head":
        A(f"s_bfe_u32 s{S_BR}, s{S_ID}, 0x10002")
    else:
        A(f"s_mov_b32 s{S_BR}, s{S_HALF}")
    A(f"s_mul_i32 s3, s{S_BR}, 40")
    A(f"s_load_dwordx4 s[{S_PTR}:{S_PTR+3}], s[0:1], s3")
    A(f"s_add_u32 s{t1}, s3, 16"); A(f"s_load_dwordx4 s[{S_PTR+4}:{S_PTR+7}], s[0:1], s{t1}")
    A(f"s_load_dwordx2 s[{S_PTR+8}:{S_PTR+9}], s[0:1], 96")
    A(f"s_load_dwordx2 s[{S_DBG}:{S_DBG+1}], s[0:1], 88")
    A(f"s_add_u32 s{t1}, s3, 32"); A(f"s_load_dwordx2 s[{S_PTR+10}:{S_PTR+11}], s[0:1], s{t1}")
    A(f"s_load_dwordx2 s[76:77], s[0:1], 32")
    if opts.get("split", "branch") == "head":
        A(f"s_bfe_u32 s{S_B}, s{S_ID}, 0x10001"); A(f"s_lshl_b32 s{S_B}, s{S_B}, 2"); A(f"s_lshr_b32 s{t1}, s{S_ID}, 6"); A(f"s_add_u32 s{S_B}, s{S_B}, s{t1}")
        A(f"s_and_b32 s{S_H}, s{S_ID}, 1"); A(f"s_lshl_b32 s{S_H}, s{S_H}, 3"); A(f"s_bfe_u32 s{t1}, s{S_ID}, 0x30003"); A(f"s_add_u32 s{S_H}, s{S_H}, s{t1}")
        A(f"s_lshl_b32 s{t1}, s{S_HALF}, 4"); A(f"s_add_u32 s{S_H}, s{S_H}, s{t1}")
    else:
        A(f"s_and_b32 s3, s{S_ID}, 7"); A(f"s_lshr_b32 s{t0}, s{S_ID}, 3")
        A(f"s_lshr_b32 s{S_B}, s3, 2"); A(f"s_lshl_b32 s{S_B}, s{S_B}, 2"); A(f"s_lshr_b32 s{t1}, s{t0}, 3"); A(f"s_add_u32 s{S_B}, s{S_B}, s{t1}")
        A(f"s_and_b32 s{S_H}, s3, 3"); A(f"s_lshl_b32 s{S_H}, s{S_H}, 3"); A(f"s_and_b32 s{t1}, s{t0}, 7"); A(f"s_add_u32 s{S_H}, s{S_H}, s{t1}")
    P.append(valu("v_lshrrev_b32", G, "6", 0)); P.append(valu("v_and_b32", 0, "63", 0))
    A("s_nop 0"); A(f"v_readfirstlane_b32 s{S_W}, v{G}")
    P.append(valu("v_lshrrev_b32", G, "4", 0)); P.append(valu("v_and_b32", M, "15", 0))
    P.append(valu("v_bfe_u32", RR, 0, "2", "2")); P.append(valu("v_and_b32", C, "3", 0))
    P.append(valu("v_lshlrev_b32", V_L16, "4", 0))
    T0, T1 = 16, 17
    A(f"s_lshr_b32 s{t0}, s{S_W}, 1"); A(f"s_and_b32 s{t0}, s{t0}, 1"); A(f"s_lshl_b32 s{t0}, s{t0}, 2")
    P.append(valu("v_or_b32", T0, f"s{t0}", G))
    P.append(valu("v_lshrrev_b32", T1, "1", M)); P.append(valu("v_xor_b32", T0, T0, T1))
    P.append(valu("v_lshlrev_b32", T0, "5", T0))
    P.append(valu("v_and_b32", T1, "1", M)); P.append(valu("v_lshl_add_u32", T0, T1, "4", T0))
    P.append(valu("v_lshl_add_u32", V_OFFA, G, "13", T0))
    A(f"s_and_b32 s{t0}, s{S_W}, 1"); A(f"s_lshl_b32 s{t0}, s{t0}, 2")
    P.append(valu("v_add_u32", T0, f"s{t0}", G))
    P.append(valu("v_and_b32", T1, "7", 0)); P.append(valu("v_xor_b32", T1, T1, T0)); P.append(valu("v_lshlrev_b32", T1, "4", T1))
    P.append(valu("v_lshrrev_b32", T0, "3", 0)); P.append(valu("v_mul_u32_u24", T0, "1280", T0)); P.append(valu("v_add_u32", V_OFFB, T0, T1))
    A(f"s_lshl_b32 s{S_OW}, s{S_W}, 15"); A(f"s_mul_i32 s{S_OX}, s{S_W}, {8*1280}")
    A(f"s_lshl_b32 s{S_LW}, s{S_W}, 10"); A(f"s_add_u32 s{S_LX}, s{S_LW}, {XOFF}")
    if opts.get("rot", False):
        A(f"s_and_b32 s{t0}, s{S_H}, 7"); A(f"s_lshr_b32 s{t1}, s{t0}, 2"); A(f"s_add_u32 s{t0}, s{t0}, s{t1}")
        A(f"s_and_b32 s{t1}, s{S_B}, 3"); A(f"s_mul_i32 s{t1}, s{t1}, 5"); A(f"s_add_u32 s{t1}, s{t1}, 1"); A(f"s_lshr_b32 s{t1}, s{t1}, 1")
        A(f"s_add_u32 s{S_SIG}, s{t0}, s{t1}")
        A(f"s_cmp_ge_u32 s{S_SIG}, 10"); A(f"s_cselect_b32 s{t0}, 10, 0"); A(f"s_sub_u32 s{S_SIG}, s{S_SIG}, s{t0}")
    else:
        A(f"s_mov_b32 s{S_SIG}, 0")
    A("s_waitcnt lgkmcnt(0)")
    if opts.get("pstamp"): P.extend(stamp(4))
    px, pk, pv, pw, pws = S_PTR, S_PTR+2, S_PTR+4, S_PTR+6, S_PTR+8
    srd_build(A, SRDD, S_DBG, None, 256)
    A(f"s_or_b32 s{t0}, s2, s{S_W}"); A(f"s_cmp_eq_u32 s{t0}, 0"); A(f"s_cbranch_scc0 {name}_nononce")
    A(f"s_memrealtime s[{S_T[3]}:{S_T[4]}]"); A("s_waitcnt lgkmcnt(0)"); A(f"s_or_b32 s{t0}, s{S_T[3]}, 1")
    P.append(valu("v_mov_b32", V_DUMMY, f"s{t0}")); P.append(valu("v_mov_b32", V_TCH, "0"))
    A(f"buffer_store_dword v{V_DUMMY}, v{V_TCH}, s[{SRDD}:{SRDD+3}], 0 offen sc1")
    P.append(label(f"{name}_nononce"))
    if opts.get("hold", True): hold_setup(name, opts, A, P)
    A(f"s_lshl_b32 s{t0}, s{S_H}, 8"); srd_build(A, SRDA, pw, t0, 640*8192 - 31*256)
    A(f"s_mul_i32 s{t0}, s{S_B}, 245760"); srd_build(A, SRDB, px, t0, 245760)
    P.extend(q_addr())
    for grp in q_dma(0): P.extend([grp[0], nop(0)] + grp[1:])
    if opts.get("pstamp"): P.extend(stamp(5))
    pa, pb = opts.get('prioA', 0), opts.get('prioBq', 0)
    if pa or pb:
        A(f"s_cmp_eq_u32 s{S_HALF}, 0"); A(f"s_cbranch_scc0 {name}_prb"); A(f"s_setprio {pa}"); A(f"s_branch {name}_noprio")
        P.append(label(f"{name}_prb")); A(f"s_setprio {pb}"); P.append(label(f"{name}_noprio"))
    A(f"s_lshl_b32 s{t1}, s{S_B}, 5"); A(f"s_add_u32 s{t1}, s{t1}, s{S_H}"); A(f"s_lshl_b32 s{t0}, s{t1}, 17")
    srd_build(A, SRDK, pk, t0, 131072); srd_build(A, SRDV, pv, t0, 131072)
    A(f"s_mul_i32 s{t1}, s{S_BR}, {12*1048576}"); A(f"s_lshl_b32 s{t2}, s{S_H}, 15"); A(f"s_add_u32 s{t0}, s{t1}, s{t2}")
    srd_build(A, SRDO, pws, t0, 12*1048576 - 31*32768)
    if opts.get("split", "branch") == "head":
        A(f"s_lshr_b32 s{t0}, s{S_ID}, 3"); A(f"s_lshl_b32 s{t0}, s{t0}, 2"); A(f"s_and_b32 s{t1}, s{S_ID}, 3"); A(f"s_add_u32 s{t0}, s{t0}, s{t1}")
        A(f"s_lshl_b32 s{t1}, s{S_HALF}, 7"); A(f"s_add_u32 s{t0}, s{t0}, s{t1}"); A(f"s_mul_i32 s{t0}, s{t0}, 20480")
    else:
        A(f"s_mul_i32 s{t0}, s{S_ID}, 20480")
    srd_build(A, SRDWO, S_PTR+10, t0, 20480)
    A(f"s_mov_b32 s{S_SC}, 0x3e0293ee"); A(f"s_mov_b32 s{S_SC+1}, 0x3e0293ee")
    P.append(valu("v_and_b32", T0, "1", G)); P.append(valu("v_lshl_or_b32", T0, T0, "2", RR))
    P.append(valu("v_lshl_add_u32", T1, G, "3", RR)); P.append(valu("v_lshlrev_b32", T1, "8", T1))
    P.append(valu("v_lshl_add_u32", T1, C, "3", T1))
    for T in range(8):
        P.append(valu("v_xor_b32", A_W[T], str(T), T0)); P.append(valu("v_lshl_add_u32", A_W[T], A_W[T], "5", T1))
    P.append(valu("v_lshrrev_b32", T0, "1", M)); P.append(valu("v_xor_b32", T0, G, T0)); P.append(valu("v_lshlrev_b32", T0, "4", T0))
    P.append(valu("v_lshl_add_u32", T0, M, "7", T0))
    A(f"s_mul_i32 s3, s{S_W}, {48*128}"); A(f"s_add_u32 s3, s3, {XOFF}")
    P.append(valu("v_add_u32", A_X[0], "s3", T0)); P.append(valu("v_xor_b32", A_X[1], "64", A_X[0]))
    P.append(valu("v_and_b32", T0, "7", M))
    P.append(valu("v_lshrrev_b32", T1, "1", T0)); P.append(valu("v_lshlrev_b32", T1, "2", T1))
    P.append(valu("v_and_b32", A_K, "1", T0)); P.append(valu("v_add_u32", T1, T1, A_K))
    P.append(valu("v_lshlrev_b32", T1, "4", T1)); P.append(valu("v_lshl_add_u32", T1, T0, "10", T1))
    P.append(valu("v_lshrrev_b32", T0, "3", M)); P.append(valu("v_lshl_add_u32", T1, T0, "8", T1))
    P.append(valu("v_and_b32", T0, "1", G)); P.append(valu("v_lshlrev_b32", T0, "1", T0))
    P.append(valu("v_lshrrev_b32", A_K, "1", G)); P.append(valu("v_or_b32", T0, T0, A_K))
    P.append(valu("v_lshl_add_u32", A_K, T0, "4", T1))
    P.append(valu("v_and_b32", T0, "1", G)); P.append(valu("v_lshl_add_u32", T0, T0, "2", RR))
    P.append(valu("v_mul_u32_u24", T0, "1056", T0))
    P.append(valu("v_lshrrev_b32", T1, "1", G)); P.append(valu("v_lshl_add_u32", T0, T1, "8", T0))
    P.append(valu("v_lshl_add_u32", T0, C, "3", T0)); P.append(valu("v_add_u32", A_V, str(VOFF), T0))
    for i in range(96): P.append(valu("v_mov_b32", ACC + i, "0"))
    if opts.get("touch_wo", True) and opts.get("wo_pos") == "pro": P.extend(wo_touch())
    if opts.get("touch_wo", True) and opts.get("wo_pos") == "Bpro":
        A(f"s_cmp_eq_u32 s{S_BR}, 0"); A(f"s_cbranch_scc1 {name}_nowot")
        P.extend(wo_touch())
        A(f"s_mul_i32 s{t0}, s{S_ID}, 20480"); srd_build(A, SRDWO, 76, t0, 20480)
        P.extend(wo_touch()[1:])
        P.append(label(f"{name}_nowot"))
    P.extend(q_addr())
    for grp in q_dma(1): P.extend([grp[0], nop(0)] + grp[1:])
    nt_ = 0
    if opts.get("touch_wo", True) and opts.get("wo_pos") == "pro2":
        tw = wo_touch(); P.extend(tw); nt_ = sum(1 for x in tw if x.kind == "vload")
    P.append(waitcnt(vm=10 + nt_)); P.append(barrier())
    if opts.get("hold"): P.extend(hold_wait(name, opts))
    P.extend(q_frag_reads(0, 0, 0))
    return P

def poll(name, srd, off_sreg, mask_or_val, mode, vtmp, sleep=8):
    o = [raw(f"s_mov_b32 s{S_T[5]}, 200000"), label(f"{name}"), raw(f"v_mov_b32 v{vtmp}, 0", kind="valu", wr=[vtmp]),
         raw(f"buffer_load_dword v{vtmp+1}, v{vtmp}, s[{srd}:{srd+3}], s{off_sreg} offen sc1"),
         raw("s_waitcnt vmcnt(0)"),
         raw(f"v_readfirstlane_b32 s{S_T[6]}, v{vtmp+1}"),
         raw(f"s_sub_u32 s{S_T[5]}, s{S_T[5]}, 1"), raw(f"s_cbranch_scc1 {name}_ok"),
         raw("s_nop 2")]
    if mode == 'bit':
        o += [raw(f"s_and_b32 s{S_T[6]}, s{S_T[6]}, s{mask_or_val}"), raw(f"s_cbranch_scc1 {name}_ok")]
    else:
        o += [raw(f"s_cmp_ge_u32 s{S_T[6]}, {mask_or_val}"), raw(f"s_cbranch_scc1 {name}_ok")]
    o += [raw(f"s_sleep {sleep}"), raw(f"s_branch {name}"), label(f"{name}_ok")]
    return o

FBOFF = 81856
S_FB = 70
S_FB = 78
L_LO, L_HI = "0x2b800000", "0x53800000"
def head_epilogue(name, opts):
    o = [valu("v_mov_b32", V_TCH, "0"), raw(f"s_cmp_eq_u32 s{S_W}, 0"), raw(f"s_cbranch_scc0 {name}_nn"),
         raw(f"buffer_load_dword v{V_DUMMY}, v{V_TCH}, s[{SRDD}:{SRDD+3}], 0 offen sc1", kind="vload", rd=[V_TCH], wr=[V_DUMMY]),
         label(f"{name}_nn"), raw(f"s_mov_b32 s{S_FB}, 0"), label(f"{name}_e0")]
    t = VT
    for qt in range(3):
        l = LSUM[qt]
        o += [valu("v_mov_b32", t[qt], l), perm32(t[qt], l), valu("v_add_f32", l, l, t[qt])]
    for qt in range(3):
        l = LSUM[qt]
        o += [valu("v_mov_b32", t[qt], l), perm16(t[qt], l), valu("v_add_f32", l, l, t[qt])]
    m = S_T[5]
    o += [raw(f"s_mov_b64 s[{m}:{m+1}], 0"), valu("v_mov_b32", 11, L_LO), valu("v_mov_b32", 12, L_HI)]
    for qt in range(3):
        o += [I(f"v_cmp_nle_f32 vcc, v11, v{LSUM[qt]}", rd=[11, LSUM[qt]], kind="valu"), raw("s_nop 1"), raw(f"s_or_b64 s[{m}:{m+1}], s[{m}:{m+1}], vcc"),
              I(f"v_cmp_nge_f32 vcc, v12, v{LSUM[qt]}", rd=[12, LSUM[qt]], kind="valu"), raw("s_nop 1"), raw(f"s_or_b64 s[{m}:{m+1}], s[{m}:{m+1}], vcc")]
    o += [raw(f"s_cmp_lg_u64 s[{m}:{m+1}], 0"), raw(f"s_cselect_b32 s{m}, 1, 0"), raw(f"s_andn2_b32 s{m}, s{m}, s{S_FB}"),
          raw(f"s_lshl_b32 s{m+1}, s{S_W}, 2"), raw(f"s_add_u32 s{m+1}, s{m+1}, {FBOFF}"),
          I(f"v_mov_b32 v11, s{m}", wr=[11], kind="valu"), I(f"v_mov_b32 v12, s{m+1}", wr=[12], kind="valu"), dsw32(12, 11)]
    for qt in range(3): o.append(vrcp(t[qt], LSUM[qt]))
    for qt in range(3):
        o.append(raw(f"s_mul_i32 s{S_T[3]}, s{S_B}, 12")); o.append(raw(f"s_mul_i32 s{S_T[4]}, s{S_W}, 3"))
        o.append(raw(f"s_add_u32 s{S_T[3]}, s{S_T[3]}, s{S_T[4]}")); o.append(raw(f"s_add_u32 s{S_T[3]}, s{S_T[3]}, {qt}"))
        o.append(raw(f"s_lshr_b32 s{S_T[4]}, s{S_T[3]}, 3")); o.append(raw(f"s_lshl_b32 s{S_T[4]}, s{S_T[4]}, 20"))
        o.append(raw(f"s_and_b32 s{S_T[3]}, s{S_T[3]}, 7")); o.append(raw(f"s_lshl_b32 s{S_T[3]}, s{S_T[3]}, 10"))
        o.append(raw(f"s_add_u32 s{S_T[qt]}, s{S_T[3]}, s{S_T[4]}"))
    for qt in range(3):
        for c in range(4):
            a = acc(2*c, qt); b = acc(2*c+1, qt)
            for r in range(4):
                o.append(valu("v_mul_f32", a + r, a + r, t[qt])); o.append(valu("v_mul_f32", b + r, b + r, t[qt]))
            o += [cvtpk(a, a, a+1), cvtpk(a+1, a+2, a+3), cvtpk(a+2, b, b+1), cvtpk(a+3, b+2, b+3)]
            o.append(bstore(a, 4, V_L16, SRDO, S_T[qt], flags=opts.get("stflags", "sc1")))
            if c < 3: o.append(raw(f"s_add_u32 s{S_T[qt]}, s{S_T[qt]}, 8192"))
    o += [waitcnt(vm=0, lgkm=0), barrier()]
    o += [valu("v_mov_b32", 12, str(FBOFF)), ds128(160, 12, 0), waitcnt(lgkm=0),
          valu("v_or_b32", 160, 160, 161), valu("v_or_b32", 162, 162, 163), valu("v_or_b32", 160, 160, 162), raw("s_nop 0"),
          raw(f"v_readfirstlane_b32 s{S_T[2]}, v160"), raw("s_nop 3"), raw(f"s_cmp_lg_u32 s{S_T[2]}, 0"), raw(f"s_cbranch_scc1 {name}_fb")]
    t0, t1 = S_T[0], S_T[1]
    o += [raw(f"s_cmp_eq_u32 s{S_W}, 0"), raw(f"s_cbranch_scc0 {name}_nopub"),
          raw(f"v_readfirstlane_b32 s{S_NONCE}, v{V_DUMMY}"), raw("s_nop 3"),
          raw(f"s_cmp_lg_u32 s{S_NONCE}, 0"), raw(f"s_cbranch_scc1 {name}_pn_done"), raw(f"s_mov_b32 s{t0}, 0")]
    o += poll(f"{name}_pn", SRDD, t0, 1, 'ge', V_TCH)
    o += [raw(f"s_mov_b32 s{S_NONCE}, s{S_T[6]}"), label(f"{name}_pn_done"),
          raw(f"s_lshl_b32 s{t0}, s{S_BR}, 3"), raw(f"s_add_u32 s{t0}, s{t0}, s{S_B}"), raw(f"s_mul_i32 s{t0}, s{t0}, 384"),
          raw(f"s_lshl_b32 s{t1}, s{S_H}, 2"), raw(f"s_add_u32 s{t0}, s{t0}, s{t1}"), raw(f"s_add_u32 s{t0}, s{t0}, {FLAGOFF}")]
    A = lambda t: o.append(raw(t))
    srd_build(A, SRDWO, S_PTR+8, t0, 260)
    o += [raw("v_lshlrev_b32 v16, 7, v0", kind="valu", wr=[16]), raw(f"v_mov_b32 v17, s{S_NONCE}", kind="valu", wr=[17]),
          raw("s_mov_b64 exec, 7"),
          raw(f"buffer_store_dword v17, v16, s[{SRDWO}:{SRDWO+3}], 0 offen sc1")]
    if opts.get("linger"):
        o += [raw("s_mov_b64 exec, 1"), raw(f"s_lshl_b32 s{t0}, s{S_ID}, 7"), raw(f"s_add_u32 s{t0}, s{t0}, {FLAGOFF + 131072}")]
        srd_build(A, SRDWO, S_PTR+8, t0, 4)
        o += [raw("v_mov_b32 v16, 0", kind="valu", wr=[16]), raw("s_nop 1"),
              raw(f"buffer_atomic_swap v17, v16, s[{SRDWO}:{SRDWO+3}], 0 offen sc0 sc1"), raw("s_waitcnt vmcnt(0)"),
              raw(f"v_readfirstlane_b32 s{t1}, v17"), raw("s_nop 3"),
              raw(f"s_cmp_eq_u32 s{t1}, s{S_NONCE}"), raw(f"s_cbranch_scc0 {name}_nopub"),
              raw(f"s_mov_b32 s{S_T[5]}, {opts.get('linger_polls', 6)}"), raw(f"s_mov_b32 s{t0}, 128"),
              label(f"{name}_lg"),
              raw(f"buffer_load_dword v17, v16, s[{SRDD}:{SRDD+3}], s{t0} offen sc1"), raw("s_waitcnt vmcnt(0)"),
              raw(f"v_readfirstlane_b32 s{t1}, v17"),
              raw(f"s_sub_u32 s{S_T[5]}, s{S_T[5]}, 1"), raw(f"s_cbranch_scc1 {name}_nopub"), raw("s_nop 2"),
              raw(f"s_cmp_ge_u32 s{t1}, 240"), raw(f"s_cbranch_scc1 {name}_nopub"),
              raw(f"s_sleep {opts.get('linger_sleep', 96)}"), raw(f"s_branch {name}_lg")]
    o += [label(f"{name}_nopub")]
    return o

def head_fallback(name):
    MX = [246, 247, 248]; NM = [184, 188, 192]; TT = 249
    def reset_off():
        return [raw(f"s_lshl_b32 s{S_O[0]}, s{S_W}, 10"), raw(f"s_add_u32 s{S_O[1]}, s{S_O[0]}, 4096"),
                raw(f"s_mov_b32 s{S_O[2]}, s{S_O[0]}"), raw(f"s_mov_b32 s{S_O[3]}, s{S_O[1]}"), raw(f"s_mov_b32 s{S_CNT}, 16")]
    def load(js):
        o = [barrier()]
        for j in js:
            o += [m0set(S_L[j], 0), nop(0), dma(V_L16, SRDK if j < 2 else SRDV, S_O[j]), salu(f"s_add_u32 s{S_O[j]}, s{S_O[j]}, 8192")]
        return o + [waitcnt(vm=0), barrier()]
    def qk(cinit):
        o = []
        for Tk in range(2):
            for c in range(4): o.append(k_read(0, Tk*4 + c))
            for c in range(4):
                for qt in range(3):
                    s = sreg(0, Tk, qt)
                    o.append(mfma16(s, KF + 4*c, qf(qt, c), cinit[qt] if c == 0 else s))
        return o
    pre = [label(f"{name}_fb")] + [valu("v_mov_b32", r, "0xff800000") for r in MX] + reset_off()
    b1 = [label(f"{name}_fb1")] + load([0, 1]) + qk([None]*3)
    for qt in range(3):
        for Tk in range(2):
            s = sreg(0, Tk, qt)
            b1 += [valu("v_max3_f32", MX[qt], MX[qt], s, s+1), valu("v_max3_f32", MX[qt], MX[qt], s+2, s+3)]
    b1 += [waitcnt(lgkm=0), raw(f"s_sub_u32 s{S_CNT}, s{S_CNT}, 1"), raw(f"s_cmp_lg_u32 s{S_CNT}, 0"), raw(f"s_cbranch_scc1 {name}_fb1")]
    mid = []
    for qt in range(3):
        mid += [valu("v_mov_b32", TT, MX[qt]), perm32(TT, MX[qt]), valu("v_max_f32", MX[qt], MX[qt], TT),
                valu("v_mov_b32", TT, MX[qt]), perm16(TT, MX[qt]), valu("v_max_f32", MX[qt], MX[qt], TT)]
        for i in range(4): mid.append(I(f"v_sub_f32 v{NM[qt]+i}, 0, v{MX[qt]}", rd=[MX[qt]], wr=[NM[qt]+i], kind="valu"))
    for i in range(96): mid.append(valu("v_mov_b32", ACC + i, "0"))
    for r in LSUM: mid.append(valu("v_mov_b32", r, "0"))
    mid += reset_off()
    b2 = [label(f"{name}_fb2")] + load([0, 1, 2, 3]) + qk(NM)
    for part in range(2):
        for qt in range(3):
            s = sreg(0, part, qt); p = preg(0, part, qt)
            b2 += [vexp(s+i, s+i) for i in range(4)] + [valu("v_add_f32", LSUM[qt], LSUM[qt], s+i) for i in range(4)] + [cvtpk(p, s, s+1), cvtpk(p+1, s+2, s+3)]
    for half in range(2):
        for T in range(4*half, 4*half + 4): b2 += v_read(0, T)
        for T in range(4*half, 4*half + 4):
            for qt in range(3): b2.append(mfma16(acc(T, qt), VF + 4*(T % 4), pop(0, qt), acc(T, qt)))
    b2 += [waitcnt(lgkm=0), raw(f"s_sub_u32 s{S_CNT}, s{S_CNT}, 1"), raw(f"s_cmp_lg_u32 s{S_CNT}, 0"), raw(f"s_cbranch_scc1 {name}_fb2")]
    post = [nop(15), raw(f"s_mov_b32 s{S_FB}, 1"), raw(f"s_branch {name}_e0")]
    p1, l1, st = resolve_loop([nop(15)] + pre, b1)
    p2, l2, st = resolve_loop(mid, b2, st)
    po, _ = resolve(post, st)
    return p1 + l1 + p2 + l2 + po

V_HOLD = 253
SRDH = 24
SRDH = 100 - 4
def hold_setup(name, opts, A, P):
    t0 = S_T[0]
    A(f"s_lshl_b32 s{t0}, s{S_ID}, 7"); A(f"s_add_u32 s{t0}, s{t0}, {FLAGOFF + 65536}")
    srd_build(A, SRDH, S_PTR+8, t0, 4)
    P.append(valu("v_mov_b32", V_TCH, "0"))
    A(f"buffer_load_dword v{V_HOLD}, v{V_TCH}, s[{SRDH}:{SRDH+3}], 0 offen sc1")
def hold_wait(name, opts):
    o = []
    A = lambda t: o.append(raw(t))
    A(f"s_cmp_eq_u32 s{S_BR}, 0"); A(f"s_cbranch_scc1 {name}_hw_end")
    A(f"s_cmp_eq_u32 s{S_W}, 0"); A(f"s_cbranch_scc0 {name}_hw_done")
    A("s_waitcnt vmcnt(0)"); A(f"v_readfirstlane_b32 s{S_T[4]}, v{V_HOLD}"); A(f"s_mov_b32 s{S_T[5]}, {opts.get('hold_polls', 24)}")
    o.append(label(f"{name}_hw"))
    A(f"buffer_load_dword v{V_HOLD}, v{V_TCH}, s[{SRDH}:{SRDH+3}], 0 offen sc1"); A("s_waitcnt vmcnt(0)")
    A(f"v_readfirstlane_b32 s{S_T[6]}, v{V_HOLD}")
    A(f"s_sub_u32 s{S_T[5]}, s{S_T[5]}, 1"); A(f"s_cbranch_scc1 {name}_hw_done"); A("s_nop 2")
    A(f"s_cmp_lg_u32 s{S_T[6]}, s{S_T[4]}"); A(f"s_cbranch_scc1 {name}_hw_done")
    A(f"s_sleep {opts.get('hold_sleep', 8)}"); A(f"s_branch {name}_hw")
    o.append(label(f"{name}_hw_done")); o.append(barrier()); o.append(label(f"{name}_hw_end"))
    return o
def hold_release(name):
    return [raw(f"s_or_b32 s{S_T[0]}, s{S_BR}, s{S_W}"), raw(f"s_cmp_eq_u32 s{S_T[0]}, 0"), raw(f"s_cbranch_scc0 {name}_hr"),
            raw(f"v_add_u32 v{V_HOLD}, 1, v{V_HOLD}", kind="valu", rd=[V_HOLD], wr=[V_HOLD]), raw(f"v_mov_b32 v{V_TCH}, 0", kind="valu", wr=[V_TCH]),
            raw("s_mov_b64 exec, 1"),
            raw(f"buffer_store_dword v{V_HOLD}, v{V_TCH}, s[{SRDH}:{SRDH+3}], 0 offen sc1"),
            raw("s_mov_b64 exec, -1"), raw("s_nop 1"), label(f"{name}_hr")]

WOT = "sc"
def wo_touch():
    if WOT == "sc":
        return [valu("v_lshlrev_b32", V_TCH, "7", 0), raw(f"s_lshl_b32 s{S_T[0]}, s{S_W}, 13"), bload(V_DUMMY, 1, V_TCH, SRDWO, S_T[0])]
    o = [nop(0), raw(f"s_mul_i32 s{S_T[0]}, s{S_W}, 5120")]
    o += [bload(V_DUMMY, 1, V_L16, SRDWO, S_T[0], off=j*1024 if j < 4 else 0) for j in range(4)]
    o += [raw(f"s_add_u32 s{S_T[0]}, s{S_T[0]}, 4096"), bload(V_DUMMY, 1, V_L16, SRDWO, S_T[0])]
    return o

def att_prio(name, opts):
    pa, pb = opts.get('prioAttA', opts.get('prioAtt', 0)), opts.get('prioAttB', opts.get('prioAtt', 0))
    if pa == pb: return [raw(f"s_setprio {pa}")]
    return [raw(f"s_cmp_eq_u32 s{S_HALF}, 0"), raw(f"s_cbranch_scc0 {name}_apb"), raw(f"s_setprio {pa}"), raw(f"s_branch {name}_apd"),
            label(f"{name}_apb"), raw(f"s_setprio {pb}"), label(f"{name}_apd")]

def build_head(name, opts, ST):
    global POL, KVROT, ATTVM, XO, LMF, QRD, BAR2, WOT
    WOT = opts.get('wot', 'sc')
    BAR2 = opts.get('bar2', False)
    QRD = opts.get('qrd', 19)
    LMF = opts.get('lmfma', False)
    XO = opts.get('x', {})
    ATTVM = opts.get('att_vm', 8)
    POL = opts.get("polite"); KVROT = opts.get("kvrot", True)
    kvflags = opts.get("kvflags", "nt")
    pro = head_prologue(name, opts) + ST(1) + [raw(f"s_mov_b32 s{S_CNT}, 4")]
    qb = [label(f"{name}_qloop")]
    for p in range(2): qb += q_iter(p, 'Q')
    qb += [raw(f"s_sub_u32 s{S_CNT}, s{S_CNT}, 1"), raw(f"s_cmp_lg_u32 s{S_CNT}, 0"), raw(f"s_cbranch_scc1 {name}_qloop")]
    pro2, qb2, st = resolve_loop(pro, qb)
    last = ST(2)
    if opts.get("hold", True):
        if opts.get("hold_at", "q") == "q": last += hold_release(name)
    if opts.get("touch_wo", True) and opts.get("wo_pos") == "q8": last += wo_touch()
    last += q_switch() + q_iter(0, 'K0', kvflags) + q_iter(1, 'K1', kvflags)
    last2, st = resolve(last, st)
    wot = wo_touch() if opts.get("touch_wo", True) and opts.get("wo_pos", "mid") == "mid" else []
    mid = [waitcnt(lgkm=0)] + ST(3) + wot + att_prio(name, opts) + q_convert() + att_prologue(kvflags) + [raw(f"s_mov_b32 s{S_CNT}, 4")]
    body = [label(f"{name}_aloop")]
    for u in range(3): body += h0(u) + h1(u, kvflags)
    body += [raw(f"s_cmp_eq_u32 s{S_CNT}, 1"), raw(f"s_cbranch_scc1 {name}_tail")]
    body += h0(3) + h1(3, kvflags)
    body += [raw(f"s_sub_u32 s{S_CNT}, s{S_CNT}, 1"), raw(f"s_branch {name}_aloop")]
    mid2, st1 = resolve(mid, st)
    _, body2, _ = resolve_loop([], body, st1)
    idx = [i for i, x in enumerate(body2) if x.txt.startswith(f"s_cbranch_scc1 {name}_tail")][0]
    _, sA = resolve(body2, st1.copy(), insert=False)
    _, sB = resolve(body2[:idx+1], sA.copy(), insert=False)
    tail = [label(f"{name}_tail")] + h0(3, tail=True) + h1(3, kvflags, tail=True) + ([] if opts.get("pstamp") else ST(4)) + (wo_touch() if opts.get("touch_wo", True) and opts.get("wo_pos") == "epi" else []) + head_epilogue(name, opts)
    tail2, _ = resolve(tail, sB)
    return pro2 + qb2 + last2 + mid2 + body2 + tail2

WSLOT = 4224; NR = 3
OACC = 16
OBF = 144
OAF = 240
O_OFFO, O_OFFW, O_AW, O_FL, O_PV = [1, 2], 3, 4, 5, 6
OG, OM, ORR, OC = 7, 8, 9, 10
OS_OO = 32; OS_OW = [33, 34, 35, 36]; OS_L = 37
OSRDO, OSRDW, OSRDOUT, OSRDF = 12, 16, 20, 24
OS_OFF, OS_WO0, OS_OO0 = 8, 40, 41
OS_AV, OS_ISS, OS_ROT = 38, 39, 9
OS_A2 = 46
OS_WB = 10
def oacc(rt, Tc): return OACC + (rt * 4 + Tc) * 4
_sel = [0]
def o_select(name, opts):
    _sel[0] += 1
    L = f"{name}_s{_sel[0]}"
    t0, t1 = S_T[0], S_T[1]
    return [raw(f"s_cmp_lg_u32 s{OS_AV}, 0"), raw(f"s_cbranch_scc1 {L}_have"),
         raw(f"s_mov_b32 s{t0}, 32"), raw(f"s_cmp_eq_u32 s{OS_ISS}, -1"), raw(f"s_cbranch_scc1 {L}_addr"),
         raw(f"s_mov_b32 s{S_T[5]}, 200000"),
         label(f"{L}_poll"),
         raw(f"buffer_load_dword v{O_PV}, v{O_FL}, s[{OSRDF}:{OSRDF+3}], 0 offen sc1")] + ([
         raw(f"buffer_load_dword v11, v{O_FL}, s[{OSRDF}:{OSRDF+3}], s{OS_WB} offen sc1"), raw("s_waitcnt vmcnt(0)"),
         raw(f"v_cmp_eq_u32 s[{OS_A2}:{OS_A2+1}], s{S_NONCE}, v11"),
         raw(f"v_cmp_eq_u32 vcc, s{S_NONCE}, v{O_PV}"), raw("s_nop 3"), raw(f"s_and_b64 vcc, vcc, s[{OS_A2}:{OS_A2+1}]")] if opts.get("waitB") else [raw("s_waitcnt vmcnt(0)"),
         raw(f"v_cmp_eq_u32 vcc, s{S_NONCE}, v{O_PV}")]) + [
         raw(f"s_sub_u32 s{S_T[5]}, s{S_T[5]}, 1"), raw(f"s_cselect_b32 s{t1}, -1, 0"), raw("s_nop 2"),
         raw(f"s_and_b32 s{t0}, vcc_lo, vcc_hi"),
         raw(f"s_or_b32 s{t1}, s{t1}, s{t0}"), raw(f"s_andn2_b32 s{OS_AV}, s{t1}, s{OS_ISS}"),
         raw(f"s_cbranch_scc1 {L}_have"), raw(f"s_sleep {opts.get('sleep', 8)}"), raw(f"s_branch {L}_poll"),
         label(f"{L}_have"),
         raw(f"s_mov_b32 s{OS_A2}, s{OS_AV}"), raw(f"s_mov_b32 s{OS_A2+1}, s{OS_AV}"),
         raw(f"s_lshr_b64 s[{OS_A2}:{OS_A2+1}], s[{OS_A2}:{OS_A2+1}], s{OS_ROT}"),
         raw(f"s_ff1_i32_b32 s{t0}, s{OS_A2}"), raw(f"s_add_u32 s{t0}, s{t0}, s{OS_ROT}"), raw(f"s_and_b32 s{t0}, s{t0}, 31"),
         raw(f"s_lshl_b32 s{t1}, 1, s{t0}"), raw(f"s_or_b32 s{OS_ISS}, s{OS_ISS}, s{t1}"), raw(f"s_andn2_b32 s{OS_AV}, s{OS_AV}, s{t1}"),
         label(f"{L}_addr"),
         raw(f"s_lshl_b32 s{t1}, s{t0}, 15"), raw(f"s_add_u32 s{OS_OO}, s{OS_OO0}, s{t1}"),
         raw(f"s_mul_i32 s{t1}, s{t0}, {128*1280}"), raw(f"s_add_u32 s{OS_OW[0]}, s{OS_WO0}, s{t1}"),
         raw(f"s_add_u32 s{OS_OW[1]}, s{OS_OW[0]}, 1280"), raw(f"s_add_u32 s{OS_OW[2]}, s{OS_OW[0]}, 2560"), raw(f"s_add_u32 s{OS_OW[3]}, s{OS_OW[0]}, 3840")]
OFL = 'sc1'
def o_loads(u):
    o = []
    for j in range(8): o.append([bload(OBF + 32*u + 4*j, 4, O_OFFO[j//4], OSRDO, OS_OO, off=(j%4)*1024, flags=OFL)])
    for b in range(4): o.append([m0set(OS_L, u * WSLOT + b * 1056), dma(O_OFFW, OSRDW, OS_OW[b])])
    return o
def o_aread(u, Tc):
    off = u * WSLOT + Tc * 32
    return [dstr(OAF + 4*Tc, O_AW, off), dstr(OAF + 4*Tc + 2, O_AW, off + 512)]

def build_oproj(name, opts, ST):
    global OFL
    OFL = opts.get('oflags', 'sc1')
    P = []
    A = lambda t, **k: P.append(raw(t, **k))
    t0, t1, t2 = S_T[0], S_T[1], S_T[2]
    A(f"s_sub_u32 s{S_ID}, s2, 512")
    if opts.get("omap", "xcd") == "xcd":
        A(f"s_and_b32 s3, s{S_ID}, 7"); A(f"s_lshr_b32 s{S_BR}, s3, 2"); A(f"s_lshr_b32 s{OS_OFF}, s{S_ID}, 3")
        A(f"s_mul_i32 s{t1}, s{OS_OFF}, 6554"); A(f"s_lshr_b32 s{t1}, s{t1}, 16")
        A(f"s_and_b32 s{t2}, s3, 3"); A(f"s_mul_i32 s{t2}, s{t2}, 3"); A(f"s_add_u32 s6, s{t2}, s{t1}")
        A(f"s_mul_i32 s{t1}, s{t1}, 10"); A(f"s_sub_u32 s7, s{OS_OFF}, s{t1}")
    else:
        A(f"s_cmp_ge_u32 s{S_ID}, 120"); A(f"s_cselect_b32 s{S_BR}, 1, 0")
        A(f"s_mul_i32 s{t0}, s{S_BR}, 120"); A(f"s_sub_u32 s{S_ID}, s{S_ID}, s{t0}")
        A(f"s_and_b32 s3, s{S_ID}, 7"); A(f"s_lshr_b32 s{OS_OFF}, s{S_ID}, 3")
        A(f"s_mul_i32 s{t1}, s{OS_OFF}, 13108"); A(f"s_lshr_b32 s{t1}, s{t1}, 16")
        A(f"s_lshr_b32 s{t2}, s3, 1"); A(f"s_mul_i32 s{t2}, s{t2}, 3"); A(f"s_add_u32 s6, s{t2}, s{t1}")
        A(f"s_mul_i32 s{t1}, s{t1}, 5"); A(f"s_sub_u32 s7, s{OS_OFF}, s{t1}"); A(f"s_and_b32 s{t2}, s3, 1"); A(f"s_mul_i32 s{t2}, s{t2}, 5"); A(f"s_add_u32 s7, s7, s{t2}")
    A(f"s_mul_i32 s3, s{S_BR}, 40"); A("s_add_u32 s3, s3, 32")
    A(f"s_load_dwordx2 s[{S_PTR}:{S_PTR+1}], s[0:1], s3")
    A(f"s_load_dwordx4 s[{S_PTR+4}:{S_PTR+7}], s[0:1], 80")
    A(f"s_load_dwordx2 s[{S_PTR+8}:{S_PTR+9}], s[0:1], 96")
    P.append(valu("v_lshrrev_b32", OG, "6", 0)); P.append(valu("v_and_b32", 0, "63", 0))
    A("s_nop 0"); A(f"v_readfirstlane_b32 s{S_W}, v{OG}")
    P.append(valu("v_lshrrev_b32", OG, "4", 0)); P.append(valu("v_and_b32", OM, "15", 0))
    P.append(valu("v_bfe_u32", ORR, 0, "2", "2")); P.append(valu("v_and_b32", OC, "3", 0))
    P.append(valu("v_lshlrev_b32", O_OFFO[0], "4", 0)); P.append(valu("v_add_u32", O_OFFO[1], "4096", O_OFFO[0]))
    P.append(valu("v_lshrrev_b32", 16, "3", 0)); P.append(valu("v_mul_u32_u24", 16, "5120", 16))
    P.append(valu("v_and_b32", 17, "7", 0)); P.append(valu("v_lshl_add_u32", O_OFFW, 17, "4", 16))
    A(f"s_mul_i32 s{OS_L}, s{S_W}, {NR*WSLOT}")
    P.append(valu("v_mul_u32_u24", 16, "1056", ORR)); P.append(valu("v_lshl_add_u32", 16, OG, "7", 16)); P.append(valu("v_lshl_add_u32", 16, OC, "3", 16))
    P.append(valu("v_add_u32", O_AW, f"s{OS_L}", 16))
    A(f"s_lshl_b32 s{OS_OO0}, s{S_W}, 13"); A(f"s_mul_i32 s{OS_WO0}, s{S_W}, {32*1280}")
    A("s_waitcnt lgkmcnt(0)")
    A(f"s_mul_i32 s{t0}, s{S_BR}, 12"); A(f"s_add_u32 s{t0}, s{t0}, s6"); A(f"s_lshl_b32 s{t0}, s{t0}, 20")
    srd_build(A, OSRDO, S_PTR+8, t0, 0 if opts.get('no_o') else 1048576)
    A(f"s_lshl_b32 s{t0}, s7, 7"); srd_build(A, OSRDW, S_PTR, t0, 0 if opts.get('no_w') else 4096*1280 - 9*128)
    A(f"s_mul_i32 s{t0}, s6, {128*2560}"); A(f"s_mul_i32 s{t1}, s{S_BR}, 1280"); A(f"s_add_u32 s{t0}, s{t0}, s{t1}")
    A(f"s_lshl_b32 s{t1}, s7, 7"); A(f"s_add_u32 s{t0}, s{t0}, s{t1}")
    srd_build(A, OSRDOUT, S_PTR+4, t0, 127*2560 + 128)
    srd_build(A, SRDD, S_PTR+6, None, 256)
    if opts.get("linger"):
        A(f"s_cmp_eq_u32 s{S_W}, 0"); A(f"s_cbranch_scc0 {name}_nocnt")
        P.append(valu("v_mov_b32", 16, "128")); P.append(valu("v_mov_b32", 17, "1"))
        A("s_mov_b64 exec, 1"); A(f"buffer_atomic_add v17, v16, s[{SRDD}:{SRDD+3}], 0 offen sc1"); A("s_mov_b64 exec, -1")
        P.append(label(f"{name}_nocnt"))
    A(f"s_mov_b32 s{t0}, 0")
    A(f"s_cmp_eq_u32 s{S_W}, 0"); A(f"s_cbranch_scc0 {name}_nw")
    P.extend(poll(f"{name}_pn", SRDD, t0, 1, 'ge', O_FL, sleep=8))
    P.append(I(f"v_mov_b32 v{O_PV}, s{S_T[6]}", wr=[O_PV], kind="valu")); P.append(valu("v_mov_b32", O_FL, str(FBOFF)))
    P.append(dsw32(O_FL, O_PV)); P.append(waitcnt(lgkm=0))
    P.append(label(f"{name}_nw"))
    P.append(barrier())
    P.append(valu("v_mov_b32", O_FL, str(FBOFF))); P.append(dsr32(O_PV, O_FL)); P.append(waitcnt(lgkm=0))
    A(f"v_readfirstlane_b32 s{S_NONCE}, v{O_PV}"); A("s_nop 3")
    A(f"s_mul_i32 s{t0}, s6, 43691"); A(f"s_lshr_b32 s{t0}, s{t0}, 16")
    A(f"s_lshl_b32 s{t1}, s6, 7"); A(f"s_add_u32 s{t1}, s{t1}, 127"); A(f"s_mul_i32 s{t1}, s{t1}, 21846"); A(f"s_lshr_b32 s{t1}, s{t1}, 22")
    A(f"s_sub_u32 s{t1}, s{t1}, s{t0}"); A(f"s_mul_i32 s{t1}, s{t1}, 384")
    A(f"s_lshl_b32 s{t2}, s{S_BR}, 3"); A(f"s_add_u32 s{t0}, s{t0}, s{t2}"); A(f"s_mul_i32 s{t0}, s{t0}, 384")
    A(f"s_mul_i32 s{t2}, s7, 21846"); A(f"s_lshr_b32 s{t2}, s{t2}, 16"); A(f"s_mul_i32 s{t2}, s{t2}, 3"); A(f"s_sub_u32 s{t2}, s7, s{t2}")
    A(f"s_lshl_b32 s{t2}, s{t2}, 7"); A(f"s_add_u32 s{t0}, s{t0}, s{t2}"); A(f"s_add_u32 s{t0}, s{t0}, {FLAGOFF}")
    srd_build(A, OSRDF, S_PTR+8, t0, 512 + (8*384 if opts.get("waitB") else 0))
    A(f"s_cmp_eq_u32 s{S_BR}, 0"); A(f"s_cselect_b32 s{OS_WB}, {8*384}, 0")
    P.append(valu("v_and_b32", O_FL, "31", 0)); P.append(valu("v_lshlrev_b32", O_FL, "2", O_FL))
    P.append(valu("v_lshrrev_b32", 16, "5", 0)); P.append(valu("v_mul_lo_u32", 16, f"s{t1}", 16)); P.append(valu("v_add_u32", O_FL, O_FL, 16))
    A(f"s_mov_b32 s{OS_AV}, 0"); A(f"s_mov_b32 s{OS_ISS}, 0")
    if opts.get("trot"):
        A(f"s_memrealtime s[{OS_A2}:{OS_A2+1}]"); A("s_waitcnt lgkmcnt(0)")
        A(f"s_sub_u32 s{t0}, s{OS_A2}, s{S_NONCE}"); A(f"s_mul_i32 s{t0}, s{t0}, {65536 // opts['trot']}"); A(f"s_lshr_b32 s{t0}, s{t0}, 16")
        A(f"s_and_b32 s{t1}, s{OS_OFF}, {opts.get('rotmask', 3)}"); A(f"s_add_u32 s{t0}, s{t0}, s{t1}"); A(f"s_and_b32 s{OS_ROT}, s{t0}, 31")
    else:
        A(f"s_and_b32 s{OS_ROT}, s{OS_OFF}, {opts.get('rotmask', 7)}")
    for i in range(128): P.append(valu("v_mov_b32", OACC + i, "0"))
    P.extend(ST(1))
    for u in range(2):
        P.extend(o_select(name, opts))
        for grp in o_loads(u): P.extend(grp if len(grp) == 1 else [grp[0], nop(0)] + grp[1:])
    P.append(waitcnt(vm=12))
    for Tc in range(4): P.extend(o_aread(0, Tc))
    A(f"s_mov_b32 s{S_CNT}, 10")
    body = [label(f"{name}_loop")]
    for u in range(3):
        mf = [mfma16(oacc(rt, Tc), OAF + 4*Tc, OBF + 32*u + 4*rt, oacc(rt, Tc)) for Tc in range(4) for rt in range(8)]
        slots = [[] for _ in mf]
        slots[0] += o_select(name, opts)
        nbefore = 0
        for j, grp in enumerate(o_loads((u + 2) % 3)):
            k = 1 + (j * opts.get('ospread', 22)) // 12
            if len(grp) == 1:
                slots[k] += grp; ki = k
            else:
                slots[k].append(grp[0]); slots[k+1] += grp[1:]; ki = k + 1
            if ki < 24: nbefore += 1
        slots[24].insert(0, waitcnt(vm=nbefore))
        n = (u + 1) % 3
        slots[24] += o_aread(n, 0); slots[25] += o_aread(n, 1); slots[26] += o_aread(n, 2); slots[31] += o_aread(n, 3)
        body += emit(mf, slots)
    if opts.get("ostamp"):
        for cnt, idx in ((8, 2), (4, 3)):
            body += [raw(f"s_cmp_eq_u32 s{S_CNT}, {cnt}"), raw(f"s_cbranch_scc0 {name}_os{idx}")] + ST(idx) + [label(f"{name}_os{idx}")]
    body += [raw(f"s_sub_u32 s{S_CNT}, s{S_CNT}, 1"), raw(f"s_cmp_lg_u32 s{S_CNT}, 0"), raw(f"s_cbranch_scc1 {name}_loop")]
    P2, body2, st = resolve_loop(P, body)
    E = []
    A = lambda t, **k: E.append(raw(t, **k))
    for u in range(2):
        mf = [mfma16(oacc(rt, Tc), OAF + 4*Tc, OBF + 32*u + 4*rt, oacc(rt, Tc)) for Tc in range(4) for rt in range(8)]
        slots = [[] for _ in mf]
        if u == 0:
            slots[24].append(waitcnt(vm=0))
            slots[24] += o_aread(1, 0); slots[25] += o_aread(1, 1); slots[26] += o_aread(1, 2); slots[31] += o_aread(1, 3)
        E += emit(mf, slots)
    E.extend(ST(4 if opts.get("ostamp") else 2))
    E.append(valu("v_lshlrev_b32", 11, "4", 0))
    A(f"s_lshl_b32 s{t0}, s{S_W}, 14"); E.append(valu("v_add_u32", 12, f"s{t0}", 11))
    A(f"s_lshl_b32 s{t0}, s{S_W}, 12"); E.append(valu("v_add_u32", 13, f"s{t0}", 11))
    E.append(valu("v_and_b32", 14, "1", OG)); E.append(valu("v_lshlrev_b32", 14, "1", 14)); E.append(valu("v_lshrrev_b32", 15, "1", OG))
    E.append(valu("v_or_b32", 14, 14, 15)); E.append(valu("v_lshlrev_b32", 14, "4", 14))
    E.append(valu("v_mul_u32_u24", 15, "2560", OM)); E.append(valu("v_add_u32", 14, 14, 15))
    A(f"s_mul_i32 s{t0}, s{S_W}, {16*2560}"); A(f"s_add_u32 s{t1}, s{t0}, {64*2560}")
    E.append(waitcnt(vm=0, lgkm=0)); E.append(barrier())
    for r in range(2):
        for tl in range(16): E.append(dsw128(12, OACC + (16*r + tl)*4, tl*1024))
        E.append(waitcnt(lgkm=0)); E.append(barrier())
        for t in range(4):
            for p in range(4): E.append(ds128(144 + (p*4 + t)*4, 13, p*16384 + t*1024))
        for pr in range(2):
            for h in range(2):
                t = 2*pr + h
                for i in range(4):
                    a = 144 + t*4 + i
                    E.append(valu("v_add_f32", a, a, a + 16)); E.append(valu("v_add_f32", a + 32, a + 32, a + 48))
                for i in range(4):
                    a = 144 + t*4 + i
                    E.append(valu("v_add_f32", a, a, a + 32))
            a = 144 + 2*pr*4; b = a + 4; q = 240 + (r*2 + pr)*4
            E += [cvtpk(q, a, a+1), cvtpk(q+1, a+2, a+3), cvtpk(q+2, b, b+1), cvtpk(q+3, b+2, b+3), perm16(q, q+2), perm16(q+1, q+3)]
            E.append(bstore(q, 4, 14, OSRDOUT, t0 if r == 0 else t1, off=pr*64, flags=opts.get('outflags', '')))
        if r == 0: E.append(waitcnt(lgkm=0)); E.append(barrier())
    E2, _ = resolve(E, st)
    return P2 + body2 + E2

def build(name, stamps=False, **opts):
    ST = (lambda i, real=False: stamp(i, real)) if stamps else (lambda i, real=False: [])
    out = [label(name)] + ST(0) + ST(6, True)
    out += [raw("s_cmp_ge_u32 s2, 752"), raw(f"s_cbranch_scc1 {name}_end"), raw("s_cmp_ge_u32 s2, 512"), raw(f"s_cbranch_scc1 {name}_oproj")]
    if opts.get("skip_heads") == "holdB":
        out += [raw("s_cmp_lt_u32 s2, 256"), raw(f"s_cbranch_scc1 {name}_end"), raw("s_mov_b32 s4, 40"), label(f"{name}_hb"), raw("s_sleep 32"),
                raw("s_sub_u32 s4, s4, 1"), raw("s_cmp_lg_u32 s4, 0"), raw(f"s_cbranch_scc1 {name}_hb"), raw("s_endpgm")]
    elif opts.get("skip_heads"): out += [raw("s_endpgm")]
    fin_h = []; fin_o = []
    if stamps:
        fin_h = [waitcnt(vm=0), raw("s_mov_b64 exec, -1")] + ([] if opts.get("pstamp") else ST(5)) + ST(7, True) + stamp_dump(8, S_PTR+8, S_W, 64<<20, 16, nwaves_shift=2)
        fin_o = [waitcnt(vm=0)] + ([] if opts.get("ostamp") else ST(3) + ST(4)) + ST(5) + ST(7, True) + stamp_dump(8, S_PTR+8, S_W, 64<<20, 16, nwaves_shift=2)
    out += build_head(name + "_h", opts, ST) + fin_h + [raw("s_endpgm")] + head_fallback(name + "_h")
    out += [label(f"{name}_oproj")] + build_oproj(name + "_o", opts, ST) + fin_o
    out += [label(f"{name}_end"), raw("s_endpgm")]
    return out
```

```python
import sys, json
sys.path.insert(0, "gen")
from asmlib import *
import k3
NAME = "concat_heads__mha_block_cached__gqa_block_cached__near_ridge_kernel"
HDR = open("concat_heads__mha_block_cached__gqa_block_cached__near_ridge.s.ref").read().split("; Override launch")[0]
DOC = """;
"""
def main(out, stamps=False, opts={}):
    s = HDR
    s += "; @launch grid=(752,1,1) block=(256,1,1) lds=81920\n"
    s += DOC
    s += '.amdgcn_target "amdgcn-amd-amdhsa--gfx950"\n.text\n'
    s += f".globl {NAME}\n.p2align 8\n.type {NAME},@function\n" + text(k3.build(NAME, stamps=stamps, **opts))
    s += f""".section .rodata,"a"
.p2align 6
.amdhsa_kernel {NAME}
  .amdhsa_next_free_vgpr 256
  .amdhsa_next_free_sgpr 100
  .amdhsa_accum_offset 256
  .amdhsa_group_segment_fixed_size 0
  .amdhsa_kernarg_size 104
  .amdhsa_user_sgpr_count 2
  .amdhsa_user_sgpr_kernarg_segment_ptr 1
  .amdhsa_system_sgpr_workgroup_id_x 1
.end_amdhsa_kernel
"""
    open(out, "w").write(s)
if __name__ == "__main__":
    opts = dict(rot=True, hold=False, rotmask=0, att_vm=4, prioAtt=0, prioA=0, omap="xcd", kvrot=False, sleep=32, bar2=True, wo_pos="pro", wot="c")
    opts.update(prioA=1, prioAttA=1, sleep=64, outflags='sc1', split='head', wo_pos='q8')
    opts.update(json.loads(sys.argv[3]) if len(sys.argv) > 3 else {})
    main(sys.argv[1], stamps=(len(sys.argv) > 2 and sys.argv[2] == "stamps"), opts=opts)
```

```python
from asmlib import *

QSLOT = 40960; XOFF = 16384
ASLOT = 16896; VOFF = 8448
ACC = 16; QF = 112
SX, SY, SZ = 160, 172, 184
PB = 196; KF = 214; VF = 230
QA = [160, 204]; QB = [192, 236]
V_OFFA, V_OFFB, V_L16 = 1, 2, 3
A_W = [4, 5, 6, 7, 8, 9, 10, 11]; A_X = [12, 15]; A_K = 13; A_V = 14
LSUM = [4, 5, 6]; VT = [7, 8, 9, 10]
ONES = 250
LACC = [4, 8, 246]
LMF = False
G, M, RR, C = 248, 249, 250, 251
V_DUMMY = 255; V_TCH = 254
S_W, S_BR, S_B, S_H = 4, 5, 6, 7
S_HALF = 79
SRDA, SRDB, SRDK, SRDV, SRDO, SRDD = 12, 16, 20, 24, 28, 64
S_O = [32, 33, 34, 35]; S_L = [38, 39, 40, 41]; S_CNT = 42
S_OW, S_OX, S_LW, S_LX, S_SIG, S_TT = 8, 9, 36, 37, 10, 11
S_KC, S_VC, S_KB, S_KROT = 8, 9, 36, 37
S_T = [43, 44, 45, 46, 47, 48, 49]
S_SC = 50
S_PTR = 52
SRDWO = 68
S_ID = 72
S_DBG = 74
FLAGOFF = 32 << 20
S_NONCE = 73

def acc(T, qt): return ACC + (T * 3 + qt) * 4
def qf(qt, c): return QF + (qt * 4 + c) * 4

def emit(mf, slots):
    out = []
    for m, fs in zip(mf, slots):
        out.append(m)
        for f in fs:
            if isinstance(f, list): out.extend(f)
            else: out.append(f)
    return out
def spread(slots, items, lo, hi):
    n = len(items); m = hi - lo
    for i, it in enumerate(items): slots[lo + (i * m) // n].append(it)

def q_addr():
    t0 = S_T[0]
    return [salu(f"s_lshl_b32 s{t0}, s{S_SIG}, 19"), salu(f"s_add_u32 s{S_O[0]}, s{S_OW}, s{t0}"),
            salu(f"s_lshl_b32 s{t0}, s{S_SIG}, 7"), salu(f"s_add_u32 s{S_O[1]}, s{S_OX}, s{t0}"),
            salu(f"s_add_u32 s{S_SIG}, s{S_SIG}, 1"), salu(f"s_cmp_eq_u32 s{S_SIG}, 10"), salu(f"s_cselect_b32 s{S_SIG}, 0, s{S_SIG}")]
def q_dma(slot):
    out = []
    for i in range(4):
        g = [m0set(S_LW, slot * QSLOT + i * 4096)]
        if i == 0: g += [dma(V_OFFA, SRDA, S_O[0])]
        else: g += [salu(f"s_add_u32 s{S_TT}, s{S_O[0]}, {i*16*8192}"), dma(V_OFFA, SRDA, S_TT)]
        out.append(g)
    for i in range(6):
        g = [m0set(S_LX, slot * QSLOT + i * 4096)]
        if i == 0: g += [dma(V_OFFB, SRDB, S_O[1])]
        else: g += [salu(f"s_add_u32 s{S_TT}, s{S_O[1]}, {i*32*1280}"), dma(V_OFFB, SRDB, S_TT)]
        out.append(g)
    return out
KVROT = True
def kv_addr(which):
    c = S_KC if which == 0 else S_VC
    a, b = (S_O[0], S_O[1]) if which == 0 else (S_O[2], S_O[3])
    t = S_TT
    return [salu(f"s_add_u32 s{t}, s{c}, s{S_KROT}"), salu(f"s_and_b32 s{t}, s{t}, 15"), salu(f"s_cmp_lt_u32 s{c}, 16"),
            salu(f"s_cselect_b32 s{t}, s{t}, 16"), salu(f"s_lshl_b32 s{t}, s{t}, 13"), salu(f"s_add_u32 s{a}, s{t}, s{S_KB}"),
            salu(f"s_add_u32 s{b}, s{a}, 4096"), salu(f"s_add_u32 s{c}, s{c}, 1")]
def kv_dma(kslot, vslot, flags):
    out = []
    for j in range(4):
        sl = kslot if j < 2 else vslot
        if KVROT:
            pre = kv_addr(j // 2) if j % 2 == 0 else []
            post = nop(0)
        else:
            pre = []
            post = salu(f"s_add_u32 s{S_O[j]}, s{S_O[j]}, 8192")
        out.append([pre + [m0set(S_L[j], sl * ASLOT)], dma(V_L16, SRDK if j < 2 else SRDV, S_O[j], flags), post])
    return out

def q_frag_reads(slot, e, st):
    out = []
    for qt in range(3): out.append(ds128(QB[st] + 4*qt, A_X[e], slot * QSLOT + qt * 2048))
    for T in range(8):
        o = slot * QSLOT + e * 8192
        out.append(dstr(QA[st] + 4*T, A_W[T], o)); out.append(dstr(QA[st] + 4*T + 2, A_W[T], o + 1024))
    return out

_pl = [0]
def polite(n):
    _pl[0] += 1
    lab = f"Lpol{_pl[0]}"
    return [raw(f"s_cmp_eq_u32 s{S_BR}, 0"), raw(f"s_cbranch_scc1 {lab}"), waitcnt(vm=n), label(lab)]
POL = None
QRD = 19
def q_half(st, reads, extra):
    mf = [mfma16(acc(T, qt), QA[st] + 4*T, QB[st] + 4*qt, acc(T, qt)) for T in range(8) for qt in range(3)]
    slots = [[] for _ in mf]
    for i, rd in enumerate(reads): slots[(i * QRD) // 19 if i < 19 else 23].append(rd)
    n = len(extra)
    for j, grp in enumerate(extra):
        k = (j * 22) // max(n, 1)
        slots[k].append(grp[0]); slots[k+1] += [x for x in grp[1:] if getattr(x, "kind", "") != "nop"]
    return emit(mf, slots)

def q_iter(p, kind, kvflags=""):
    out = q_half(0, q_frag_reads(p, 1, 1), [])
    out += [waitcnt(vm=0, lgkm=0) if kind != 'K1' else waitcnt(lgkm=0), barrier()]
    if kind == 'Q':
        extra = [q_addr()] + q_dma(p)
        if POL:
            for pos, n in POL: extra[pos] = extra[pos] + polite(n)
    elif kind == 'K0': extra = kv_dma(0, 0, kvflags) + kv_dma(1, 1, kvflags)
    else: extra = kv_dma(2, 2, kvflags) + kv_dma(3, 3, kvflags)
    reads = q_frag_reads(1 - p, 0, 0) if kind != 'K1' else []
    out += q_half(1, reads, extra)
    return out

def q_switch():
    o = []
    A = lambda t: o.append(raw(t))
    t0, t1 = S_T[0], S_T[1]
    A(f"s_lshr_b32 s{t0}, s{S_W}, 1"); A(f"s_lshl_b32 s{t0}, s{t0}, 2"); A(f"s_and_b32 s{t1}, s{S_W}, 1"); A(f"s_add_u32 s{t0}, s{t0}, s{t1}")
    A(f"s_lshl_b32 s{t0}, s{t0}, 4"); A(f"s_lshl_b32 s{t1}, s{S_W}, 10"); A(f"s_add_u32 s{S_L[0]}, s{t0}, s{t1}")
    A(f"s_add_u32 s{S_L[1]}, s{S_L[0]}, {4096+128}")
    A(f"s_mul_i32 s{t0}, s{S_W}, 1056"); A(f"s_add_u32 s{S_L[2]}, s{t0}, {VOFF}"); A(f"s_add_u32 s{S_L[3]}, s{S_L[2]}, {4*1056}")
    A(f"s_lshl_b32 s{S_KB}, s{S_W}, 10"); A(f"s_mov_b32 s{S_KC}, 0"); A(f"s_mov_b32 s{S_VC}, 0")
    if KVROT:
        A(f"s_lshr_b32 s{S_KROT}, s{S_ID}, 3"); A(f"s_add_u32 s{S_KROT}, s{S_KROT}, s{S_ID}"); A(f"s_and_b32 s{S_KROT}, s{S_KROT}, 15")
    else:
        A(f"s_mov_b32 s{S_O[0]}, s{S_KB}"); A(f"s_add_u32 s{S_O[1]}, s{S_KB}, 4096"); A(f"s_mov_b32 s{S_O[2]}, s{S_O[0]}"); A(f"s_mov_b32 s{S_O[3]}, s{S_O[1]}")
    return o

def q_convert():
    o = []
    for qt in range(3):
        for T in range(8):
            a = acc(T, qt)
            o.append(pkmul(a, a, f"s[{S_SC}:{S_SC+1}]")); o.append(pkmul(a+2, a+2, f"s[{S_SC}:{S_SC+1}]"))
    for qt in range(3):
        for c in range(4):
            q = qf(qt, c); a = acc(2*c, qt); b = acc(2*c+1, qt)
            o += [cvtpk(q, a, a+1), cvtpk(q+1, a+2, a+3), cvtpk(q+2, b, b+1), cvtpk(q+3, b+2, b+3)]
    for qt in range(3):
        for c in range(4):
            q = qf(qt, c)
            o += [perm16(q, q+2), perm16(q+1, q+3)]
    for i in range(96): o.append(valu("v_mov_b32", ACC + i, "0"))
    if LMF:
        for qt in range(3):
            for i in range(4): o.append(valu("v_mov_b32", LACC[qt] + i, "0"))
        for i in range(4): o.append(valu("v_mov_b32", ONES + i, "0x3f803f80"))
    else:
        for r in LSUM: o.append(valu("v_mov_b32", r, "0"))
    return o

def sreg(j, Tk, qt):
    if Tk == 0: return SX + 4*qt
    return (SY if j % 2 == 0 else SZ) + 4*qt
def preg(j, part, qt):
    base = PB + 6*qt
    if part == 1: return base + 2
    return base + (0 if j % 2 == 0 else 4)
def pop(j, qt): return PB + 6*qt + (0 if j % 2 == 0 else 2)
def k_read(j, i): return ds128(KF + 4*(i % 4), A_K, (j % 4) * ASLOT + (i % 4) * 64 + (i // 4) * 512)
def v_read(j, T):
    o = (j % 4) * ASLOT + T * 32
    d = VF + 4*(T % 4)
    if j % 2 == 0: return [dstr(d, A_V, o), dstr(d+2, A_V, o + 512)]
    return [dstr(d+2, A_V, o), dstr(d, A_V, o + 512)]
def softmax_ops(j, part):
    if XO.get("nosm"): return [nop(0)]
    ops = []
    for qt in range(3):
        s = sreg(j, part, qt); p = preg(j, part, qt)
        ops.append([vexp(s, s), vexp(s+1, s+1), vexp(s+2, s+2), vexp(s+3, s+3),
                    valu("v_add_f32", LSUM[qt], LSUM[qt], s), cvtpk(p, s, s+1), valu("v_add_f32", LSUM[qt], LSUM[qt], s+1),
                    valu("v_add_f32", LSUM[qt], LSUM[qt], s+2), cvtpk(p+1, s+2, s+3), valu("v_add_f32", LSUM[qt], LSUM[qt], s+3)])
    seq = list(ops[0][:4])
    for qt in range(1, 3):
        e = ops[qt][:4]; f = ops[qt-1][4:]
        seq += [e[0], f[0], f[1], e[1], f[2], e[2], f[3], f[4], e[3], f[5]]
    seq += ops[2][4:]
    if LMF: seq = [x for x in seq if not x.txt.startswith("v_add_f32")]
    if XO.get("noadd"): seq = [x for x in seq if not x.txt.startswith("v_add_f32")]
    if XO.get("noexp"): seq = [x for x in seq if not x.txt.startswith("v_exp")]
    return seq
def qk_mfmas(j):
    mf = []
    for Tk in range(2):
        for c in range(4):
            i = Tk*4 + c
            for qt in range(3):
                s = sreg(j, Tk, qt)
                mf.append(mfma16(s, KF + 4*(i % 4), qf(qt, c), None if c == 0 else s))
    return mf
def pv_mfmas(j):
    return [mfma16(acc(T, qt), VF + 4*(T % 4), pop(j, qt), acc(T, qt)) for T in range(8) for qt in range(3)]
def l_mfmas(j):
    return [mfma16(LACC[qt], ONES, pop(j, qt), LACC[qt]) for qt in range(3)]

def h0(s, tail=False):
    sm = softmax_ops(s, 1)
    vr_ = [v_read(s, T) for T in range(4)]
    if tail:
        out = []
        for v in vr_: out += v
        return out + sm
    mf = qk_mfmas(s + 1)
    slots = [[] for _ in mf]
    for i in range(5): slots[3*i].append(k_read(s + 1, i + 3))
    for T in range(4): slots[14 + 2*T].append(vr_[T][0]); slots[15 + 2*T].append(vr_[T][1])
    spread(slots, sm, 0, 23)
    return emit(mf, slots)
ATTVM = 8
XO = {}
BAR2 = False
SPLITB = 0
def h1(s, kvflags, tail=False):
    mf = pv_mfmas(s)
    slots = [[] for _ in mf]
    for T in range(4, 8):
        v = v_read(s, T); slots[3*(T-4) + 2].append(v[0]); slots[3*(T-4) + 3].append(v[1])
    if not tail:
        spread(slots, softmax_ops(s + 1, 0), 0, 23)
        if BAR2:
            if s % 2 == 0:
                slots[16].append([waitcnt(vm=0, lgkm=0), barrier()])
                grps = kv_dma(s % 4, (s + 3) % 4, kvflags)
                if not SPLITB: grps += kv_dma((s + 1) % 4, s % 4, kvflags)
            else:
                grps = kv_dma(s % 4, (s - 1) % 4, kvflags) if SPLITB else []
            for j, grp in enumerate(grps):
                k = (16 + j) if (s % 2 == 0 or SPLITB != 2) else (4 + 3*j)
                slots[k].append(grp[0]); slots[k].append(grp[2] if grp[2].kind == "nop" else nop(0)); slots[k].append(grp[1])
                if grp[2].kind != "nop": slots[k].append(grp[2])
            for i in range(3): slots[17 + i].append(k_read(s + 2, i))
        else:
          if XO.get("nobar"): slots[16].append([waitcnt(lgkm=0)])
          else: slots[16].append([waitcnt(vm=ATTVM, lgkm=0), barrier()])
          for i in range(3): slots[17 + i].append(k_read(s + 2, i))
          if not XO.get("nodma"):
            for j, grp in enumerate(kv_dma((s + 1) % 4, s % 4, kvflags)):
              slots[17 + j].append(grp[0]); slots[18 + j].append(grp[1])
              if grp[2].kind != "nop": slots[19 + j].append(grp[2])
    if LMF:
        lm = l_mfmas(s); slots[2].append(lm[0]); slots[8].append(lm[1]); slots[13].append(lm[2])
    return emit(mf, slots)
def att_prologue(kvflags):
    o = [raw(f"s_sub_u32 s{S_VC}, s{S_VC}, 1")] if KVROT else [raw(f"s_sub_u32 s{S_O[2]}, s{S_O[2]}, 8192"), raw(f"s_sub_u32 s{S_O[3]}, s{S_O[3]}, 8192")]
    o += [waitcnt(vm=14), barrier()]
    for i in range(3): o.append(k_read(0, i))
    mf = qk_mfmas(0)
    slots = [[] for _ in mf]
    for i in range(5): slots[3*i].append(k_read(0, i + 3))
    o += emit(mf, slots)
    o += [waitcnt(vm=8, lgkm=0), barrier()]
    for i in range(3): o.append(k_read(1, i))
    if not BAR2:
        for grp in kv_dma(0, 3, kvflags): o += grp[0] + [nop(0), grp[1], grp[2]]
    o += softmax_ops(0, 0)
    return o

def srd_build(A, dst, ptr, offreg, nrec):
    if offreg is None:
        A(f"s_mov_b32 s{dst}, s{ptr}"); A(f"s_and_b32 s{dst+1}, s{ptr+1}, 0xffff")
    else:
        A(f"s_add_u32 s{dst}, s{ptr}, s{offreg}"); A(f"s_addc_u32 s{dst+1}, s{ptr+1}, 0"); A(f"s_and_b32 s{dst+1}, s{dst+1}, 0xffff")
    A(f"s_mov_b32 s{dst+2}, {nrec}"); A(f"s_mov_b32 s{dst+3}, 0x20000")

def head_prologue(name, opts):
    P = []
    A = lambda t, **k: P.append(raw(t, **k))
    t0, t1, t2 = S_T[0], S_T[1], S_T[2]
    A(f"s_lshr_b32 s{S_HALF}, s2, 8"); A(f"s_and_b32 s{S_ID}, s2, 255")
    if opts.get("split", "branch") == "head":
        A(f"s_bfe_u32 s{S_BR}, s{S_ID}, 0x10002")
    else:
        A(f"s_mov_b32 s{S_BR}, s{S_HALF}")
    A(f"s_mul_i32 s3, s{S_BR}, 40")
    A(f"s_load_dwordx4 s[{S_PTR}:{S_PTR+3}], s[0:1], s3")
    A(f"s_add_u32 s{t1}, s3, 16"); A(f"s_load_dwordx4 s[{S_PTR+4}:{S_PTR+7}], s[0:1], s{t1}")
    A(f"s_load_dwordx2 s[{S_PTR+8}:{S_PTR+9}], s[0:1], 96")
    A(f"s_load_dwordx2 s[{S_DBG}:{S_DBG+1}], s[0:1], 88")
    A(f"s_add_u32 s{t1}, s3, 32"); A(f"s_load_dwordx2 s[{S_PTR+10}:{S_PTR+11}], s[0:1], s{t1}")
    A(f"s_load_dwordx2 s[76:77], s[0:1], 32")
    if opts.get("split", "branch") == "head":
        A(f"s_bfe_u32 s{S_B}, s{S_ID}, 0x10001"); A(f"s_lshl_b32 s{S_B}, s{S_B}, 2"); A(f"s_lshr_b32 s{t1}, s{S_ID}, 6"); A(f"s_add_u32 s{S_B}, s{S_B}, s{t1}")
        A(f"s_and_b32 s{S_H}, s{S_ID}, 1"); A(f"s_lshl_b32 s{S_H}, s{S_H}, 3"); A(f"s_bfe_u32 s{t1}, s{S_ID}, 0x30003"); A(f"s_add_u32 s{S_H}, s{S_H}, s{t1}")
        A(f"s_lshl_b32 s{t1}, s{S_HALF}, 4"); A(f"s_add_u32 s{S_H}, s{S_H}, s{t1}")
    else:
        A(f"s_and_b32 s3, s{S_ID}, 7"); A(f"s_lshr_b32 s{t0}, s{S_ID}, 3")
        A(f"s_lshr_b32 s{S_B}, s3, 2"); A(f"s_lshl_b32 s{S_B}, s{S_B}, 2"); A(f"s_lshr_b32 s{t1}, s{t0}, 3"); A(f"s_add_u32 s{S_B}, s{S_B}, s{t1}")
        A(f"s_and_b32 s{S_H}, s3, 3"); A(f"s_lshl_b32 s{S_H}, s{S_H}, 3"); A(f"s_and_b32 s{t1}, s{t0}, 7"); A(f"s_add_u32 s{S_H}, s{S_H}, s{t1}")
    P.append(valu("v_lshrrev_b32", G, "6", 0)); P.append(valu("v_and_b32", 0, "63", 0))
    A("s_nop 0"); A(f"v_readfirstlane_b32 s{S_W}, v{G}")
    P.append(valu("v_lshrrev_b32", G, "4", 0)); P.append(valu("v_and_b32", M, "15", 0))
    P.append(valu("v_bfe_u32", RR, 0, "2", "2")); P.append(valu("v_and_b32", C, "3", 0))
    P.append(valu("v_lshlrev_b32", V_L16, "4", 0))
    T0, T1 = 16, 17
    A(f"s_lshr_b32 s{t0}, s{S_W}, 1"); A(f"s_and_b32 s{t0}, s{t0}, 1"); A(f"s_lshl_b32 s{t0}, s{t0}, 2")
    P.append(valu("v_or_b32", T0, f"s{t0}", G))
    P.append(valu("v_lshrrev_b32", T1, "1", M)); P.append(valu("v_xor_b32", T0, T0, T1))
    P.append(valu("v_lshlrev_b32", T0, "5", T0))
    P.append(valu("v_and_b32", T1, "1", M)); P.append(valu("v_lshl_add_u32", T0, T1, "4", T0))
    P.append(valu("v_lshl_add_u32", V_OFFA, G, "13", T0))
    A(f"s_and_b32 s{t0}, s{S_W}, 1"); A(f"s_lshl_b32 s{t0}, s{t0}, 2")
    P.append(valu("v_add_u32", T0, f"s{t0}", G))
    P.append(valu("v_and_b32", T1, "7", 0)); P.append(valu("v_xor_b32", T1, T1, T0)); P.append(valu("v_lshlrev_b32", T1, "4", T1))
    P.append(valu("v_lshrrev_b32", T0, "3", 0)); P.append(valu("v_mul_u32_u24", T0, "1280", T0)); P.append(valu("v_add_u32", V_OFFB, T0, T1))
    A(f"s_lshl_b32 s{S_OW}, s{S_W}, 15"); A(f"s_mul_i32 s{S_OX}, s{S_W}, {8*1280}")
    A(f"s_lshl_b32 s{S_LW}, s{S_W}, 10"); A(f"s_add_u32 s{S_LX}, s{S_LW}, {XOFF}")
    if opts.get("rot", False):
        A(f"s_and_b32 s{t0}, s{S_H}, 7"); A(f"s_lshr_b32 s{t1}, s{t0}, 2"); A(f"s_add_u32 s{t0}, s{t0}, s{t1}")
        A(f"s_and_b32 s{t1}, s{S_B}, 3"); A(f"s_mul_i32 s{t1}, s{t1}, 5"); A(f"s_add_u32 s{t1}, s{t1}, 1"); A(f"s_lshr_b32 s{t1}, s{t1}, 1")
        A(f"s_add_u32 s{S_SIG}, s{t0}, s{t1}")
        A(f"s_cmp_ge_u32 s{S_SIG}, 10"); A(f"s_cselect_b32 s{t0}, 10, 0"); A(f"s_sub_u32 s{S_SIG}, s{S_SIG}, s{t0}")
    else:
        A(f"s_mov_b32 s{S_SIG}, 0")
    A("s_waitcnt lgkmcnt(0)")
    if opts.get("pstamp"): P.extend(stamp(4))
    px, pk, pv, pw, pws = S_PTR, S_PTR+2, S_PTR+4, S_PTR+6, S_PTR+8
    srd_build(A, SRDD, S_DBG, None, 256)
    A(f"s_or_b32 s{t0}, s2, s{S_W}"); A(f"s_cmp_eq_u32 s{t0}, 0"); A(f"s_cbranch_scc0 {name}_nononce")
    A(f"s_memrealtime s[{S_T[3]}:{S_T[4]}]"); A("s_waitcnt lgkmcnt(0)"); A(f"s_or_b32 s{t0}, s{S_T[3]}, 1")
    P.append(valu("v_mov_b32", V_DUMMY, f"s{t0}")); P.append(valu("v_mov_b32", V_TCH, "0"))
    A(f"buffer_store_dword v{V_DUMMY}, v{V_TCH}, s[{SRDD}:{SRDD+3}], 0 offen sc1")
    P.append(label(f"{name}_nononce"))
    if opts.get("hold", True): hold_setup(name, opts, A, P)
    A(f"s_lshl_b32 s{t0}, s{S_H}, 8"); srd_build(A, SRDA, pw, t0, 640*8192 - 31*256)
    A(f"s_mul_i32 s{t0}, s{S_B}, 245760"); srd_build(A, SRDB, px, t0, 245760)
    P.extend(q_addr())
    for grp in q_dma(0): P.extend([grp[0], nop(0)] + grp[1:])
    if opts.get("pstamp"): P.extend(stamp(5))
    pa, pb = opts.get('prioA', 0), opts.get('prioBq', 0)
    if pa or pb:
        A(f"s_cmp_eq_u32 s{S_HALF}, 0"); A(f"s_cbranch_scc0 {name}_prb"); A(f"s_setprio {pa}"); A(f"s_branch {name}_noprio")
        P.append(label(f"{name}_prb")); A(f"s_setprio {pb}"); P.append(label(f"{name}_noprio"))
    A(f"s_lshl_b32 s{t1}, s{S_B}, 5"); A(f"s_add_u32 s{t1}, s{t1}, s{S_H}"); A(f"s_lshl_b32 s{t0}, s{t1}, 17")
    srd_build(A, SRDK, pk, t0, 131072); srd_build(A, SRDV, pv, t0, 131072)
    A(f"s_mul_i32 s{t1}, s{S_BR}, {12*1048576}"); A(f"s_lshl_b32 s{t2}, s{S_H}, 15"); A(f"s_add_u32 s{t0}, s{t1}, s{t2}")
    srd_build(A, SRDO, pws, t0, 12*1048576 - 31*32768)
    if opts.get("split", "branch") == "head":
        A(f"s_lshr_b32 s{t0}, s{S_ID}, 3"); A(f"s_lshl_b32 s{t0}, s{t0}, 2"); A(f"s_and_b32 s{t1}, s{S_ID}, 3"); A(f"s_add_u32 s{t0}, s{t0}, s{t1}")
        A(f"s_lshl_b32 s{t1}, s{S_HALF}, 7"); A(f"s_add_u32 s{t0}, s{t0}, s{t1}"); A(f"s_mul_i32 s{t0}, s{t0}, 20480")
    else:
        A(f"s_mul_i32 s{t0}, s{S_ID}, 20480")
    srd_build(A, SRDWO, S_PTR+10, t0, 20480)
    A(f"s_mov_b32 s{S_SC}, 0x3e0293ee"); A(f"s_mov_b32 s{S_SC+1}, 0x3e0293ee")
    P.append(valu("v_and_b32", T0, "1", G)); P.append(valu("v_lshl_or_b32", T0, T0, "2", RR))
    P.append(valu("v_lshl_add_u32", T1, G, "3", RR)); P.append(valu("v_lshlrev_b32", T1, "8", T1))
    P.append(valu("v_lshl_add_u32", T1, C, "3", T1))
    for T in range(8):
        P.append(valu("v_xor_b32", A_W[T], str(T), T0)); P.append(valu("v_lshl_add_u32", A_W[T], A_W[T], "5", T1))
    P.append(valu("v_lshrrev_b32", T0, "1", M)); P.append(valu("v_xor_b32", T0, G, T0)); P.append(valu("v_lshlrev_b32", T0, "4", T0))
    P.append(valu("v_lshl_add_u32", T0, M, "7", T0))
    A(f"s_mul_i32 s3, s{S_W}, {48*128}"); A(f"s_add_u32 s3, s3, {XOFF}")
    P.append(valu("v_add_u32", A_X[0], "s3", T0)); P.append(valu("v_xor_b32", A_X[1], "64", A_X[0]))
    P.append(valu("v_and_b32", T0, "7", M))
    P.append(valu("v_lshrrev_b32", T1, "1", T0)); P.append(valu("v_lshlrev_b32", T1, "2", T1))
    P.append(valu("v_and_b32", A_K, "1", T0)); P.append(valu("v_add_u32", T1, T1, A_K))
    P.append(valu("v_lshlrev_b32", T1, "4", T1)); P.append(valu("v_lshl_add_u32", T1, T0, "10", T1))
    P.append(valu("v_lshrrev_b32", T0, "3", M)); P.append(valu("v_lshl_add_u32", T1, T0, "8", T1))
    P.append(valu("v_and_b32", T0, "1", G)); P.append(valu("v_lshlrev_b32", T0, "1", T0))
    P.append(valu("v_lshrrev_b32", A_K, "1", G)); P.append(valu("v_or_b32", T0, T0, A_K))
    P.append(valu("v_lshl_add_u32", A_K, T0, "4", T1))
    P.append(valu("v_and_b32", T0, "1", G)); P.append(valu("v_lshl_add_u32", T0, T0, "2", RR))
    P.append(valu("v_mul_u32_u24", T0, "1056", T0))
    P.append(valu("v_lshrrev_b32", T1, "1", G)); P.append(valu("v_lshl_add_u32", T0, T1, "8", T0))
    P.append(valu("v_lshl_add_u32", T0, C, "3", T0)); P.append(valu("v_add_u32", A_V, str(VOFF), T0))
    for i in range(96): P.append(valu("v_mov_b32", ACC + i, "0"))
    if opts.get("touch_wo", True) and opts.get("wo_pos") == "pro": P.extend(wo_touch())
    if opts.get("touch_wo", True) and opts.get("wo_pos") == "Bpro":
        A(f"s_cmp_eq_u32 s{S_BR}, 0"); A(f"s_cbranch_scc1 {name}_nowot")
        P.extend(wo_touch())
        A(f"s_mul_i32 s{t0}, s{S_ID}, 20480"); srd_build(A, SRDWO, 76, t0, 20480)
        P.extend(wo_touch()[1:])
        P.append(label(f"{name}_nowot"))
    P.extend(q_addr())
    for grp in q_dma(1): P.extend([grp[0], nop(0)] + grp[1:])
    nt_ = 0
    if opts.get("touch_wo", True) and opts.get("wo_pos") == "pro2":
        tw = wo_touch(); P.extend(tw); nt_ = sum(1 for x in tw if x.kind == "vload")
    P.append(waitcnt(vm=10 + nt_)); P.append(barrier())
    if opts.get("hold"): P.extend(hold_wait(name, opts))
    P.extend(q_frag_reads(0, 0, 0))
    return P

def poll(name, srd, off_sreg, mask_or_val, mode, vtmp, sleep=8):
    o = [raw(f"s_mov_b32 s{S_T[5]}, 200000"), label(f"{name}"), raw(f"v_mov_b32 v{vtmp}, 0", kind="valu", wr=[vtmp]),
         raw(f"buffer_load_dword v{vtmp+1}, v{vtmp}, s[{srd}:{srd+3}], s{off_sreg} offen sc1"),
         raw("s_waitcnt vmcnt(0)"),
         raw(f"v_readfirstlane_b32 s{S_T[6]}, v{vtmp+1}"),
         raw(f"s_sub_u32 s{S_T[5]}, s{S_T[5]}, 1"), raw(f"s_cbranch_scc1 {name}_ok"),
         raw("s_nop 2")]
    if mode == 'bit':
        o += [raw(f"s_and_b32 s{S_T[6]}, s{S_T[6]}, s{mask_or_val}"), raw(f"s_cbranch_scc1 {name}_ok")]
    else:
        o += [raw(f"s_cmp_ge_u32 s{S_T[6]}, {mask_or_val}"), raw(f"s_cbranch_scc1 {name}_ok")]
    o += [raw(f"s_sleep {sleep}"), raw(f"s_branch {name}"), label(f"{name}_ok")]
    return o

FBOFF = 81856
S_FB = 70
S_FB = 78
L_LO, L_HI = "0x2b800000", "0x53800000"
def head_epilogue(name, opts):
    o = [valu("v_mov_b32", V_TCH, "0"), raw(f"s_cmp_eq_u32 s{S_W}, 0"), raw(f"s_cbranch_scc0 {name}_nn"),
         raw(f"buffer_load_dword v{V_DUMMY}, v{V_TCH}, s[{SRDD}:{SRDD+3}], 0 offen sc1", kind="vload", rd=[V_TCH], wr=[V_DUMMY]),
         label(f"{name}_nn"), raw(f"s_mov_b32 s{S_FB}, 0"), label(f"{name}_e0")]
    t = VT
    for qt in range(3):
        l = LSUM[qt]
        o += [valu("v_mov_b32", t[qt], l), perm32(t[qt], l), valu("v_add_f32", l, l, t[qt])]
    for qt in range(3):
        l = LSUM[qt]
        o += [valu("v_mov_b32", t[qt], l), perm16(t[qt], l), valu("v_add_f32", l, l, t[qt])]
    m = S_T[5]
    o += [raw(f"s_mov_b64 s[{m}:{m+1}], 0"), valu("v_mov_b32", 11, L_LO), valu("v_mov_b32", 12, L_HI)]
    for qt in range(3):
        o += [I(f"v_cmp_nle_f32 vcc, v11, v{LSUM[qt]}", rd=[11, LSUM[qt]], kind="valu"), raw("s_nop 1"), raw(f"s_or_b64 s[{m}:{m+1}], s[{m}:{m+1}], vcc"),
              I(f"v_cmp_nge_f32 vcc, v12, v{LSUM[qt]}", rd=[12, LSUM[qt]], kind="valu"), raw("s_nop 1"), raw(f"s_or_b64 s[{m}:{m+1}], s[{m}:{m+1}], vcc")]
    o += [raw(f"s_cmp_lg_u64 s[{m}:{m+1}], 0"), raw(f"s_cselect_b32 s{m}, 1, 0"), raw(f"s_andn2_b32 s{m}, s{m}, s{S_FB}"),
          raw(f"s_lshl_b32 s{m+1}, s{S_W}, 2"), raw(f"s_add_u32 s{m+1}, s{m+1}, {FBOFF}"),
          I(f"v_mov_b32 v11, s{m}", wr=[11], kind="valu"), I(f"v_mov_b32 v12, s{m+1}", wr=[12], kind="valu"), dsw32(12, 11)]
    for qt in range(3): o.append(vrcp(t[qt], LSUM[qt]))
    for qt in range(3):
        o.append(raw(f"s_mul_i32 s{S_T[3]}, s{S_B}, 12")); o.append(raw(f"s_mul_i32 s{S_T[4]}, s{S_W}, 3"))
        o.append(raw(f"s_add_u32 s{S_T[3]}, s{S_T[3]}, s{S_T[4]}")); o.append(raw(f"s_add_u32 s{S_T[3]}, s{S_T[3]}, {qt}"))
        o.append(raw(f"s_lshr_b32 s{S_T[4]}, s{S_T[3]}, 3")); o.append(raw(f"s_lshl_b32 s{S_T[4]}, s{S_T[4]}, 20"))
        o.append(raw(f"s_and_b32 s{S_T[3]}, s{S_T[3]}, 7")); o.append(raw(f"s_lshl_b32 s{S_T[3]}, s{S_T[3]}, 10"))
        o.append(raw(f"s_add_u32 s{S_T[qt]}, s{S_T[3]}, s{S_T[4]}"))
    for qt in range(3):
        for c in range(4):
            a = acc(2*c, qt); b = acc(2*c+1, qt)
            for r in range(4):
                o.append(valu("v_mul_f32", a + r, a + r, t[qt])); o.append(valu("v_mul_f32", b + r, b + r, t[qt]))
            o += [cvtpk(a, a, a+1), cvtpk(a+1, a+2, a+3), cvtpk(a+2, b, b+1), cvtpk(a+3, b+2, b+3)]
            o.append(bstore(a, 4, V_L16, SRDO, S_T[qt], flags=opts.get("stflags", "sc1")))
            if c < 3: o.append(raw(f"s_add_u32 s{S_T[qt]}, s{S_T[qt]}, 8192"))
    o += [waitcnt(vm=0, lgkm=0), barrier()]
    o += [valu("v_mov_b32", 12, str(FBOFF)), ds128(160, 12, 0), waitcnt(lgkm=0),
          valu("v_or_b32", 160, 160, 161), valu("v_or_b32", 162, 162, 163), valu("v_or_b32", 160, 160, 162), raw("s_nop 0"),
          raw(f"v_readfirstlane_b32 s{S_T[2]}, v160"), raw("s_nop 3"), raw(f"s_cmp_lg_u32 s{S_T[2]}, 0"), raw(f"s_cbranch_scc1 {name}_fb")]
    t0, t1 = S_T[0], S_T[1]
    o += [raw(f"s_cmp_eq_u32 s{S_W}, 0"), raw(f"s_cbranch_scc0 {name}_nopub"),
          raw(f"v_readfirstlane_b32 s{S_NONCE}, v{V_DUMMY}"), raw("s_nop 3"),
          raw(f"s_cmp_lg_u32 s{S_NONCE}, 0"), raw(f"s_cbranch_scc1 {name}_pn_done"), raw(f"s_mov_b32 s{t0}, 0")]
    o += poll(f"{name}_pn", SRDD, t0, 1, 'ge', V_TCH)
    o += [raw(f"s_mov_b32 s{S_NONCE}, s{S_T[6]}"), label(f"{name}_pn_done"),
          raw(f"s_lshl_b32 s{t0}, s{S_BR}, 3"), raw(f"s_add_u32 s{t0}, s{t0}, s{S_B}"), raw(f"s_mul_i32 s{t0}, s{t0}, 384"),
          raw(f"s_lshl_b32 s{t1}, s{S_H}, 2"), raw(f"s_add_u32 s{t0}, s{t0}, s{t1}"), raw(f"s_add_u32 s{t0}, s{t0}, {FLAGOFF}")]
    A = lambda t: o.append(raw(t))
    srd_build(A, SRDWO, S_PTR+8, t0, 260)
    o += [raw("v_lshlrev_b32 v16, 7, v0", kind="valu", wr=[16]), raw(f"v_mov_b32 v17, s{S_NONCE}", kind="valu", wr=[17]),
          raw("s_mov_b64 exec, 7"),
          raw(f"buffer_store_dword v17, v16, s[{SRDWO}:{SRDWO+3}], 0 offen sc1")]
    if opts.get("linger"):
        o += [raw("s_mov_b64 exec, 1"), raw(f"s_lshl_b32 s{t0}, s{S_ID}, 7"), raw(f"s_add_u32 s{t0}, s{t0}, {FLAGOFF + 131072}")]
        srd_build(A, SRDWO, S_PTR+8, t0, 4)
        o += [raw("v_mov_b32 v16, 0", kind="valu", wr=[16]), raw("s_nop 1"),
              raw(f"buffer_atomic_swap v17, v16, s[{SRDWO}:{SRDWO+3}], 0 offen sc0 sc1"), raw("s_waitcnt vmcnt(0)"),
              raw(f"v_readfirstlane_b32 s{t1}, v17"), raw("s_nop 3"),
              raw(f"s_cmp_eq_u32 s{t1}, s{S_NONCE}"), raw(f"s_cbranch_scc0 {name}_nopub"),
              raw(f"s_mov_b32 s{S_T[5]}, {opts.get('linger_polls', 6)}"), raw(f"s_mov_b32 s{t0}, 128"),
              label(f"{name}_lg"),
              raw(f"buffer_load_dword v17, v16, s[{SRDD}:{SRDD+3}], s{t0} offen sc1"), raw("s_waitcnt vmcnt(0)"),
              raw(f"v_readfirstlane_b32 s{t1}, v17"),
              raw(f"s_sub_u32 s{S_T[5]}, s{S_T[5]}, 1"), raw(f"s_cbranch_scc1 {name}_nopub"), raw("s_nop 2"),
              raw(f"s_cmp_ge_u32 s{t1}, 240"), raw(f"s_cbranch_scc1 {name}_nopub"),
              raw(f"s_sleep {opts.get('linger_sleep', 96)}"), raw(f"s_branch {name}_lg")]
    o += [label(f"{name}_nopub")]
    return o

def head_fallback(name):
    MX = [246, 247, 248]; NM = [184, 188, 192]; TT = 249
    def reset_off():
        return [raw(f"s_lshl_b32 s{S_O[0]}, s{S_W}, 10"), raw(f"s_add_u32 s{S_O[1]}, s{S_O[0]}, 4096"),
                raw(f"s_mov_b32 s{S_O[2]}, s{S_O[0]}"), raw(f"s_mov_b32 s{S_O[3]}, s{S_O[1]}"), raw(f"s_mov_b32 s{S_CNT}, 16")]
    def load(js):
        o = [barrier()]
        for j in js:
            o += [m0set(S_L[j], 0), nop(0), dma(V_L16, SRDK if j < 2 else SRDV, S_O[j]), salu(f"s_add_u32 s{S_O[j]}, s{S_O[j]}, 8192")]
        return o + [waitcnt(vm=0), barrier()]
    def qk(cinit):
        o = []
        for Tk in range(2):
            for c in range(4): o.append(k_read(0, Tk*4 + c))
            for c in range(4):
                for qt in range(3):
                    s = sreg(0, Tk, qt)
                    o.append(mfma16(s, KF + 4*c, qf(qt, c), cinit[qt] if c == 0 else s))
        return o
    pre = [label(f"{name}_fb")] + [valu("v_mov_b32", r, "0xff800000") for r in MX] + reset_off()
    b1 = [label(f"{name}_fb1")] + load([0, 1]) + qk([None]*3)
    for qt in range(3):
        for Tk in range(2):
            s = sreg(0, Tk, qt)
            b1 += [valu("v_max3_f32", MX[qt], MX[qt], s, s+1), valu("v_max3_f32", MX[qt], MX[qt], s+2, s+3)]
    b1 += [waitcnt(lgkm=0), raw(f"s_sub_u32 s{S_CNT}, s{S_CNT}, 1"), raw(f"s_cmp_lg_u32 s{S_CNT}, 0"), raw(f"s_cbranch_scc1 {name}_fb1")]
    mid = []
    for qt in range(3):
        mid += [valu("v_mov_b32", TT, MX[qt]), perm32(TT, MX[qt]), valu("v_max_f32", MX[qt], MX[qt], TT),
                valu("v_mov_b32", TT, MX[qt]), perm16(TT, MX[qt]), valu("v_max_f32", MX[qt], MX[qt], TT)]
        for i in range(4): mid.append(I(f"v_sub_f32 v{NM[qt]+i}, 0, v{MX[qt]}", rd=[MX[qt]], wr=[NM[qt]+i], kind="valu"))
    for i in range(96): mid.append(valu("v_mov_b32", ACC + i, "0"))
    for r in LSUM: mid.append(valu("v_mov_b32", r, "0"))
    mid += reset_off()
    b2 = [label(f"{name}_fb2")] + load([0, 1, 2, 3]) + qk(NM)
    for part in range(2):
        for qt in range(3):
            s = sreg(0, part, qt); p = preg(0, part, qt)
            b2 += [vexp(s+i, s+i) for i in range(4)] + [valu("v_add_f32", LSUM[qt], LSUM[qt], s+i) for i in range(4)] + [cvtpk(p, s, s+1), cvtpk(p+1, s+2, s+3)]
    for half in range(2):
        for T in range(4*half, 4*half + 4): b2 += v_read(0, T)
        for T in range(4*half, 4*half + 4):
            for qt in range(3): b2.append(mfma16(acc(T, qt), VF + 4*(T % 4), pop(0, qt), acc(T, qt)))
    b2 += [waitcnt(lgkm=0), raw(f"s_sub_u32 s{S_CNT}, s{S_CNT}, 1"), raw(f"s_cmp_lg_u32 s{S_CNT}, 0"), raw(f"s_cbranch_scc1 {name}_fb2")]
    post = [nop(15), raw(f"s_mov_b32 s{S_FB}, 1"), raw(f"s_branch {name}_e0")]
    p1, l1, st = resolve_loop([nop(15)] + pre, b1)
    p2, l2, st = resolve_loop(mid, b2, st)
    po, _ = resolve(post, st)
    return p1 + l1 + p2 + l2 + po

V_HOLD = 253
SRDH = 24
SRDH = 100 - 4
def hold_setup(name, opts, A, P):
    t0 = S_T[0]
    A(f"s_lshl_b32 s{t0}, s{S_ID}, 7"); A(f"s_add_u32 s{t0}, s{t0}, {FLAGOFF + 65536}")
    srd_build(A, SRDH, S_PTR+8, t0, 4)
    P.append(valu("v_mov_b32", V_TCH, "0"))
    A(f"buffer_load_dword v{V_HOLD}, v{V_TCH}, s[{SRDH}:{SRDH+3}], 0 offen sc1")
def hold_wait(name, opts):
    o = []
    A = lambda t: o.append(raw(t))
    A(f"s_cmp_eq_u32 s{S_BR}, 0"); A(f"s_cbranch_scc1 {name}_hw_end")
    A(f"s_cmp_eq_u32 s{S_W}, 0"); A(f"s_cbranch_scc0 {name}_hw_done")
    A("s_waitcnt vmcnt(0)"); A(f"v_readfirstlane_b32 s{S_T[4]}, v{V_HOLD}"); A(f"s_mov_b32 s{S_T[5]}, {opts.get('hold_polls', 24)}")
    o.append(label(f"{name}_hw"))
    A(f"buffer_load_dword v{V_HOLD}, v{V_TCH}, s[{SRDH}:{SRDH+3}], 0 offen sc1"); A("s_waitcnt vmcnt(0)")
    A(f"v_readfirstlane_b32 s{S_T[6]}, v{V_HOLD}")
    A(f"s_sub_u32 s{S_T[5]}, s{S_T[5]}, 1"); A(f"s_cbranch_scc1 {name}_hw_done"); A("s_nop 2")
    A(f"s_cmp_lg_u32 s{S_T[6]}, s{S_T[4]}"); A(f"s_cbranch_scc1 {name}_hw_done")
    A(f"s_sleep {opts.get('hold_sleep', 8)}"); A(f"s_branch {name}_hw")
    o.append(label(f"{name}_hw_done")); o.append(barrier()); o.append(label(f"{name}_hw_end"))
    return o
def hold_release(name):
    return [raw(f"s_or_b32 s{S_T[0]}, s{S_BR}, s{S_W}"), raw(f"s_cmp_eq_u32 s{S_T[0]}, 0"), raw(f"s_cbranch_scc0 {name}_hr"),
            raw(f"v_add_u32 v{V_HOLD}, 1, v{V_HOLD}", kind="valu", rd=[V_HOLD], wr=[V_HOLD]), raw(f"v_mov_b32 v{V_TCH}, 0", kind="valu", wr=[V_TCH]),
            raw("s_mov_b64 exec, 1"),
            raw(f"buffer_store_dword v{V_HOLD}, v{V_TCH}, s[{SRDH}:{SRDH+3}], 0 offen sc1"),
            raw("s_mov_b64 exec, -1"), raw("s_nop 1"), label(f"{name}_hr")]

WOT = "sc"
def wo_touch():
    if WOT == "sc":
        return [valu("v_lshlrev_b32", V_TCH, "7", 0), raw(f"s_lshl_b32 s{S_T[0]}, s{S_W}, 13"), bload(V_DUMMY, 1, V_TCH, SRDWO, S_T[0])]
    o = [nop(0), raw(f"s_mul_i32 s{S_T[0]}, s{S_W}, 5120")]
    o += [bload(V_DUMMY, 1, V_L16, SRDWO, S_T[0], off=j*1024 if j < 4 else 0) for j in range(4)]
    o += [raw(f"s_add_u32 s{S_T[0]}, s{S_T[0]}, 4096"), bload(V_DUMMY, 1, V_L16, SRDWO, S_T[0])]
    return o

def att_prio(name, opts):
    pa, pb = opts.get('prioAttA', opts.get('prioAtt', 0)), opts.get('prioAttB', opts.get('prioAtt', 0))
    if pa == pb: return [raw(f"s_setprio {pa}")]
    return [raw(f"s_cmp_eq_u32 s{S_HALF}, 0"), raw(f"s_cbranch_scc0 {name}_apb"), raw(f"s_setprio {pa}"), raw(f"s_branch {name}_apd"),
            label(f"{name}_apb"), raw(f"s_setprio {pb}"), label(f"{name}_apd")]

def build_head(name, opts, ST):
    global POL, KVROT, ATTVM, XO, LMF, QRD, BAR2, WOT, SPLITB
    SPLITB = opts.get('splitb', 0)
    WOT = opts.get('wot', 'sc')
    BAR2 = opts.get('bar2', False)
    QRD = opts.get('qrd', 19)
    LMF = opts.get('lmfma', False)
    XO = opts.get('x', {})
    ATTVM = opts.get('att_vm', 8)
    POL = opts.get("polite"); KVROT = opts.get("kvrot", True)
    kvflags = opts.get("kvflags", "nt")
    pro = head_prologue(name, opts) + ST(1) + [raw(f"s_mov_b32 s{S_CNT}, 4")]
    qb = [label(f"{name}_qloop")]
    for p in range(2): qb += q_iter(p, 'Q')
    qb += [raw(f"s_sub_u32 s{S_CNT}, s{S_CNT}, 1"), raw(f"s_cmp_lg_u32 s{S_CNT}, 0"), raw(f"s_cbranch_scc1 {name}_qloop")]
    pro2, qb2, st = resolve_loop(pro, qb)
    last = ST(2)
    if opts.get("hold", True):
        if opts.get("hold_at", "q") == "q": last += hold_release(name)
    if opts.get("touch_wo", True) and opts.get("wo_pos") == "q8": last += wo_touch()
    last += q_switch() + q_iter(0, 'K0', kvflags) + q_iter(1, 'K1', kvflags)
    last2, st = resolve(last, st)
    wot = wo_touch() if opts.get("touch_wo", True) and opts.get("wo_pos", "mid") == "mid" else []
    mid = [waitcnt(lgkm=0)] + ST(3) + wot + att_prio(name, opts) + q_convert() + att_prologue(kvflags) + [raw(f"s_mov_b32 s{S_CNT}, 4")]
    body = [label(f"{name}_aloop")]
    for u in range(3): body += h0(u) + h1(u, kvflags)
    body += [raw(f"s_cmp_eq_u32 s{S_CNT}, 1"), raw(f"s_cbranch_scc1 {name}_tail")]
    body += h0(3) + h1(3, kvflags)
    body += [raw(f"s_sub_u32 s{S_CNT}, s{S_CNT}, 1"), raw(f"s_branch {name}_aloop")]
    mid2, st1 = resolve(mid, st)
    _, body2, _ = resolve_loop([], body, st1)
    idx = [i for i, x in enumerate(body2) if x.txt.startswith(f"s_cbranch_scc1 {name}_tail")][0]
    _, sA = resolve(body2, st1.copy(), insert=False)
    _, sB = resolve(body2[:idx+1], sA.copy(), insert=False)
    tail = [label(f"{name}_tail")] + h0(3, tail=True) + h1(3, kvflags, tail=True) + ([] if opts.get("pstamp") else ST(4)) + (wo_touch() if opts.get("touch_wo", True) and opts.get("wo_pos") == "epi" else []) + head_epilogue(name, opts)
    tail2, _ = resolve(tail, sB)
    return pro2 + qb2 + last2 + mid2 + body2 + tail2

WSLOT = 4224; NR = 3
OACC = 16
OBF = 144
OAF = 240
O_OFFO, O_OFFW, O_AW, O_FL, O_PV = [1, 2], 3, 4, 5, 6
OG, OM, ORR, OC = 7, 8, 9, 10
OS_OO = 32; OS_OW = [33, 34, 35, 36]; OS_L = 37
OSRDO, OSRDW, OSRDOUT, OSRDF = 12, 16, 20, 24
OS_OFF, OS_WO0, OS_OO0 = 8, 40, 41
OS_AV, OS_ISS, OS_ROT = 38, 39, 9
OS_A2 = 46
OS_WB = 10
def oacc(rt, Tc): return OACC + (rt * 4 + Tc) * 4
_sel = [0]
def o_select(name, opts):
    _sel[0] += 1
    L = f"{name}_s{_sel[0]}"
    t0, t1 = S_T[0], S_T[1]
    return [raw(f"s_cmp_lg_u32 s{OS_AV}, 0"), raw(f"s_cbranch_scc1 {L}_have"),
         raw(f"s_mov_b32 s{t0}, 32"), raw(f"s_cmp_eq_u32 s{OS_ISS}, -1"), raw(f"s_cbranch_scc1 {L}_addr"),
         raw(f"s_mov_b32 s{S_T[5]}, 200000"),
         label(f"{L}_poll"),
         raw(f"buffer_load_dword v{O_PV}, v{O_FL}, s[{OSRDF}:{OSRDF+3}], 0 offen sc1")] + ([
         raw(f"buffer_load_dword v11, v{O_FL}, s[{OSRDF}:{OSRDF+3}], s{OS_WB} offen sc1"), raw("s_waitcnt vmcnt(0)"),
         raw(f"v_cmp_eq_u32 s[{OS_A2}:{OS_A2+1}], s{S_NONCE}, v11"),
         raw(f"v_cmp_eq_u32 vcc, s{S_NONCE}, v{O_PV}"), raw("s_nop 3"), raw(f"s_and_b64 vcc, vcc, s[{OS_A2}:{OS_A2+1}]")] if opts.get("waitB") else [raw("s_waitcnt vmcnt(0)"),
         raw(f"v_cmp_eq_u32 vcc, s{S_NONCE}, v{O_PV}")]) + [
         raw(f"s_sub_u32 s{S_T[5]}, s{S_T[5]}, 1"), raw(f"s_cselect_b32 s{t1}, -1, 0"), raw("s_nop 2"),
         raw(f"s_and_b32 s{t0}, vcc_lo, vcc_hi"),
         raw(f"s_or_b32 s{t1}, s{t1}, s{t0}"), raw(f"s_andn2_b32 s{OS_AV}, s{t1}, s{OS_ISS}"),
         raw(f"s_cbranch_scc1 {L}_have"), raw(f"s_sleep {opts.get('sleep', 8)}"), raw(f"s_branch {L}_poll"),
         label(f"{L}_have"),
         raw(f"s_mov_b32 s{OS_A2}, s{OS_AV}"), raw(f"s_mov_b32 s{OS_A2+1}, s{OS_AV}"),
         raw(f"s_lshr_b64 s[{OS_A2}:{OS_A2+1}], s[{OS_A2}:{OS_A2+1}], s{OS_ROT}"),
         raw(f"s_ff1_i32_b32 s{t0}, s{OS_A2}"), raw(f"s_add_u32 s{t0}, s{t0}, s{OS_ROT}"), raw(f"s_and_b32 s{t0}, s{t0}, 31"),
         raw(f"s_lshl_b32 s{t1}, 1, s{t0}"), raw(f"s_or_b32 s{OS_ISS}, s{OS_ISS}, s{t1}"), raw(f"s_andn2_b32 s{OS_AV}, s{OS_AV}, s{t1}"),
         label(f"{L}_addr"),
         raw(f"s_lshl_b32 s{t1}, s{t0}, 15"), raw(f"s_add_u32 s{OS_OO}, s{OS_OO0}, s{t1}"),
         raw(f"s_mul_i32 s{t1}, s{t0}, {128*1280}"), raw(f"s_add_u32 s{OS_OW[0]}, s{OS_WO0}, s{t1}"),
         raw(f"s_add_u32 s{OS_OW[1]}, s{OS_OW[0]}, 1280"), raw(f"s_add_u32 s{OS_OW[2]}, s{OS_OW[0]}, 2560"), raw(f"s_add_u32 s{OS_OW[3]}, s{OS_OW[0]}, 3840")]
OFL = 'sc1'
def o_loads(u):
    o = []
    for j in range(8): o.append([bload(OBF + 32*u + 4*j, 4, O_OFFO[j//4], OSRDO, OS_OO, off=(j%4)*1024, flags=OFL)])
    for b in range(4): o.append([m0set(OS_L, u * WSLOT + b * 1056), dma(O_OFFW, OSRDW, OS_OW[b])])
    return o
def o_aread(u, Tc):
    off = u * WSLOT + Tc * 32
    return [dstr(OAF + 4*Tc, O_AW, off), dstr(OAF + 4*Tc + 2, O_AW, off + 512)]

def build_oproj(name, opts, ST):
    global OFL
    OFL = opts.get('oflags', 'sc1')
    P = []
    A = lambda t, **k: P.append(raw(t, **k))
    t0, t1, t2 = S_T[0], S_T[1], S_T[2]
    if opts.get("prioT"): A(f"s_setprio {opts['prioT']}")
    A(f"s_sub_u32 s{S_ID}, s2, 512")
    if opts.get("omap", "xcd") == "xcd":
        A(f"s_and_b32 s3, s{S_ID}, 7"); A(f"s_lshr_b32 s{S_BR}, s3, 2"); A(f"s_lshr_b32 s{OS_OFF}, s{S_ID}, 3")
        A(f"s_mul_i32 s{t1}, s{OS_OFF}, 6554"); A(f"s_lshr_b32 s{t1}, s{t1}, 16")
        A(f"s_and_b32 s{t2}, s3, 3"); A(f"s_mul_i32 s{t2}, s{t2}, 3"); A(f"s_add_u32 s6, s{t2}, s{t1}")
        A(f"s_mul_i32 s{t1}, s{t1}, 10"); A(f"s_sub_u32 s7, s{OS_OFF}, s{t1}")
    else:
        A(f"s_cmp_ge_u32 s{S_ID}, 120"); A(f"s_cselect_b32 s{S_BR}, 1, 0")
        A(f"s_mul_i32 s{t0}, s{S_BR}, 120"); A(f"s_sub_u32 s{S_ID}, s{S_ID}, s{t0}")
        A(f"s_and_b32 s3, s{S_ID}, 7"); A(f"s_lshr_b32 s{OS_OFF}, s{S_ID}, 3")
        A(f"s_mul_i32 s{t1}, s{OS_OFF}, 13108"); A(f"s_lshr_b32 s{t1}, s{t1}, 16")
        A(f"s_lshr_b32 s{t2}, s3, 1"); A(f"s_mul_i32 s{t2}, s{t2}, 3"); A(f"s_add_u32 s6, s{t2}, s{t1}")
        A(f"s_mul_i32 s{t1}, s{t1}, 5"); A(f"s_sub_u32 s7, s{OS_OFF}, s{t1}"); A(f"s_and_b32 s{t2}, s3, 1"); A(f"s_mul_i32 s{t2}, s{t2}, 5"); A(f"s_add_u32 s7, s7, s{t2}")
    A(f"s_mul_i32 s3, s{S_BR}, 40"); A("s_add_u32 s3, s3, 32")
    A(f"s_load_dwordx2 s[{S_PTR}:{S_PTR+1}], s[0:1], s3")
    A(f"s_load_dwordx4 s[{S_PTR+4}:{S_PTR+7}], s[0:1], 80")
    A(f"s_load_dwordx2 s[{S_PTR+8}:{S_PTR+9}], s[0:1], 96")
    P.append(valu("v_lshrrev_b32", OG, "6", 0)); P.append(valu("v_and_b32", 0, "63", 0))
    A("s_nop 0"); A(f"v_readfirstlane_b32 s{S_W}, v{OG}")
    P.append(valu("v_lshrrev_b32", OG, "4", 0)); P.append(valu("v_and_b32", OM, "15", 0))
    P.append(valu("v_bfe_u32", ORR, 0, "2", "2")); P.append(valu("v_and_b32", OC, "3", 0))
    P.append(valu("v_lshlrev_b32", O_OFFO[0], "4", 0)); P.append(valu("v_add_u32", O_OFFO[1], "4096", O_OFFO[0]))
    P.append(valu("v_lshrrev_b32", 16, "3", 0)); P.append(valu("v_mul_u32_u24", 16, "5120", 16))
    P.append(valu("v_and_b32", 17, "7", 0)); P.append(valu("v_lshl_add_u32", O_OFFW, 17, "4", 16))
    A(f"s_mul_i32 s{OS_L}, s{S_W}, {NR*WSLOT}")
    P.append(valu("v_mul_u32_u24", 16, "1056", ORR)); P.append(valu("v_lshl_add_u32", 16, OG, "7", 16)); P.append(valu("v_lshl_add_u32", 16, OC, "3", 16))
    P.append(valu("v_add_u32", O_AW, f"s{OS_L}", 16))
    A(f"s_lshl_b32 s{OS_OO0}, s{S_W}, 13"); A(f"s_mul_i32 s{OS_WO0}, s{S_W}, {32*1280}")
    A("s_waitcnt lgkmcnt(0)")
    A(f"s_mul_i32 s{t0}, s{S_BR}, 12"); A(f"s_add_u32 s{t0}, s{t0}, s6"); A(f"s_lshl_b32 s{t0}, s{t0}, 20")
    srd_build(A, OSRDO, S_PTR+8, t0, 0 if opts.get('no_o') else 1048576)
    A(f"s_lshl_b32 s{t0}, s7, 7"); srd_build(A, OSRDW, S_PTR, t0, 0 if opts.get('no_w') else 4096*1280 - 9*128)
    A(f"s_mul_i32 s{t0}, s6, {128*2560}"); A(f"s_mul_i32 s{t1}, s{S_BR}, 1280"); A(f"s_add_u32 s{t0}, s{t0}, s{t1}")
    A(f"s_lshl_b32 s{t1}, s7, 7"); A(f"s_add_u32 s{t0}, s{t0}, s{t1}")
    srd_build(A, OSRDOUT, S_PTR+4, t0, 127*2560 + 128)
    srd_build(A, SRDD, S_PTR+6, None, 256)
    if opts.get("linger"):
        A(f"s_cmp_eq_u32 s{S_W}, 0"); A(f"s_cbranch_scc0 {name}_nocnt")
        P.append(valu("v_mov_b32", 16, "128")); P.append(valu("v_mov_b32", 17, "1"))
        A("s_mov_b64 exec, 1"); A(f"buffer_atomic_add v17, v16, s[{SRDD}:{SRDD+3}], 0 offen sc1"); A("s_mov_b64 exec, -1")
        P.append(label(f"{name}_nocnt"))
    A(f"s_mov_b32 s{t0}, 0")
    A(f"s_cmp_eq_u32 s{S_W}, 0"); A(f"s_cbranch_scc0 {name}_nw")
    P.extend(poll(f"{name}_pn", SRDD, t0, 1, 'ge', O_FL, sleep=8))
    P.append(I(f"v_mov_b32 v{O_PV}, s{S_T[6]}", wr=[O_PV], kind="valu")); P.append(valu("v_mov_b32", O_FL, str(FBOFF)))
    P.append(dsw32(O_FL, O_PV)); P.append(waitcnt(lgkm=0))
    P.append(label(f"{name}_nw"))
    P.append(barrier())
    P.append(valu("v_mov_b32", O_FL, str(FBOFF))); P.append(dsr32(O_PV, O_FL)); P.append(waitcnt(lgkm=0))
    A(f"v_readfirstlane_b32 s{S_NONCE}, v{O_PV}"); A("s_nop 3")
    A(f"s_mul_i32 s{t0}, s6, 43691"); A(f"s_lshr_b32 s{t0}, s{t0}, 16")
    A(f"s_lshl_b32 s{t1}, s6, 7"); A(f"s_add_u32 s{t1}, s{t1}, 127"); A(f"s_mul_i32 s{t1}, s{t1}, 21846"); A(f"s_lshr_b32 s{t1}, s{t1}, 22")
    A(f"s_sub_u32 s{t1}, s{t1}, s{t0}"); A(f"s_mul_i32 s{t1}, s{t1}, 384")
    A(f"s_lshl_b32 s{t2}, s{S_BR}, 3"); A(f"s_add_u32 s{t0}, s{t0}, s{t2}"); A(f"s_mul_i32 s{t0}, s{t0}, 384")
    A(f"s_mul_i32 s{t2}, s7, 21846"); A(f"s_lshr_b32 s{t2}, s{t2}, 16"); A(f"s_mul_i32 s{t2}, s{t2}, 3"); A(f"s_sub_u32 s{t2}, s7, s{t2}")
    A(f"s_lshl_b32 s{t2}, s{t2}, 7"); A(f"s_add_u32 s{t0}, s{t0}, s{t2}"); A(f"s_add_u32 s{t0}, s{t0}, {FLAGOFF}")
    srd_build(A, OSRDF, S_PTR+8, t0, 512 + (8*384 if opts.get("waitB") else 0))
    A(f"s_cmp_eq_u32 s{S_BR}, 0"); A(f"s_cselect_b32 s{OS_WB}, {8*384}, 0")
    P.append(valu("v_and_b32", O_FL, "31", 0)); P.append(valu("v_lshlrev_b32", O_FL, "2", O_FL))
    P.append(valu("v_lshrrev_b32", 16, "5", 0)); P.append(valu("v_mul_lo_u32", 16, f"s{t1}", 16)); P.append(valu("v_add_u32", O_FL, O_FL, 16))
    A(f"s_mov_b32 s{OS_AV}, 0"); A(f"s_mov_b32 s{OS_ISS}, 0")
    if opts.get("trot"):
        A(f"s_memrealtime s[{OS_A2}:{OS_A2+1}]"); A("s_waitcnt lgkmcnt(0)")
        A(f"s_sub_u32 s{t0}, s{OS_A2}, s{S_NONCE}"); A(f"s_mul_i32 s{t0}, s{t0}, {65536 // opts['trot']}"); A(f"s_lshr_b32 s{t0}, s{t0}, 16")
        A(f"s_and_b32 s{t1}, s{OS_OFF}, {opts.get('rotmask', 3)}"); A(f"s_add_u32 s{t0}, s{t0}, s{t1}"); A(f"s_and_b32 s{OS_ROT}, s{t0}, 31")
    else:
        A(f"s_and_b32 s{OS_ROT}, s{OS_OFF}, {opts.get('rotmask', 7)}")
    for i in range(128): P.append(valu("v_mov_b32", OACC + i, "0"))
    P.extend(ST(1))
    for u in range(2):
        P.extend(o_select(name, opts))
        for grp in o_loads(u): P.extend(grp if len(grp) == 1 else [grp[0], nop(0)] + grp[1:])
    P.append(waitcnt(vm=12))
    for Tc in range(4): P.extend(o_aread(0, Tc))
    A(f"s_mov_b32 s{S_CNT}, 10")
    body = [label(f"{name}_loop")]
    for u in range(3):
        mf = [mfma16(oacc(rt, Tc), OAF + 4*Tc, OBF + 32*u + 4*rt, oacc(rt, Tc)) for Tc in range(4) for rt in range(8)]
        slots = [[] for _ in mf]
        slots[0] += o_select(name, opts)
        nbefore = 0
        for j, grp in enumerate(o_loads((u + 2) % 3)):
            k = 1 + (j * opts.get('ospread', 22)) // 12
            if len(grp) == 1:
                slots[k] += grp; ki = k
            else:
                slots[k].append(grp[0]); slots[k+1] += grp[1:]; ki = k + 1
            if ki < 24: nbefore += 1
        slots[24].insert(0, waitcnt(vm=nbefore))
        n = (u + 1) % 3
        slots[24] += o_aread(n, 0); slots[25] += o_aread(n, 1); slots[26] += o_aread(n, 2); slots[31] += o_aread(n, 3)
        body += emit(mf, slots)
    if opts.get("ostamp"):
        for cnt, idx in ((8, 2), (4, 3)):
            body += [raw(f"s_cmp_eq_u32 s{S_CNT}, {cnt}"), raw(f"s_cbranch_scc0 {name}_os{idx}")] + ST(idx) + [label(f"{name}_os{idx}")]
    body += [raw(f"s_sub_u32 s{S_CNT}, s{S_CNT}, 1"), raw(f"s_cmp_lg_u32 s{S_CNT}, 0"), raw(f"s_cbranch_scc1 {name}_loop")]
    P2, body2, st = resolve_loop(P, body)
    E = []
    A = lambda t, **k: E.append(raw(t, **k))
    for u in range(2):
        mf = [mfma16(oacc(rt, Tc), OAF + 4*Tc, OBF + 32*u + 4*rt, oacc(rt, Tc)) for Tc in range(4) for rt in range(8)]
        slots = [[] for _ in mf]
        if u == 0:
            slots[24].append(waitcnt(vm=0))
            slots[24] += o_aread(1, 0); slots[25] += o_aread(1, 1); slots[26] += o_aread(1, 2); slots[31] += o_aread(1, 3)
        E += emit(mf, slots)
    E.extend(ST(4 if opts.get("ostamp") else 2))
    E.append(valu("v_lshlrev_b32", 11, "4", 0))
    A(f"s_lshl_b32 s{t0}, s{S_W}, 14"); E.append(valu("v_add_u32", 12, f"s{t0}", 11))
    A(f"s_lshl_b32 s{t0}, s{S_W}, 12"); E.append(valu("v_add_u32", 13, f"s{t0}", 11))
    E.append(valu("v_and_b32", 14, "1", OG)); E.append(valu("v_lshlrev_b32", 14, "1", 14)); E.append(valu("v_lshrrev_b32", 15, "1", OG))
    E.append(valu("v_or_b32", 14, 14, 15)); E.append(valu("v_lshlrev_b32", 14, "4", 14))
    E.append(valu("v_mul_u32_u24", 15, "2560", OM)); E.append(valu("v_add_u32", 14, 14, 15))
    A(f"s_mul_i32 s{t0}, s{S_W}, {16*2560}"); A(f"s_add_u32 s{t1}, s{t0}, {64*2560}")
    E.append(waitcnt(vm=0, lgkm=0)); E.append(barrier())
    for r in range(2):
        for tl in range(16): E.append(dsw128(12, OACC + (16*r + tl)*4, tl*1024))
        E.append(waitcnt(lgkm=0)); E.append(barrier())
        for t in range(4):
            for p in range(4): E.append(ds128(144 + (p*4 + t)*4, 13, p*16384 + t*1024))
        for pr in range(2):
            for h in range(2):
                t = 2*pr + h
                for i in range(4):
                    a = 144 + t*4 + i
                    E.append(valu("v_add_f32", a, a, a + 16)); E.append(valu("v_add_f32", a + 32, a + 32, a + 48))
                for i in range(4):
                    a = 144 + t*4 + i
                    E.append(valu("v_add_f32", a, a, a + 32))
            a = 144 + 2*pr*4; b = a + 4; q = 240 + (r*2 + pr)*4
            E += [cvtpk(q, a, a+1), cvtpk(q+1, a+2, a+3), cvtpk(q+2, b, b+1), cvtpk(q+3, b+2, b+3), perm16(q, q+2), perm16(q+1, q+3)]
            E.append(bstore(q, 4, 14, OSRDOUT, t0 if r == 0 else t1, off=pr*64, flags=opts.get('outflags', '')))
        if r == 0: E.append(waitcnt(lgkm=0)); E.append(barrier())
    E2, _ = resolve(E, st)
    return P2 + body2 + E2

def build(name, stamps=False, **opts):
    ST = (lambda i, real=False: stamp(i, real)) if stamps else (lambda i, real=False: [])
    out = [label(name)] + ST(0) + ST(6, True)
    out += [raw("s_cmp_ge_u32 s2, 752"), raw(f"s_cbranch_scc1 {name}_end"), raw("s_cmp_ge_u32 s2, 512"), raw(f"s_cbranch_scc1 {name}_oproj")]
    if opts.get("skip_heads") == "holdB":
        out += [raw("s_cmp_lt_u32 s2, 256"), raw(f"s_cbranch_scc1 {name}_end"), raw("s_mov_b32 s4, 40"), label(f"{name}_hb"), raw("s_sleep 32"),
                raw("s_sub_u32 s4, s4, 1"), raw("s_cmp_lg_u32 s4, 0"), raw(f"s_cbranch_scc1 {name}_hb"), raw("s_endpgm")]
    elif opts.get("skip_heads"): out += [raw("s_endpgm")]
    fin_h = []; fin_o = []
    if stamps:
        fin_h = [waitcnt(vm=0), raw("s_mov_b64 exec, -1")] + ([] if opts.get("pstamp") else ST(5)) + ST(7, True) + stamp_dump(8, S_PTR+8, S_W, 64<<20, 16, nwaves_shift=2)
        fin_o = [waitcnt(vm=0)] + ([] if opts.get("ostamp") else ST(3) + ST(4)) + ST(5) + ST(7, True) + stamp_dump(8, S_PTR+8, S_W, 64<<20, 16, nwaves_shift=2)
    out += build_head(name + "_h", opts, ST) + fin_h + [raw("s_endpgm")] + head_fallback(name + "_h")
    out += [label(f"{name}_oproj")] + build_oproj(name + "_o", opts, ST) + fin_o
    out += [label(f"{name}_end"), raw("s_endpgm")]
    return out
```

```python
from asmlib import *

QSLOT = 40960; XOFF = 16384
ASLOT = 16896; VOFF = 8448
ACC = 16; QF = 112
SX, SY, SZ = 160, 172, 184
PB = 196; KF = 214; VF = 230
QA = [160, 204]; QB = [192, 236]
V_OFFA, V_OFFB, V_L16 = 1, 2, 3
A_W = [4, 5, 6, 7, 8, 9, 10, 11]; A_X = [12, 15]; A_K = 13; A_V = 14
LSUM = [4, 5, 6]; VT = [7, 8, 9, 10]
ONES = 250
LACC = [4, 8, 246]
LMF = False
G, M, RR, C = 248, 249, 250, 251
V_DUMMY = 255; V_TCH = 254
S_W, S_BR, S_B, S_H = 4, 5, 6, 7
S_HALF = 79
SRDA, SRDB, SRDK, SRDV, SRDO, SRDD = 12, 16, 20, 24, 28, 64
S_O = [32, 33, 34, 35]; S_L = [38, 39, 40, 41]; S_CNT = 42
S_OW, S_OX, S_LW, S_LX, S_SIG, S_TT = 8, 9, 36, 37, 10, 11
S_KC, S_VC, S_KB, S_KROT = 8, 9, 36, 37
S_T = [43, 44, 45, 46, 47, 48, 49]
S_SC = 50
S_PTR = 52
SRDWO = 68
S_ID = 72
S_DBG = 74
FLAGOFF = 32 << 20
S_NONCE = 73

def acc(T, qt): return ACC + (T * 3 + qt) * 4
def qf(qt, c): return QF + (qt * 4 + c) * 4

def emit(mf, slots):
    out = []
    for m, fs in zip(mf, slots):
        out.append(m)
        for f in fs:
            if isinstance(f, list): out.extend(f)
            else: out.append(f)
    return out
def spread(slots, items, lo, hi):
    n = len(items); m = hi - lo
    for i, it in enumerate(items): slots[lo + (i * m) // n].append(it)

def q_addr():
    t0 = S_T[0]
    return [salu(f"s_lshl_b32 s{t0}, s{S_SIG}, 19"), salu(f"s_add_u32 s{S_O[0]}, s{S_OW}, s{t0}"),
            salu(f"s_lshl_b32 s{t0}, s{S_SIG}, 7"), salu(f"s_add_u32 s{S_O[1]}, s{S_OX}, s{t0}"),
            salu(f"s_add_u32 s{S_SIG}, s{S_SIG}, 1"), salu(f"s_cmp_eq_u32 s{S_SIG}, 10"), salu(f"s_cselect_b32 s{S_SIG}, 0, s{S_SIG}")]
def q_dma(slot):
    out = []
    for i in range(4):
        g = [m0set(S_LW, slot * QSLOT + i * 4096)]
        if i == 0: g += [dma(V_OFFA, SRDA, S_O[0])]
        else: g += [salu(f"s_add_u32 s{S_TT}, s{S_O[0]}, {i*16*8192}"), dma(V_OFFA, SRDA, S_TT)]
        out.append(g)
    for i in range(6):
        g = [m0set(S_LX, slot * QSLOT + i * 4096)]
        if i == 0: g += [dma(V_OFFB, SRDB, S_O[1])]
        else: g += [salu(f"s_add_u32 s{S_TT}, s{S_O[1]}, {i*32*1280}"), dma(V_OFFB, SRDB, S_TT)]
        out.append(g)
    return out
KVROT = True
def kv_addr(which):
    c = S_KC if which == 0 else S_VC
    a, b = (S_O[0], S_O[1]) if which == 0 else (S_O[2], S_O[3])
    t = S_TT
    return [salu(f"s_add_u32 s{t}, s{c}, s{S_KROT}"), salu(f"s_and_b32 s{t}, s{t}, 15"), salu(f"s_cmp_lt_u32 s{c}, 16"),
            salu(f"s_cselect_b32 s{t}, s{t}, 16"), salu(f"s_lshl_b32 s{t}, s{t}, 13"), salu(f"s_add_u32 s{a}, s{t}, s{S_KB}"),
            salu(f"s_add_u32 s{b}, s{a}, 4096"), salu(f"s_add_u32 s{c}, s{c}, 1")]
def kv_dma(kslot, vslot, flags):
    out = []
    for j in range(4):
        sl = kslot if j < 2 else vslot
        if KVROT:
            pre = kv_addr(j // 2) if j % 2 == 0 else []
            post = nop(0)
        else:
            pre = []
            post = salu(f"s_add_u32 s{S_O[j]}, s{S_O[j]}, 8192")
        out.append([pre + [m0set(S_L[j], sl * ASLOT)], dma(V_L16, SRDK if j < 2 else SRDV, S_O[j], flags), post])
    return out

def q_frag_reads(slot, e, st):
    out = []
    for qt in range(3): out.append(ds128(QB[st] + 4*qt, A_X[e], slot * QSLOT + qt * 2048))
    for T in range(8):
        o = slot * QSLOT + e * 8192
        out.append(dstr(QA[st] + 4*T, A_W[T], o)); out.append(dstr(QA[st] + 4*T + 2, A_W[T], o + 1024))
    return out

_pl = [0]
def polite(n):
    _pl[0] += 1
    lab = f"Lpol{_pl[0]}"
    return [raw(f"s_cmp_eq_u32 s{S_BR}, 0"), raw(f"s_cbranch_scc1 {lab}"), waitcnt(vm=n), label(lab)]
POL = None
QRD = 19
def q_half(st, reads, extra):
    mf = [mfma16(acc(T, qt), QA[st] + 4*T, QB[st] + 4*qt, acc(T, qt)) for T in range(8) for qt in range(3)]
    slots = [[] for _ in mf]
    for i, rd in enumerate(reads): slots[(i * QRD) // 19 if i < 19 else 23].append(rd)
    n = len(extra)
    for j, grp in enumerate(extra):
        k = (j * 22) // max(n, 1)
        slots[k].append(grp[0]); slots[k+1] += [x for x in grp[1:] if getattr(x, "kind", "") != "nop"]
    return emit(mf, slots)

def q_iter(p, kind, kvflags=""):
    out = q_half(0, q_frag_reads(p, 1, 1), [])
    out += [waitcnt(vm=0, lgkm=0) if kind != 'K1' else waitcnt(lgkm=0), barrier()]
    if kind == 'Q':
        extra = [q_addr()] + q_dma(p)
        if POL:
            for pos, n in POL: extra[pos] = extra[pos] + polite(n)
    elif kind == 'K0': extra = kv_dma(0, 0, kvflags) + kv_dma(1, 1, kvflags)
    else: extra = kv_dma(2, 2, kvflags) + kv_dma(3, 3, kvflags)
    reads = q_frag_reads(1 - p, 0, 0) if kind != 'K1' else []
    out += q_half(1, reads, extra)
    return out

def q_switch():
    o = []
    A = lambda t: o.append(raw(t))
    t0, t1 = S_T[0], S_T[1]
    A(f"s_lshr_b32 s{t0}, s{S_W}, 1"); A(f"s_lshl_b32 s{t0}, s{t0}, 2"); A(f"s_and_b32 s{t1}, s{S_W}, 1"); A(f"s_add_u32 s{t0}, s{t0}, s{t1}")
    A(f"s_lshl_b32 s{t0}, s{t0}, 4"); A(f"s_lshl_b32 s{t1}, s{S_W}, 10"); A(f"s_add_u32 s{S_L[0]}, s{t0}, s{t1}")
    A(f"s_add_u32 s{S_L[1]}, s{S_L[0]}, {4096+128}")
    A(f"s_mul_i32 s{t0}, s{S_W}, 1056"); A(f"s_add_u32 s{S_L[2]}, s{t0}, {VOFF}"); A(f"s_add_u32 s{S_L[3]}, s{S_L[2]}, {4*1056}")
    A(f"s_lshl_b32 s{S_KB}, s{S_W}, 10"); A(f"s_mov_b32 s{S_KC}, 0"); A(f"s_mov_b32 s{S_VC}, 0")
    if KVROT:
        A(f"s_lshr_b32 s{S_KROT}, s{S_ID}, 3"); A(f"s_add_u32 s{S_KROT}, s{S_KROT}, s{S_ID}"); A(f"s_and_b32 s{S_KROT}, s{S_KROT}, 15")
    else:
        A(f"s_mov_b32 s{S_O[0]}, s{S_KB}"); A(f"s_add_u32 s{S_O[1]}, s{S_KB}, 4096"); A(f"s_mov_b32 s{S_O[2]}, s{S_O[0]}"); A(f"s_mov_b32 s{S_O[3]}, s{S_O[1]}")
    return o

def q_convert():
    o = []
    for qt in range(3):
        for T in range(8):
            a = acc(T, qt)
            o.append(pkmul(a, a, f"s[{S_SC}:{S_SC+1}]")); o.append(pkmul(a+2, a+2, f"s[{S_SC}:{S_SC+1}]"))
    for qt in range(3):
        for c in range(4):
            q = qf(qt, c); a = acc(2*c, qt); b = acc(2*c+1, qt)
            o += [cvtpk(q, a, a+1), cvtpk(q+1, a+2, a+3), cvtpk(q+2, b, b+1), cvtpk(q+3, b+2, b+3)]
    for qt in range(3):
        for c in range(4):
            q = qf(qt, c)
            o += [perm16(q, q+2), perm16(q+1, q+3)]
    for i in range(96): o.append(valu("v_mov_b32", ACC + i, "0"))
    if LMF:
        for qt in range(3):
            for i in range(4): o.append(valu("v_mov_b32", LACC[qt] + i, "0"))
        for i in range(4): o.append(valu("v_mov_b32", ONES + i, "0x3f803f80"))
    else:
        for r in LSUM: o.append(valu("v_mov_b32", r, "0"))
    return o

def sreg(j, Tk, qt):
    if Tk == 0: return SX + 4*qt
    return (SY if j % 2 == 0 else SZ) + 4*qt
def preg(j, part, qt):
    base = PB + 6*qt
    if part == 1: return base + 2
    return base + (0 if j % 2 == 0 else 4)
def pop(j, qt): return PB + 6*qt + (0 if j % 2 == 0 else 2)
def k_read(j, i): return ds128(KF + 4*(i % 4), A_K, (j % 4) * ASLOT + (i % 4) * 64 + (i // 4) * 512)
def v_read(j, T):
    o = (j % 4) * ASLOT + T * 32
    d = VF + 4*(T % 4)
    if j % 2 == 0: return [dstr(d, A_V, o), dstr(d+2, A_V, o + 512)]
    return [dstr(d+2, A_V, o), dstr(d, A_V, o + 512)]
def softmax_ops(j, part):
    if XO.get("nosm"): return [nop(0)]
    ops = []
    for qt in range(3):
        s = sreg(j, part, qt); p = preg(j, part, qt)
        ops.append([vexp(s, s), vexp(s+1, s+1), vexp(s+2, s+2), vexp(s+3, s+3),
                    valu("v_add_f32", LSUM[qt], LSUM[qt], s), cvtpk(p, s, s+1), valu("v_add_f32", LSUM[qt], LSUM[qt], s+1),
                    valu("v_add_f32", LSUM[qt], LSUM[qt], s+2), cvtpk(p+1, s+2, s+3), valu("v_add_f32", LSUM[qt], LSUM[qt], s+3)])
    seq = list(ops[0][:4])
    for qt in range(1, 3):
        e = ops[qt][:4]; f = ops[qt-1][4:]
        seq += [e[0], f[0], f[1], e[1], f[2], e[2], f[3], f[4], e[3], f[5]]
    seq += ops[2][4:]
    if LMF: seq = [x for x in seq if not x.txt.startswith("v_add_f32")]
    if XO.get("noadd"): seq = [x for x in seq if not x.txt.startswith("v_add_f32")]
    if XO.get("noexp"): seq = [x for x in seq if not x.txt.startswith("v_exp")]
    return seq
def qk_mfmas(j):
    mf = []
    for Tk in range(2):
        for c in range(4):
            i = Tk*4 + c
            for qt in range(3):
                s = sreg(j, Tk, qt)
                mf.append(mfma16(s, KF + 4*(i % 4), qf(qt, c), None if c == 0 else s))
    return mf
def pv_mfmas(j):
    return [mfma16(acc(T, qt), VF + 4*(T % 4), pop(j, qt), acc(T, qt)) for T in range(8) for qt in range(3)]
def l_mfmas(j):
    return [mfma16(LACC[qt], ONES, pop(j, qt), LACC[qt]) for qt in range(3)]

def h0(s, tail=False):
    sm = softmax_ops(s, 1)
    vr_ = [v_read(s, T) for T in range(4)]
    if tail:
        out = []
        for v in vr_: out += v
        return out + sm
    mf = qk_mfmas(s + 1)
    slots = [[] for _ in mf]
    for i in range(5): slots[3*i].append(k_read(s + 1, i + 3))
    for T in range(4): slots[14 + 2*T].append(vr_[T][0]); slots[15 + 2*T].append(vr_[T][1])
    spread(slots, sm, 0, 23)
    return emit(mf, slots)
ATTVM = 8
XO = {}
BAR2 = False
SPLITB = 0
def h1(s, kvflags, tail=False):
    mf = pv_mfmas(s)
    slots = [[] for _ in mf]
    for T in range(4, 8):
        v = v_read(s, T); slots[3*(T-4) + 2].append(v[0]); slots[3*(T-4) + 3].append(v[1])
    if not tail:
        spread(slots, softmax_ops(s + 1, 0), 0, 23)
        if BAR2:
            if s % 2 == 0:
                slots[16].append([waitcnt(vm=0, lgkm=0), barrier()])
                grps = kv_dma(s % 4, (s + 3) % 4, kvflags)
                if not SPLITB: grps += kv_dma((s + 1) % 4, s % 4, kvflags)
            else:
                grps = kv_dma(s % 4, (s - 1) % 4, kvflags) if SPLITB else []
            for j, grp in enumerate(grps):
                k = (16 + j) if (s % 2 == 0 or SPLITB != 2) else (4 + 3*j)
                slots[k].append(grp[0]); slots[k].append(grp[2] if grp[2].kind == "nop" else nop(0)); slots[k].append(grp[1])
                if grp[2].kind != "nop": slots[k].append(grp[2])
            for i in range(3): slots[17 + i].append(k_read(s + 2, i))
        else:
          if XO.get("nobar"): slots[16].append([waitcnt(lgkm=0)])
          else: slots[16].append([waitcnt(vm=ATTVM, lgkm=0), barrier()])
          for i in range(3): slots[17 + i].append(k_read(s + 2, i))
          if not XO.get("nodma"):
            for j, grp in enumerate(kv_dma((s + 1) % 4, s % 4, kvflags)):
              slots[17 + j].append(grp[0]); slots[18 + j].append(grp[1])
              if grp[2].kind != "nop": slots[19 + j].append(grp[2])
    if LMF:
        lm = l_mfmas(s); slots[2].append(lm[0]); slots[8].append(lm[1]); slots[13].append(lm[2])
    return emit(mf, slots)
def att_prologue(kvflags):
    o = [raw(f"s_sub_u32 s{S_VC}, s{S_VC}, 1")] if KVROT else [raw(f"s_sub_u32 s{S_O[2]}, s{S_O[2]}, 8192"), raw(f"s_sub_u32 s{S_O[3]}, s{S_O[3]}, 8192")]
    o += [waitcnt(vm=14), barrier()]
    for i in range(3): o.append(k_read(0, i))
    mf = qk_mfmas(0)
    slots = [[] for _ in mf]
    for i in range(5): slots[3*i].append(k_read(0, i + 3))
    o += emit(mf, slots)
    o += [waitcnt(vm=8, lgkm=0), barrier()]
    for i in range(3): o.append(k_read(1, i))
    if not BAR2:
        for grp in kv_dma(0, 3, kvflags): o += grp[0] + [nop(0), grp[1], grp[2]]
    o += softmax_ops(0, 0)
    return o

def srd_build(A, dst, ptr, offreg, nrec):
    if offreg is None:
        A(f"s_mov_b32 s{dst}, s{ptr}"); A(f"s_and_b32 s{dst+1}, s{ptr+1}, 0xffff")
    else:
        A(f"s_add_u32 s{dst}, s{ptr}, s{offreg}"); A(f"s_addc_u32 s{dst+1}, s{ptr+1}, 0"); A(f"s_and_b32 s{dst+1}, s{dst+1}, 0xffff")
    A(f"s_mov_b32 s{dst+2}, {nrec}"); A(f"s_mov_b32 s{dst+3}, 0x20000")

def head_prologue(name, opts):
    P = []
    A = lambda t, **k: P.append(raw(t, **k))
    t0, t1, t2 = S_T[0], S_T[1], S_T[2]
    A(f"s_lshr_b32 s{S_HALF}, s2, 8"); A(f"s_and_b32 s{S_ID}, s2, 255")
    if opts.get("split", "branch") == "head":
        A(f"s_bfe_u32 s{S_BR}, s{S_ID}, 0x10002")
    else:
        A(f"s_mov_b32 s{S_BR}, s{S_HALF}")
    A(f"s_mul_i32 s3, s{S_BR}, 40")
    A(f"s_load_dwordx4 s[{S_PTR}:{S_PTR+3}], s[0:1], s3")
    A(f"s_add_u32 s{t1}, s3, 16"); A(f"s_load_dwordx4 s[{S_PTR+4}:{S_PTR+7}], s[0:1], s{t1}")
    A(f"s_load_dwordx2 s[{S_PTR+8}:{S_PTR+9}], s[0:1], 96")
    A(f"s_load_dwordx2 s[{S_DBG}:{S_DBG+1}], s[0:1], 88")
    A(f"s_add_u32 s{t1}, s3, 32"); A(f"s_load_dwordx2 s[{S_PTR+10}:{S_PTR+11}], s[0:1], s{t1}")
    A(f"s_load_dwordx2 s[76:77], s[0:1], 32")
    if opts.get("split", "branch") == "head":
        A(f"s_bfe_u32 s{S_B}, s{S_ID}, 0x10001"); A(f"s_lshl_b32 s{S_B}, s{S_B}, 2"); A(f"s_lshr_b32 s{t1}, s{S_ID}, 6"); A(f"s_add_u32 s{S_B}, s{S_B}, s{t1}")
        A(f"s_and_b32 s{S_H}, s{S_ID}, 1"); A(f"s_lshl_b32 s{S_H}, s{S_H}, 3"); A(f"s_bfe_u32 s{t1}, s{S_ID}, 0x30003"); A(f"s_add_u32 s{S_H}, s{S_H}, s{t1}")
        A(f"s_lshl_b32 s{t1}, s{S_HALF}, 4"); A(f"s_add_u32 s{S_H}, s{S_H}, s{t1}")
    else:
        A(f"s_and_b32 s3, s{S_ID}, 7"); A(f"s_lshr_b32 s{t0}, s{S_ID}, 3")
        A(f"s_lshr_b32 s{S_B}, s3, 2"); A(f"s_lshl_b32 s{S_B}, s{S_B}, 2"); A(f"s_lshr_b32 s{t1}, s{t0}, 3"); A(f"s_add_u32 s{S_B}, s{S_B}, s{t1}")
        A(f"s_and_b32 s{S_H}, s3, 3"); A(f"s_lshl_b32 s{S_H}, s{S_H}, 3"); A(f"s_and_b32 s{t1}, s{t0}, 7"); A(f"s_add_u32 s{S_H}, s{S_H}, s{t1}")
    P.append(valu("v_lshrrev_b32", G, "6", 0)); P.append(valu("v_and_b32", 0, "63", 0))
    A("s_nop 0"); A(f"v_readfirstlane_b32 s{S_W}, v{G}")
    P.append(valu("v_lshrrev_b32", G, "4", 0)); P.append(valu("v_and_b32", M, "15", 0))
    P.append(valu("v_bfe_u32", RR, 0, "2", "2")); P.append(valu("v_and_b32", C, "3", 0))
    P.append(valu("v_lshlrev_b32", V_L16, "4", 0))
    T0, T1 = 16, 17
    A(f"s_lshr_b32 s{t0}, s{S_W}, 1"); A(f"s_and_b32 s{t0}, s{t0}, 1"); A(f"s_lshl_b32 s{t0}, s{t0}, 2")
    P.append(valu("v_or_b32", T0, f"s{t0}", G))
    P.append(valu("v_lshrrev_b32", T1, "1", M)); P.append(valu("v_xor_b32", T0, T0, T1))
    P.append(valu("v_lshlrev_b32", T0, "5", T0))
    P.append(valu("v_and_b32", T1, "1", M)); P.append(valu("v_lshl_add_u32", T0, T1, "4", T0))
    P.append(valu("v_lshl_add_u32", V_OFFA, G, "13", T0))
    A(f"s_and_b32 s{t0}, s{S_W}, 1"); A(f"s_lshl_b32 s{t0}, s{t0}, 2")
    P.append(valu("v_add_u32", T0, f"s{t0}", G))
    P.append(valu("v_and_b32", T1, "7", 0)); P.append(valu("v_xor_b32", T1, T1, T0)); P.append(valu("v_lshlrev_b32", T1, "4", T1))
    P.append(valu("v_lshrrev_b32", T0, "3", 0)); P.append(valu("v_mul_u32_u24", T0, "1280", T0)); P.append(valu("v_add_u32", V_OFFB, T0, T1))
    A(f"s_lshl_b32 s{S_OW}, s{S_W}, 15"); A(f"s_mul_i32 s{S_OX}, s{S_W}, {8*1280}")
    A(f"s_lshl_b32 s{S_LW}, s{S_W}, 10"); A(f"s_add_u32 s{S_LX}, s{S_LW}, {XOFF}")
    if opts.get("rot", False):
        A(f"s_and_b32 s{t0}, s{S_H}, 7"); A(f"s_lshr_b32 s{t1}, s{t0}, 2"); A(f"s_add_u32 s{t0}, s{t0}, s{t1}")
        A(f"s_and_b32 s{t1}, s{S_B}, 3"); A(f"s_mul_i32 s{t1}, s{t1}, 5"); A(f"s_add_u32 s{t1}, s{t1}, 1"); A(f"s_lshr_b32 s{t1}, s{t1}, 1")
        A(f"s_add_u32 s{S_SIG}, s{t0}, s{t1}")
        A(f"s_cmp_ge_u32 s{S_SIG}, 10"); A(f"s_cselect_b32 s{t0}, 10, 0"); A(f"s_sub_u32 s{S_SIG}, s{S_SIG}, s{t0}")
    else:
        A(f"s_mov_b32 s{S_SIG}, 0")
    A("s_waitcnt lgkmcnt(0)")
    if opts.get("pstamp"): P.extend(stamp(4))
    px, pk, pv, pw, pws = S_PTR, S_PTR+2, S_PTR+4, S_PTR+6, S_PTR+8
    srd_build(A, SRDD, S_DBG, None, 256)
    A(f"s_or_b32 s{t0}, s2, s{S_W}"); A(f"s_cmp_eq_u32 s{t0}, 0"); A(f"s_cbranch_scc0 {name}_nononce")
    A(f"s_memrealtime s[{S_T[3]}:{S_T[4]}]"); A("s_waitcnt lgkmcnt(0)"); A(f"s_or_b32 s{t0}, s{S_T[3]}, 1")
    P.append(valu("v_mov_b32", V_DUMMY, f"s{t0}")); P.append(valu("v_mov_b32", V_TCH, "0"))
    A(f"buffer_store_dword v{V_DUMMY}, v{V_TCH}, s[{SRDD}:{SRDD+3}], 0 offen sc1")
    P.append(label(f"{name}_nononce"))
    if opts.get("hold", True): hold_setup(name, opts, A, P)
    A(f"s_lshl_b32 s{t0}, s{S_H}, 8"); srd_build(A, SRDA, pw, t0, 640*8192 - 31*256)
    A(f"s_mul_i32 s{t0}, s{S_B}, 245760"); srd_build(A, SRDB, px, t0, 245760)
    P.extend(q_addr())
    for grp in q_dma(0): P.extend([grp[0], nop(0)] + grp[1:])
    if opts.get("pstamp"): P.extend(stamp(5))
    pa, pb = opts.get('prioA', 0), opts.get('prioBq', 0)
    if pa or pb:
        A(f"s_cmp_eq_u32 s{S_HALF}, 0"); A(f"s_cbranch_scc0 {name}_prb"); A(f"s_setprio {pa}"); A(f"s_branch {name}_noprio")
        P.append(label(f"{name}_prb")); A(f"s_setprio {pb}"); P.append(label(f"{name}_noprio"))
    A(f"s_lshl_b32 s{t1}, s{S_B}, 5"); A(f"s_add_u32 s{t1}, s{t1}, s{S_H}"); A(f"s_lshl_b32 s{t0}, s{t1}, 17")
    srd_build(A, SRDK, pk, t0, 131072); srd_build(A, SRDV, pv, t0, 131072)
    A(f"s_mul_i32 s{t1}, s{S_BR}, {12*1048576}"); A(f"s_lshl_b32 s{t2}, s{S_H}, 15"); A(f"s_add_u32 s{t0}, s{t1}, s{t2}")
    srd_build(A, SRDO, pws, t0, 12*1048576 - 31*32768)
    if opts.get("split", "branch") == "head":
        A(f"s_lshr_b32 s{t0}, s{S_ID}, 3"); A(f"s_lshl_b32 s{t0}, s{t0}, 2"); A(f"s_and_b32 s{t1}, s{S_ID}, 3"); A(f"s_add_u32 s{t0}, s{t0}, s{t1}")
        A(f"s_lshl_b32 s{t1}, s{S_HALF}, 7"); A(f"s_add_u32 s{t0}, s{t0}, s{t1}"); A(f"s_mul_i32 s{t0}, s{t0}, 20480")
    else:
        A(f"s_mul_i32 s{t0}, s{S_ID}, 20480")
    srd_build(A, SRDWO, S_PTR+10, t0, 20480)
    A(f"s_mov_b32 s{S_SC}, 0x3e0293ee"); A(f"s_mov_b32 s{S_SC+1}, 0x3e0293ee")
    P.append(valu("v_and_b32", T0, "1", G)); P.append(valu("v_lshl_or_b32", T0, T0, "2", RR))
    P.append(valu("v_lshl_add_u32", T1, G, "3", RR)); P.append(valu("v_lshlrev_b32", T1, "8", T1))
    P.append(valu("v_lshl_add_u32", T1, C, "3", T1))
    for T in range(8):
        P.append(valu("v_xor_b32", A_W[T], str(T), T0)); P.append(valu("v_lshl_add_u32", A_W[T], A_W[T], "5", T1))
    P.append(valu("v_lshrrev_b32", T0, "1", M)); P.append(valu("v_xor_b32", T0, G, T0)); P.append(valu("v_lshlrev_b32", T0, "4", T0))
    P.append(valu("v_lshl_add_u32", T0, M, "7", T0))
    A(f"s_mul_i32 s3, s{S_W}, {48*128}"); A(f"s_add_u32 s3, s3, {XOFF}")
    P.append(valu("v_add_u32", A_X[0], "s3", T0)); P.append(valu("v_xor_b32", A_X[1], "64", A_X[0]))
    P.append(valu("v_and_b32", T0, "7", M))
    P.append(valu("v_lshrrev_b32", T1, "1", T0)); P.append(valu("v_lshlrev_b32", T1, "2", T1))
    P.append(valu("v_and_b32", A_K, "1", T0)); P.append(valu("v_add_u32", T1, T1, A_K))
    P.append(valu("v_lshlrev_b32", T1, "4", T1)); P.append(valu("v_lshl_add_u32", T1, T0, "10", T1))
    P.append(valu("v_lshrrev_b32", T0, "3", M)); P.append(valu("v_lshl_add_u32", T1, T0, "8", T1))
    P.append(valu("v_and_b32", T0, "1", G)); P.append(valu("v_lshlrev_b32", T0, "1", T0))
    P.append(valu("v_lshrrev_b32", A_K, "1", G)); P.append(valu("v_or_b32", T0, T0, A_K))
    P.append(valu("v_lshl_add_u32", A_K, T0, "4", T1))
    P.append(valu("v_and_b32", T0, "1", G)); P.append(valu("v_lshl_add_u32", T0, T0, "2", RR))
    P.append(valu("v_mul_u32_u24", T0, "1056", T0))
    P.append(valu("v_lshrrev_b32", T1, "1", G)); P.append(valu("v_lshl_add_u32", T0, T1, "8", T0))
    P.append(valu("v_lshl_add_u32", T0, C, "3", T0)); P.append(valu("v_add_u32", A_V, str(VOFF), T0))
    for i in range(96): P.append(valu("v_mov_b32", ACC + i, "0"))
    if opts.get("touch_wo", True) and opts.get("wo_pos") == "pro": P.extend(wo_touch())
    if opts.get("touch_wo", True) and opts.get("wo_pos") == "Bpro":
        A(f"s_cmp_eq_u32 s{S_BR}, 0"); A(f"s_cbranch_scc1 {name}_nowot")
        P.extend(wo_touch())
        A(f"s_mul_i32 s{t0}, s{S_ID}, 20480"); srd_build(A, SRDWO, 76, t0, 20480)
        P.extend(wo_touch()[1:])
        P.append(label(f"{name}_nowot"))
    P.extend(q_addr())
    for grp in q_dma(1): P.extend([grp[0], nop(0)] + grp[1:])
    nt_ = 0
    if opts.get("touch_wo", True) and opts.get("wo_pos") == "pro2":
        tw = wo_touch(); P.extend(tw); nt_ = sum(1 for x in tw if x.kind == "vload")
    P.append(waitcnt(vm=10 + nt_)); P.append(barrier())
    if opts.get("hold"): P.extend(hold_wait(name, opts))
    P.extend(q_frag_reads(0, 0, 0))
    return P

def poll(name, srd, off_sreg, mask_or_val, mode, vtmp, sleep=8):
    o = [raw(f"s_mov_b32 s{S_T[5]}, 200000"), label(f"{name}"), raw(f"v_mov_b32 v{vtmp}, 0", kind="valu", wr=[vtmp]),
         raw(f"buffer_load_dword v{vtmp+1}, v{vtmp}, s[{srd}:{srd+3}], s{off_sreg} offen sc1"),
         raw("s_waitcnt vmcnt(0)"),
         raw(f"v_readfirstlane_b32 s{S_T[6]}, v{vtmp+1}"),
         raw(f"s_sub_u32 s{S_T[5]}, s{S_T[5]}, 1"), raw(f"s_cbranch_scc1 {name}_ok"),
         raw("s_nop 2")]
    if mode == 'bit':
        o += [raw(f"s_and_b32 s{S_T[6]}, s{S_T[6]}, s{mask_or_val}"), raw(f"s_cbranch_scc1 {name}_ok")]
    else:
        o += [raw(f"s_cmp_ge_u32 s{S_T[6]}, {mask_or_val}"), raw(f"s_cbranch_scc1 {name}_ok")]
    o += [raw(f"s_sleep {sleep}"), raw(f"s_branch {name}"), label(f"{name}_ok")]
    return o

FBOFF = 81856
S_FB = 70
S_FB = 78
L_LO, L_HI = "0x2b800000", "0x53800000"
def head_epilogue(name, opts):
    o = [valu("v_mov_b32", V_TCH, "0"), raw(f"s_cmp_eq_u32 s{S_W}, 0"), raw(f"s_cbranch_scc0 {name}_nn"),
         raw(f"buffer_load_dword v{V_DUMMY}, v{V_TCH}, s[{SRDD}:{SRDD+3}], 0 offen sc1", kind="vload", rd=[V_TCH], wr=[V_DUMMY]),
         label(f"{name}_nn"), raw(f"s_mov_b32 s{S_FB}, 0"), label(f"{name}_e0")]
    t = VT
    for qt in range(3):
        l = LSUM[qt]
        o += [valu("v_mov_b32", t[qt], l), perm32(t[qt], l), valu("v_add_f32", l, l, t[qt])]
    for qt in range(3):
        l = LSUM[qt]
        o += [valu("v_mov_b32", t[qt], l), perm16(t[qt], l), valu("v_add_f32", l, l, t[qt])]
    m = S_T[5]
    o += [raw(f"s_mov_b64 s[{m}:{m+1}], 0"), valu("v_mov_b32", 11, L_LO), valu("v_mov_b32", 12, L_HI)]
    for qt in range(3):
        o += [I(f"v_cmp_nle_f32 vcc, v11, v{LSUM[qt]}", rd=[11, LSUM[qt]], kind="valu"), raw("s_nop 1"), raw(f"s_or_b64 s[{m}:{m+1}], s[{m}:{m+1}], vcc"),
              I(f"v_cmp_nge_f32 vcc, v12, v{LSUM[qt]}", rd=[12, LSUM[qt]], kind="valu"), raw("s_nop 1"), raw(f"s_or_b64 s[{m}:{m+1}], s[{m}:{m+1}], vcc")]
    o += [raw(f"s_cmp_lg_u64 s[{m}:{m+1}], 0"), raw(f"s_cselect_b32 s{m}, 1, 0"), raw(f"s_andn2_b32 s{m}, s{m}, s{S_FB}"),
          raw(f"s_lshl_b32 s{m+1}, s{S_W}, 2"), raw(f"s_add_u32 s{m+1}, s{m+1}, {FBOFF}"),
          I(f"v_mov_b32 v11, s{m}", wr=[11], kind="valu"), I(f"v_mov_b32 v12, s{m+1}", wr=[12], kind="valu"), dsw32(12, 11)]
    for qt in range(3): o.append(vrcp(t[qt], LSUM[qt]))
    for qt in range(3):
        o.append(raw(f"s_mul_i32 s{S_T[3]}, s{S_B}, 12")); o.append(raw(f"s_mul_i32 s{S_T[4]}, s{S_W}, 3"))
        o.append(raw(f"s_add_u32 s{S_T[3]}, s{S_T[3]}, s{S_T[4]}")); o.append(raw(f"s_add_u32 s{S_T[3]}, s{S_T[3]}, {qt}"))
        o.append(raw(f"s_lshr_b32 s{S_T[4]}, s{S_T[3]}, 3")); o.append(raw(f"s_lshl_b32 s{S_T[4]}, s{S_T[4]}, 20"))
        o.append(raw(f"s_and_b32 s{S_T[3]}, s{S_T[3]}, 7")); o.append(raw(f"s_lshl_b32 s{S_T[3]}, s{S_T[3]}, 10"))
        o.append(raw(f"s_add_u32 s{S_T[qt]}, s{S_T[3]}, s{S_T[4]}"))
    for qt in range(3):
        for c in range(4):
            a = acc(2*c, qt); b = acc(2*c+1, qt)
            for r in range(4):
                o.append(valu("v_mul_f32", a + r, a + r, t[qt])); o.append(valu("v_mul_f32", b + r, b + r, t[qt]))
            o += [cvtpk(a, a, a+1), cvtpk(a+1, a+2, a+3), cvtpk(a+2, b, b+1), cvtpk(a+3, b+2, b+3)]
            o.append(bstore(a, 4, V_L16, SRDO, S_T[qt], flags=opts.get("stflags", "sc1")))
            if c < 3: o.append(raw(f"s_add_u32 s{S_T[qt]}, s{S_T[qt]}, 8192"))
    o += [waitcnt(vm=0, lgkm=0), barrier()]
    o += [valu("v_mov_b32", 12, str(FBOFF)), ds128(160, 12, 0), waitcnt(lgkm=0),
          valu("v_or_b32", 160, 160, 161), valu("v_or_b32", 162, 162, 163), valu("v_or_b32", 160, 160, 162), raw("s_nop 0"),
          raw(f"v_readfirstlane_b32 s{S_T[2]}, v160"), raw("s_nop 3"), raw(f"s_cmp_lg_u32 s{S_T[2]}, 0"), raw(f"s_cbranch_scc1 {name}_fb")]
    t0, t1 = S_T[0], S_T[1]
    o += [raw(f"s_cmp_eq_u32 s{S_W}, 0"), raw(f"s_cbranch_scc0 {name}_nopub"),
          raw(f"v_readfirstlane_b32 s{S_NONCE}, v{V_DUMMY}"), raw("s_nop 3"),
          raw(f"s_cmp_lg_u32 s{S_NONCE}, 0"), raw(f"s_cbranch_scc1 {name}_pn_done"), raw(f"s_mov_b32 s{t0}, 0")]
    o += poll(f"{name}_pn", SRDD, t0, 1, 'ge', V_TCH)
    o += [raw(f"s_mov_b32 s{S_NONCE}, s{S_T[6]}"), label(f"{name}_pn_done"),
          raw(f"s_lshl_b32 s{t0}, s{S_BR}, 3"), raw(f"s_add_u32 s{t0}, s{t0}, s{S_B}"), raw(f"s_mul_i32 s{t0}, s{t0}, 384"),
          raw(f"s_lshl_b32 s{t1}, s{S_H}, 2"), raw(f"s_add_u32 s{t0}, s{t0}, s{t1}"), raw(f"s_add_u32 s{t0}, s{t0}, {FLAGOFF}")]
    A = lambda t: o.append(raw(t))
    srd_build(A, SRDWO, S_PTR+8, t0, 260)
    o += [raw("v_lshlrev_b32 v16, 7, v0", kind="valu", wr=[16]), raw(f"v_mov_b32 v17, s{S_NONCE}", kind="valu", wr=[17]),
          raw("s_mov_b64 exec, 7"),
          raw(f"buffer_store_dword v17, v16, s[{SRDWO}:{SRDWO+3}], 0 offen sc1")]
    if opts.get("linger"):
        o += [raw("s_mov_b64 exec, 1"), raw(f"s_lshl_b32 s{t0}, s{S_ID}, 7"), raw(f"s_add_u32 s{t0}, s{t0}, {FLAGOFF + 131072}")]
        srd_build(A, SRDWO, S_PTR+8, t0, 4)
        o += [raw("v_mov_b32 v16, 0", kind="valu", wr=[16]), raw("s_nop 1"),
              raw(f"buffer_atomic_swap v17, v16, s[{SRDWO}:{SRDWO+3}], 0 offen sc0 sc1"), raw("s_waitcnt vmcnt(0)"),
              raw(f"v_readfirstlane_b32 s{t1}, v17"), raw("s_nop 3"),
              raw(f"s_cmp_eq_u32 s{t1}, s{S_NONCE}"), raw(f"s_cbranch_scc0 {name}_nopub"),
              raw(f"s_mov_b32 s{S_T[5]}, {opts.get('linger_polls', 6)}"), raw(f"s_mov_b32 s{t0}, 128"),
              label(f"{name}_lg"),
              raw(f"buffer_load_dword v17, v16, s[{SRDD}:{SRDD+3}], s{t0} offen sc1"), raw("s_waitcnt vmcnt(0)"),
              raw(f"v_readfirstlane_b32 s{t1}, v17"),
              raw(f"s_sub_u32 s{S_T[5]}, s{S_T[5]}, 1"), raw(f"s_cbranch_scc1 {name}_nopub"), raw("s_nop 2"),
              raw(f"s_cmp_ge_u32 s{t1}, 240"), raw(f"s_cbranch_scc1 {name}_nopub"),
              raw(f"s_sleep {opts.get('linger_sleep', 96)}"), raw(f"s_branch {name}_lg")]
    o += [label(f"{name}_nopub")]
    return o

def head_fallback(name):
    MX = [246, 247, 248]; NM = [184, 188, 192]; TT = 249
    def reset_off():
        return [raw(f"s_lshl_b32 s{S_O[0]}, s{S_W}, 10"), raw(f"s_add_u32 s{S_O[1]}, s{S_O[0]}, 4096"),
                raw(f"s_mov_b32 s{S_O[2]}, s{S_O[0]}"), raw(f"s_mov_b32 s{S_O[3]}, s{S_O[1]}"), raw(f"s_mov_b32 s{S_CNT}, 16")]
    def load(js):
        o = [barrier()]
        for j in js:
            o += [m0set(S_L[j], 0), nop(0), dma(V_L16, SRDK if j < 2 else SRDV, S_O[j]), salu(f"s_add_u32 s{S_O[j]}, s{S_O[j]}, 8192")]
        return o + [waitcnt(vm=0), barrier()]
    def qk(cinit):
        o = []
        for Tk in range(2):
            for c in range(4): o.append(k_read(0, Tk*4 + c))
            for c in range(4):
                for qt in range(3):
                    s = sreg(0, Tk, qt)
                    o.append(mfma16(s, KF + 4*c, qf(qt, c), cinit[qt] if c == 0 else s))
        return o
    pre = [label(f"{name}_fb")] + [valu("v_mov_b32", r, "0xff800000") for r in MX] + reset_off()
    b1 = [label(f"{name}_fb1")] + load([0, 1]) + qk([None]*3)
    for qt in range(3):
        for Tk in range(2):
            s = sreg(0, Tk, qt)
            b1 += [valu("v_max3_f32", MX[qt], MX[qt], s, s+1), valu("v_max3_f32", MX[qt], MX[qt], s+2, s+3)]
    b1 += [waitcnt(lgkm=0), raw(f"s_sub_u32 s{S_CNT}, s{S_CNT}, 1"), raw(f"s_cmp_lg_u32 s{S_CNT}, 0"), raw(f"s_cbranch_scc1 {name}_fb1")]
    mid = []
    for qt in range(3):
        mid += [valu("v_mov_b32", TT, MX[qt]), perm32(TT, MX[qt]), valu("v_max_f32", MX[qt], MX[qt], TT),
                valu("v_mov_b32", TT, MX[qt]), perm16(TT, MX[qt]), valu("v_max_f32", MX[qt], MX[qt], TT)]
        for i in range(4): mid.append(I(f"v_sub_f32 v{NM[qt]+i}, 0, v{MX[qt]}", rd=[MX[qt]], wr=[NM[qt]+i], kind="valu"))
    for i in range(96): mid.append(valu("v_mov_b32", ACC + i, "0"))
    for r in LSUM: mid.append(valu("v_mov_b32", r, "0"))
    mid += reset_off()
    b2 = [label(f"{name}_fb2")] + load([0, 1, 2, 3]) + qk(NM)
    for part in range(2):
        for qt in range(3):
            s = sreg(0, part, qt); p = preg(0, part, qt)
            b2 += [vexp(s+i, s+i) for i in range(4)] + [valu("v_add_f32", LSUM[qt], LSUM[qt], s+i) for i in range(4)] + [cvtpk(p, s, s+1), cvtpk(p+1, s+2, s+3)]
    for half in range(2):
        for T in range(4*half, 4*half + 4): b2 += v_read(0, T)
        for T in range(4*half, 4*half + 4):
            for qt in range(3): b2.append(mfma16(acc(T, qt), VF + 4*(T % 4), pop(0, qt), acc(T, qt)))
    b2 += [waitcnt(lgkm=0), raw(f"s_sub_u32 s{S_CNT}, s{S_CNT}, 1"), raw(f"s_cmp_lg_u32 s{S_CNT}, 0"), raw(f"s_cbranch_scc1 {name}_fb2")]
    post = [nop(15), raw(f"s_mov_b32 s{S_FB}, 1"), raw(f"s_branch {name}_e0")]
    p1, l1, st = resolve_loop([nop(15)] + pre, b1)
    p2, l2, st = resolve_loop(mid, b2, st)
    po, _ = resolve(post, st)
    return p1 + l1 + p2 + l2 + po

V_HOLD = 253
SRDH = 24
SRDH = 100 - 4
def hold_setup(name, opts, A, P):
    t0 = S_T[0]
    A(f"s_lshl_b32 s{t0}, s{S_ID}, 7"); A(f"s_add_u32 s{t0}, s{t0}, {FLAGOFF + 65536}")
    srd_build(A, SRDH, S_PTR+8, t0, 4)
    P.append(valu("v_mov_b32", V_TCH, "0"))
    A(f"buffer_load_dword v{V_HOLD}, v{V_TCH}, s[{SRDH}:{SRDH+3}], 0 offen sc1")
def hold_wait(name, opts):
    o = []
    A = lambda t: o.append(raw(t))
    A(f"s_cmp_eq_u32 s{S_BR}, 0"); A(f"s_cbranch_scc1 {name}_hw_end")
    A(f"s_cmp_eq_u32 s{S_W}, 0"); A(f"s_cbranch_scc0 {name}_hw_done")
    A("s_waitcnt vmcnt(0)"); A(f"v_readfirstlane_b32 s{S_T[4]}, v{V_HOLD}"); A(f"s_mov_b32 s{S_T[5]}, {opts.get('hold_polls', 24)}")
    o.append(label(f"{name}_hw"))
    A(f"buffer_load_dword v{V_HOLD}, v{V_TCH}, s[{SRDH}:{SRDH+3}], 0 offen sc1"); A("s_waitcnt vmcnt(0)")
    A(f"v_readfirstlane_b32 s{S_T[6]}, v{V_HOLD}")
    A(f"s_sub_u32 s{S_T[5]}, s{S_T[5]}, 1"); A(f"s_cbranch_scc1 {name}_hw_done"); A("s_nop 2")
    A(f"s_cmp_lg_u32 s{S_T[6]}, s{S_T[4]}"); A(f"s_cbranch_scc1 {name}_hw_done")
    A(f"s_sleep {opts.get('hold_sleep', 8)}"); A(f"s_branch {name}_hw")
    o.append(label(f"{name}_hw_done")); o.append(barrier()); o.append(label(f"{name}_hw_end"))
    return o
def hold_release(name):
    return [raw(f"s_or_b32 s{S_T[0]}, s{S_BR}, s{S_W}"), raw(f"s_cmp_eq_u32 s{S_T[0]}, 0"), raw(f"s_cbranch_scc0 {name}_hr"),
            raw(f"v_add_u32 v{V_HOLD}, 1, v{V_HOLD}", kind="valu", rd=[V_HOLD], wr=[V_HOLD]), raw(f"v_mov_b32 v{V_TCH}, 0", kind="valu", wr=[V_TCH]),
            raw("s_mov_b64 exec, 1"),
            raw(f"buffer_store_dword v{V_HOLD}, v{V_TCH}, s[{SRDH}:{SRDH+3}], 0 offen sc1"),
            raw("s_mov_b64 exec, -1"), raw("s_nop 1"), label(f"{name}_hr")]

WOT = "sc"
def wo_touch():
    if WOT == "sc":
        return [valu("v_lshlrev_b32", V_TCH, "7", 0), raw(f"s_lshl_b32 s{S_T[0]}, s{S_W}, 13"), bload(V_DUMMY, 1, V_TCH, SRDWO, S_T[0])]
    o = [nop(0), raw(f"s_mul_i32 s{S_T[0]}, s{S_W}, 5120")]
    o += [bload(V_DUMMY, 1, V_L16, SRDWO, S_T[0], off=j*1024 if j < 4 else 0) for j in range(4)]
    o += [raw(f"s_add_u32 s{S_T[0]}, s{S_T[0]}, 4096"), bload(V_DUMMY, 1, V_L16, SRDWO, S_T[0])]
    return o

def att_prio(name, opts):
    pa, pb = opts.get('prioAttA', opts.get('prioAtt', 0)), opts.get('prioAttB', opts.get('prioAtt', 0))
    if pa == pb: return [raw(f"s_setprio {pa}")]
    return [raw(f"s_cmp_eq_u32 s{S_HALF}, 0"), raw(f"s_cbranch_scc0 {name}_apb"), raw(f"s_setprio {pa}"), raw(f"s_branch {name}_apd"),
            label(f"{name}_apb"), raw(f"s_setprio {pb}"), label(f"{name}_apd")]

def build_head(name, opts, ST):
    global POL, KVROT, ATTVM, XO, LMF, QRD, BAR2, WOT, SPLITB
    SPLITB = opts.get('splitb', 0)
    WOT = opts.get('wot', 'sc')
    BAR2 = opts.get('bar2', False)
    QRD = opts.get('qrd', 19)
    LMF = opts.get('lmfma', False)
    XO = opts.get('x', {})
    ATTVM = opts.get('att_vm', 8)
    POL = opts.get("polite"); KVROT = opts.get("kvrot", True)
    kvflags = opts.get("kvflags", "nt")
    pro = head_prologue(name, opts) + ST(1) + [raw(f"s_mov_b32 s{S_CNT}, 4")]
    qb = [label(f"{name}_qloop")]
    for p in range(2): qb += q_iter(p, 'Q')
    qb += [raw(f"s_sub_u32 s{S_CNT}, s{S_CNT}, 1"), raw(f"s_cmp_lg_u32 s{S_CNT}, 0"), raw(f"s_cbranch_scc1 {name}_qloop")]
    pro2, qb2, st = resolve_loop(pro, qb)
    last = ST(2)
    if opts.get("hold", True):
        if opts.get("hold_at", "q") == "q": last += hold_release(name)
    if opts.get("touch_wo", True) and opts.get("wo_pos") == "q8": last += wo_touch()
    last += q_switch() + q_iter(0, 'K0', kvflags) + q_iter(1, 'K1', kvflags)
    last2, st = resolve(last, st)
    wot = wo_touch() if opts.get("touch_wo", True) and opts.get("wo_pos", "mid") == "mid" else []
    mid = [waitcnt(lgkm=0)] + ST(3) + wot + att_prio(name, opts) + q_convert() + att_prologue(kvflags) + [raw(f"s_mov_b32 s{S_CNT}, 4")]
    body = [label(f"{name}_aloop")]
    for u in range(3): body += h0(u) + h1(u, kvflags)
    body += [raw(f"s_cmp_eq_u32 s{S_CNT}, 1"), raw(f"s_cbranch_scc1 {name}_tail")]
    body += h0(3) + h1(3, kvflags)
    body += [raw(f"s_sub_u32 s{S_CNT}, s{S_CNT}, 1"), raw(f"s_branch {name}_aloop")]
    mid2, st1 = resolve(mid, st)
    _, body2, _ = resolve_loop([], body, st1)
    idx = [i for i, x in enumerate(body2) if x.txt.startswith(f"s_cbranch_scc1 {name}_tail")][0]
    _, sA = resolve(body2, st1.copy(), insert=False)
    _, sB = resolve(body2[:idx+1], sA.copy(), insert=False)
    tail = [label(f"{name}_tail")] + h0(3, tail=True) + h1(3, kvflags, tail=True) + ([] if opts.get("pstamp") else ST(4)) + (wo_touch() if opts.get("touch_wo", True) and opts.get("wo_pos") == "epi" else []) + head_epilogue(name, opts)
    tail2, _ = resolve(tail, sB)
    return pro2 + qb2 + last2 + mid2 + body2 + tail2

WSLOT = 4224; NR = 3
OACC = 16
OBF = 144
OAF = 240
O_OFFO, O_OFFW, O_AW, O_FL, O_PV = [1, 2], 3, 4, 5, 6
OG, OM, ORR, OC = 7, 8, 9, 10
OS_OO = 32; OS_OW = [33, 34, 35, 36]; OS_L = 37
OSRDO, OSRDW, OSRDOUT, OSRDF = 12, 16, 20, 24
OS_OFF, OS_WO0, OS_OO0 = 8, 40, 41
OS_AV, OS_ISS, OS_ROT = 38, 39, 9
OS_A2 = 46
OS_WB = 10
def oacc(rt, Tc): return OACC + (rt * 4 + Tc) * 4
_sel = [0]
def o_select(name, opts):
    _sel[0] += 1
    L = f"{name}_s{_sel[0]}"
    t0, t1 = S_T[0], S_T[1]
    return [raw(f"s_cmp_lg_u32 s{OS_AV}, 0"), raw(f"s_cbranch_scc1 {L}_have"),
         raw(f"s_mov_b32 s{t0}, 32"), raw(f"s_cmp_eq_u32 s{OS_ISS}, -1"), raw(f"s_cbranch_scc1 {L}_addr"),
         raw(f"s_mov_b32 s{S_T[5]}, 200000"),
         label(f"{L}_poll"),
         raw(f"buffer_load_dword v{O_PV}, v{O_FL}, s[{OSRDF}:{OSRDF+3}], 0 offen sc1")] + ([
         raw(f"buffer_load_dword v11, v{O_FL}, s[{OSRDF}:{OSRDF+3}], s{OS_WB} offen sc1"), raw("s_waitcnt vmcnt(0)"),
         raw(f"v_cmp_eq_u32 s[{OS_A2}:{OS_A2+1}], s{S_NONCE}, v11"),
         raw(f"v_cmp_eq_u32 vcc, s{S_NONCE}, v{O_PV}"), raw("s_nop 3"), raw(f"s_and_b64 vcc, vcc, s[{OS_A2}:{OS_A2+1}]")] if opts.get("waitB") else [raw("s_waitcnt vmcnt(0)"),
         raw(f"v_cmp_eq_u32 vcc, s{S_NONCE}, v{O_PV}")]) + [
         raw(f"s_sub_u32 s{S_T[5]}, s{S_T[5]}, 1"), raw(f"s_cselect_b32 s{t1}, -1, 0"), raw("s_nop 2"),
         raw(f"s_and_b32 s{t0}, vcc_lo, vcc_hi"),
         raw(f"s_or_b32 s{t1}, s{t1}, s{t0}"), raw(f"s_andn2_b32 s{OS_AV}, s{t1}, s{OS_ISS}"),
         raw(f"s_cbranch_scc1 {L}_have"), raw(f"s_sleep {opts.get('sleep', 8)}"), raw(f"s_branch {L}_poll"),
         label(f"{L}_have"),
         raw(f"s_mov_b32 s{OS_A2}, s{OS_AV}"), raw(f"s_mov_b32 s{OS_A2+1}, s{OS_AV}"),
         raw(f"s_lshr_b64 s[{OS_A2}:{OS_A2+1}], s[{OS_A2}:{OS_A2+1}], s{OS_ROT}"),
         raw(f"s_ff1_i32_b32 s{t0}, s{OS_A2}"), raw(f"s_add_u32 s{t0}, s{t0}, s{OS_ROT}"), raw(f"s_and_b32 s{t0}, s{t0}, 31"),
         raw(f"s_lshl_b32 s{t1}, 1, s{t0}"), raw(f"s_or_b32 s{OS_ISS}, s{OS_ISS}, s{t1}"), raw(f"s_andn2_b32 s{OS_AV}, s{OS_AV}, s{t1}"),
         label(f"{L}_addr"),
         raw(f"s_lshl_b32 s{t1}, s{t0}, 15"), raw(f"s_add_u32 s{OS_OO}, s{OS_OO0}, s{t1}"),
         raw(f"s_mul_i32 s{t1}, s{t0}, {128*1280}"), raw(f"s_add_u32 s{OS_OW[0]}, s{OS_WO0}, s{t1}"),
         raw(f"s_add_u32 s{OS_OW[1]}, s{OS_OW[0]}, 1280"), raw(f"s_add_u32 s{OS_OW[2]}, s{OS_OW[0]}, 2560"), raw(f"s_add_u32 s{OS_OW[3]}, s{OS_OW[0]}, 3840")]
OFL = 'sc1'
def o_loads(u):
    o = []
    for j in range(8): o.append([bload(OBF + 32*u + 4*j, 4, O_OFFO[j//4], OSRDO, OS_OO, off=(j%4)*1024, flags=OFL)])
    for b in range(4): o.append([m0set(OS_L, u * WSLOT + b * 1056), dma(O_OFFW, OSRDW, OS_OW[b])])
    return o
def o_aread(u, Tc):
    off = u * WSLOT + Tc * 32
    return [dstr(OAF + 4*Tc, O_AW, off), dstr(OAF + 4*Tc + 2, O_AW, off + 512)]

def build_oproj(name, opts, ST):
    global OFL
    OFL = opts.get('oflags', 'sc1')
    P = []
    A = lambda t, **k: P.append(raw(t, **k))
    t0, t1, t2 = S_T[0], S_T[1], S_T[2]
    if opts.get("prioT"): A(f"s_setprio {opts['prioT']}")
    A(f"s_sub_u32 s{S_ID}, s2, 512")
    if opts.get("omap", "xcd") == "xcd":
        A(f"s_and_b32 s3, s{S_ID}, 7"); A(f"s_lshr_b32 s{S_BR}, s3, 2"); A(f"s_lshr_b32 s{OS_OFF}, s{S_ID}, 3")
        A(f"s_mul_i32 s{t1}, s{OS_OFF}, 6554"); A(f"s_lshr_b32 s{t1}, s{t1}, 16")
        A(f"s_and_b32 s{t2}, s3, 3"); A(f"s_mul_i32 s{t2}, s{t2}, 3"); A(f"s_add_u32 s6, s{t2}, s{t1}")
        A(f"s_mul_i32 s{t1}, s{t1}, 10"); A(f"s_sub_u32 s7, s{OS_OFF}, s{t1}")
    else:
        A(f"s_cmp_ge_u32 s{S_ID}, 120"); A(f"s_cselect_b32 s{S_BR}, 1, 0")
        A(f"s_mul_i32 s{t0}, s{S_BR}, 120"); A(f"s_sub_u32 s{S_ID}, s{S_ID}, s{t0}")
        A(f"s_and_b32 s3, s{S_ID}, 7"); A(f"s_lshr_b32 s{OS_OFF}, s{S_ID}, 3")
        A(f"s_mul_i32 s{t1}, s{OS_OFF}, 13108"); A(f"s_lshr_b32 s{t1}, s{t1}, 16")
        A(f"s_lshr_b32 s{t2}, s3, 1"); A(f"s_mul_i32 s{t2}, s{t2}, 3"); A(f"s_add_u32 s6, s{t2}, s{t1}")
        A(f"s_mul_i32 s{t1}, s{t1}, 5"); A(f"s_sub_u32 s7, s{OS_OFF}, s{t1}"); A(f"s_and_b32 s{t2}, s3, 1"); A(f"s_mul_i32 s{t2}, s{t2}, 5"); A(f"s_add_u32 s7, s7, s{t2}")
    A(f"s_mul_i32 s3, s{S_BR}, 40"); A("s_add_u32 s3, s3, 32")
    A(f"s_load_dwordx2 s[{S_PTR}:{S_PTR+1}], s[0:1], s3")
    A(f"s_load_dwordx4 s[{S_PTR+4}:{S_PTR+7}], s[0:1], 80")
    A(f"s_load_dwordx2 s[{S_PTR+8}:{S_PTR+9}], s[0:1], 96")
    P.append(valu("v_lshrrev_b32", OG, "6", 0)); P.append(valu("v_and_b32", 0, "63", 0))
    A("s_nop 0"); A(f"v_readfirstlane_b32 s{S_W}, v{OG}")
    P.append(valu("v_lshrrev_b32", OG, "4", 0)); P.append(valu("v_and_b32", OM, "15", 0))
    P.append(valu("v_bfe_u32", ORR, 0, "2", "2")); P.append(valu("v_and_b32", OC, "3", 0))
    P.append(valu("v_lshlrev_b32", O_OFFO[0], "4", 0)); P.append(valu("v_add_u32", O_OFFO[1], "4096", O_OFFO[0]))
    P.append(valu("v_lshrrev_b32", 16, "3", 0)); P.append(valu("v_mul_u32_u24", 16, "5120", 16))
    P.append(valu("v_and_b32", 17, "7", 0)); P.append(valu("v_lshl_add_u32", O_OFFW, 17, "4", 16))
    A(f"s_mul_i32 s{OS_L}, s{S_W}, {NR*WSLOT}")
    P.append(valu("v_mul_u32_u24", 16, "1056", ORR)); P.append(valu("v_lshl_add_u32", 16, OG, "7", 16)); P.append(valu("v_lshl_add_u32", 16, OC, "3", 16))
    P.append(valu("v_add_u32", O_AW, f"s{OS_L}", 16))
    A(f"s_lshl_b32 s{OS_OO0}, s{S_W}, 13"); A(f"s_mul_i32 s{OS_WO0}, s{S_W}, {32*1280}")
    A("s_waitcnt lgkmcnt(0)")
    A(f"s_mul_i32 s{t0}, s{S_BR}, 12"); A(f"s_add_u32 s{t0}, s{t0}, s6"); A(f"s_lshl_b32 s{t0}, s{t0}, 20")
    srd_build(A, OSRDO, S_PTR+8, t0, 0 if opts.get('no_o') else 1048576)
    A(f"s_lshl_b32 s{t0}, s7, 7"); srd_build(A, OSRDW, S_PTR, t0, 0 if opts.get('no_w') else 4096*1280 - 9*128)
    A(f"s_mul_i32 s{t0}, s6, {128*2560}"); A(f"s_mul_i32 s{t1}, s{S_BR}, 1280"); A(f"s_add_u32 s{t0}, s{t0}, s{t1}")
    A(f"s_lshl_b32 s{t1}, s7, 7"); A(f"s_add_u32 s{t0}, s{t0}, s{t1}")
    srd_build(A, OSRDOUT, S_PTR+4, t0, 127*2560 + 128)
    srd_build(A, SRDD, S_PTR+6, None, 256)
    if opts.get("linger"):
        A(f"s_cmp_eq_u32 s{S_W}, 0"); A(f"s_cbranch_scc0 {name}_nocnt")
        P.append(valu("v_mov_b32", 16, "128")); P.append(valu("v_mov_b32", 17, "1"))
        A("s_mov_b64 exec, 1"); A(f"buffer_atomic_add v17, v16, s[{SRDD}:{SRDD+3}], 0 offen sc1"); A("s_mov_b64 exec, -1")
        P.append(label(f"{name}_nocnt"))
    A(f"s_mov_b32 s{t0}, 0")
    A(f"s_cmp_eq_u32 s{S_W}, 0"); A(f"s_cbranch_scc0 {name}_nw")
    P.extend(poll(f"{name}_pn", SRDD, t0, 1, 'ge', O_FL, sleep=8))
    P.append(I(f"v_mov_b32 v{O_PV}, s{S_T[6]}", wr=[O_PV], kind="valu")); P.append(valu("v_mov_b32", O_FL, str(FBOFF)))
    P.append(dsw32(O_FL, O_PV)); P.append(waitcnt(lgkm=0))
    P.append(label(f"{name}_nw"))
    P.append(barrier())
    P.append(valu("v_mov_b32", O_FL, str(FBOFF))); P.append(dsr32(O_PV, O_FL)); P.append(waitcnt(lgkm=0))
    A(f"v_readfirstlane_b32 s{S_NONCE}, v{O_PV}"); A("s_nop 3")
    A(f"s_mul_i32 s{t0}, s6, 43691"); A(f"s_lshr_b32 s{t0}, s{t0}, 16")
    A(f"s_lshl_b32 s{t1}, s6, 7"); A(f"s_add_u32 s{t1}, s{t1}, 127"); A(f"s_mul_i32 s{t1}, s{t1}, 21846"); A(f"s_lshr_b32 s{t1}, s{t1}, 22")
    A(f"s_sub_u32 s{t1}, s{t1}, s{t0}"); A(f"s_mul_i32 s{t1}, s{t1}, 384")
    A(f"s_lshl_b32 s{t2}, s{S_BR}, 3"); A(f"s_add_u32 s{t0}, s{t0}, s{t2}"); A(f"s_mul_i32 s{t0}, s{t0}, 384")
    A(f"s_mul_i32 s{t2}, s7, 21846"); A(f"s_lshr_b32 s{t2}, s{t2}, 16"); A(f"s_mul_i32 s{t2}, s{t2}, 3"); A(f"s_sub_u32 s{t2}, s7, s{t2}")
    A(f"s_lshl_b32 s{t2}, s{t2}, 7"); A(f"s_add_u32 s{t0}, s{t0}, s{t2}"); A(f"s_add_u32 s{t0}, s{t0}, {FLAGOFF}")
    srd_build(A, OSRDF, S_PTR+8, t0, 512 + (8*384 if opts.get("waitB") else 0))
    A(f"s_cmp_eq_u32 s{S_BR}, 0"); A(f"s_cselect_b32 s{OS_WB}, {8*384}, 0")
    P.append(valu("v_and_b32", O_FL, "31", 0)); P.append(valu("v_lshlrev_b32", O_FL, "2", O_FL))
    P.append(valu("v_lshrrev_b32", 16, "5", 0)); P.append(valu("v_mul_lo_u32", 16, f"s{t1}", 16)); P.append(valu("v_add_u32", O_FL, O_FL, 16))
    A(f"s_mov_b32 s{OS_AV}, 0"); A(f"s_mov_b32 s{OS_ISS}, 0")
    if opts.get("trot"):
        A(f"s_memrealtime s[{OS_A2}:{OS_A2+1}]"); A("s_waitcnt lgkmcnt(0)")
        A(f"s_sub_u32 s{t0}, s{OS_A2}, s{S_NONCE}"); A(f"s_mul_i32 s{t0}, s{t0}, {65536 // opts['trot']}"); A(f"s_lshr_b32 s{t0}, s{t0}, 16")
        A(f"s_and_b32 s{t1}, s{OS_OFF}, {opts.get('rotmask', 3)}"); A(f"s_add_u32 s{t0}, s{t0}, s{t1}"); A(f"s_and_b32 s{OS_ROT}, s{t0}, 31")
    else:
        A(f"s_and_b32 s{OS_ROT}, s{OS_OFF}, {opts.get('rotmask', 7)}")
    for i in range(128): P.append(valu("v_mov_b32", OACC + i, "0"))
    P.extend(ST(1))
    for u in range(2):
        P.extend(o_select(name, opts))
        for grp in o_loads(u): P.extend(grp if len(grp) == 1 else [grp[0], nop(0)] + grp[1:])
    P.append(waitcnt(vm=12))
    for Tc in range(4): P.extend(o_aread(0, Tc))
    A(f"s_mov_b32 s{S_CNT}, 10")
    body = [label(f"{name}_loop")]
    for u in range(3):
        mf = [mfma16(oacc(rt, Tc), OAF + 4*Tc, OBF + 32*u + 4*rt, oacc(rt, Tc)) for Tc in range(4) for rt in range(8)]
        slots = [[] for _ in mf]
        slots[0] += o_select(name, opts)
        nbefore = 0
        for j, grp in enumerate(o_loads((u + 2) % 3)):
            k = 1 + (j * opts.get('ospread', 22)) // 12
            if len(grp) == 1:
                slots[k] += grp; ki = k
            else:
                slots[k].append(grp[0]); slots[k+1] += grp[1:]; ki = k + 1
            if ki < 24: nbefore += 1
        slots[24].insert(0, waitcnt(vm=nbefore))
        n = (u + 1) % 3
        slots[24] += o_aread(n, 0); slots[25] += o_aread(n, 1); slots[26] += o_aread(n, 2); slots[31] += o_aread(n, 3)
        body += emit(mf, slots)
    if opts.get("ostamp"):
        for cnt, idx in ((8, 2), (4, 3)):
            body += [raw(f"s_cmp_eq_u32 s{S_CNT}, {cnt}"), raw(f"s_cbranch_scc0 {name}_os{idx}")] + ST(idx) + [label(f"{name}_os{idx}")]
    body += [raw(f"s_sub_u32 s{S_CNT}, s{S_CNT}, 1"), raw(f"s_cmp_lg_u32 s{S_CNT}, 0"), raw(f"s_cbranch_scc1 {name}_loop")]
    P2, body2, st = resolve_loop(P, body)
    E = []
    A = lambda t, **k: E.append(raw(t, **k))
    for u in range(2):
        mf = [mfma16(oacc(rt, Tc), OAF + 4*Tc, OBF + 32*u + 4*rt, oacc(rt, Tc)) for Tc in range(4) for rt in range(8)]
        slots = [[] for _ in mf]
        if u == 0:
            slots[24].append(waitcnt(vm=0))
            slots[24] += o_aread(1, 0); slots[25] += o_aread(1, 1); slots[26] += o_aread(1, 2); slots[31] += o_aread(1, 3)
        E += emit(mf, slots)
    E.extend(ST(4 if opts.get("ostamp") else 2))
    E.append(valu("v_lshlrev_b32", 11, "4", 0))
    A(f"s_lshl_b32 s{t0}, s{S_W}, 14"); E.append(valu("v_add_u32", 12, f"s{t0}", 11))
    A(f"s_lshl_b32 s{t0}, s{S_W}, 12"); E.append(valu("v_add_u32", 13, f"s{t0}", 11))
    E.append(valu("v_and_b32", 14, "1", OG)); E.append(valu("v_lshlrev_b32", 14, "1", 14)); E.append(valu("v_lshrrev_b32", 15, "1", OG))
    E.append(valu("v_or_b32", 14, 14, 15)); E.append(valu("v_lshlrev_b32", 14, "4", 14))
    E.append(valu("v_mul_u32_u24", 15, "2560", OM)); E.append(valu("v_add_u32", 14, 14, 15))
    A(f"s_mul_i32 s{t0}, s{S_W}, {16*2560}"); A(f"s_add_u32 s{t1}, s{t0}, {64*2560}")
    E.append(waitcnt(vm=0, lgkm=0)); E.append(barrier())
    def wr(r): return [dsw128(12, OACC + (16*r + tl)*4, tl*1024) for tl in range(16)]
    def rd(base): return [ds128(base + (p*4 + t)*4, 13, p*16384 + t*1024) for t in range(4) for p in range(4)]
    def fin(r, base):
        o = []
        for pr in range(2):
            for h in range(2):
                t = 2*pr + h
                for i in range(4):
                    a = base + t*4 + i
                    o.append(valu("v_add_f32", a, a, a + 16)); o.append(valu("v_add_f32", a + 32, a + 32, a + 48))
                for i in range(4):
                    a = base + t*4 + i
                    o.append(valu("v_add_f32", a, a, a + 32))
            a = base + 2*pr*4; b = a + 4; q = 240 + (r*2 + pr)*4
            o += [cvtpk(q, a, a+1), cvtpk(q+1, a+2, a+3), cvtpk(q+2, b, b+1), cvtpk(q+3, b+2, b+3), perm16(q, q+2), perm16(q+1, q+3)]
            o.append(bstore(q, 4, 14, OSRDOUT, t0 if r == 0 else t1, off=pr*64, flags=opts.get('outflags', '')))
        return o
    E += wr(0) + [waitcnt(lgkm=0), barrier()] + rd(144) + [waitcnt(lgkm=0), barrier()] + wr(1) + fin(0, 144)
    E += [waitcnt(lgkm=0), barrier()] + rd(16) + fin(1, 16)
    E2, _ = resolve(E, st)
    return P2 + body2 + E2

def build(name, stamps=False, **opts):
    ST = (lambda i, real=False: stamp(i, real)) if stamps else (lambda i, real=False: [])
    out = [label(name)] + ST(0) + ST(6, True)
    out += [raw("s_cmp_ge_u32 s2, 752"), raw(f"s_cbranch_scc1 {name}_end"), raw("s_cmp_ge_u32 s2, 512"), raw(f"s_cbranch_scc1 {name}_oproj")]
    if opts.get("skip_heads") == "holdB":
        out += [raw("s_cmp_lt_u32 s2, 256"), raw(f"s_cbranch_scc1 {name}_end"), raw("s_mov_b32 s4, 40"), label(f"{name}_hb"), raw("s_sleep 32"),
                raw("s_sub_u32 s4, s4, 1"), raw("s_cmp_lg_u32 s4, 0"), raw(f"s_cbranch_scc1 {name}_hb"), raw("s_endpgm")]
    elif opts.get("skip_heads"): out += [raw("s_endpgm")]
    fin_h = []; fin_o = []
    if stamps:
        fin_h = [waitcnt(vm=0), raw("s_mov_b64 exec, -1")] + ([] if opts.get("pstamp") else ST(5)) + ST(7, True) + stamp_dump(8, S_PTR+8, S_W, 64<<20, 16, nwaves_shift=2)
        fin_o = [waitcnt(vm=0)] + ([] if opts.get("ostamp") else ST(3) + ST(4)) + ST(5) + ST(7, True) + stamp_dump(8, S_PTR+8, S_W, 64<<20, 16, nwaves_shift=2)
    out += build_head(name + "_h", opts, ST) + fin_h + [raw("s_endpgm")] + head_fallback(name + "_h")
    out += [label(f"{name}_oproj")] + build_oproj(name + "_o", opts, ST) + fin_o
    out += [label(f"{name}_end"), raw("s_endpgm")]
    return out
```

```python
from asmlib import *

QSLOT = 40960; XOFF = 16384
ASLOT = 16896; VOFF = 8448
ACC = 16; QF = 112
SX, SY, SZ = 160, 172, 184
PB = 196; KF = 214; VF = 230
QA = [160, 204]; QB = [192, 236]
V_OFFA, V_OFFB, V_L16 = 1, 2, 3
A_W = [4, 5, 6, 7, 8, 9, 10, 11]; A_X = [12, 15]; A_K = 13; A_V = 14
LSUM = [4, 5, 6]; VT = [7, 8, 9, 10]
ONES = 250
LACC = [4, 8, 246]
LMF = False
G, M, RR, C = 248, 249, 250, 251
V_DUMMY = 255; V_TCH = 254
S_W, S_BR, S_B, S_H = 4, 5, 6, 7
S_HALF = 79
SRDA, SRDB, SRDK, SRDV, SRDO, SRDD = 12, 16, 20, 24, 28, 64
S_O = [32, 33, 34, 35]; S_L = [38, 39, 40, 41]; S_CNT = 42
S_OW, S_OX, S_LW, S_LX, S_SIG, S_TT = 8, 9, 36, 37, 10, 11
S_KC, S_VC, S_KB, S_KROT = 8, 9, 36, 37
S_T = [43, 44, 45, 46, 47, 48, 49]
S_SC = 50
S_PTR = 52
SRDWO = 68
S_ID = 72
S_DBG = 74
FLAGOFF = 32 << 20
S_NONCE = 73

def acc(T, qt): return ACC + (T * 3 + qt) * 4
def qf(qt, c): return QF + (qt * 4 + c) * 4

def emit(mf, slots):
    out = []
    for m, fs in zip(mf, slots):
        out.append(m)
        for f in fs:
            if isinstance(f, list): out.extend(f)
            else: out.append(f)
    return out
def spread(slots, items, lo, hi):
    n = len(items); m = hi - lo
    for i, it in enumerate(items): slots[lo + (i * m) // n].append(it)

def q_addr():
    t0 = S_T[0]
    return [salu(f"s_lshl_b32 s{t0}, s{S_SIG}, 19"), salu(f"s_add_u32 s{S_O[0]}, s{S_OW}, s{t0}"),
            salu(f"s_lshl_b32 s{t0}, s{S_SIG}, 7"), salu(f"s_add_u32 s{S_O[1]}, s{S_OX}, s{t0}"),
            salu(f"s_add_u32 s{S_SIG}, s{S_SIG}, 1"), salu(f"s_cmp_eq_u32 s{S_SIG}, 10"), salu(f"s_cselect_b32 s{S_SIG}, 0, s{S_SIG}")]
def q_dma(slot):
    out = []
    for i in range(4):
        g = [m0set(S_LW, slot * QSLOT + i * 4096)]
        if i == 0: g += [dma(V_OFFA, SRDA, S_O[0])]
        else: g += [salu(f"s_add_u32 s{S_TT}, s{S_O[0]}, {i*16*8192}"), dma(V_OFFA, SRDA, S_TT)]
        out.append(g)
    for i in range(6):
        g = [m0set(S_LX, slot * QSLOT + i * 4096)]
        if i == 0: g += [dma(V_OFFB, SRDB, S_O[1])]
        else: g += [salu(f"s_add_u32 s{S_TT}, s{S_O[1]}, {i*32*1280}"), dma(V_OFFB, SRDB, S_TT)]
        out.append(g)
    return out
KVROT = True
def kv_addr(which):
    c = S_KC if which == 0 else S_VC
    a, b = (S_O[0], S_O[1]) if which == 0 else (S_O[2], S_O[3])
    t = S_TT
    return [salu(f"s_add_u32 s{t}, s{c}, s{S_KROT}"), salu(f"s_and_b32 s{t}, s{t}, 15"), salu(f"s_cmp_lt_u32 s{c}, 16"),
            salu(f"s_cselect_b32 s{t}, s{t}, 16"), salu(f"s_lshl_b32 s{t}, s{t}, 13"), salu(f"s_add_u32 s{a}, s{t}, s{S_KB}"),
            salu(f"s_add_u32 s{b}, s{a}, 4096"), salu(f"s_add_u32 s{c}, s{c}, 1")]
def kv_dma(kslot, vslot, flags):
    out = []
    for j in range(4):
        sl = kslot if j < 2 else vslot
        if KVROT:
            pre = kv_addr(j // 2) if j % 2 == 0 else []
            post = nop(0)
        else:
            pre = []
            post = salu(f"s_add_u32 s{S_O[j]}, s{S_O[j]}, 8192")
        out.append([pre + [m0set(S_L[j], sl * ASLOT)], dma(V_L16, SRDK if j < 2 else SRDV, S_O[j], flags), post])
    return out

def q_frag_reads(slot, e, st):
    out = []
    for qt in range(3): out.append(ds128(QB[st] + 4*qt, A_X[e], slot * QSLOT + qt * 2048))
    for T in range(8):
        o = slot * QSLOT + e * 8192
        out.append(dstr(QA[st] + 4*T, A_W[T], o)); out.append(dstr(QA[st] + 4*T + 2, A_W[T], o + 1024))
    return out

_pl = [0]
def polite(n):
    _pl[0] += 1
    lab = f"Lpol{_pl[0]}"
    return [raw(f"s_cmp_eq_u32 s{S_BR}, 0"), raw(f"s_cbranch_scc1 {lab}"), waitcnt(vm=n), label(lab)]
POL = None
QRD = 19
def q_half(st, reads, extra):
    mf = [mfma16(acc(T, qt), QA[st] + 4*T, QB[st] + 4*qt, acc(T, qt)) for T in range(8) for qt in range(3)]
    slots = [[] for _ in mf]
    for i, rd in enumerate(reads): slots[(i * QRD) // 19 if i < 19 else 23].append(rd)
    n = len(extra)
    for j, grp in enumerate(extra):
        k = (j * 22) // max(n, 1)
        slots[k].append(grp[0]); slots[k+1] += [x for x in grp[1:] if getattr(x, "kind", "") != "nop"]
    return emit(mf, slots)

def q_iter(p, kind, kvflags=""):
    out = q_half(0, q_frag_reads(p, 1, 1), [])
    out += [waitcnt(vm=0, lgkm=0) if kind != 'K1' else waitcnt(lgkm=0), barrier()]
    if kind == 'Q':
        extra = [q_addr()] + q_dma(p)
        if POL:
            for pos, n in POL: extra[pos] = extra[pos] + polite(n)
    elif kind == 'K0': extra = kv_dma(0, 0, kvflags) + kv_dma(1, 1, kvflags)
    else: extra = kv_dma(2, 2, kvflags) + kv_dma(3, 3, kvflags)
    reads = q_frag_reads(1 - p, 0, 0) if kind != 'K1' else []
    out += q_half(1, reads, extra)
    return out

def q_switch():
    o = []
    A = lambda t: o.append(raw(t))
    t0, t1 = S_T[0], S_T[1]
    A(f"s_lshr_b32 s{t0}, s{S_W}, 1"); A(f"s_lshl_b32 s{t0}, s{t0}, 2"); A(f"s_and_b32 s{t1}, s{S_W}, 1"); A(f"s_add_u32 s{t0}, s{t0}, s{t1}")
    A(f"s_lshl_b32 s{t0}, s{t0}, 4"); A(f"s_lshl_b32 s{t1}, s{S_W}, 10"); A(f"s_add_u32 s{S_L[0]}, s{t0}, s{t1}")
    A(f"s_add_u32 s{S_L[1]}, s{S_L[0]}, {4096+128}")
    A(f"s_mul_i32 s{t0}, s{S_W}, 1056"); A(f"s_add_u32 s{S_L[2]}, s{t0}, {VOFF}"); A(f"s_add_u32 s{S_L[3]}, s{S_L[2]}, {4*1056}")
    A(f"s_lshl_b32 s{S_KB}, s{S_W}, 10"); A(f"s_mov_b32 s{S_KC}, 0"); A(f"s_mov_b32 s{S_VC}, 0")
    if KVROT:
        A(f"s_lshr_b32 s{S_KROT}, s{S_ID}, 3"); A(f"s_add_u32 s{S_KROT}, s{S_KROT}, s{S_ID}"); A(f"s_and_b32 s{S_KROT}, s{S_KROT}, 15")
    else:
        A(f"s_mov_b32 s{S_O[0]}, s{S_KB}"); A(f"s_add_u32 s{S_O[1]}, s{S_KB}, 4096"); A(f"s_mov_b32 s{S_O[2]}, s{S_O[0]}"); A(f"s_mov_b32 s{S_O[3]}, s{S_O[1]}")
    return o

def q_convert():
    o = []
    for qt in range(3):
        for T in range(8):
            a = acc(T, qt)
            o.append(pkmul(a, a, f"s[{S_SC}:{S_SC+1}]")); o.append(pkmul(a+2, a+2, f"s[{S_SC}:{S_SC+1}]"))
    for qt in range(3):
        for c in range(4):
            q = qf(qt, c); a = acc(2*c, qt); b = acc(2*c+1, qt)
            o += [cvtpk(q, a, a+1), cvtpk(q+1, a+2, a+3), cvtpk(q+2, b, b+1), cvtpk(q+3, b+2, b+3)]
    for qt in range(3):
        for c in range(4):
            q = qf(qt, c)
            o += [perm16(q, q+2), perm16(q+1, q+3)]
    for i in range(96): o.append(valu("v_mov_b32", ACC + i, "0"))
    if LMF:
        for qt in range(3):
            for i in range(4): o.append(valu("v_mov_b32", LACC[qt] + i, "0"))
        for i in range(4): o.append(valu("v_mov_b32", ONES + i, "0x3f803f80"))
    else:
        for r in LSUM: o.append(valu("v_mov_b32", r, "0"))
    return o

def sreg(j, Tk, qt):
    if Tk == 0: return SX + 4*qt
    return (SY if j % 2 == 0 else SZ) + 4*qt
def preg(j, part, qt):
    base = PB + 6*qt
    if part == 1: return base + 2
    return base + (0 if j % 2 == 0 else 4)
def pop(j, qt): return PB + 6*qt + (0 if j % 2 == 0 else 2)
def k_read(j, i): return ds128(KF + 4*(i % 4), A_K, (j % 4) * ASLOT + (i % 4) * 64 + (i // 4) * 512)
def v_read(j, T):
    o = (j % 4) * ASLOT + T * 32
    d = VF + 4*(T % 4)
    if j % 2 == 0: return [dstr(d, A_V, o), dstr(d+2, A_V, o + 512)]
    return [dstr(d+2, A_V, o), dstr(d, A_V, o + 512)]
def softmax_ops(j, part):
    if XO.get("nosm"): return [nop(0)]
    ops = []
    for qt in range(3):
        s = sreg(j, part, qt); p = preg(j, part, qt)
        ops.append([vexp(s, s), vexp(s+1, s+1), vexp(s+2, s+2), vexp(s+3, s+3),
                    valu("v_add_f32", LSUM[qt], LSUM[qt], s), cvtpk(p, s, s+1), valu("v_add_f32", LSUM[qt], LSUM[qt], s+1),
                    valu("v_add_f32", LSUM[qt], LSUM[qt], s+2), cvtpk(p+1, s+2, s+3), valu("v_add_f32", LSUM[qt], LSUM[qt], s+3)])
    seq = list(ops[0][:4])
    for qt in range(1, 3):
        e = ops[qt][:4]; f = ops[qt-1][4:]
        seq += [e[0], f[0], f[1], e[1], f[2], e[2], f[3], f[4], e[3], f[5]]
    seq += ops[2][4:]
    if LMF: seq = [x for x in seq if not x.txt.startswith("v_add_f32")]
    if XO.get("noadd"): seq = [x for x in seq if not x.txt.startswith("v_add_f32")]
    if XO.get("noexp"): seq = [x for x in seq if not x.txt.startswith("v_exp")]
    return seq
def qk_mfmas(j):
    mf = []
    for Tk in range(2):
        for c in range(4):
            i = Tk*4 + c
            for qt in range(3):
                s = sreg(j, Tk, qt)
                mf.append(mfma16(s, KF + 4*(i % 4), qf(qt, c), None if c == 0 else s))
    return mf
def pv_mfmas(j):
    return [mfma16(acc(T, qt), VF + 4*(T % 4), pop(j, qt), acc(T, qt)) for T in range(8) for qt in range(3)]
def l_mfmas(j):
    return [mfma16(LACC[qt], ONES, pop(j, qt), LACC[qt]) for qt in range(3)]

def h0(s, tail=False):
    sm = softmax_ops(s, 1)
    vr_ = [v_read(s, T) for T in range(4)]
    if tail:
        out = []
        for v in vr_: out += v
        return out + sm
    mf = qk_mfmas(s + 1)
    slots = [[] for _ in mf]
    for i in range(5): slots[3*i].append(k_read(s + 1, i + 3))
    for T in range(4): slots[14 + 2*T].append(vr_[T][0]); slots[15 + 2*T].append(vr_[T][1])
    spread(slots, sm, 0, 23)
    return emit(mf, slots)
ATTVM = 8
XO = {}
BAR2 = False
def h1(s, kvflags, tail=False):
    mf = pv_mfmas(s)
    slots = [[] for _ in mf]
    for T in range(4, 8):
        v = v_read(s, T); slots[3*(T-4) + 2].append(v[0]); slots[3*(T-4) + 3].append(v[1])
    if not tail:
        spread(slots, softmax_ops(s + 1, 0), 0, 23)
        if BAR2:
            if s % 2 == 0:
                slots[16].append([waitcnt(vm=0, lgkm=0), barrier()])
                grps = kv_dma(s % 4, (s + 3) % 4, kvflags) + kv_dma((s + 1) % 4, s % 4, kvflags)
                for j, grp in enumerate(grps):
                    k = 16 + j
                    slots[k].append(grp[0]); slots[k].append(grp[2] if grp[2].kind == "nop" else nop(0)); slots[k].append(grp[1])
                    if grp[2].kind != "nop": slots[k].append(grp[2])
            for i in range(3): slots[17 + i].append(k_read(s + 2, i))
        else:
          if XO.get("nobar"): slots[16].append([waitcnt(lgkm=0)])
          else: slots[16].append([waitcnt(vm=ATTVM, lgkm=0), barrier()])
          for i in range(3): slots[17 + i].append(k_read(s + 2, i))
          if not XO.get("nodma"):
            for j, grp in enumerate(kv_dma((s + 1) % 4, s % 4, kvflags)):
              slots[17 + j].append(grp[0]); slots[18 + j].append(grp[1])
              if grp[2].kind != "nop": slots[19 + j].append(grp[2])
    if LMF:
        lm = l_mfmas(s); slots[2].append(lm[0]); slots[8].append(lm[1]); slots[13].append(lm[2])
    return emit(mf, slots)
def att_prologue(kvflags):
    o = [raw(f"s_sub_u32 s{S_VC}, s{S_VC}, 1")] if KVROT else [raw(f"s_sub_u32 s{S_O[2]}, s{S_O[2]}, 8192"), raw(f"s_sub_u32 s{S_O[3]}, s{S_O[3]}, 8192")]
    o += [waitcnt(vm=14), barrier()]
    for i in range(3): o.append(k_read(0, i))
    mf = qk_mfmas(0)
    slots = [[] for _ in mf]
    for i in range(5): slots[3*i].append(k_read(0, i + 3))
    o += emit(mf, slots)
    o += [waitcnt(vm=8, lgkm=0), barrier()]
    for i in range(3): o.append(k_read(1, i))
    if not BAR2:
        for grp in kv_dma(0, 3, kvflags): o += grp[0] + [nop(0), grp[1], grp[2]]
    o += softmax_ops(0, 0)
    return o

def srd_build(A, dst, ptr, offreg, nrec):
    if offreg is None:
        A(f"s_mov_b32 s{dst}, s{ptr}"); A(f"s_and_b32 s{dst+1}, s{ptr+1}, 0xffff")
    else:
        A(f"s_add_u32 s{dst}, s{ptr}, s{offreg}"); A(f"s_addc_u32 s{dst+1}, s{ptr+1}, 0"); A(f"s_and_b32 s{dst+1}, s{dst+1}, 0xffff")
    A(f"s_mov_b32 s{dst+2}, {nrec}"); A(f"s_mov_b32 s{dst+3}, 0x20000")

def head_prologue(name, opts):
    P = []
    A = lambda t, **k: P.append(raw(t, **k))
    t0, t1, t2 = S_T[0], S_T[1], S_T[2]
    A(f"s_lshr_b32 s{S_HALF}, s2, 8"); A(f"s_and_b32 s{S_ID}, s2, 255")
    if opts.get("split", "branch") == "head":
        A(f"s_bfe_u32 s{S_BR}, s{S_ID}, 0x10002")
    else:
        A(f"s_mov_b32 s{S_BR}, s{S_HALF}")
    A(f"s_mul_i32 s3, s{S_BR}, 40")
    A(f"s_load_dwordx4 s[{S_PTR}:{S_PTR+3}], s[0:1], s3")
    A(f"s_add_u32 s{t1}, s3, 16"); A(f"s_load_dwordx4 s[{S_PTR+4}:{S_PTR+7}], s[0:1], s{t1}")
    A(f"s_load_dwordx2 s[{S_PTR+8}:{S_PTR+9}], s[0:1], 96")
    A(f"s_load_dwordx2 s[{S_DBG}:{S_DBG+1}], s[0:1], 88")
    A(f"s_add_u32 s{t1}, s3, 32"); A(f"s_load_dwordx2 s[{S_PTR+10}:{S_PTR+11}], s[0:1], s{t1}")
    A(f"s_load_dwordx2 s[76:77], s[0:1], 32")
    if opts.get("split", "branch") == "head":
        A(f"s_bfe_u32 s{S_B}, s{S_ID}, 0x10001"); A(f"s_lshl_b32 s{S_B}, s{S_B}, 2"); A(f"s_lshr_b32 s{t1}, s{S_ID}, 6"); A(f"s_add_u32 s{S_B}, s{S_B}, s{t1}")
        A(f"s_and_b32 s{S_H}, s{S_ID}, 1"); A(f"s_lshl_b32 s{S_H}, s{S_H}, 3"); A(f"s_bfe_u32 s{t1}, s{S_ID}, 0x30003"); A(f"s_add_u32 s{S_H}, s{S_H}, s{t1}")
        A(f"s_lshl_b32 s{t1}, s{S_HALF}, 4"); A(f"s_add_u32 s{S_H}, s{S_H}, s{t1}")
    else:
        A(f"s_and_b32 s3, s{S_ID}, 7"); A(f"s_lshr_b32 s{t0}, s{S_ID}, 3")
        A(f"s_lshr_b32 s{S_B}, s3, 2"); A(f"s_lshl_b32 s{S_B}, s{S_B}, 2"); A(f"s_lshr_b32 s{t1}, s{t0}, 3"); A(f"s_add_u32 s{S_B}, s{S_B}, s{t1}")
        A(f"s_and_b32 s{S_H}, s3, 3"); A(f"s_lshl_b32 s{S_H}, s{S_H}, 3"); A(f"s_and_b32 s{t1}, s{t0}, 7"); A(f"s_add_u32 s{S_H}, s{S_H}, s{t1}")
    P.append(valu("v_lshrrev_b32", G, "6", 0)); P.append(valu("v_and_b32", 0, "63", 0))
    A("s_nop 0"); A(f"v_readfirstlane_b32 s{S_W}, v{G}")
    P.append(valu("v_lshrrev_b32", G, "4", 0)); P.append(valu("v_and_b32", M, "15", 0))
    P.append(valu("v_bfe_u32", RR, 0, "2", "2")); P.append(valu("v_and_b32", C, "3", 0))
    P.append(valu("v_lshlrev_b32", V_L16, "4", 0))
    T0, T1 = 16, 17
    A(f"s_lshr_b32 s{t0}, s{S_W}, 1"); A(f"s_and_b32 s{t0}, s{t0}, 1"); A(f"s_lshl_b32 s{t0}, s{t0}, 2")
    P.append(valu("v_or_b32", T0, f"s{t0}", G))
    P.append(valu("v_lshrrev_b32", T1, "1", M)); P.append(valu("v_xor_b32", T0, T0, T1))
    P.append(valu("v_lshlrev_b32", T0, "5", T0))
    P.append(valu("v_and_b32", T1, "1", M)); P.append(valu("v_lshl_add_u32", T0, T1, "4", T0))
    P.append(valu("v_lshl_add_u32", V_OFFA, G, "13", T0))
    A(f"s_and_b32 s{t0}, s{S_W}, 1"); A(f"s_lshl_b32 s{t0}, s{t0}, 2")
    P.append(valu("v_add_u32", T0, f"s{t0}", G))
    P.append(valu("v_and_b32", T1, "7", 0)); P.append(valu("v_xor_b32", T1, T1, T0)); P.append(valu("v_lshlrev_b32", T1, "4", T1))
    P.append(valu("v_lshrrev_b32", T0, "3", 0)); P.append(valu("v_mul_u32_u24", T0, "1280", T0)); P.append(valu("v_add_u32", V_OFFB, T0, T1))
    A(f"s_lshl_b32 s{S_OW}, s{S_W}, 15"); A(f"s_mul_i32 s{S_OX}, s{S_W}, {8*1280}")
    A(f"s_lshl_b32 s{S_LW}, s{S_W}, 10"); A(f"s_add_u32 s{S_LX}, s{S_LW}, {XOFF}")
    if opts.get("rot", False):
        A(f"s_and_b32 s{t0}, s{S_H}, 7"); A(f"s_lshr_b32 s{t1}, s{t0}, 2"); A(f"s_add_u32 s{t0}, s{t0}, s{t1}")
        A(f"s_and_b32 s{t1}, s{S_B}, 3"); A(f"s_mul_i32 s{t1}, s{t1}, 5"); A(f"s_add_u32 s{t1}, s{t1}, 1"); A(f"s_lshr_b32 s{t1}, s{t1}, 1")
        A(f"s_add_u32 s{S_SIG}, s{t0}, s{t1}")
        A(f"s_cmp_ge_u32 s{S_SIG}, 10"); A(f"s_cselect_b32 s{t0}, 10, 0"); A(f"s_sub_u32 s{S_SIG}, s{S_SIG}, s{t0}")
    else:
        A(f"s_mov_b32 s{S_SIG}, 0")
    A("s_waitcnt lgkmcnt(0)")
    if opts.get("pstamp"): P.extend(stamp(4))
    px, pk, pv, pw, pws = S_PTR, S_PTR+2, S_PTR+4, S_PTR+6, S_PTR+8
    srd_build(A, SRDD, S_DBG, None, 256)
    A(f"s_or_b32 s{t0}, s2, s{S_W}"); A(f"s_cmp_eq_u32 s{t0}, 0"); A(f"s_cbranch_scc0 {name}_nononce")
    A(f"s_memrealtime s[{S_T[3]}:{S_T[4]}]"); A("s_waitcnt lgkmcnt(0)"); A(f"s_or_b32 s{t0}, s{S_T[3]}, 1")
    P.append(valu("v_mov_b32", V_DUMMY, f"s{t0}")); P.append(valu("v_mov_b32", V_TCH, "0"))
    A(f"buffer_store_dword v{V_DUMMY}, v{V_TCH}, s[{SRDD}:{SRDD+3}], 0 offen sc1")
    P.append(label(f"{name}_nononce"))
    if opts.get("hold", True): hold_setup(name, opts, A, P)
    A(f"s_lshl_b32 s{t0}, s{S_H}, 8"); srd_build(A, SRDA, pw, t0, 640*8192 - 31*256)
    A(f"s_mul_i32 s{t0}, s{S_B}, 245760"); srd_build(A, SRDB, px, t0, 245760)
    P.extend(q_addr())
    for grp in q_dma(0): P.extend([grp[0], nop(0)] + grp[1:])
    if opts.get("pstamp"): P.extend(stamp(5))
    pa, pb = opts.get('prioA', 0), opts.get('prioBq', 0)
    if pa or pb:
        A(f"s_cmp_eq_u32 s{S_HALF}, 0"); A(f"s_cbranch_scc0 {name}_prb"); A(f"s_setprio {pa}"); A(f"s_branch {name}_noprio")
        P.append(label(f"{name}_prb")); A(f"s_setprio {pb}"); P.append(label(f"{name}_noprio"))
    A(f"s_lshl_b32 s{t1}, s{S_B}, 5"); A(f"s_add_u32 s{t1}, s{t1}, s{S_H}"); A(f"s_lshl_b32 s{t0}, s{t1}, 17")
    srd_build(A, SRDK, pk, t0, 131072); srd_build(A, SRDV, pv, t0, 131072)
    A(f"s_mul_i32 s{t1}, s{S_BR}, {12*1048576}"); A(f"s_lshl_b32 s{t2}, s{S_H}, 15"); A(f"s_add_u32 s{t0}, s{t1}, s{t2}")
    srd_build(A, SRDO, pws, t0, 12*1048576 - 31*32768)
    if opts.get("split", "branch") == "head":
        A(f"s_lshr_b32 s{t0}, s{S_ID}, 3"); A(f"s_lshl_b32 s{t0}, s{t0}, 2"); A(f"s_and_b32 s{t1}, s{S_ID}, 3"); A(f"s_add_u32 s{t0}, s{t0}, s{t1}")
        A(f"s_lshl_b32 s{t1}, s{S_HALF}, 7"); A(f"s_add_u32 s{t0}, s{t0}, s{t1}"); A(f"s_mul_i32 s{t0}, s{t0}, 20480")
    else:
        A(f"s_mul_i32 s{t0}, s{S_ID}, 20480")
    srd_build(A, SRDWO, S_PTR+10, t0, 20480)
    A(f"s_mov_b32 s{S_SC}, 0x3e0293ee"); A(f"s_mov_b32 s{S_SC+1}, 0x3e0293ee")
    P.append(valu("v_and_b32", T0, "1", G)); P.append(valu("v_lshl_or_b32", T0, T0, "2", RR))
    P.append(valu("v_lshl_add_u32", T1, G, "3", RR)); P.append(valu("v_lshlrev_b32", T1, "8", T1))
    P.append(valu("v_lshl_add_u32", T1, C, "3", T1))
    for T in range(8):
        P.append(valu("v_xor_b32", A_W[T], str(T), T0)); P.append(valu("v_lshl_add_u32", A_W[T], A_W[T], "5", T1))
    P.append(valu("v_lshrrev_b32", T0, "1", M)); P.append(valu("v_xor_b32", T0, G, T0)); P.append(valu("v_lshlrev_b32", T0, "4", T0))
    P.append(valu("v_lshl_add_u32", T0, M, "7", T0))
    A(f"s_mul_i32 s3, s{S_W}, {48*128}"); A(f"s_add_u32 s3, s3, {XOFF}")
    P.append(valu("v_add_u32", A_X[0], "s3", T0)); P.append(valu("v_xor_b32", A_X[1], "64", A_X[0]))
    P.append(valu("v_and_b32", T0, "7", M))
    P.append(valu("v_lshrrev_b32", T1, "1", T0)); P.append(valu("v_lshlrev_b32", T1, "2", T1))
    P.append(valu("v_and_b32", A_K, "1", T0)); P.append(valu("v_add_u32", T1, T1, A_K))
    P.append(valu("v_lshlrev_b32", T1, "4", T1)); P.append(valu("v_lshl_add_u32", T1, T0, "10", T1))
    P.append(valu("v_lshrrev_b32", T0, "3", M)); P.append(valu("v_lshl_add_u32", T1, T0, "8", T1))
    P.append(valu("v_and_b32", T0, "1", G)); P.append(valu("v_lshlrev_b32", T0, "1", T0))
    P.append(valu("v_lshrrev_b32", A_K, "1", G)); P.append(valu("v_or_b32", T0, T0, A_K))
    P.append(valu("v_lshl_add_u32", A_K, T0, "4", T1))
    P.append(valu("v_and_b32", T0, "1", G)); P.append(valu("v_lshl_add_u32", T0, T0, "2", RR))
    P.append(valu("v_mul_u32_u24", T0, "1056", T0))
    P.append(valu("v_lshrrev_b32", T1, "1", G)); P.append(valu("v_lshl_add_u32", T0, T1, "8", T0))
    P.append(valu("v_lshl_add_u32", T0, C, "3", T0)); P.append(valu("v_add_u32", A_V, str(VOFF), T0))
    for i in range(96): P.append(valu("v_mov_b32", ACC + i, "0"))
    if opts.get("touch_wo", True) and opts.get("wo_pos") == "pro": P.extend(wo_touch())
    if opts.get("touch_wo", True) and opts.get("wo_pos") == "Bpro":
        A(f"s_cmp_eq_u32 s{S_BR}, 0"); A(f"s_cbranch_scc1 {name}_nowot")
        P.extend(wo_touch())
        A(f"s_mul_i32 s{t0}, s{S_ID}, 20480"); srd_build(A, SRDWO, 76, t0, 20480)
        P.extend(wo_touch()[1:])
        P.append(label(f"{name}_nowot"))
    P.extend(q_addr())
    for grp in q_dma(1): P.extend([grp[0], nop(0)] + grp[1:])
    nt_ = 0
    if opts.get("touch_wo", True) and opts.get("wo_pos") == "pro2":
        tw = wo_touch(); P.extend(tw); nt_ = sum(1 for x in tw if x.kind == "vload")
    P.append(waitcnt(vm=10 + nt_)); P.append(barrier())
    if opts.get("hold"): P.extend(hold_wait(name, opts))
    P.extend(q_frag_reads(0, 0, 0))
    return P

def poll(name, srd, off_sreg, mask_or_val, mode, vtmp, sleep=8):
    o = [raw(f"s_mov_b32 s{S_T[5]}, 200000"), label(f"{name}"), raw(f"v_mov_b32 v{vtmp}, 0", kind="valu", wr=[vtmp]),
         raw(f"buffer_load_dword v{vtmp+1}, v{vtmp}, s[{srd}:{srd+3}], s{off_sreg} offen sc1"),
         raw("s_waitcnt vmcnt(0)"),
         raw(f"v_readfirstlane_b32 s{S_T[6]}, v{vtmp+1}"),
         raw(f"s_sub_u32 s{S_T[5]}, s{S_T[5]}, 1"), raw(f"s_cbranch_scc1 {name}_ok"),
         raw("s_nop 2")]
    if mode == 'bit':
        o += [raw(f"s_and_b32 s{S_T[6]}, s{S_T[6]}, s{mask_or_val}"), raw(f"s_cbranch_scc1 {name}_ok")]
    else:
        o += [raw(f"s_cmp_ge_u32 s{S_T[6]}, {mask_or_val}"), raw(f"s_cbranch_scc1 {name}_ok")]
    o += [raw(f"s_sleep {sleep}"), raw(f"s_branch {name}"), label(f"{name}_ok")]
    return o

FBOFF = 81856
S_FB = 70
S_FB = 78
L_LO, L_HI = "0x2b800000", "0x53800000"
def head_epilogue(name, opts):
    o = [valu("v_mov_b32", V_TCH, "0"), raw(f"s_cmp_eq_u32 s{S_W}, 0"), raw(f"s_cbranch_scc0 {name}_nn"),
         raw(f"buffer_load_dword v{V_DUMMY}, v{V_TCH}, s[{SRDD}:{SRDD+3}], 0 offen sc1", kind="vload", rd=[V_TCH], wr=[V_DUMMY]),
         label(f"{name}_nn"), raw(f"s_mov_b32 s{S_FB}, 0"), label(f"{name}_e0")]
    t = VT
    for qt in range(3):
        l = LSUM[qt]
        o += [valu("v_mov_b32", t[qt], l), perm32(t[qt], l), valu("v_add_f32", l, l, t[qt])]
    for qt in range(3):
        l = LSUM[qt]
        o += [valu("v_mov_b32", t[qt], l), perm16(t[qt], l), valu("v_add_f32", l, l, t[qt])]
    m = S_T[5]
    o += [raw(f"s_mov_b64 s[{m}:{m+1}], 0"), valu("v_mov_b32", 11, L_LO), valu("v_mov_b32", 12, L_HI)]
    for qt in range(3):
        o += [I(f"v_cmp_nle_f32 vcc, v11, v{LSUM[qt]}", rd=[11, LSUM[qt]], kind="valu"), raw("s_nop 1"), raw(f"s_or_b64 s[{m}:{m+1}], s[{m}:{m+1}], vcc"),
              I(f"v_cmp_nge_f32 vcc, v12, v{LSUM[qt]}", rd=[12, LSUM[qt]], kind="valu"), raw("s_nop 1"), raw(f"s_or_b64 s[{m}:{m+1}], s[{m}:{m+1}], vcc")]
    o += [raw(f"s_cmp_lg_u64 s[{m}:{m+1}], 0"), raw(f"s_cselect_b32 s{m}, 1, 0"), raw(f"s_andn2_b32 s{m}, s{m}, s{S_FB}"),
          raw(f"s_lshl_b32 s{m+1}, s{S_W}, 2"), raw(f"s_add_u32 s{m+1}, s{m+1}, {FBOFF}"),
          I(f"v_mov_b32 v11, s{m}", wr=[11], kind="valu"), I(f"v_mov_b32 v12, s{m+1}", wr=[12], kind="valu"), dsw32(12, 11)]
    for qt in range(3): o.append(vrcp(t[qt], LSUM[qt]))
    for qt in range(3):
        o.append(raw(f"s_mul_i32 s{S_T[3]}, s{S_B}, 12")); o.append(raw(f"s_mul_i32 s{S_T[4]}, s{S_W}, 3"))
        o.append(raw(f"s_add_u32 s{S_T[3]}, s{S_T[3]}, s{S_T[4]}")); o.append(raw(f"s_add_u32 s{S_T[3]}, s{S_T[3]}, {qt}"))
        o.append(raw(f"s_lshr_b32 s{S_T[4]}, s{S_T[3]}, 3")); o.append(raw(f"s_lshl_b32 s{S_T[4]}, s{S_T[4]}, 20"))
        o.append(raw(f"s_and_b32 s{S_T[3]}, s{S_T[3]}, 7")); o.append(raw(f"s_lshl_b32 s{S_T[3]}, s{S_T[3]}, 10"))
        o.append(raw(f"s_add_u32 s{S_T[qt]}, s{S_T[3]}, s{S_T[4]}"))
    for qt in range(3):
        for c in range(4):
            a = acc(2*c, qt); b = acc(2*c+1, qt)
            for r in range(4):
                o.append(valu("v_mul_f32", a + r, a + r, t[qt])); o.append(valu("v_mul_f32", b + r, b + r, t[qt]))
            o += [cvtpk(a, a, a+1), cvtpk(a+1, a+2, a+3), cvtpk(a+2, b, b+1), cvtpk(a+3, b+2, b+3)]
            o.append(bstore(a, 4, V_L16, SRDO, S_T[qt], flags=opts.get("stflags", "sc1")))
            if c < 3: o.append(raw(f"s_add_u32 s{S_T[qt]}, s{S_T[qt]}, 8192"))
    o += [waitcnt(vm=0, lgkm=0), barrier()]
    o += [valu("v_mov_b32", 12, str(FBOFF)), ds128(160, 12, 0), waitcnt(lgkm=0),
          valu("v_or_b32", 160, 160, 161), valu("v_or_b32", 162, 162, 163), valu("v_or_b32", 160, 160, 162), raw("s_nop 0"),
          raw(f"v_readfirstlane_b32 s{S_T[2]}, v160"), raw("s_nop 3"), raw(f"s_cmp_lg_u32 s{S_T[2]}, 0"), raw(f"s_cbranch_scc1 {name}_fb")]
    t0, t1 = S_T[0], S_T[1]
    o += [raw(f"s_cmp_eq_u32 s{S_W}, 0"), raw(f"s_cbranch_scc0 {name}_nopub"),
          raw(f"v_readfirstlane_b32 s{S_NONCE}, v{V_DUMMY}"), raw("s_nop 3"),
          raw(f"s_cmp_lg_u32 s{S_NONCE}, 0"), raw(f"s_cbranch_scc1 {name}_pn_done"), raw(f"s_mov_b32 s{t0}, 0")]
    o += poll(f"{name}_pn", SRDD, t0, 1, 'ge', V_TCH)
    o += [raw(f"s_mov_b32 s{S_NONCE}, s{S_T[6]}"), label(f"{name}_pn_done"),
          raw(f"s_lshl_b32 s{t0}, s{S_BR}, 3"), raw(f"s_add_u32 s{t0}, s{t0}, s{S_B}"), raw(f"s_mul_i32 s{t0}, s{t0}, 384"),
          raw(f"s_lshl_b32 s{t1}, s{S_H}, 2"), raw(f"s_add_u32 s{t0}, s{t0}, s{t1}"), raw(f"s_add_u32 s{t0}, s{t0}, {FLAGOFF}")]
    A = lambda t: o.append(raw(t))
    srd_build(A, SRDWO, S_PTR+8, t0, 260)
    o += [raw("v_lshlrev_b32 v16, 7, v0", kind="valu", wr=[16]), raw(f"v_mov_b32 v17, s{S_NONCE}", kind="valu", wr=[17]),
          raw("s_mov_b64 exec, 7"),
          raw(f"buffer_store_dword v17, v16, s[{SRDWO}:{SRDWO+3}], 0 offen sc1")]
    if opts.get("linger"):
        o += [raw("s_mov_b64 exec, 1"), raw(f"s_lshl_b32 s{t0}, s{S_ID}, 7"), raw(f"s_add_u32 s{t0}, s{t0}, {FLAGOFF + 131072}")]
        srd_build(A, SRDWO, S_PTR+8, t0, 4)
        o += [raw("v_mov_b32 v16, 0", kind="valu", wr=[16]), raw("s_nop 1"),
              raw(f"buffer_atomic_swap v17, v16, s[{SRDWO}:{SRDWO+3}], 0 offen sc0 sc1"), raw("s_waitcnt vmcnt(0)"),
              raw(f"v_readfirstlane_b32 s{t1}, v17"), raw("s_nop 3"),
              raw(f"s_cmp_eq_u32 s{t1}, s{S_NONCE}"), raw(f"s_cbranch_scc0 {name}_nopub"),
              raw(f"s_mov_b32 s{S_T[5]}, {opts.get('linger_polls', 6)}"), raw(f"s_mov_b32 s{t0}, 128"),
              label(f"{name}_lg"),
              raw(f"buffer_load_dword v17, v16, s[{SRDD}:{SRDD+3}], s{t0} offen sc1"), raw("s_waitcnt vmcnt(0)"),
              raw(f"v_readfirstlane_b32 s{t1}, v17"),
              raw(f"s_sub_u32 s{S_T[5]}, s{S_T[5]}, 1"), raw(f"s_cbranch_scc1 {name}_nopub"), raw("s_nop 2"),
              raw(f"s_cmp_ge_u32 s{t1}, 240"), raw(f"s_cbranch_scc1 {name}_nopub"),
              raw(f"s_sleep {opts.get('linger_sleep', 96)}"), raw(f"s_branch {name}_lg")]
    o += [label(f"{name}_nopub")]
    return o

def head_fallback(name):
    MX = [246, 247, 248]; NM = [184, 188, 192]; TT = 249
    def reset_off():
        return [raw(f"s_lshl_b32 s{S_O[0]}, s{S_W}, 10"), raw(f"s_add_u32 s{S_O[1]}, s{S_O[0]}, 4096"),
                raw(f"s_mov_b32 s{S_O[2]}, s{S_O[0]}"), raw(f"s_mov_b32 s{S_O[3]}, s{S_O[1]}"), raw(f"s_mov_b32 s{S_CNT}, 16")]
    def load(js):
        o = [barrier()]
        for j in js:
            o += [m0set(S_L[j], 0), nop(0), dma(V_L16, SRDK if j < 2 else SRDV, S_O[j]), salu(f"s_add_u32 s{S_O[j]}, s{S_O[j]}, 8192")]
        return o + [waitcnt(vm=0), barrier()]
    def qk(cinit):
        o = []
        for Tk in range(2):
            for c in range(4): o.append(k_read(0, Tk*4 + c))
            for c in range(4):
                for qt in range(3):
                    s = sreg(0, Tk, qt)
                    o.append(mfma16(s, KF + 4*c, qf(qt, c), cinit[qt] if c == 0 else s))
        return o
    pre = [label(f"{name}_fb")] + [valu("v_mov_b32", r, "0xff800000") for r in MX] + reset_off()
    b1 = [label(f"{name}_fb1")] + load([0, 1]) + qk([None]*3)
    for qt in range(3):
        for Tk in range(2):
            s = sreg(0, Tk, qt)
            b1 += [valu("v_max3_f32", MX[qt], MX[qt], s, s+1), valu("v_max3_f32", MX[qt], MX[qt], s+2, s+3)]
    b1 += [waitcnt(lgkm=0), raw(f"s_sub_u32 s{S_CNT}, s{S_CNT}, 1"), raw(f"s_cmp_lg_u32 s{S_CNT}, 0"), raw(f"s_cbranch_scc1 {name}_fb1")]
    mid = []
    for qt in range(3):
        mid += [valu("v_mov_b32", TT, MX[qt]), perm32(TT, MX[qt]), valu("v_max_f32", MX[qt], MX[qt], TT),
                valu("v_mov_b32", TT, MX[qt]), perm16(TT, MX[qt]), valu("v_max_f32", MX[qt], MX[qt], TT)]
        for i in range(4): mid.append(I(f"v_sub_f32 v{NM[qt]+i}, 0, v{MX[qt]}", rd=[MX[qt]], wr=[NM[qt]+i], kind="valu"))
    for i in range(96): mid.append(valu("v_mov_b32", ACC + i, "0"))
    for r in LSUM: mid.append(valu("v_mov_b32", r, "0"))
    mid += reset_off()
    b2 = [label(f"{name}_fb2")] + load([0, 1, 2, 3]) + qk(NM)
    for part in range(2):
        for qt in range(3):
            s = sreg(0, part, qt); p = preg(0, part, qt)
            b2 += [vexp(s+i, s+i) for i in range(4)] + [valu("v_add_f32", LSUM[qt], LSUM[qt], s+i) for i in range(4)] + [cvtpk(p, s, s+1), cvtpk(p+1, s+2, s+3)]
    for half in range(2):
        for T in range(4*half, 4*half + 4): b2 += v_read(0, T)
        for T in range(4*half, 4*half + 4):
            for qt in range(3): b2.append(mfma16(acc(T, qt), VF + 4*(T % 4), pop(0, qt), acc(T, qt)))
    b2 += [waitcnt(lgkm=0), raw(f"s_sub_u32 s{S_CNT}, s{S_CNT}, 1"), raw(f"s_cmp_lg_u32 s{S_CNT}, 0"), raw(f"s_cbranch_scc1 {name}_fb2")]
    post = [nop(15), raw(f"s_mov_b32 s{S_FB}, 1"), raw(f"s_branch {name}_e0")]
    p1, l1, st = resolve_loop([nop(15)] + pre, b1)
    p2, l2, st = resolve_loop(mid, b2, st)
    po, _ = resolve(post, st)
    return p1 + l1 + p2 + l2 + po

V_HOLD = 253
SRDH = 24
SRDH = 100 - 4
def hold_setup(name, opts, A, P):
    t0 = S_T[0]
    A(f"s_lshl_b32 s{t0}, s{S_ID}, 7"); A(f"s_add_u32 s{t0}, s{t0}, {FLAGOFF + 65536}")
    srd_build(A, SRDH, S_PTR+8, t0, 4)
    P.append(valu("v_mov_b32", V_TCH, "0"))
    A(f"buffer_load_dword v{V_HOLD}, v{V_TCH}, s[{SRDH}:{SRDH+3}], 0 offen sc1")
def hold_wait(name, opts):
    o = []
    A = lambda t: o.append(raw(t))
    A(f"s_cmp_eq_u32 s{S_BR}, 0"); A(f"s_cbranch_scc1 {name}_hw_end")
    A(f"s_cmp_eq_u32 s{S_W}, 0"); A(f"s_cbranch_scc0 {name}_hw_done")
    A("s_waitcnt vmcnt(0)"); A(f"v_readfirstlane_b32 s{S_T[4]}, v{V_HOLD}"); A(f"s_mov_b32 s{S_T[5]}, {opts.get('hold_polls', 24)}")
    o.append(label(f"{name}_hw"))
    A(f"buffer_load_dword v{V_HOLD}, v{V_TCH}, s[{SRDH}:{SRDH+3}], 0 offen sc1"); A("s_waitcnt vmcnt(0)")
    A(f"v_readfirstlane_b32 s{S_T[6]}, v{V_HOLD}")
    A(f"s_sub_u32 s{S_T[5]}, s{S_T[5]}, 1"); A(f"s_cbranch_scc1 {name}_hw_done"); A("s_nop 2")
    A(f"s_cmp_lg_u32 s{S_T[6]}, s{S_T[4]}"); A(f"s_cbranch_scc1 {name}_hw_done")
    A(f"s_sleep {opts.get('hold_sleep', 8)}"); A(f"s_branch {name}_hw")
    o.append(label(f"{name}_hw_done")); o.append(barrier()); o.append(label(f"{name}_hw_end"))
    return o
def hold_release(name):
    return [raw(f"s_or_b32 s{S_T[0]}, s{S_BR}, s{S_W}"), raw(f"s_cmp_eq_u32 s{S_T[0]}, 0"), raw(f"s_cbranch_scc0 {name}_hr"),
            raw(f"v_add_u32 v{V_HOLD}, 1, v{V_HOLD}", kind="valu", rd=[V_HOLD], wr=[V_HOLD]), raw(f"v_mov_b32 v{V_TCH}, 0", kind="valu", wr=[V_TCH]),
            raw("s_mov_b64 exec, 1"),
            raw(f"buffer_store_dword v{V_HOLD}, v{V_TCH}, s[{SRDH}:{SRDH+3}], 0 offen sc1"),
            raw("s_mov_b64 exec, -1"), raw("s_nop 1"), label(f"{name}_hr")]

WOT = "sc"
def wo_touch():
    if WOT == "sc":
        return [valu("v_lshlrev_b32", V_TCH, "7", 0), raw(f"s_lshl_b32 s{S_T[0]}, s{S_W}, 13"), bload(V_DUMMY, 1, V_TCH, SRDWO, S_T[0])]
    o = [nop(0), raw(f"s_mul_i32 s{S_T[0]}, s{S_W}, 5120")]
    o += [bload(V_DUMMY, 1, V_L16, SRDWO, S_T[0], off=j*1024 if j < 4 else 0) for j in range(4)]
    o += [raw(f"s_add_u32 s{S_T[0]}, s{S_T[0]}, 4096"), bload(V_DUMMY, 1, V_L16, SRDWO, S_T[0])]
    return o

def att_prio(name, opts):
    pa, pb = opts.get('prioAttA', opts.get('prioAtt', 0)), opts.get('prioAttB', opts.get('prioAtt', 0))
    if pa == pb: return [raw(f"s_setprio {pa}")]
    return [raw(f"s_cmp_eq_u32 s{S_HALF}, 0"), raw(f"s_cbranch_scc0 {name}_apb"), raw(f"s_setprio {pa}"), raw(f"s_branch {name}_apd"),
            label(f"{name}_apb"), raw(f"s_setprio {pb}"), label(f"{name}_apd")]

def build_head(name, opts, ST):
    global POL, KVROT, ATTVM, XO, LMF, QRD, BAR2, WOT
    WOT = opts.get('wot', 'sc')
    BAR2 = opts.get('bar2', False)
    QRD = opts.get('qrd', 19)
    LMF = opts.get('lmfma', False)
    XO = opts.get('x', {})
    ATTVM = opts.get('att_vm', 8)
    POL = opts.get("polite"); KVROT = opts.get("kvrot", True)
    kvflags = opts.get("kvflags", "nt")
    pro = head_prologue(name, opts) + ST(1) + [raw(f"s_mov_b32 s{S_CNT}, 4")]
    qb = [label(f"{name}_qloop")]
    for p in range(2): qb += q_iter(p, 'Q')
    qb += [raw(f"s_sub_u32 s{S_CNT}, s{S_CNT}, 1"), raw(f"s_cmp_lg_u32 s{S_CNT}, 0"), raw(f"s_cbranch_scc1 {name}_qloop")]
    pro2, qb2, st = resolve_loop(pro, qb)
    last = ST(2)
    if opts.get("hold", True):
        if opts.get("hold_at", "q") == "q": last += hold_release(name)
    if opts.get("touch_wo", True) and opts.get("wo_pos") == "q8": last += wo_touch()
    last += q_switch() + q_iter(0, 'K0', kvflags) + q_iter(1, 'K1', kvflags)
    last2, st = resolve(last, st)
    wot = wo_touch() if opts.get("touch_wo", True) and opts.get("wo_pos", "mid") == "mid" else []
    mid = [waitcnt(lgkm=0)] + ST(3) + wot + att_prio(name, opts) + q_convert() + att_prologue(kvflags) + [raw(f"s_mov_b32 s{S_CNT}, 4")]
    body = [label(f"{name}_aloop")]
    for u in range(3): body += h0(u) + h1(u, kvflags)
    body += [raw(f"s_cmp_eq_u32 s{S_CNT}, 1"), raw(f"s_cbranch_scc1 {name}_tail")]
    body += h0(3) + h1(3, kvflags)
    body += [raw(f"s_sub_u32 s{S_CNT}, s{S_CNT}, 1"), raw(f"s_branch {name}_aloop")]
    mid2, st1 = resolve(mid, st)
    _, body2, _ = resolve_loop([], body, st1)
    idx = [i for i, x in enumerate(body2) if x.txt.startswith(f"s_cbranch_scc1 {name}_tail")][0]
    _, sA = resolve(body2, st1.copy(), insert=False)
    _, sB = resolve(body2[:idx+1], sA.copy(), insert=False)
    tail = [label(f"{name}_tail")] + h0(3, tail=True) + h1(3, kvflags, tail=True) + ([] if opts.get("pstamp") else ST(4)) + (wo_touch() if opts.get("touch_wo", True) and opts.get("wo_pos") == "epi" else []) + head_epilogue(name, opts)
    tail2, _ = resolve(tail, sB)
    return pro2 + qb2 + last2 + mid2 + body2 + tail2

WSLOT = 4224; NR = 3
OACC = 16
OBF = 144
OAF = 240
O_OFFO, O_OFFW, O_AW, O_FL, O_PV = [1, 2], 3, 4, 5, 6
OG, OM, ORR, OC = 7, 8, 9, 10
OS_OO = 32; OS_OW = [33, 34, 35, 36]; OS_L = 37
OSRDO, OSRDW, OSRDOUT, OSRDF = 12, 16, 20, 24
OS_OFF, OS_WO0, OS_OO0 = 8, 40, 41
OS_AV, OS_ISS, OS_ROT = 38, 39, 9
OS_A2 = 46
OS_WB = 10
def oacc(rt, Tc): return OACC + (rt * 4 + Tc) * 4
_sel = [0]
def o_select(name, opts):
    _sel[0] += 1
    L = f"{name}_s{_sel[0]}"
    t0, t1 = S_T[0], S_T[1]
    return [raw(f"s_cmp_lg_u32 s{OS_AV}, 0"), raw(f"s_cbranch_scc1 {L}_have"),
         raw(f"s_mov_b32 s{t0}, 32"), raw(f"s_cmp_eq_u32 s{OS_ISS}, -1"), raw(f"s_cbranch_scc1 {L}_addr"),
         raw(f"s_mov_b32 s{S_T[5]}, 200000"),
         label(f"{L}_poll"),
         raw(f"buffer_load_dword v{O_PV}, v{O_FL}, s[{OSRDF}:{OSRDF+3}], 0 offen sc1")] + ([
         raw(f"buffer_load_dword v11, v{O_FL}, s[{OSRDF}:{OSRDF+3}], s{OS_WB} offen sc1"), raw("s_waitcnt vmcnt(0)"),
         raw(f"v_cmp_eq_u32 s[{OS_A2}:{OS_A2+1}], s{S_NONCE}, v11"),
         raw(f"v_cmp_eq_u32 vcc, s{S_NONCE}, v{O_PV}"), raw("s_nop 3"), raw(f"s_and_b64 vcc, vcc, s[{OS_A2}:{OS_A2+1}]")] if opts.get("waitB") else [raw("s_waitcnt vmcnt(0)"),
         raw(f"v_cmp_eq_u32 vcc, s{S_NONCE}, v{O_PV}")]) + [
         raw(f"s_sub_u32 s{S_T[5]}, s{S_T[5]}, 1"), raw(f"s_cselect_b32 s{t1}, -1, 0"), raw("s_nop 2"),
         raw(f"s_and_b32 s{t0}, vcc_lo, vcc_hi"),
         raw(f"s_or_b32 s{t1}, s{t1}, s{t0}"), raw(f"s_andn2_b32 s{OS_AV}, s{t1}, s{OS_ISS}"),
         raw(f"s_cbranch_scc1 {L}_have"), raw(f"s_sleep {opts.get('sleep', 8)}"), raw(f"s_branch {L}_poll"),
         label(f"{L}_have"),
         raw(f"s_mov_b32 s{OS_A2}, s{OS_AV}"), raw(f"s_mov_b32 s{OS_A2+1}, s{OS_AV}"),
         raw(f"s_lshr_b64 s[{OS_A2}:{OS_A2+1}], s[{OS_A2}:{OS_A2+1}], s{OS_ROT}"),
         raw(f"s_ff1_i32_b32 s{t0}, s{OS_A2}"), raw(f"s_add_u32 s{t0}, s{t0}, s{OS_ROT}"), raw(f"s_and_b32 s{t0}, s{t0}, 31"),
         raw(f"s_lshl_b32 s{t1}, 1, s{t0}"), raw(f"s_or_b32 s{OS_ISS}, s{OS_ISS}, s{t1}"), raw(f"s_andn2_b32 s{OS_AV}, s{OS_AV}, s{t1}"),
         label(f"{L}_addr"),
         raw(f"s_lshl_b32 s{t1}, s{t0}, 15"), raw(f"s_add_u32 s{OS_OO}, s{OS_OO0}, s{t1}"),
         raw(f"s_mul_i32 s{t1}, s{t0}, {128*1280}"), raw(f"s_add_u32 s{OS_OW[0]}, s{OS_WO0}, s{t1}"),
         raw(f"s_add_u32 s{OS_OW[1]}, s{OS_OW[0]}, 1280"), raw(f"s_add_u32 s{OS_OW[2]}, s{OS_OW[0]}, 2560"), raw(f"s_add_u32 s{OS_OW[3]}, s{OS_OW[0]}, 3840")]
OFL = 'sc1'
def o_loads(u):
    o = []
    for j in range(8): o.append([bload(OBF + 32*u + 4*j, 4, O_OFFO[j//4], OSRDO, OS_OO, off=(j%4)*1024, flags=OFL)])
    for b in range(4): o.append([m0set(OS_L, u * WSLOT + b * 1056), dma(O_OFFW, OSRDW, OS_OW[b])])
    return o
def o_aread(u, Tc):
    off = u * WSLOT + Tc * 32
    return [dstr(OAF + 4*Tc, O_AW, off), dstr(OAF + 4*Tc + 2, O_AW, off + 512)]

def build_oproj(name, opts, ST):
    global OFL
    OFL = opts.get('oflags', 'sc1')
    P = []
    A = lambda t, **k: P.append(raw(t, **k))
    t0, t1, t2 = S_T[0], S_T[1], S_T[2]
    if opts.get("prioT"): A(f"s_setprio {opts['prioT']}")
    A(f"s_sub_u32 s{S_ID}, s2, 512")
    if opts.get("omap", "xcd") == "xcd":
        A(f"s_and_b32 s3, s{S_ID}, 7"); A(f"s_lshr_b32 s{S_BR}, s3, 2"); A(f"s_lshr_b32 s{OS_OFF}, s{S_ID}, 3")
        A(f"s_mul_i32 s{t1}, s{OS_OFF}, 6554"); A(f"s_lshr_b32 s{t1}, s{t1}, 16")
        A(f"s_and_b32 s{t2}, s3, 3"); A(f"s_mul_i32 s{t2}, s{t2}, 3"); A(f"s_add_u32 s6, s{t2}, s{t1}")
        A(f"s_mul_i32 s{t1}, s{t1}, 10"); A(f"s_sub_u32 s7, s{OS_OFF}, s{t1}")
    else:
        A(f"s_cmp_ge_u32 s{S_ID}, 120"); A(f"s_cselect_b32 s{S_BR}, 1, 0")
        A(f"s_mul_i32 s{t0}, s{S_BR}, 120"); A(f"s_sub_u32 s{S_ID}, s{S_ID}, s{t0}")
        A(f"s_and_b32 s3, s{S_ID}, 7"); A(f"s_lshr_b32 s{OS_OFF}, s{S_ID}, 3")
        A(f"s_mul_i32 s{t1}, s{OS_OFF}, 13108"); A(f"s_lshr_b32 s{t1}, s{t1}, 16")
        A(f"s_lshr_b32 s{t2}, s3, 1"); A(f"s_mul_i32 s{t2}, s{t2}, 3"); A(f"s_add_u32 s6, s{t2}, s{t1}")
        A(f"s_mul_i32 s{t1}, s{t1}, 5"); A(f"s_sub_u32 s7, s{OS_OFF}, s{t1}"); A(f"s_and_b32 s{t2}, s3, 1"); A(f"s_mul_i32 s{t2}, s{t2}, 5"); A(f"s_add_u32 s7, s7, s{t2}")
    A(f"s_mul_i32 s3, s{S_BR}, 40"); A("s_add_u32 s3, s3, 32")
    A(f"s_load_dwordx2 s[{S_PTR}:{S_PTR+1}], s[0:1], s3")
    A(f"s_load_dwordx4 s[{S_PTR+4}:{S_PTR+7}], s[0:1], 80")
    A(f"s_load_dwordx2 s[{S_PTR+8}:{S_PTR+9}], s[0:1], 96")
    P.append(valu("v_lshrrev_b32", OG, "6", 0)); P.append(valu("v_and_b32", 0, "63", 0))
    A("s_nop 0"); A(f"v_readfirstlane_b32 s{S_W}, v{OG}")
    P.append(valu("v_lshrrev_b32", OG, "4", 0)); P.append(valu("v_and_b32", OM, "15", 0))
    P.append(valu("v_bfe_u32", ORR, 0, "2", "2")); P.append(valu("v_and_b32", OC, "3", 0))
    P.append(valu("v_lshlrev_b32", O_OFFO[0], "4", 0)); P.append(valu("v_add_u32", O_OFFO[1], "4096", O_OFFO[0]))
    P.append(valu("v_lshrrev_b32", 16, "3", 0)); P.append(valu("v_mul_u32_u24", 16, "5120", 16))
    P.append(valu("v_and_b32", 17, "7", 0)); P.append(valu("v_lshl_add_u32", O_OFFW, 17, "4", 16))
    A(f"s_mul_i32 s{OS_L}, s{S_W}, {NR*WSLOT}")
    P.append(valu("v_mul_u32_u24", 16, "1056", ORR)); P.append(valu("v_lshl_add_u32", 16, OG, "7", 16)); P.append(valu("v_lshl_add_u32", 16, OC, "3", 16))
    P.append(valu("v_add_u32", O_AW, f"s{OS_L}", 16))
    A(f"s_lshl_b32 s{OS_OO0}, s{S_W}, 13"); A(f"s_mul_i32 s{OS_WO0}, s{S_W}, {32*1280}")
    A("s_waitcnt lgkmcnt(0)")
    A(f"s_mul_i32 s{t0}, s{S_BR}, 12"); A(f"s_add_u32 s{t0}, s{t0}, s6"); A(f"s_lshl_b32 s{t0}, s{t0}, 20")
    srd_build(A, OSRDO, S_PTR+8, t0, 0 if opts.get('no_o') else 1048576)
    A(f"s_lshl_b32 s{t0}, s7, 7"); srd_build(A, OSRDW, S_PTR, t0, 0 if opts.get('no_w') else 4096*1280 - 9*128)
    A(f"s_mul_i32 s{t0}, s6, {128*2560}"); A(f"s_mul_i32 s{t1}, s{S_BR}, 1280"); A(f"s_add_u32 s{t0}, s{t0}, s{t1}")
    A(f"s_lshl_b32 s{t1}, s7, 7"); A(f"s_add_u32 s{t0}, s{t0}, s{t1}")
    srd_build(A, OSRDOUT, S_PTR+4, t0, 127*2560 + 128)
    srd_build(A, SRDD, S_PTR+6, None, 256)
    if opts.get("linger"):
        A(f"s_cmp_eq_u32 s{S_W}, 0"); A(f"s_cbranch_scc0 {name}_nocnt")
        P.append(valu("v_mov_b32", 16, "128")); P.append(valu("v_mov_b32", 17, "1"))
        A("s_mov_b64 exec, 1"); A(f"buffer_atomic_add v17, v16, s[{SRDD}:{SRDD+3}], 0 offen sc1"); A("s_mov_b64 exec, -1")
        P.append(label(f"{name}_nocnt"))
    A(f"s_mov_b32 s{t0}, 0")
    A(f"s_cmp_eq_u32 s{S_W}, 0"); A(f"s_cbranch_scc0 {name}_nw")
    P.extend(poll(f"{name}_pn", SRDD, t0, 1, 'ge', O_FL, sleep=8))
    P.append(I(f"v_mov_b32 v{O_PV}, s{S_T[6]}", wr=[O_PV], kind="valu")); P.append(valu("v_mov_b32", O_FL, str(FBOFF)))
    P.append(dsw32(O_FL, O_PV)); P.append(waitcnt(lgkm=0))
    P.append(label(f"{name}_nw"))
    P.append(barrier())
    P.append(valu("v_mov_b32", O_FL, str(FBOFF))); P.append(dsr32(O_PV, O_FL)); P.append(waitcnt(lgkm=0))
    A(f"v_readfirstlane_b32 s{S_NONCE}, v{O_PV}"); A("s_nop 3")
    A(f"s_mul_i32 s{t0}, s6, 43691"); A(f"s_lshr_b32 s{t0}, s{t0}, 16")
    A(f"s_lshl_b32 s{t1}, s6, 7"); A(f"s_add_u32 s{t1}, s{t1}, 127"); A(f"s_mul_i32 s{t1}, s{t1}, 21846"); A(f"s_lshr_b32 s{t1}, s{t1}, 22")
    A(f"s_sub_u32 s{t1}, s{t1}, s{t0}"); A(f"s_mul_i32 s{t1}, s{t1}, 384")
    A(f"s_lshl_b32 s{t2}, s{S_BR}, 3"); A(f"s_add_u32 s{t0}, s{t0}, s{t2}"); A(f"s_mul_i32 s{t0}, s{t0}, 384")
    A(f"s_mul_i32 s{t2}, s7, 21846"); A(f"s_lshr_b32 s{t2}, s{t2}, 16"); A(f"s_mul_i32 s{t2}, s{t2}, 3"); A(f"s_sub_u32 s{t2}, s7, s{t2}")
    A(f"s_lshl_b32 s{t2}, s{t2}, 7"); A(f"s_add_u32 s{t0}, s{t0}, s{t2}"); A(f"s_add_u32 s{t0}, s{t0}, {FLAGOFF}")
    srd_build(A, OSRDF, S_PTR+8, t0, 512 + (8*384 if opts.get("waitB") else 0))
    A(f"s_cmp_eq_u32 s{S_BR}, 0"); A(f"s_cselect_b32 s{OS_WB}, {8*384}, 0")
    P.append(valu("v_and_b32", O_FL, "31", 0)); P.append(valu("v_lshlrev_b32", O_FL, "2", O_FL))
    P.append(valu("v_lshrrev_b32", 16, "5", 0)); P.append(valu("v_mul_lo_u32", 16, f"s{t1}", 16)); P.append(valu("v_add_u32", O_FL, O_FL, 16))
    A(f"s_mov_b32 s{OS_AV}, 0"); A(f"s_mov_b32 s{OS_ISS}, 0")
    if opts.get("trot"):
        A(f"s_memrealtime s[{OS_A2}:{OS_A2+1}]"); A("s_waitcnt lgkmcnt(0)")
        A(f"s_sub_u32 s{t0}, s{OS_A2}, s{S_NONCE}"); A(f"s_mul_i32 s{t0}, s{t0}, {65536 // opts['trot']}"); A(f"s_lshr_b32 s{t0}, s{t0}, 16")
        A(f"s_and_b32 s{t1}, s{OS_OFF}, {opts.get('rotmask', 3)}"); A(f"s_add_u32 s{t0}, s{t0}, s{t1}"); A(f"s_and_b32 s{OS_ROT}, s{t0}, 31")
    else:
        A(f"s_and_b32 s{OS_ROT}, s{OS_OFF}, {opts.get('rotmask', 7)}")
    for i in range(128): P.append(valu("v_mov_b32", OACC + i, "0"))
    P.extend(ST(1))
    for u in range(2):
        P.extend(o_select(name, opts))
        for grp in o_loads(u): P.extend(grp if len(grp) == 1 else [grp[0], nop(0)] + grp[1:])
    P.append(waitcnt(vm=12))
    for Tc in range(4): P.extend(o_aread(0, Tc))
    A(f"s_mov_b32 s{S_CNT}, 10")
    body = [label(f"{name}_loop")]
    for u in range(3):
        mf = [mfma16(oacc(rt, Tc), OAF + 4*Tc, OBF + 32*u + 4*rt, oacc(rt, Tc)) for Tc in range(4) for rt in range(8)]
        slots = [[] for _ in mf]
        slots[0] += o_select(name, opts)
        nbefore = 0
        for j, grp in enumerate(o_loads((u + 2) % 3)):
            k = 1 + (j * opts.get('ospread', 22)) // 12
            if len(grp) == 1:
                slots[k] += grp; ki = k
            else:
                slots[k].append(grp[0]); slots[k+1] += grp[1:]; ki = k + 1
            if ki < 24: nbefore += 1
        slots[24].insert(0, waitcnt(vm=nbefore))
        n = (u + 1) % 3
        slots[24] += o_aread(n, 0); slots[25] += o_aread(n, 1); slots[26] += o_aread(n, 2); slots[31] += o_aread(n, 3)
        body += emit(mf, slots)
    if opts.get("ostamp"):
        for cnt, idx in ((8, 2), (4, 3)):
            body += [raw(f"s_cmp_eq_u32 s{S_CNT}, {cnt}"), raw(f"s_cbranch_scc0 {name}_os{idx}")] + ST(idx) + [label(f"{name}_os{idx}")]
    body += [raw(f"s_sub_u32 s{S_CNT}, s{S_CNT}, 1"), raw(f"s_cmp_lg_u32 s{S_CNT}, 0"), raw(f"s_cbranch_scc1 {name}_loop")]
    P2, body2, st = resolve_loop(P, body)
    E = []
    A = lambda t, **k: E.append(raw(t, **k))
    for u in range(2):
        mf = [mfma16(oacc(rt, Tc), OAF + 4*Tc, OBF + 32*u + 4*rt, oacc(rt, Tc)) for Tc in range(4) for rt in range(8)]
        slots = [[] for _ in mf]
        if u == 0:
            slots[24].append(waitcnt(vm=0))
            slots[24] += o_aread(1, 0); slots[25] += o_aread(1, 1); slots[26] += o_aread(1, 2); slots[31] += o_aread(1, 3)
        E += emit(mf, slots)
    E.extend(ST(4 if opts.get("ostamp") else 2))
    E.append(valu("v_lshlrev_b32", 11, "4", 0))
    A(f"s_lshl_b32 s{t0}, s{S_W}, 14"); E.append(valu("v_add_u32", 12, f"s{t0}", 11))
    A(f"s_lshl_b32 s{t0}, s{S_W}, 12"); E.append(valu("v_add_u32", 13, f"s{t0}", 11))
    E.append(valu("v_and_b32", 14, "1", OG)); E.append(valu("v_lshlrev_b32", 14, "1", 14)); E.append(valu("v_lshrrev_b32", 15, "1", OG))
    E.append(valu("v_or_b32", 14, 14, 15)); E.append(valu("v_lshlrev_b32", 14, "4", 14))
    E.append(valu("v_mul_u32_u24", 15, "2560", OM)); E.append(valu("v_add_u32", 14, 14, 15))
    A(f"s_mul_i32 s{t0}, s{S_W}, {16*2560}"); A(f"s_add_u32 s{t1}, s{t0}, {64*2560}")
    E.append(waitcnt(vm=0, lgkm=0)); E.append(barrier())
    for r in range(2):
        for tl in range(16): E.append(dsw128(12, OACC + (16*r + tl)*4, tl*1024))
        E.append(waitcnt(lgkm=0)); E.append(barrier())
        for t in range(4):
            for p in range(4): E.append(ds128(144 + (p*4 + t)*4, 13, p*16384 + t*1024))
        for pr in range(2):
            for h in range(2):
                t = 2*pr + h
                for i in range(4):
                    a = 144 + t*4 + i
                    E.append(valu("v_add_f32", a, a, a + 16)); E.append(valu("v_add_f32", a + 32, a + 32, a + 48))
                for i in range(4):
                    a = 144 + t*4 + i
                    E.append(valu("v_add_f32", a, a, a + 32))
            a = 144 + 2*pr*4; b = a + 4; q = 240 + (r*2 + pr)*4
            E += [cvtpk(q, a, a+1), cvtpk(q+1, a+2, a+3), cvtpk(q+2, b, b+1), cvtpk(q+3, b+2, b+3), perm16(q, q+2), perm16(q+1, q+3)]
            E.append(bstore(q, 4, 14, OSRDOUT, t0 if r == 0 else t1, off=pr*64, flags=opts.get('outflags', '')))
        if r == 0: E.append(waitcnt(lgkm=0)); E.append(barrier())
    E2, _ = resolve(E, st)
    return P2 + body2 + E2

def build(name, stamps=False, **opts):
    ST = (lambda i, real=False: stamp(i, real)) if stamps else (lambda i, real=False: [])
    out = [label(name)] + ST(0) + ST(6, True)
    out += [raw("s_cmp_ge_u32 s2, 752"), raw(f"s_cbranch_scc1 {name}_end"), raw("s_cmp_ge_u32 s2, 512"), raw(f"s_cbranch_scc1 {name}_oproj")]
    if opts.get("skip_heads") == "holdB":
        out += [raw("s_cmp_lt_u32 s2, 256"), raw(f"s_cbranch_scc1 {name}_end"), raw("s_mov_b32 s4, 40"), label(f"{name}_hb"), raw("s_sleep 32"),
                raw("s_sub_u32 s4, s4, 1"), raw("s_cmp_lg_u32 s4, 0"), raw(f"s_cbranch_scc1 {name}_hb"), raw("s_endpgm")]
    elif opts.get("skip_heads"): out += [raw("s_endpgm")]
    fin_h = []; fin_o = []
    if stamps:
        fin_h = [waitcnt(vm=0), raw("s_mov_b64 exec, -1")] + ([] if opts.get("pstamp") else ST(5)) + ST(7, True) + stamp_dump(8, S_PTR+8, S_W, 64<<20, 16, nwaves_shift=2)
        fin_o = [waitcnt(vm=0)] + ([] if opts.get("ostamp") else ST(3) + ST(4)) + ST(5) + ST(7, True) + stamp_dump(8, S_PTR+8, S_W, 64<<20, 16, nwaves_shift=2)
    out += build_head(name + "_h", opts, ST) + fin_h + [raw("s_endpgm")] + head_fallback(name + "_h")
    out += [label(f"{name}_oproj")] + build_oproj(name + "_o", opts, ST) + fin_o
    out += [label(f"{name}_end"), raw("s_endpgm")]
    return out
```

```python
from asmlib import *

QSLOT = 40960; XOFF = 16384
ASLOT = 16896; VOFF = 8448
ACC = 16; QF = 112
SX, SY, SZ = 160, 172, 184
PB = 196; KF = 214; VF = 230
QA = [160, 204]; QB = [192, 236]
V_OFFA, V_OFFB, V_L16 = 1, 2, 3
A_W = [4, 5, 6, 7, 8, 9, 10, 11]; A_X = [12, 15]; A_K = 13; A_V = 14
LSUM = [4, 5, 6]; VT = [7, 8, 9, 10]
ONES = 250
LACC = [4, 8, 246]
LMF = False
G, M, RR, C = 248, 249, 250, 251
V_DUMMY = 255; V_TCH = 254
S_W, S_BR, S_B, S_H = 4, 5, 6, 7
S_HALF = 79
SRDA, SRDB, SRDK, SRDV, SRDO, SRDD = 12, 16, 20, 24, 28, 64
S_O = [32, 33, 34, 35]; S_L = [38, 39, 40, 41]; S_CNT = 42
S_OW, S_OX, S_LW, S_LX, S_SIG, S_TT = 8, 9, 36, 37, 10, 11
S_KC, S_VC, S_KB, S_KROT = 8, 9, 36, 37
S_T = [43, 44, 45, 46, 47, 48, 49]
S_SC = 50
S_PTR = 52
SRDWO = 68
S_ID = 72
S_DBG = 74
FLAGOFF = 32 << 20
S_NONCE = 73

def acc(T, qt): return ACC + (T * 3 + qt) * 4
def qf(qt, c): return QF + (qt * 4 + c) * 4

def emit(mf, slots):
    out = []
    for m, fs in zip(mf, slots):
        out.append(m)
        for f in fs:
            if isinstance(f, list): out.extend(f)
            else: out.append(f)
    return out
def spread(slots, items, lo, hi):
    n = len(items); m = hi - lo
    for i, it in enumerate(items): slots[lo + (i * m) // n].append(it)

def q_addr():
    t0 = S_T[0]
    return [salu(f"s_lshl_b32 s{t0}, s{S_SIG}, 19"), salu(f"s_add_u32 s{S_O[0]}, s{S_OW}, s{t0}"),
            salu(f"s_lshl_b32 s{t0}, s{S_SIG}, 7"), salu(f"s_add_u32 s{S_O[1]}, s{S_OX}, s{t0}"),
            salu(f"s_add_u32 s{S_SIG}, s{S_SIG}, 1"), salu(f"s_cmp_eq_u32 s{S_SIG}, 10"), salu(f"s_cselect_b32 s{S_SIG}, 0, s{S_SIG}")]
def q_dma(slot):
    out = []
    for i in range(4):
        g = [m0set(S_LW, slot * QSLOT + i * 4096)]
        if i == 0: g += [dma(V_OFFA, SRDA, S_O[0])]
        else: g += [salu(f"s_add_u32 s{S_TT}, s{S_O[0]}, {i*16*8192}"), dma(V_OFFA, SRDA, S_TT)]
        out.append(g)
    for i in range(6):
        g = [m0set(S_LX, slot * QSLOT + i * 4096)]
        if i == 0: g += [dma(V_OFFB, SRDB, S_O[1])]
        else: g += [salu(f"s_add_u32 s{S_TT}, s{S_O[1]}, {i*32*1280}"), dma(V_OFFB, SRDB, S_TT)]
        out.append(g)
    return out
KVROT = True
def kv_addr(which):
    c = S_KC if which == 0 else S_VC
    a, b = (S_O[0], S_O[1]) if which == 0 else (S_O[2], S_O[3])
    t = S_TT
    return [salu(f"s_add_u32 s{t}, s{c}, s{S_KROT}"), salu(f"s_and_b32 s{t}, s{t}, 15"), salu(f"s_cmp_lt_u32 s{c}, 16"),
            salu(f"s_cselect_b32 s{t}, s{t}, 16"), salu(f"s_lshl_b32 s{t}, s{t}, 13"), salu(f"s_add_u32 s{a}, s{t}, s{S_KB}"),
            salu(f"s_add_u32 s{b}, s{a}, 4096"), salu(f"s_add_u32 s{c}, s{c}, 1")]
def kv_dma(kslot, vslot, flags):
    out = []
    for j in range(4):
        sl = kslot if j < 2 else vslot
        if KVROT:
            pre = kv_addr(j // 2) if j % 2 == 0 else []
            post = nop(0)
        else:
            pre = []
            post = salu(f"s_add_u32 s{S_O[j]}, s{S_O[j]}, 8192")
        out.append([pre + [m0set(S_L[j], sl * ASLOT)], dma(V_L16, SRDK if j < 2 else SRDV, S_O[j], flags), post])
    return out

def q_frag_reads(slot, e, st):
    out = []
    for qt in range(3): out.append(ds128(QB[st] + 4*qt, A_X[e], slot * QSLOT + qt * 2048))
    for T in range(8):
        o = slot * QSLOT + e * 8192
        out.append(dstr(QA[st] + 4*T, A_W[T], o)); out.append(dstr(QA[st] + 4*T + 2, A_W[T], o + 1024))
    return out

_pl = [0]
def polite(n):
    _pl[0] += 1
    lab = f"Lpol{_pl[0]}"
    return [raw(f"s_cmp_eq_u32 s{S_BR}, 0"), raw(f"s_cbranch_scc1 {lab}"), waitcnt(vm=n), label(lab)]
POL = None
QRD = 19
def q_half(st, reads, extra):
    mf = [mfma16(acc(T, qt), QA[st] + 4*T, QB[st] + 4*qt, acc(T, qt)) for T in range(8) for qt in range(3)]
    slots = [[] for _ in mf]
    for i, rd in enumerate(reads): slots[(i * QRD) // 19 if i < 19 else 23].append(rd)
    n = len(extra)
    for j, grp in enumerate(extra):
        k = (j * 22) // max(n, 1)
        slots[k].append(grp[0]); slots[k+1] += [x for x in grp[1:] if getattr(x, "kind", "") != "nop"]
    return emit(mf, slots)

def q_iter(p, kind, kvflags=""):
    out = q_half(0, q_frag_reads(p, 1, 1), [])
    out += [waitcnt(vm=0, lgkm=0) if kind != 'K1' else waitcnt(lgkm=0), barrier()]
    if kind == 'Q':
        extra = [q_addr()] + q_dma(p)
        if POL:
            for pos, n in POL: extra[pos] = extra[pos] + polite(n)
    elif kind == 'K0': extra = kv_dma(0, 0, kvflags) + kv_dma(1, 1, kvflags)
    else: extra = kv_dma(2, 2, kvflags) + kv_dma(3, 3, kvflags)
    reads = q_frag_reads(1 - p, 0, 0) if kind != 'K1' else []
    out += q_half(1, reads, extra)
    return out

def q_switch():
    o = []
    A = lambda t: o.append(raw(t))
    t0, t1 = S_T[0], S_T[1]
    A(f"s_lshr_b32 s{t0}, s{S_W}, 1"); A(f"s_lshl_b32 s{t0}, s{t0}, 2"); A(f"s_and_b32 s{t1}, s{S_W}, 1"); A(f"s_add_u32 s{t0}, s{t0}, s{t1}")
    A(f"s_lshl_b32 s{t0}, s{t0}, 4"); A(f"s_lshl_b32 s{t1}, s{S_W}, 10"); A(f"s_add_u32 s{S_L[0]}, s{t0}, s{t1}")
    A(f"s_add_u32 s{S_L[1]}, s{S_L[0]}, {4096+128}")
    A(f"s_mul_i32 s{t0}, s{S_W}, 1056"); A(f"s_add_u32 s{S_L[2]}, s{t0}, {VOFF}"); A(f"s_add_u32 s{S_L[3]}, s{S_L[2]}, {4*1056}")
    A(f"s_lshl_b32 s{S_KB}, s{S_W}, 10"); A(f"s_mov_b32 s{S_KC}, 0"); A(f"s_mov_b32 s{S_VC}, 0")
    if KVROT:
        A(f"s_lshr_b32 s{S_KROT}, s{S_ID}, 3"); A(f"s_add_u32 s{S_KROT}, s{S_KROT}, s{S_ID}"); A(f"s_and_b32 s{S_KROT}, s{S_KROT}, 15")
    else:
        A(f"s_mov_b32 s{S_O[0]}, s{S_KB}"); A(f"s_add_u32 s{S_O[1]}, s{S_KB}, 4096"); A(f"s_mov_b32 s{S_O[2]}, s{S_O[0]}"); A(f"s_mov_b32 s{S_O[3]}, s{S_O[1]}")
    return o

def q_convert():
    o = []
    for qt in range(3):
        for T in range(8):
            a = acc(T, qt)
            o.append(pkmul(a, a, f"s[{S_SC}:{S_SC+1}]")); o.append(pkmul(a+2, a+2, f"s[{S_SC}:{S_SC+1}]"))
    for qt in range(3):
        for c in range(4):
            q = qf(qt, c); a = acc(2*c, qt); b = acc(2*c+1, qt)
            o += [cvtpk(q, a, a+1), cvtpk(q+1, a+2, a+3), cvtpk(q+2, b, b+1), cvtpk(q+3, b+2, b+3)]
    for qt in range(3):
        for c in range(4):
            q = qf(qt, c)
            o += [perm16(q, q+2), perm16(q+1, q+3)]
    for i in range(96): o.append(valu("v_mov_b32", ACC + i, "0"))
    if LMF:
        for qt in range(3):
            for i in range(4): o.append(valu("v_mov_b32", LACC[qt] + i, "0"))
        for i in range(4): o.append(valu("v_mov_b32", ONES + i, "0x3f803f80"))
    else:
        for r in LSUM: o.append(valu("v_mov_b32", r, "0"))
    return o

def sreg(j, Tk, qt):
    if Tk == 0: return SX + 4*qt
    return (SY if j % 2 == 0 else SZ) + 4*qt
def preg(j, part, qt):
    base = PB + 6*qt
    if part == 1: return base + 2
    return base + (0 if j % 2 == 0 else 4)
def pop(j, qt): return PB + 6*qt + (0 if j % 2 == 0 else 2)
def k_read(j, i): return ds128(KF + 4*(i % 4), A_K, (j % 4) * ASLOT + (i % 4) * 64 + (i // 4) * 512)
def v_read(j, T):
    o = (j % 4) * ASLOT + T * 32
    d = VF + 4*(T % 4)
    if j % 2 == 0: return [dstr(d, A_V, o), dstr(d+2, A_V, o + 512)]
    return [dstr(d+2, A_V, o), dstr(d, A_V, o + 512)]
def softmax_ops(j, part):
    if XO.get("nosm"): return [nop(0)]
    ops = []
    for qt in range(3):
        s = sreg(j, part, qt); p = preg(j, part, qt)
        ops.append([vexp(s, s), vexp(s+1, s+1), vexp(s+2, s+2), vexp(s+3, s+3),
                    valu("v_add_f32", LSUM[qt], LSUM[qt], s), cvtpk(p, s, s+1), valu("v_add_f32", LSUM[qt], LSUM[qt], s+1),
                    valu("v_add_f32", LSUM[qt], LSUM[qt], s+2), cvtpk(p+1, s+2, s+3), valu("v_add_f32", LSUM[qt], LSUM[qt], s+3)])
    seq = list(ops[0][:4])
    for qt in range(1, 3):
        e = ops[qt][:4]; f = ops[qt-1][4:]
        seq += [e[0], f[0], f[1], e[1], f[2], e[2], f[3], f[4], e[3], f[5]]
    seq += ops[2][4:]
    if LMF: seq = [x for x in seq if not x.txt.startswith("v_add_f32")]
    if XO.get("noadd"): seq = [x for x in seq if not x.txt.startswith("v_add_f32")]
    if XO.get("noexp"): seq = [x for x in seq if not x.txt.startswith("v_exp")]
    return seq
def qk_mfmas(j):
    mf = []
    for Tk in range(2):
        for c in range(4):
            i = Tk*4 + c
            for qt in range(3):
                s = sreg(j, Tk, qt)
                mf.append(mfma16(s, KF + 4*(i % 4), qf(qt, c), None if c == 0 else s))
    return mf
def pv_mfmas(j):
    return [mfma16(acc(T, qt), VF + 4*(T % 4), pop(j, qt), acc(T, qt)) for T in range(8) for qt in range(3)]
def l_mfmas(j):
    return [mfma16(LACC[qt], ONES, pop(j, qt), LACC[qt]) for qt in range(3)]

def h0(s, tail=False):
    sm = softmax_ops(s, 1)
    vr_ = [v_read(s, T) for T in range(4)]
    if tail:
        out = []
        for v in vr_: out += v
        return out + sm
    mf = qk_mfmas(s + 1)
    slots = [[] for _ in mf]
    for i in range(5): slots[3*i].append(k_read(s + 1, i + 3))
    for T in range(4): slots[14 + 2*T].append(vr_[T][0]); slots[15 + 2*T].append(vr_[T][1])
    spread(slots, sm, 0, 23)
    return emit(mf, slots)
ATTVM = 8
XO = {}
BAR2 = False
SPLITB = 0
def h1(s, kvflags, tail=False):
    mf = pv_mfmas(s)
    slots = [[] for _ in mf]
    for T in range(4, 8):
        v = v_read(s, T); slots[3*(T-4) + 2].append(v[0]); slots[3*(T-4) + 3].append(v[1])
    if not tail:
        spread(slots, softmax_ops(s + 1, 0), 0, 23)
        if BAR2:
            if s % 2 == 0:
                slots[16].append([waitcnt(vm=0, lgkm=0), barrier()])
                grps = kv_dma(s % 4, (s + 3) % 4, kvflags)
                if not SPLITB: grps += kv_dma((s + 1) % 4, s % 4, kvflags)
            else:
                grps = kv_dma(s % 4, (s - 1) % 4, kvflags) if SPLITB else []
            for j, grp in enumerate(grps):
                k = (16 + j) if (s % 2 == 0 or SPLITB != 2) else (4 + 3*j)
                slots[k].append(grp[0]); slots[k].append(grp[2] if grp[2].kind == "nop" else nop(0)); slots[k].append(grp[1])
                if grp[2].kind != "nop": slots[k].append(grp[2])
            for i in range(3): slots[17 + i].append(k_read(s + 2, i))
        else:
          if XO.get("nobar"): slots[16].append([waitcnt(lgkm=0)])
          else: slots[16].append([waitcnt(vm=ATTVM, lgkm=0), barrier()])
          for i in range(3): slots[17 + i].append(k_read(s + 2, i))
          if not XO.get("nodma"):
            for j, grp in enumerate(kv_dma((s + 1) % 4, s % 4, kvflags)):
              slots[17 + j].append(grp[0]); slots[18 + j].append(grp[1])
              if grp[2].kind != "nop": slots[19 + j].append(grp[2])
    if LMF:
        lm = l_mfmas(s); slots[2].append(lm[0]); slots[8].append(lm[1]); slots[13].append(lm[2])
    return emit(mf, slots)
def att_prologue(kvflags):
    o = [raw(f"s_sub_u32 s{S_VC}, s{S_VC}, 1")] if KVROT else [raw(f"s_sub_u32 s{S_O[2]}, s{S_O[2]}, 8192"), raw(f"s_sub_u32 s{S_O[3]}, s{S_O[3]}, 8192")]
    o += [waitcnt(vm=14), barrier()]
    for i in range(3): o.append(k_read(0, i))
    mf = qk_mfmas(0)
    slots = [[] for _ in mf]
    for i in range(5): slots[3*i].append(k_read(0, i + 3))
    o += emit(mf, slots)
    o += [waitcnt(vm=8, lgkm=0), barrier()]
    for i in range(3): o.append(k_read(1, i))
    if not BAR2:
        for grp in kv_dma(0, 3, kvflags): o += grp[0] + [nop(0), grp[1], grp[2]]
    o += softmax_ops(0, 0)
    return o

def srd_build(A, dst, ptr, offreg, nrec):
    if offreg is None:
        A(f"s_mov_b32 s{dst}, s{ptr}"); A(f"s_and_b32 s{dst+1}, s{ptr+1}, 0xffff")
    else:
        A(f"s_add_u32 s{dst}, s{ptr}, s{offreg}"); A(f"s_addc_u32 s{dst+1}, s{ptr+1}, 0"); A(f"s_and_b32 s{dst+1}, s{dst+1}, 0xffff")
    A(f"s_mov_b32 s{dst+2}, {nrec}"); A(f"s_mov_b32 s{dst+3}, 0x20000")

def head_prologue(name, opts):
    P = []
    A = lambda t, **k: P.append(raw(t, **k))
    t0, t1, t2 = S_T[0], S_T[1], S_T[2]
    A(f"s_lshr_b32 s{S_HALF}, s2, 8"); A(f"s_and_b32 s{S_ID}, s2, 255")
    if opts.get("split", "branch") == "head":
        A(f"s_bfe_u32 s{S_BR}, s{S_ID}, 0x10002")
    else:
        A(f"s_mov_b32 s{S_BR}, s{S_HALF}")
    A(f"s_mul_i32 s3, s{S_BR}, 40")
    A(f"s_load_dwordx4 s[{S_PTR}:{S_PTR+3}], s[0:1], s3")
    A(f"s_add_u32 s{t1}, s3, 16"); A(f"s_load_dwordx4 s[{S_PTR+4}:{S_PTR+7}], s[0:1], s{t1}")
    A(f"s_load_dwordx2 s[{S_PTR+8}:{S_PTR+9}], s[0:1], 96")
    A(f"s_load_dwordx2 s[{S_DBG}:{S_DBG+1}], s[0:1], 88")
    A(f"s_add_u32 s{t1}, s3, 32"); A(f"s_load_dwordx2 s[{S_PTR+10}:{S_PTR+11}], s[0:1], s{t1}")
    A(f"s_load_dwordx2 s[76:77], s[0:1], 32")
    if opts.get("split", "branch") == "head":
        A(f"s_bfe_u32 s{S_B}, s{S_ID}, 0x10001"); A(f"s_lshl_b32 s{S_B}, s{S_B}, 2"); A(f"s_lshr_b32 s{t1}, s{S_ID}, 6"); A(f"s_add_u32 s{S_B}, s{S_B}, s{t1}")
        A(f"s_and_b32 s{S_H}, s{S_ID}, 1"); A(f"s_lshl_b32 s{S_H}, s{S_H}, 3"); A(f"s_bfe_u32 s{t1}, s{S_ID}, 0x30003"); A(f"s_add_u32 s{S_H}, s{S_H}, s{t1}")
        A(f"s_lshl_b32 s{t1}, s{S_HALF}, 4"); A(f"s_add_u32 s{S_H}, s{S_H}, s{t1}")
    else:
        A(f"s_and_b32 s3, s{S_ID}, 7"); A(f"s_lshr_b32 s{t0}, s{S_ID}, 3")
        A(f"s_lshr_b32 s{S_B}, s3, 2"); A(f"s_lshl_b32 s{S_B}, s{S_B}, 2"); A(f"s_lshr_b32 s{t1}, s{t0}, 3"); A(f"s_add_u32 s{S_B}, s{S_B}, s{t1}")
        A(f"s_and_b32 s{S_H}, s3, 3"); A(f"s_lshl_b32 s{S_H}, s{S_H}, 3"); A(f"s_and_b32 s{t1}, s{t0}, 7"); A(f"s_add_u32 s{S_H}, s{S_H}, s{t1}")
    P.append(valu("v_lshrrev_b32", G, "6", 0)); P.append(valu("v_and_b32", 0, "63", 0))
    A("s_nop 0"); A(f"v_readfirstlane_b32 s{S_W}, v{G}")
    P.append(valu("v_lshrrev_b32", G, "4", 0)); P.append(valu("v_and_b32", M, "15", 0))
    P.append(valu("v_bfe_u32", RR, 0, "2", "2")); P.append(valu("v_and_b32", C, "3", 0))
    P.append(valu("v_lshlrev_b32", V_L16, "4", 0))
    T0, T1 = 16, 17
    A(f"s_lshr_b32 s{t0}, s{S_W}, 1"); A(f"s_and_b32 s{t0}, s{t0}, 1"); A(f"s_lshl_b32 s{t0}, s{t0}, 2")
    P.append(valu("v_or_b32", T0, f"s{t0}", G))
    P.append(valu("v_lshrrev_b32", T1, "1", M)); P.append(valu("v_xor_b32", T0, T0, T1))
    P.append(valu("v_lshlrev_b32", T0, "5", T0))
    P.append(valu("v_and_b32", T1, "1", M)); P.append(valu("v_lshl_add_u32", T0, T1, "4", T0))
    P.append(valu("v_lshl_add_u32", V_OFFA, G, "13", T0))
    A(f"s_and_b32 s{t0}, s{S_W}, 1"); A(f"s_lshl_b32 s{t0}, s{t0}, 2")
    P.append(valu("v_add_u32", T0, f"s{t0}", G))
    P.append(valu("v_and_b32", T1, "7", 0)); P.append(valu("v_xor_b32", T1, T1, T0)); P.append(valu("v_lshlrev_b32", T1, "4", T1))
    P.append(valu("v_lshrrev_b32", T0, "3", 0)); P.append(valu("v_mul_u32_u24", T0, "1280", T0)); P.append(valu("v_add_u32", V_OFFB, T0, T1))
    A(f"s_lshl_b32 s{S_OW}, s{S_W}, 15"); A(f"s_mul_i32 s{S_OX}, s{S_W}, {8*1280}")
    A(f"s_lshl_b32 s{S_LW}, s{S_W}, 10"); A(f"s_add_u32 s{S_LX}, s{S_LW}, {XOFF}")
    if opts.get("rot", False):
        A(f"s_and_b32 s{t0}, s{S_H}, 7"); A(f"s_lshr_b32 s{t1}, s{t0}, 2"); A(f"s_add_u32 s{t0}, s{t0}, s{t1}")
        A(f"s_and_b32 s{t1}, s{S_B}, 3"); A(f"s_mul_i32 s{t1}, s{t1}, 5"); A(f"s_add_u32 s{t1}, s{t1}, 1"); A(f"s_lshr_b32 s{t1}, s{t1}, 1")
        A(f"s_add_u32 s{S_SIG}, s{t0}, s{t1}")
        A(f"s_cmp_ge_u32 s{S_SIG}, 10"); A(f"s_cselect_b32 s{t0}, 10, 0"); A(f"s_sub_u32 s{S_SIG}, s{S_SIG}, s{t0}")
    else:
        A(f"s_mov_b32 s{S_SIG}, 0")
    A("s_waitcnt lgkmcnt(0)")
    if opts.get("pstamp"): P.extend(stamp(4))
    px, pk, pv, pw, pws = S_PTR, S_PTR+2, S_PTR+4, S_PTR+6, S_PTR+8
    srd_build(A, SRDD, S_DBG, None, 256)
    A(f"s_or_b32 s{t0}, s2, s{S_W}"); A(f"s_cmp_eq_u32 s{t0}, 0"); A(f"s_cbranch_scc0 {name}_nononce")
    A(f"s_memrealtime s[{S_T[3]}:{S_T[4]}]"); A("s_waitcnt lgkmcnt(0)"); A(f"s_or_b32 s{t0}, s{S_T[3]}, 1")
    P.append(valu("v_mov_b32", V_DUMMY, f"s{t0}")); P.append(valu("v_mov_b32", V_TCH, "0"))
    A(f"buffer_store_dword v{V_DUMMY}, v{V_TCH}, s[{SRDD}:{SRDD+3}], 0 offen sc1")
    P.append(label(f"{name}_nononce"))
    if opts.get("hold", True): hold_setup(name, opts, A, P)
    A(f"s_lshl_b32 s{t0}, s{S_H}, 8"); srd_build(A, SRDA, pw, t0, 640*8192 - 31*256)
    A(f"s_mul_i32 s{t0}, s{S_B}, 245760"); srd_build(A, SRDB, px, t0, 245760)
    if opts.get("s2late"):
        A(f"s_cmp_eq_u32 s{S_HALF}, 0"); A(f"s_cbranch_scc0 {name}_nod0")
    P.extend(q_addr())
    for grp in q_dma(0): P.extend([grp[0], nop(0)] + grp[1:])
    if opts.get("s2late"): P.append(label(f"{name}_nod0"))
    if opts.get("pstamp"): P.extend(stamp(5))
    pa, pb = opts.get('prioA', 0), opts.get('prioBq', 0)
    if pa or pb:
        A(f"s_cmp_eq_u32 s{S_HALF}, 0"); A(f"s_cbranch_scc0 {name}_prb"); A(f"s_setprio {pa}"); A(f"s_branch {name}_noprio")
        P.append(label(f"{name}_prb")); A(f"s_setprio {pb}"); P.append(label(f"{name}_noprio"))
    A(f"s_lshl_b32 s{t1}, s{S_B}, 5"); A(f"s_add_u32 s{t1}, s{t1}, s{S_H}"); A(f"s_lshl_b32 s{t0}, s{t1}, 17")
    srd_build(A, SRDK, pk, t0, 131072); srd_build(A, SRDV, pv, t0, 131072)
    A(f"s_mul_i32 s{t1}, s{S_BR}, {12*1048576}"); A(f"s_lshl_b32 s{t2}, s{S_H}, 15"); A(f"s_add_u32 s{t0}, s{t1}, s{t2}")
    srd_build(A, SRDO, pws, t0, 12*1048576 - 31*32768)
    if opts.get("split", "branch") == "head":
        A(f"s_lshr_b32 s{t0}, s{S_ID}, 3"); A(f"s_lshl_b32 s{t0}, s{t0}, 2"); A(f"s_and_b32 s{t1}, s{S_ID}, 3"); A(f"s_add_u32 s{t0}, s{t0}, s{t1}")
        A(f"s_lshl_b32 s{t1}, s{S_HALF}, 7"); A(f"s_add_u32 s{t0}, s{t0}, s{t1}"); A(f"s_mul_i32 s{t0}, s{t0}, 20480")
    else:
        A(f"s_mul_i32 s{t0}, s{S_ID}, 20480")
    srd_build(A, SRDWO, S_PTR+10, t0, 20480)
    A(f"s_mov_b32 s{S_SC}, 0x3e0293ee"); A(f"s_mov_b32 s{S_SC+1}, 0x3e0293ee")
    P.append(valu("v_and_b32", T0, "1", G)); P.append(valu("v_lshl_or_b32", T0, T0, "2", RR))
    P.append(valu("v_lshl_add_u32", T1, G, "3", RR)); P.append(valu("v_lshlrev_b32", T1, "8", T1))
    P.append(valu("v_lshl_add_u32", T1, C, "3", T1))
    for T in range(8):
        P.append(valu("v_xor_b32", A_W[T], str(T), T0)); P.append(valu("v_lshl_add_u32", A_W[T], A_W[T], "5", T1))
    P.append(valu("v_lshrrev_b32", T0, "1", M)); P.append(valu("v_xor_b32", T0, G, T0)); P.append(valu("v_lshlrev_b32", T0, "4", T0))
    P.append(valu("v_lshl_add_u32", T0, M, "7", T0))
    A(f"s_mul_i32 s3, s{S_W}, {48*128}"); A(f"s_add_u32 s3, s3, {XOFF}")
    P.append(valu("v_add_u32", A_X[0], "s3", T0)); P.append(valu("v_xor_b32", A_X[1], "64", A_X[0]))
    P.append(valu("v_and_b32", T0, "7", M))
    P.append(valu("v_lshrrev_b32", T1, "1", T0)); P.append(valu("v_lshlrev_b32", T1, "2", T1))
    P.append(valu("v_and_b32", A_K, "1", T0)); P.append(valu("v_add_u32", T1, T1, A_K))
    P.append(valu("v_lshlrev_b32", T1, "4", T1)); P.append(valu("v_lshl_add_u32", T1, T0, "10", T1))
    P.append(valu("v_lshrrev_b32", T0, "3", M)); P.append(valu("v_lshl_add_u32", T1, T0, "8", T1))
    P.append(valu("v_and_b32", T0, "1", G)); P.append(valu("v_lshlrev_b32", T0, "1", T0))
    P.append(valu("v_lshrrev_b32", A_K, "1", G)); P.append(valu("v_or_b32", T0, T0, A_K))
    P.append(valu("v_lshl_add_u32", A_K, T0, "4", T1))
    P.append(valu("v_and_b32", T0, "1", G)); P.append(valu("v_lshl_add_u32", T0, T0, "2", RR))
    P.append(valu("v_mul_u32_u24", T0, "1056", T0))
    P.append(valu("v_lshrrev_b32", T1, "1", G)); P.append(valu("v_lshl_add_u32", T0, T1, "8", T0))
    P.append(valu("v_lshl_add_u32", T0, C, "3", T0)); P.append(valu("v_add_u32", A_V, str(VOFF), T0))
    for i in range(96): P.append(valu("v_mov_b32", ACC + i, "0"))
    if opts.get("touch_wo", True) and opts.get("wo_pos") == "pro": P.extend(wo_touch())
    if opts.get("touch_wo", True) and opts.get("wo_pos") == "Bpro":
        A(f"s_cmp_eq_u32 s{S_BR}, 0"); A(f"s_cbranch_scc1 {name}_nowot")
        P.extend(wo_touch())
        A(f"s_mul_i32 s{t0}, s{S_ID}, 20480"); srd_build(A, SRDWO, 76, t0, 20480)
        P.extend(wo_touch()[1:])
        P.append(label(f"{name}_nowot"))
    if opts.get("s2late"):
        A(f"s_cmp_eq_u32 s{S_HALF}, 0"); A(f"s_cbranch_scc1 {name}_nod1")
        P.extend(q_addr())
        for grp in q_dma(0): P.extend([grp[0], nop(0)] + grp[1:])
        P.append(label(f"{name}_nod1"))
    P.extend(q_addr())
    for grp in q_dma(1): P.extend([grp[0], nop(0)] + grp[1:])
    nt_ = 0
    if opts.get("touch_wo", True) and opts.get("wo_pos") == "pro2":
        tw = wo_touch(); P.extend(tw); nt_ = sum(1 for x in tw if x.kind == "vload")
    P.append(waitcnt(vm=10 + nt_)); P.append(barrier())
    if opts.get("hold"): P.extend(hold_wait(name, opts))
    P.extend(q_frag_reads(0, 0, 0))
    return P

def poll(name, srd, off_sreg, mask_or_val, mode, vtmp, sleep=8):
    o = [raw(f"s_mov_b32 s{S_T[5]}, 200000"), label(f"{name}"), raw(f"v_mov_b32 v{vtmp}, 0", kind="valu", wr=[vtmp]),
         raw(f"buffer_load_dword v{vtmp+1}, v{vtmp}, s[{srd}:{srd+3}], s{off_sreg} offen sc1"),
         raw("s_waitcnt vmcnt(0)"),
         raw(f"v_readfirstlane_b32 s{S_T[6]}, v{vtmp+1}"),
         raw(f"s_sub_u32 s{S_T[5]}, s{S_T[5]}, 1"), raw(f"s_cbranch_scc1 {name}_ok"),
         raw("s_nop 2")]
    if mode == 'bit':
        o += [raw(f"s_and_b32 s{S_T[6]}, s{S_T[6]}, s{mask_or_val}"), raw(f"s_cbranch_scc1 {name}_ok")]
    else:
        o += [raw(f"s_cmp_ge_u32 s{S_T[6]}, {mask_or_val}"), raw(f"s_cbranch_scc1 {name}_ok")]
    o += [raw(f"s_sleep {sleep}"), raw(f"s_branch {name}"), label(f"{name}_ok")]
    return o

FBOFF = 81856
S_FB = 70
S_FB = 78
L_LO, L_HI = "0x2b800000", "0x53800000"
def head_epilogue(name, opts):
    o = [valu("v_mov_b32", V_TCH, "0"), raw(f"s_cmp_eq_u32 s{S_W}, 0"), raw(f"s_cbranch_scc0 {name}_nn"),
         raw(f"buffer_load_dword v{V_DUMMY}, v{V_TCH}, s[{SRDD}:{SRDD+3}], 0 offen sc1", kind="vload", rd=[V_TCH], wr=[V_DUMMY]),
         label(f"{name}_nn"), raw(f"s_mov_b32 s{S_FB}, 0"), label(f"{name}_e0")]
    t = VT
    for qt in range(3):
        l = LSUM[qt]
        o += [valu("v_mov_b32", t[qt], l), perm32(t[qt], l), valu("v_add_f32", l, l, t[qt])]
    for qt in range(3):
        l = LSUM[qt]
        o += [valu("v_mov_b32", t[qt], l), perm16(t[qt], l), valu("v_add_f32", l, l, t[qt])]
    m = S_T[5]
    o += [raw(f"s_mov_b64 s[{m}:{m+1}], 0"), valu("v_mov_b32", 11, L_LO), valu("v_mov_b32", 12, L_HI)]
    for qt in range(3):
        o += [I(f"v_cmp_nle_f32 vcc, v11, v{LSUM[qt]}", rd=[11, LSUM[qt]], kind="valu"), raw("s_nop 1"), raw(f"s_or_b64 s[{m}:{m+1}], s[{m}:{m+1}], vcc"),
              I(f"v_cmp_nge_f32 vcc, v12, v{LSUM[qt]}", rd=[12, LSUM[qt]], kind="valu"), raw("s_nop 1"), raw(f"s_or_b64 s[{m}:{m+1}], s[{m}:{m+1}], vcc")]
    o += [raw(f"s_cmp_lg_u64 s[{m}:{m+1}], 0"), raw(f"s_cselect_b32 s{m}, 1, 0"), raw(f"s_andn2_b32 s{m}, s{m}, s{S_FB}"),
          raw(f"s_lshl_b32 s{m+1}, s{S_W}, 2"), raw(f"s_add_u32 s{m+1}, s{m+1}, {FBOFF}"),
          I(f"v_mov_b32 v11, s{m}", wr=[11], kind="valu"), I(f"v_mov_b32 v12, s{m+1}", wr=[12], kind="valu"), dsw32(12, 11)]
    for qt in range(3): o.append(vrcp(t[qt], LSUM[qt]))
    for qt in range(3):
        o.append(raw(f"s_mul_i32 s{S_T[3]}, s{S_B}, 12")); o.append(raw(f"s_mul_i32 s{S_T[4]}, s{S_W}, 3"))
        o.append(raw(f"s_add_u32 s{S_T[3]}, s{S_T[3]}, s{S_T[4]}")); o.append(raw(f"s_add_u32 s{S_T[3]}, s{S_T[3]}, {qt}"))
        o.append(raw(f"s_lshr_b32 s{S_T[4]}, s{S_T[3]}, 3")); o.append(raw(f"s_lshl_b32 s{S_T[4]}, s{S_T[4]}, 20"))
        o.append(raw(f"s_and_b32 s{S_T[3]}, s{S_T[3]}, 7")); o.append(raw(f"s_lshl_b32 s{S_T[3]}, s{S_T[3]}, 10"))
        o.append(raw(f"s_add_u32 s{S_T[qt]}, s{S_T[3]}, s{S_T[4]}"))
    for qt in range(3):
        for c in range(4):
            a = acc(2*c, qt); b = acc(2*c+1, qt)
            for r in range(4):
                o.append(valu("v_mul_f32", a + r, a + r, t[qt])); o.append(valu("v_mul_f32", b + r, b + r, t[qt]))
            o += [cvtpk(a, a, a+1), cvtpk(a+1, a+2, a+3), cvtpk(a+2, b, b+1), cvtpk(a+3, b+2, b+3)]
            o.append(bstore(a, 4, V_L16, SRDO, S_T[qt], flags=opts.get("stflags", "sc1")))
            if c < 3: o.append(raw(f"s_add_u32 s{S_T[qt]}, s{S_T[qt]}, 8192"))
    o += [waitcnt(vm=0, lgkm=0), barrier()]
    o += [valu("v_mov_b32", 12, str(FBOFF)), ds128(160, 12, 0), waitcnt(lgkm=0),
          valu("v_or_b32", 160, 160, 161), valu("v_or_b32", 162, 162, 163), valu("v_or_b32", 160, 160, 162), raw("s_nop 0"),
          raw(f"v_readfirstlane_b32 s{S_T[2]}, v160"), raw("s_nop 3"), raw(f"s_cmp_lg_u32 s{S_T[2]}, 0"), raw(f"s_cbranch_scc1 {name}_fb")]
    t0, t1 = S_T[0], S_T[1]
    o += [raw(f"s_cmp_eq_u32 s{S_W}, 0"), raw(f"s_cbranch_scc0 {name}_nopub"),
          raw(f"v_readfirstlane_b32 s{S_NONCE}, v{V_DUMMY}"), raw("s_nop 3"),
          raw(f"s_cmp_lg_u32 s{S_NONCE}, 0"), raw(f"s_cbranch_scc1 {name}_pn_done"), raw(f"s_mov_b32 s{t0}, 0")]
    o += poll(f"{name}_pn", SRDD, t0, 1, 'ge', V_TCH)
    o += [raw(f"s_mov_b32 s{S_NONCE}, s{S_T[6]}"), label(f"{name}_pn_done"),
          raw(f"s_lshl_b32 s{t0}, s{S_BR}, 3"), raw(f"s_add_u32 s{t0}, s{t0}, s{S_B}"), raw(f"s_mul_i32 s{t0}, s{t0}, 384"),
          raw(f"s_lshl_b32 s{t1}, s{S_H}, 2"), raw(f"s_add_u32 s{t0}, s{t0}, s{t1}"), raw(f"s_add_u32 s{t0}, s{t0}, {FLAGOFF}")]
    A = lambda t: o.append(raw(t))
    srd_build(A, SRDWO, S_PTR+8, t0, 260)
    o += [raw("v_lshlrev_b32 v16, 7, v0", kind="valu", wr=[16]), raw(f"v_mov_b32 v17, s{S_NONCE}", kind="valu", wr=[17]),
          raw("s_mov_b64 exec, 7"),
          raw(f"buffer_store_dword v17, v16, s[{SRDWO}:{SRDWO+3}], 0 offen sc1")]
    if opts.get("linger"):
        o += [raw("s_mov_b64 exec, 1"), raw(f"s_lshl_b32 s{t0}, s{S_ID}, 7"), raw(f"s_add_u32 s{t0}, s{t0}, {FLAGOFF + 131072}")]
        srd_build(A, SRDWO, S_PTR+8, t0, 4)
        o += [raw("v_mov_b32 v16, 0", kind="valu", wr=[16]), raw("s_nop 1"),
              raw(f"buffer_atomic_swap v17, v16, s[{SRDWO}:{SRDWO+3}], 0 offen sc0 sc1"), raw("s_waitcnt vmcnt(0)"),
              raw(f"v_readfirstlane_b32 s{t1}, v17"), raw("s_nop 3"),
              raw(f"s_cmp_eq_u32 s{t1}, s{S_NONCE}"), raw(f"s_cbranch_scc0 {name}_nopub"),
              raw(f"s_mov_b32 s{S_T[5]}, {opts.get('linger_polls', 6)}"), raw(f"s_mov_b32 s{t0}, 128"),
              label(f"{name}_lg"),
              raw(f"buffer_load_dword v17, v16, s[{SRDD}:{SRDD+3}], s{t0} offen sc1"), raw("s_waitcnt vmcnt(0)"),
              raw(f"v_readfirstlane_b32 s{t1}, v17"),
              raw(f"s_sub_u32 s{S_T[5]}, s{S_T[5]}, 1"), raw(f"s_cbranch_scc1 {name}_nopub"), raw("s_nop 2"),
              raw(f"s_cmp_ge_u32 s{t1}, 240"), raw(f"s_cbranch_scc1 {name}_nopub"),
              raw(f"s_sleep {opts.get('linger_sleep', 96)}"), raw(f"s_branch {name}_lg")]
    o += [label(f"{name}_nopub")]
    return o

def head_fallback(name):
    MX = [246, 247, 248]; NM = [184, 188, 192]; TT = 249
    def reset_off():
        return [raw(f"s_lshl_b32 s{S_O[0]}, s{S_W}, 10"), raw(f"s_add_u32 s{S_O[1]}, s{S_O[0]}, 4096"),
                raw(f"s_mov_b32 s{S_O[2]}, s{S_O[0]}"), raw(f"s_mov_b32 s{S_O[3]}, s{S_O[1]}"), raw(f"s_mov_b32 s{S_CNT}, 16")]
    def load(js):
        o = [barrier()]
        for j in js:
            o += [m0set(S_L[j], 0), nop(0), dma(V_L16, SRDK if j < 2 else SRDV, S_O[j]), salu(f"s_add_u32 s{S_O[j]}, s{S_O[j]}, 8192")]
        return o + [waitcnt(vm=0), barrier()]
    def qk(cinit):
        o = []
        for Tk in range(2):
            for c in range(4): o.append(k_read(0, Tk*4 + c))
            for c in range(4):
                for qt in range(3):
                    s = sreg(0, Tk, qt)
                    o.append(mfma16(s, KF + 4*c, qf(qt, c), cinit[qt] if c == 0 else s))
        return o
    pre = [label(f"{name}_fb")] + [valu("v_mov_b32", r, "0xff800000") for r in MX] + reset_off()
    b1 = [label(f"{name}_fb1")] + load([0, 1]) + qk([None]*3)
    for qt in range(3):
        for Tk in range(2):
            s = sreg(0, Tk, qt)
            b1 += [valu("v_max3_f32", MX[qt], MX[qt], s, s+1), valu("v_max3_f32", MX[qt], MX[qt], s+2, s+3)]
    b1 += [waitcnt(lgkm=0), raw(f"s_sub_u32 s{S_CNT}, s{S_CNT}, 1"), raw(f"s_cmp_lg_u32 s{S_CNT}, 0"), raw(f"s_cbranch_scc1 {name}_fb1")]
    mid = []
    for qt in range(3):
        mid += [valu("v_mov_b32", TT, MX[qt]), perm32(TT, MX[qt]), valu("v_max_f32", MX[qt], MX[qt], TT),
                valu("v_mov_b32", TT, MX[qt]), perm16(TT, MX[qt]), valu("v_max_f32", MX[qt], MX[qt], TT)]
        for i in range(4): mid.append(I(f"v_sub_f32 v{NM[qt]+i}, 0, v{MX[qt]}", rd=[MX[qt]], wr=[NM[qt]+i], kind="valu"))
    for i in range(96): mid.append(valu("v_mov_b32", ACC + i, "0"))
    for r in LSUM: mid.append(valu("v_mov_b32", r, "0"))
    mid += reset_off()
    b2 = [label(f"{name}_fb2")] + load([0, 1, 2, 3]) + qk(NM)
    for part in range(2):
        for qt in range(3):
            s = sreg(0, part, qt); p = preg(0, part, qt)
            b2 += [vexp(s+i, s+i) for i in range(4)] + [valu("v_add_f32", LSUM[qt], LSUM[qt], s+i) for i in range(4)] + [cvtpk(p, s, s+1), cvtpk(p+1, s+2, s+3)]
    for half in range(2):
        for T in range(4*half, 4*half + 4): b2 += v_read(0, T)
        for T in range(4*half, 4*half + 4):
            for qt in range(3): b2.append(mfma16(acc(T, qt), VF + 4*(T % 4), pop(0, qt), acc(T, qt)))
    b2 += [waitcnt(lgkm=0), raw(f"s_sub_u32 s{S_CNT}, s{S_CNT}, 1"), raw(f"s_cmp_lg_u32 s{S_CNT}, 0"), raw(f"s_cbranch_scc1 {name}_fb2")]
    post = [nop(15), raw(f"s_mov_b32 s{S_FB}, 1"), raw(f"s_branch {name}_e0")]
    p1, l1, st = resolve_loop([nop(15)] + pre, b1)
    p2, l2, st = resolve_loop(mid, b2, st)
    po, _ = resolve(post, st)
    return p1 + l1 + p2 + l2 + po

V_HOLD = 253
SRDH = 24
SRDH = 100 - 4
def hold_setup(name, opts, A, P):
    t0 = S_T[0]
    A(f"s_lshl_b32 s{t0}, s{S_ID}, 7"); A(f"s_add_u32 s{t0}, s{t0}, {FLAGOFF + 65536}")
    srd_build(A, SRDH, S_PTR+8, t0, 4)
    P.append(valu("v_mov_b32", V_TCH, "0"))
    A(f"buffer_load_dword v{V_HOLD}, v{V_TCH}, s[{SRDH}:{SRDH+3}], 0 offen sc1")
def hold_wait(name, opts):
    o = []
    A = lambda t: o.append(raw(t))
    A(f"s_cmp_eq_u32 s{S_BR}, 0"); A(f"s_cbranch_scc1 {name}_hw_end")
    A(f"s_cmp_eq_u32 s{S_W}, 0"); A(f"s_cbranch_scc0 {name}_hw_done")
    A("s_waitcnt vmcnt(0)"); A(f"v_readfirstlane_b32 s{S_T[4]}, v{V_HOLD}"); A(f"s_mov_b32 s{S_T[5]}, {opts.get('hold_polls', 24)}")
    o.append(label(f"{name}_hw"))
    A(f"buffer_load_dword v{V_HOLD}, v{V_TCH}, s[{SRDH}:{SRDH+3}], 0 offen sc1"); A("s_waitcnt vmcnt(0)")
    A(f"v_readfirstlane_b32 s{S_T[6]}, v{V_HOLD}")
    A(f"s_sub_u32 s{S_T[5]}, s{S_T[5]}, 1"); A(f"s_cbranch_scc1 {name}_hw_done"); A("s_nop 2")
    A(f"s_cmp_lg_u32 s{S_T[6]}, s{S_T[4]}"); A(f"s_cbranch_scc1 {name}_hw_done")
    A(f"s_sleep {opts.get('hold_sleep', 8)}"); A(f"s_branch {name}_hw")
    o.append(label(f"{name}_hw_done")); o.append(barrier()); o.append(label(f"{name}_hw_end"))
    return o
def hold_release(name):
    return [raw(f"s_or_b32 s{S_T[0]}, s{S_BR}, s{S_W}"), raw(f"s_cmp_eq_u32 s{S_T[0]}, 0"), raw(f"s_cbranch_scc0 {name}_hr"),
            raw(f"v_add_u32 v{V_HOLD}, 1, v{V_HOLD}", kind="valu", rd=[V_HOLD], wr=[V_HOLD]), raw(f"v_mov_b32 v{V_TCH}, 0", kind="valu", wr=[V_TCH]),
            raw("s_mov_b64 exec, 1"),
            raw(f"buffer_store_dword v{V_HOLD}, v{V_TCH}, s[{SRDH}:{SRDH+3}], 0 offen sc1"),
            raw("s_mov_b64 exec, -1"), raw("s_nop 1"), label(f"{name}_hr")]

WOT = "sc"
def wo_touch():
    if WOT == "sc":
        return [valu("v_lshlrev_b32", V_TCH, "7", 0), raw(f"s_lshl_b32 s{S_T[0]}, s{S_W}, 13"), bload(V_DUMMY, 1, V_TCH, SRDWO, S_T[0])]
    o = [nop(0), raw(f"s_mul_i32 s{S_T[0]}, s{S_W}, 5120")]
    o += [bload(V_DUMMY, 1, V_L16, SRDWO, S_T[0], off=j*1024 if j < 4 else 0) for j in range(4)]
    o += [raw(f"s_add_u32 s{S_T[0]}, s{S_T[0]}, 4096"), bload(V_DUMMY, 1, V_L16, SRDWO, S_T[0])]
    return o

def att_prio(name, opts):
    pa, pb = opts.get('prioAttA', opts.get('prioAtt', 0)), opts.get('prioAttB', opts.get('prioAtt', 0))
    if pa == pb: return [raw(f"s_setprio {pa}")]
    return [raw(f"s_cmp_eq_u32 s{S_HALF}, 0"), raw(f"s_cbranch_scc0 {name}_apb"), raw(f"s_setprio {pa}"), raw(f"s_branch {name}_apd"),
            label(f"{name}_apb"), raw(f"s_setprio {pb}"), label(f"{name}_apd")]

def build_head(name, opts, ST):
    global POL, KVROT, ATTVM, XO, LMF, QRD, BAR2, WOT, SPLITB
    SPLITB = opts.get('splitb', 0)
    WOT = opts.get('wot', 'sc')
    BAR2 = opts.get('bar2', False)
    QRD = opts.get('qrd', 19)
    LMF = opts.get('lmfma', False)
    XO = opts.get('x', {})
    ATTVM = opts.get('att_vm', 8)
    POL = opts.get("polite"); KVROT = opts.get("kvrot", True)
    kvflags = opts.get("kvflags", "nt")
    pro = head_prologue(name, opts) + ST(1) + [raw(f"s_mov_b32 s{S_CNT}, 4")]
    qb = [label(f"{name}_qloop")]
    for p in range(2): qb += q_iter(p, 'Q')
    qb += [raw(f"s_sub_u32 s{S_CNT}, s{S_CNT}, 1"), raw(f"s_cmp_lg_u32 s{S_CNT}, 0"), raw(f"s_cbranch_scc1 {name}_qloop")]
    pro2, qb2, st = resolve_loop(pro, qb)
    last = ST(2)
    if opts.get("hold", True):
        if opts.get("hold_at", "q") == "q": last += hold_release(name)
    if opts.get("touch_wo", True) and opts.get("wo_pos") == "q8": last += wo_touch()
    last += q_switch() + q_iter(0, 'K0', kvflags) + q_iter(1, 'K1', kvflags)
    last2, st = resolve(last, st)
    wot = wo_touch() if opts.get("touch_wo", True) and opts.get("wo_pos", "mid") == "mid" else []
    mid = [waitcnt(lgkm=0)] + ST(3) + wot + att_prio(name, opts) + q_convert() + att_prologue(kvflags) + [raw(f"s_mov_b32 s{S_CNT}, 4")]
    body = [label(f"{name}_aloop")]
    for u in range(3): body += h0(u) + h1(u, kvflags)
    body += [raw(f"s_cmp_eq_u32 s{S_CNT}, 1"), raw(f"s_cbranch_scc1 {name}_tail")]
    body += h0(3) + h1(3, kvflags)
    body += [raw(f"s_sub_u32 s{S_CNT}, s{S_CNT}, 1"), raw(f"s_branch {name}_aloop")]
    mid2, st1 = resolve(mid, st)
    _, body2, _ = resolve_loop([], body, st1)
    idx = [i for i, x in enumerate(body2) if x.txt.startswith(f"s_cbranch_scc1 {name}_tail")][0]
    _, sA = resolve(body2, st1.copy(), insert=False)
    _, sB = resolve(body2[:idx+1], sA.copy(), insert=False)
    tail = [label(f"{name}_tail")] + h0(3, tail=True) + h1(3, kvflags, tail=True) + ([] if opts.get("pstamp") else ST(4)) + (wo_touch() if opts.get("touch_wo", True) and opts.get("wo_pos") == "epi" else []) + head_epilogue(name, opts)
    tail2, _ = resolve(tail, sB)
    return pro2 + qb2 + last2 + mid2 + body2 + tail2

WSLOT = 4224; NR = 3
OACC = 16
OBF = 144
OAF = 240
O_OFFO, O_OFFW, O_AW, O_FL, O_PV = [1, 2], 3, 4, 5, 6
OG, OM, ORR, OC = 7, 8, 9, 10
OS_OO = 32; OS_OW = [33, 34, 35, 36]; OS_L = 37
OSRDO, OSRDW, OSRDOUT, OSRDF = 12, 16, 20, 24
OS_OFF, OS_WO0, OS_OO0 = 8, 40, 41
OS_AV, OS_ISS, OS_ROT = 38, 39, 9
OS_A2 = 46
OS_WB = 10
def oacc(rt, Tc): return OACC + (rt * 4 + Tc) * 4
_sel = [0]
def o_select(name, opts):
    _sel[0] += 1
    L = f"{name}_s{_sel[0]}"
    t0, t1 = S_T[0], S_T[1]
    return [raw(f"s_cmp_lg_u32 s{OS_AV}, 0"), raw(f"s_cbranch_scc1 {L}_have"),
         raw(f"s_mov_b32 s{t0}, 32"), raw(f"s_cmp_eq_u32 s{OS_ISS}, -1"), raw(f"s_cbranch_scc1 {L}_addr"),
         raw(f"s_mov_b32 s{S_T[5]}, 200000"),
         label(f"{L}_poll"),
         raw(f"buffer_load_dword v{O_PV}, v{O_FL}, s[{OSRDF}:{OSRDF+3}], 0 offen sc1")] + ([
         raw(f"buffer_load_dword v11, v{O_FL}, s[{OSRDF}:{OSRDF+3}], s{OS_WB} offen sc1"), raw("s_waitcnt vmcnt(0)"),
         raw(f"v_cmp_eq_u32 s[{OS_A2}:{OS_A2+1}], s{S_NONCE}, v11"),
         raw(f"v_cmp_eq_u32 vcc, s{S_NONCE}, v{O_PV}"), raw("s_nop 3"), raw(f"s_and_b64 vcc, vcc, s[{OS_A2}:{OS_A2+1}]")] if opts.get("waitB") else [raw("s_waitcnt vmcnt(0)"),
         raw(f"v_cmp_eq_u32 vcc, s{S_NONCE}, v{O_PV}")]) + [
         raw(f"s_sub_u32 s{S_T[5]}, s{S_T[5]}, 1"), raw(f"s_cselect_b32 s{t1}, -1, 0"), raw("s_nop 2"),
         raw(f"s_and_b32 s{t0}, vcc_lo, vcc_hi"),
         raw(f"s_or_b32 s{t1}, s{t1}, s{t0}"), raw(f"s_andn2_b32 s{OS_AV}, s{t1}, s{OS_ISS}"),
         raw(f"s_cbranch_scc1 {L}_have"), raw(f"s_sleep {opts.get('sleep', 8)}"), raw(f"s_branch {L}_poll"),
         label(f"{L}_have"),
         raw(f"s_mov_b32 s{OS_A2}, s{OS_AV}"), raw(f"s_mov_b32 s{OS_A2+1}, s{OS_AV}"),
         raw(f"s_lshr_b64 s[{OS_A2}:{OS_A2+1}], s[{OS_A2}:{OS_A2+1}], s{OS_ROT}"),
         raw(f"s_ff1_i32_b32 s{t0}, s{OS_A2}"), raw(f"s_add_u32 s{t0}, s{t0}, s{OS_ROT}"), raw(f"s_and_b32 s{t0}, s{t0}, 31"),
         raw(f"s_lshl_b32 s{t1}, 1, s{t0}"), raw(f"s_or_b32 s{OS_ISS}, s{OS_ISS}, s{t1}"), raw(f"s_andn2_b32 s{OS_AV}, s{OS_AV}, s{t1}"),
         label(f"{L}_addr"),
         raw(f"s_lshl_b32 s{t1}, s{t0}, 15"), raw(f"s_add_u32 s{OS_OO}, s{OS_OO0}, s{t1}"),
         raw(f"s_mul_i32 s{t1}, s{t0}, {128*1280}"), raw(f"s_add_u32 s{OS_OW[0]}, s{OS_WO0}, s{t1}"),
         raw(f"s_add_u32 s{OS_OW[1]}, s{OS_OW[0]}, 1280"), raw(f"s_add_u32 s{OS_OW[2]}, s{OS_OW[0]}, 2560"), raw(f"s_add_u32 s{OS_OW[3]}, s{OS_OW[0]}, 3840")]
OFL = 'sc1'
def o_loads(u):
    o = []
    for j in range(8): o.append([bload(OBF + 32*u + 4*j, 4, O_OFFO[j//4], OSRDO, OS_OO, off=(j%4)*1024, flags=OFL)])
    for b in range(4): o.append([m0set(OS_L, u * WSLOT + b * 1056), dma(O_OFFW, OSRDW, OS_OW[b])])
    return o
def o_aread(u, Tc):
    off = u * WSLOT + Tc * 32
    return [dstr(OAF + 4*Tc, O_AW, off), dstr(OAF + 4*Tc + 2, O_AW, off + 512)]

def build_oproj(name, opts, ST):
    global OFL
    OFL = opts.get('oflags', 'sc1')
    P = []
    A = lambda t, **k: P.append(raw(t, **k))
    t0, t1, t2 = S_T[0], S_T[1], S_T[2]
    if opts.get("prioT"): A(f"s_setprio {opts['prioT']}")
    A(f"s_sub_u32 s{S_ID}, s2, 512")
    if opts.get("omap", "xcd") == "xcd":
        A(f"s_and_b32 s3, s{S_ID}, 7"); A(f"s_lshr_b32 s{S_BR}, s3, 2"); A(f"s_lshr_b32 s{OS_OFF}, s{S_ID}, 3")
        A(f"s_mul_i32 s{t1}, s{OS_OFF}, 6554"); A(f"s_lshr_b32 s{t1}, s{t1}, 16")
        A(f"s_and_b32 s{t2}, s3, 3"); A(f"s_mul_i32 s{t2}, s{t2}, 3"); A(f"s_add_u32 s6, s{t2}, s{t1}")
        A(f"s_mul_i32 s{t1}, s{t1}, 10"); A(f"s_sub_u32 s7, s{OS_OFF}, s{t1}")
    else:
        A(f"s_cmp_ge_u32 s{S_ID}, 120"); A(f"s_cselect_b32 s{S_BR}, 1, 0")
        A(f"s_mul_i32 s{t0}, s{S_BR}, 120"); A(f"s_sub_u32 s{S_ID}, s{S_ID}, s{t0}")
        A(f"s_and_b32 s3, s{S_ID}, 7"); A(f"s_lshr_b32 s{OS_OFF}, s{S_ID}, 3")
        A(f"s_mul_i32 s{t1}, s{OS_OFF}, 13108"); A(f"s_lshr_b32 s{t1}, s{t1}, 16")
        A(f"s_lshr_b32 s{t2}, s3, 1"); A(f"s_mul_i32 s{t2}, s{t2}, 3"); A(f"s_add_u32 s6, s{t2}, s{t1}")
        A(f"s_mul_i32 s{t1}, s{t1}, 5"); A(f"s_sub_u32 s7, s{OS_OFF}, s{t1}"); A(f"s_and_b32 s{t2}, s3, 1"); A(f"s_mul_i32 s{t2}, s{t2}, 5"); A(f"s_add_u32 s7, s7, s{t2}")
    A(f"s_mul_i32 s3, s{S_BR}, 40"); A("s_add_u32 s3, s3, 32")
    A(f"s_load_dwordx2 s[{S_PTR}:{S_PTR+1}], s[0:1], s3")
    A(f"s_load_dwordx4 s[{S_PTR+4}:{S_PTR+7}], s[0:1], 80")
    A(f"s_load_dwordx2 s[{S_PTR+8}:{S_PTR+9}], s[0:1], 96")
    P.append(valu("v_lshrrev_b32", OG, "6", 0)); P.append(valu("v_and_b32", 0, "63", 0))
    A("s_nop 0"); A(f"v_readfirstlane_b32 s{S_W}, v{OG}")
    P.append(valu("v_lshrrev_b32", OG, "4", 0)); P.append(valu("v_and_b32", OM, "15", 0))
    P.append(valu("v_bfe_u32", ORR, 0, "2", "2")); P.append(valu("v_and_b32", OC, "3", 0))
    P.append(valu("v_lshlrev_b32", O_OFFO[0], "4", 0)); P.append(valu("v_add_u32", O_OFFO[1], "4096", O_OFFO[0]))
    P.append(valu("v_lshrrev_b32", 16, "3", 0)); P.append(valu("v_mul_u32_u24", 16, "5120", 16))
    P.append(valu("v_and_b32", 17, "7", 0)); P.append(valu("v_lshl_add_u32", O_OFFW, 17, "4", 16))
    A(f"s_mul_i32 s{OS_L}, s{S_W}, {NR*WSLOT}")
    P.append(valu("v_mul_u32_u24", 16, "1056", ORR)); P.append(valu("v_lshl_add_u32", 16, OG, "7", 16)); P.append(valu("v_lshl_add_u32", 16, OC, "3", 16))
    P.append(valu("v_add_u32", O_AW, f"s{OS_L}", 16))
    A(f"s_lshl_b32 s{OS_OO0}, s{S_W}, 13"); A(f"s_mul_i32 s{OS_WO0}, s{S_W}, {32*1280}")
    A("s_waitcnt lgkmcnt(0)")
    A(f"s_mul_i32 s{t0}, s{S_BR}, 12"); A(f"s_add_u32 s{t0}, s{t0}, s6"); A(f"s_lshl_b32 s{t0}, s{t0}, 20")
    srd_build(A, OSRDO, S_PTR+8, t0, 0 if opts.get('no_o') else 1048576)
    A(f"s_lshl_b32 s{t0}, s7, 7"); srd_build(A, OSRDW, S_PTR, t0, 0 if opts.get('no_w') else 4096*1280 - 9*128)
    A(f"s_mul_i32 s{t0}, s6, {128*2560}"); A(f"s_mul_i32 s{t1}, s{S_BR}, 1280"); A(f"s_add_u32 s{t0}, s{t0}, s{t1}")
    A(f"s_lshl_b32 s{t1}, s7, 7"); A(f"s_add_u32 s{t0}, s{t0}, s{t1}")
    srd_build(A, OSRDOUT, S_PTR+4, t0, 127*2560 + 128)
    srd_build(A, SRDD, S_PTR+6, None, 256)
    if opts.get("linger"):
        A(f"s_cmp_eq_u32 s{S_W}, 0"); A(f"s_cbranch_scc0 {name}_nocnt")
        P.append(valu("v_mov_b32", 16, "128")); P.append(valu("v_mov_b32", 17, "1"))
        A("s_mov_b64 exec, 1"); A(f"buffer_atomic_add v17, v16, s[{SRDD}:{SRDD+3}], 0 offen sc1"); A("s_mov_b64 exec, -1")
        P.append(label(f"{name}_nocnt"))
    A(f"s_mov_b32 s{t0}, 0")
    A(f"s_cmp_eq_u32 s{S_W}, 0"); A(f"s_cbranch_scc0 {name}_nw")
    P.extend(poll(f"{name}_pn", SRDD, t0, 1, 'ge', O_FL, sleep=8))
    P.append(I(f"v_mov_b32 v{O_PV}, s{S_T[6]}", wr=[O_PV], kind="valu")); P.append(valu("v_mov_b32", O_FL, str(FBOFF)))
    P.append(dsw32(O_FL, O_PV)); P.append(waitcnt(lgkm=0))
    P.append(label(f"{name}_nw"))
    P.append(barrier())
    P.append(valu("v_mov_b32", O_FL, str(FBOFF))); P.append(dsr32(O_PV, O_FL)); P.append(waitcnt(lgkm=0))
    A(f"v_readfirstlane_b32 s{S_NONCE}, v{O_PV}"); A("s_nop 3")
    A(f"s_mul_i32 s{t0}, s6, 43691"); A(f"s_lshr_b32 s{t0}, s{t0}, 16")
    A(f"s_lshl_b32 s{t1}, s6, 7"); A(f"s_add_u32 s{t1}, s{t1}, 127"); A(f"s_mul_i32 s{t1}, s{t1}, 21846"); A(f"s_lshr_b32 s{t1}, s{t1}, 22")
    A(f"s_sub_u32 s{t1}, s{t1}, s{t0}"); A(f"s_mul_i32 s{t1}, s{t1}, 384")
    A(f"s_lshl_b32 s{t2}, s{S_BR}, 3"); A(f"s_add_u32 s{t0}, s{t0}, s{t2}"); A(f"s_mul_i32 s{t0}, s{t0}, 384")
    A(f"s_mul_i32 s{t2}, s7, 21846"); A(f"s_lshr_b32 s{t2}, s{t2}, 16"); A(f"s_mul_i32 s{t2}, s{t2}, 3"); A(f"s_sub_u32 s{t2}, s7, s{t2}")
    A(f"s_lshl_b32 s{t2}, s{t2}, 7"); A(f"s_add_u32 s{t0}, s{t0}, s{t2}"); A(f"s_add_u32 s{t0}, s{t0}, {FLAGOFF}")
    srd_build(A, OSRDF, S_PTR+8, t0, 512 + (8*384 if opts.get("waitB") else 0))
    A(f"s_cmp_eq_u32 s{S_BR}, 0"); A(f"s_cselect_b32 s{OS_WB}, {8*384}, 0")
    P.append(valu("v_and_b32", O_FL, "31", 0)); P.append(valu("v_lshlrev_b32", O_FL, "2", O_FL))
    P.append(valu("v_lshrrev_b32", 16, "5", 0)); P.append(valu("v_mul_lo_u32", 16, f"s{t1}", 16)); P.append(valu("v_add_u32", O_FL, O_FL, 16))
    A(f"s_mov_b32 s{OS_AV}, 0"); A(f"s_mov_b32 s{OS_ISS}, 0")
    if opts.get("trot"):
        A(f"s_memrealtime s[{OS_A2}:{OS_A2+1}]"); A("s_waitcnt lgkmcnt(0)")
        A(f"s_sub_u32 s{t0}, s{OS_A2}, s{S_NONCE}"); A(f"s_mul_i32 s{t0}, s{t0}, {65536 // opts['trot']}"); A(f"s_lshr_b32 s{t0}, s{t0}, 16")
        A(f"s_and_b32 s{t1}, s{OS_OFF}, {opts.get('rotmask', 3)}"); A(f"s_add_u32 s{t0}, s{t0}, s{t1}"); A(f"s_and_b32 s{OS_ROT}, s{t0}, 31")
    else:
        A(f"s_and_b32 s{OS_ROT}, s{OS_OFF}, {opts.get('rotmask', 7)}")
    for i in range(128): P.append(valu("v_mov_b32", OACC + i, "0"))
    P.extend(ST(1))
    for u in range(2):
        P.extend(o_select(name, opts))
        for grp in o_loads(u): P.extend(grp if len(grp) == 1 else [grp[0], nop(0)] + grp[1:])
    P.append(waitcnt(vm=12))
    for Tc in range(4): P.extend(o_aread(0, Tc))
    A(f"s_mov_b32 s{S_CNT}, 10")
    body = [label(f"{name}_loop")]
    for u in range(3):
        mf = [mfma16(oacc(rt, Tc), OAF + 4*Tc, OBF + 32*u + 4*rt, oacc(rt, Tc)) for Tc in range(4) for rt in range(8)]
        slots = [[] for _ in mf]
        slots[0] += o_select(name, opts)
        nbefore = 0
        for j, grp in enumerate(o_loads((u + 2) % 3)):
            k = 1 + (j * opts.get('ospread', 22)) // 12
            if len(grp) == 1:
                slots[k] += grp; ki = k
            else:
                slots[k].append(grp[0]); slots[k+1] += grp[1:]; ki = k + 1
            if ki < 24: nbefore += 1
        slots[24].insert(0, waitcnt(vm=nbefore))
        n = (u + 1) % 3
        slots[24] += o_aread(n, 0); slots[25] += o_aread(n, 1); slots[26] += o_aread(n, 2); slots[31] += o_aread(n, 3)
        body += emit(mf, slots)
    if opts.get("ostamp"):
        for cnt, idx in ((8, 2), (4, 3)):
            body += [raw(f"s_cmp_eq_u32 s{S_CNT}, {cnt}"), raw(f"s_cbranch_scc0 {name}_os{idx}")] + ST(idx) + [label(f"{name}_os{idx}")]
    body += [raw(f"s_sub_u32 s{S_CNT}, s{S_CNT}, 1"), raw(f"s_cmp_lg_u32 s{S_CNT}, 0"), raw(f"s_cbranch_scc1 {name}_loop")]
    P2, body2, st = resolve_loop(P, body)
    E = []
    A = lambda t, **k: E.append(raw(t, **k))
    for u in range(2):
        mf = [mfma16(oacc(rt, Tc), OAF + 4*Tc, OBF + 32*u + 4*rt, oacc(rt, Tc)) for Tc in range(4) for rt in range(8)]
        slots = [[] for _ in mf]
        if u == 0:
            slots[24].append(waitcnt(vm=0))
            slots[24] += o_aread(1, 0); slots[25] += o_aread(1, 1); slots[26] += o_aread(1, 2); slots[31] += o_aread(1, 3)
        E += emit(mf, slots)
    E.extend(ST(4 if opts.get("ostamp") else 2))
    E.append(valu("v_lshlrev_b32", 11, "4", 0))
    A(f"s_lshl_b32 s{t0}, s{S_W}, 14"); E.append(valu("v_add_u32", 12, f"s{t0}", 11))
    A(f"s_lshl_b32 s{t0}, s{S_W}, 12"); E.append(valu("v_add_u32", 13, f"s{t0}", 11))
    E.append(valu("v_and_b32", 14, "1", OG)); E.append(valu("v_lshlrev_b32", 14, "1", 14)); E.append(valu("v_lshrrev_b32", 15, "1", OG))
    E.append(valu("v_or_b32", 14, 14, 15)); E.append(valu("v_lshlrev_b32", 14, "4", 14))
    E.append(valu("v_mul_u32_u24", 15, "2560", OM)); E.append(valu("v_add_u32", 14, 14, 15))
    A(f"s_mul_i32 s{t0}, s{S_W}, {16*2560}"); A(f"s_add_u32 s{t1}, s{t0}, {64*2560}")
    E.append(waitcnt(vm=0, lgkm=0)); E.append(barrier())
    def wr(r): return [dsw128(12, OACC + (16*r + tl)*4, tl*1024) for tl in range(16)]
    def rd(base): return [ds128(base + (p*4 + t)*4, 13, p*16384 + t*1024) for t in range(4) for p in range(4)]
    def fin(r, base):
        o = []
        for pr in range(2):
            for h in range(2):
                t = 2*pr + h
                for i in range(4):
                    a = base + t*4 + i
                    o.append(valu("v_add_f32", a, a, a + 16)); o.append(valu("v_add_f32", a + 32, a + 32, a + 48))
                for i in range(4):
                    a = base + t*4 + i
                    o.append(valu("v_add_f32", a, a, a + 32))
            a = base + 2*pr*4; b = a + 4; q = 240 + (r*2 + pr)*4
            o += [cvtpk(q, a, a+1), cvtpk(q+1, a+2, a+3), cvtpk(q+2, b, b+1), cvtpk(q+3, b+2, b+3), perm16(q, q+2), perm16(q+1, q+3)]
            o.append(bstore(q, 4, 14, OSRDOUT, t0 if r == 0 else t1, off=pr*64, flags=opts.get('outflags', '')))
        return o
    E += wr(0) + [waitcnt(lgkm=0), barrier()] + rd(144) + [waitcnt(lgkm=0), barrier()] + wr(1) + fin(0, 144)
    E += [waitcnt(lgkm=0), barrier()] + rd(16) + fin(1, 16)
    E2, _ = resolve(E, st)
    return P2 + body2 + E2

def build(name, stamps=False, **opts):
    ST = (lambda i, real=False: stamp(i, real)) if stamps else (lambda i, real=False: [])
    out = [label(name)] + ST(0) + ST(6, True)
    out += [raw("s_cmp_ge_u32 s2, 752"), raw(f"s_cbranch_scc1 {name}_end"), raw("s_cmp_ge_u32 s2, 512"), raw(f"s_cbranch_scc1 {name}_oproj")]
    if opts.get("skip_heads") == "holdB":
        out += [raw("s_cmp_lt_u32 s2, 256"), raw(f"s_cbranch_scc1 {name}_end"), raw("s_mov_b32 s4, 40"), label(f"{name}_hb"), raw("s_sleep 32"),
                raw("s_sub_u32 s4, s4, 1"), raw("s_cmp_lg_u32 s4, 0"), raw(f"s_cbranch_scc1 {name}_hb"), raw("s_endpgm")]
    elif opts.get("skip_heads"): out += [raw("s_endpgm")]
    fin_h = []; fin_o = []
    if stamps:
        fin_h = [waitcnt(vm=0), raw("s_mov_b64 exec, -1")] + ([] if opts.get("pstamp") else ST(5)) + ST(7, True) + stamp_dump(8, S_PTR+8, S_W, 64<<20, 16, nwaves_shift=2)
        fin_o = [waitcnt(vm=0)] + ([] if opts.get("ostamp") else ST(3) + ST(4)) + ST(5) + ST(7, True) + stamp_dump(8, S_PTR+8, S_W, 64<<20, 16, nwaves_shift=2)
    out += build_head(name + "_h", opts, ST) + fin_h + [raw("s_endpgm")] + head_fallback(name + "_h")
    out += [label(f"{name}_oproj")] + build_oproj(name + "_o", opts, ST) + fin_o
    out += [label(f"{name}_end"), raw("s_endpgm")]
    return out
```
